```python
import torch

def _softmax(x, axis=-1):
    return torch.softmax(x, dim=axis)
def _gelu(x):
    return torch.nn.functional.gelu(x, approximate="tanh")
def _silu(x):
    return torch.nn.functional.silu(x)
def _sigmoid(x):
    return torch.sigmoid(x)
def _layernorm(x, axis=-1, eps=1e-5):
    m = x.mean(dim=axis, keepdim=True)
    v = x.var(dim=axis, keepdim=True, unbiased=False)
    return (x - m) / torch.sqrt(v + eps)
def _scatter_add(tgt, idx, src, axis=0):
    return tgt.clone().index_add_(axis, idx, src)
def _segment_sum(src, seg, n):
    out = torch.zeros((n,) + src.shape[1:], dtype=src.dtype)
    return out.index_add_(0, seg, src)
def _pad(x, pw):
    flat = tuple(v for pair in reversed(pw) for v in pair)
    return torch.nn.functional.pad(x, flat)

kernel_name = 'concat_heads__ssm_conv_h3__ssm_conv_s5__prompt'

def setup_inputs():

    _w = (lambda a: (lambda t: t.to(torch.bfloat16) if t.is_floating_point() else t)(torch.as_tensor(a)))
    def _A_setup():
        B, S, D = 1, 2048, 1024
        ks = 4
        return {
            "q": _w((lambda *s: torch.randn(*s, dtype=torch.bfloat16) * 0.05)(B, S, D)),
            "k": _w((lambda *s: torch.randn(*s, dtype=torch.bfloat16) * 0.2)(B, S, D)),
            "v": _w((lambda *s: torch.randn(*s, dtype=torch.bfloat16) * 0.2)(B, S, D)),
            "shift_k": _w((lambda *s: torch.randn(*s, dtype=torch.bfloat16) * 0.2)(D, ks) * 0.5),
            "ssm_k": _w((lambda *s: torch.randn(*s, dtype=torch.bfloat16) * 0.8)(D, S) * (1.0 / S ** 0.5)),
            "ssm_D": _w((lambda *s: torch.randn(*s, dtype=torch.bfloat16) * 0.2)(D)),
        }
    _A_in = _A_setup()

    def _B_setup():
        B, S, D = 1, 2048, 1024
        P = D
        Lambda_re = -0.5 * (lambda _x: torch.exp(torch.as_tensor(_x)))((lambda *s: torch.randn(*s, dtype=torch.bfloat16) * 0.2)(P))
        Lambda_im = (lambda *s: torch.randn(*s, dtype=torch.bfloat16) * 0.4)(P) * 1.0
        B_re = (lambda *s: torch.randn(*s, dtype=torch.bfloat16) * 0.2)(P, D) * (D ** -0.5)
        B_im = (lambda *s: torch.randn(*s, dtype=torch.bfloat16) * 0.2)(P, D) * (D ** -0.5)
        C_re = (lambda *s: torch.randn(*s, dtype=torch.bfloat16) * 0.2)(D, P) * (P ** -0.5)
        C_im = (lambda *s: torch.randn(*s, dtype=torch.bfloat16) * 0.2)(D, P) * (P ** -0.5)
        log_dt = (lambda *s: torch.randn(*s, dtype=torch.bfloat16) * 0.2)(P) * 0.3 - 2.0
        Dskip = (lambda *s: torch.randn(*s, dtype=torch.bfloat16) * 0.05)(D)
        return {
            "x": _w((lambda *s: torch.randn(*s, dtype=torch.bfloat16) * 0.05)(B, S, D)),
            "Lambda_re": _w(Lambda_re),
            "Lambda_im": _w(Lambda_im),
            "B_re": _w(B_re),
            "B_im": _w(B_im),
            "C_re": _w(C_re),
            "C_im": _w(C_im),
            "log_dt": _w(log_dt),
            "Dskip": _w(Dskip),
        }
    _B_in = _B_setup()

    return {
        "A_q": _A_in["q"],
        "A_k": _A_in["k"],
        "A_v": _A_in["v"],
        "A_shift_k": _A_in["shift_k"],
        "A_ssm_k": _A_in["ssm_k"],
        "A_ssm_D": _A_in["ssm_D"],
        "B_x": _B_in["x"],
        "B_Lambda_re": _B_in["Lambda_re"],
        "B_Lambda_im": _B_in["Lambda_im"],
        "B_B_re": _B_in["B_re"],
        "B_B_im": _B_in["B_im"],
        "B_C_re": _B_in["C_re"],
        "B_C_im": _B_in["C_im"],
        "B_log_dt": _B_in["log_dt"],
        "B_Dskip": _B_in["Dskip"],
    }

def reference(A_q, A_k, A_v, A_shift_k, A_ssm_k, A_ssm_D, B_x, B_Lambda_re, B_Lambda_im, B_B_re, B_B_im, B_C_re, B_C_im, B_log_dt, B_Dskip):
    def _A_ref(q, k, v, shift_k, ssm_k, ssm_D):
        B, S, D = q.shape
        ks = shift_k.shape[-1]
        k_pad = _pad(k, ((0, 0), (ks - 1, 0), (0, 0)))
        k_shift = torch.zeros_like(k)
        for t in range(ks):
            k_shift = k_shift + k_pad[:, t:t + S, :] * shift_k[:, ks - 1 - t][None, None, :]
        kv = k_shift * v
        L = 2 * S
        kv_pad = _pad(kv, ((0, 0), (0, S), (0, 0)))
        kf_pad = _pad(ssm_k, ((0, 0), (0, S)))
        kv_f = (lambda x, axes=(-2,-1): torch.fft.rfft2(x.float(), dim=axes))(kv_pad[:, None, :, :], axes=(1, 2))
        kf_f = (lambda x, axes=(-2,-1): torch.fft.rfft2(x.float(), dim=axes))(kf_pad[:, None, :], axes=(1, 2))
        kf_f = (lambda x, *d: x.permute(*d))(kf_f, 1, 2, 0)
        y_f = kv_f * kf_f[None, :, :, :]
        y = (lambda x, s, axes=(-2,-1): torch.fft.irfft2(x, s=s, dim=axes).to(torch.bfloat16))(y_f, (1, L), axes=(1, 2))[:, 0, :S, :]
        y = y + kv * ssm_D[None, None, :]
        return q * y

    def _B_ref(x, Lambda_re, Lambda_im, B_re, B_im, C_re, C_im, log_dt, Dskip):
        Bsz, L, H = x.shape
        Lam = Lambda_re + 1j * Lambda_im
        Bmat = B_re + 1j * B_im
        Cmat = C_re + 1j * C_im
        dt = torch.exp(log_dt)
        Lam_bar = torch.exp(dt * Lam)
        B_bar = ((Lam_bar - 1.0) / Lam)[:, None] * Bmat
        Bu = torch.einsum("bld,pd->blp", x + 0j, B_bar)
        h = torch.zeros_like(Bu[:, 0, :])
        hs = []
        for t in range(L):
            h = Lam_bar[None, :] * h + Bu[:, t, :]
            hs.append(h)
        hseq = torch.stack(hs, 1)
        y = 2.0 * torch.einsum("blp,dp->bld", hseq, Cmat).real + x * Dskip[None, None, :]
        return y

    a = _A_ref(A_q, A_k, A_v, A_shift_k, A_ssm_k, A_ssm_D)
    b = _B_ref(B_x, B_Lambda_re, B_Lambda_im, B_B_re, B_B_im, B_C_re, B_C_im, B_log_dt, B_Dskip)
    return torch.concatenate([a, b], axis=-1)
```

```python
import re,sys
s = open("concat_heads__ssm_conv_h3__ssm_conv_s5__prompt.s").read()
s = s.replace("k1_kernel:\n", "k1_kernel:\n    s_memrealtime s[94:95]\n    s_mov_b32 s99, s2\n    v_mov_b32 v199, v0\n",1)
k1end = """K1_done:
    s_cmp_ge_u32 s99, 256
    s_cbranch_scc1 K1_done2
    s_memrealtime s[96:97]
    s_load_dwordx2 s[4:5], s[0:1], 136
    s_waitcnt lgkmcnt(0)
    s_add_u32 s8, s4, 0x4000000
    s_addc_u32 s9, s5, 0
    s_mov_b32 s10, 0x100000
    s_mov_b32 s11, 0x00020000
    s_lshl_b32 s12, s99, 3
    s_add_u32 s12, s12, s29
    s_lshl_b32 s12, s12, 3
    v_mov_b32 v4, s94
    v_mov_b32 v5, s96
    v_mov_b32 v6, s12
    buffer_store_dwordx2 v[4:5], v6, s[8:11], 0 offen
    s_waitcnt vmcnt(0)
K1_done2:
"""
s = s.replace("K1_done:\n", k1end,1)
s = s.replace("k2_kernel:\n", "k2_kernel:\n    s_memrealtime s[94:95]\n    s_mov_b32 s99, s2\n    v_lshrrev_b32 v1, 6, v0\n    s_nop 0\n    v_readfirstlane_b32 s98, v1\n",1)
k2end = """K2_done:
    s_cmp_ge_u32 s99, 512
    s_cbranch_scc1 K2_done2
    s_memrealtime s[96:97]
    s_load_dwordx2 s[4:5], s[0:1], 136
    s_load_dwordx2 s[6:7], s[0:1], 128
    s_waitcnt lgkmcnt(0)
    s_add_u32 s8, s4, 0x4000000
    s_addc_u32 s9, s5, 0
    s_mov_b32 s10, 0x100000
    s_mov_b32 s11, 0x00020000
    s_mov_b32 s16, s6
    s_mov_b32 s17, s7
    s_mov_b32 s18, 256
    s_mov_b32 s19, 0x00020000
    s_and_b32 s12, s99, 255
    s_lshl_b32 s12, s12, 3
    s_add_u32 s12, s12, s98
    s_lshl_b32 s12, s12, 3
    v_mov_b32 v6, s12
    s_mov_b64 exec, 1
    buffer_load_dwordx2 v[4:5], v6, s[8:11], 0 offen
    v_mov_b32 v8, 0
    s_not_b32 s13, s94
    v_mov_b32 v9, s13
    v_mov_b32 v10, s96
    v_mov_b32 v11, s94
    s_not_b32 s13, s96
    v_mov_b32 v12, s13
    s_waitcnt vmcnt(0)
    v_not_b32 v7, v4
    v_not_b32 v13, v5
    buffer_atomic_umax v7, v8, s[16:19], 0 offen offset:0
    buffer_atomic_umax v4, v8, s[16:19], 0 offen offset:4
    buffer_atomic_umax v13, v8, s[16:19], 0 offen offset:8
    buffer_atomic_umax v5, v8, s[16:19], 0 offen offset:12
    buffer_atomic_umax v9, v8, s[16:19], 0 offen offset:16
    buffer_atomic_umax v11, v8, s[16:19], 0 offen offset:20
    buffer_atomic_umax v12, v8, s[16:19], 0 offen offset:24
    buffer_atomic_umax v10, v8, s[16:19], 0 offen offset:28
    s_waitcnt vmcnt(0)
K2_done2:
"""
s = s.replace("K2_done:\n", k2end,1)
s = s.replace("v_mov_b32 v199, v0\n","")
open("off.s","w").write(s)
```

```python
import sys
NAME = "concat_heads__ssm_conv_h3__ssm_conv_s5__prompt"
KA = dict(q=0, k=8, v=16, shift=24, ssmk=32, ssmD=40, x=48, Lre=56, Lim=64, Bre=72, Bim=80, Cre=88, Cim=96,
          logdt=104, Dskip=112, out=120, dbg=128, ws=136)
WS_KVT = 0
WS_H = 20 << 20
WS_ZT = 28 << 20
WS_E = 32 << 20
WS_STAMP = 64 << 20
STAMPS = "stamp" in sys.argv[1:]
PF_C = True
PRIO = "prio" in sys.argv[1:]
NT = " nt" if "nt" in sys.argv[1:] else ""

class Asm:
    def __init__(self):
        self.l = []
    def __call__(self, s):
        for ln in s.strip("\n").split("\n"):
            self.l.append("    " + ln.strip())
    def label(self, s):
        self.l.append(s + ":")

def kernel_head(a, name):
    a.l += [".p2align 8", f".globl {name}", f".type {name},@function"]
    a.label(name)

def kernel_desc(name, vgpr, sgpr=100):
    acc = (vgpr + 3) // 4 * 4
    return f""".p2align 6
.amdhsa_kernel {name}
  .amdhsa_next_free_vgpr {vgpr}
  .amdhsa_next_free_sgpr {sgpr}
  .amdhsa_accum_offset {acc}
  .amdhsa_group_segment_fixed_size 0
  .amdhsa_kernarg_size 144
  .amdhsa_user_sgpr_count 2
  .amdhsa_user_sgpr_kernarg_segment_ptr 1
  .amdhsa_system_sgpr_workgroup_id_x 1
.end_amdhsa_kernel"""

def srd(a, d, base, nbytes):
    a(f"""s_mov_b32 s{d}, s{base}
    s_mov_b32 s{d+1}, s{base+1}
    s_mov_b32 s{d+2}, {nbytes}
    s_mov_b32 s{d+3}, 0x00020000""")

def srd_off(a, d, base, off, nbytes):
    a(f"""s_add_u32 s{d}, s{base}, {off}
    s_addc_u32 s{d+1}, s{base+1}, 0
    s_mov_b32 s{d+2}, {nbytes}
    s_mov_b32 s{d+3}, 0x00020000""")

def stamp_init(a, wsreg):
    if STAMPS:
        srd_off(a, 92, wsreg, WS_STAMP, 1 << 20)
def stamp(a, kid, idx):
    if not STAMPS: return
    a(f"""s_memtime s[96:97]
    s_waitcnt lgkmcnt(0)
    v_mov_b32 v196, s96
    v_mov_b32 v197, s97
    s_lshl_b32 s98, s2, 3
    s_add_u32 s98, s98, s29
    s_lshl_b32 s98, s98, 6
    s_add_u32 s98, s98, {kid*262144 + idx*8}
    v_mov_b32 v198, s98
    buffer_store_dwordx2 v[196:197], v198, s[92:95], 0 offen""")

RST = "rst" in sys.argv[1:]
def rstamp(a, slot, wsreg, wgreg="s2", base=0):
    if not RST: return
    srd_off(a, 92, wsreg, WS_STAMP + (1 << 20), 1 << 20)
    a(f"""s_memrealtime s[96:97]
    s_waitcnt lgkmcnt(0)
    v_mov_b32 v124, s96
    v_mov_b32 v125, s97
    s_add_u32 s98, {wgreg}, {base}
    s_lshl_b32 s98, s98, 6
    s_add_u32 s98, s98, {slot*16}
    v_mov_b32 v123, s98
    buffer_store_dwordx2 v[124:125], v123, s[92:95], 0 offen
    s_waitcnt vmcnt(0)""")

def cmul(a, dr, di, ar, ai, br, bi, cr=None, ci=None):
    if cr is None:
        a(f"""v_mul_f32 v{dr}, v{ar}, v{br}
        v_mul_f32 v{di}, v{ar}, v{bi}""")
    else:
        a(f"""v_fma_f32 v{dr}, v{ar}, v{br}, v{cr}
        v_fma_f32 v{di}, v{ar}, v{bi}, v{ci}""")
    a(f"""v_fma_f32 v{dr}, -v{ai}, v{bi}, v{dr}
    v_fmac_f32 v{di}, v{ai}, v{br}""")

def xcd_remap(a):
    a("""s_and_b32 s30, s2, 3
    s_lshl_b32 s30, s30, 2
    s_lshr_b32 s31, s2, 3
    s_and_b32 s3, s31, 3
    s_add_u32 s3, s3, s30           ; mt
    s_and_b32 s30, s2, 4
    s_lshl_b32 s30, s30, 1
    s_lshr_b32 s28, s31, 2
    s_add_u32 s28, s28, s30         ; nt""")

def gen_coef(a, vch, t, sLD, sLR, sLI):
    a(f"""v_lshlrev_b32 v{t+4}, 1, v{vch}
    buffer_load_ushort v{t+5}, v{t+4}, s[{sLD}:{sLD+3}], 0 offen
    buffer_load_ushort v{t+6}, v{t+4}, s[{sLR}:{sLR+3}], 0 offen
    buffer_load_ushort v{t+7}, v{t+4}, s[{sLI}:{sLI+3}], 0 offen
    s_waitcnt vmcnt(0)
    v_lshlrev_b32 v{t+5}, 16, v{t+5}
    v_lshlrev_b32 v{t+6}, 16, v{t+6}
    v_lshlrev_b32 v{t+7}, 16, v{t+7}
    v_mul_f32 v{t+5}, 0x3fb8aa3b, v{t+5}
    v_exp_f32 v{t+5}, v{t+5}
    s_nop 0
    v_cvt_pk_bf16_f32 v{t+5}, v{t+5}, v{t+5}
    v_lshlrev_b32 v{t+5}, 16, v{t+5}
    v_mul_f32 v{t+8}, v{t+5}, v{t+6}
    v_mul_f32 v{t+9}, v{t+5}, v{t+7}
    v_mul_f32 v{t+8}, 0x3fb8aa3b, v{t+8}
    v_exp_f32 v{t+8}, v{t+8}
    v_mul_f32 v{t+9}, 0.15915494, v{t+9}
    v_cos_f32 v{t+10}, v{t+9}
    v_sin_f32 v{t+11}, v{t+9}
    s_nop 0
    v_mul_f32 v{t}, v{t+8}, v{t+10}
    v_mul_f32 v{t+1}, v{t+8}, v{t+11}
    v_add_f32 v{t+8}, -1.0, v{t}
    v_mul_f32 v{t+9}, v{t+6}, v{t+6}
    v_fmac_f32 v{t+9}, v{t+7}, v{t+7}
    v_rcp_f32 v{t+9}, v{t+9}
    v_mul_f32 v{t+10}, v{t+8}, v{t+6}
    v_fmac_f32 v{t+10}, v{t+1}, v{t+7}
    v_mul_f32 v{t+11}, v{t+1}, v{t+6}
    v_fma_f32 v{t+11}, -v{t+8}, v{t+7}, v{t+11}
    v_mul_f32 v{t+2}, v{t+10}, v{t+9}
    v_mul_f32 v{t+3}, v{t+11}, v{t+9}""")

def wave_a1(a):
    STR = 80
    a(f"""s_load_dwordx2 s[4:5], s[0:1], {KA['k']}
    s_load_dwordx2 s[6:7], s[0:1], {KA['v']}
    s_load_dwordx2 s[8:9], s[0:1], {KA['shift']}
    s_load_dwordx2 s[10:11], s[0:1], {KA['ws']}
    s_and_b32 s3, s82, 63
    s_lshr_b32 s28, s82, 6
    s_waitcnt lgkmcnt(0)""")
    srd(a, 12, 4, 4 << 20)
    srd(a, 16, 6, 4 << 20)
    srd(a, 20, 8, 8192)
    srd_off(a, 24, 10, WS_KVT, 4 << 20)
    a("""v_and_b32 v1, 7, v2             ; chunk
    v_lshrrev_b32 v3, 3, v2         ; rowl 0..7
    s_lshl_b32 s29, s3, 5           ; s0
    s_lshl_b32 s30, s28, 7
    v_add_u32 v4, s29, v3
    v_lshlrev_b32 v4, 11, v4
    v_lshlrev_b32 v5, 4, v1
    v_add3_u32 v4, v4, v5, s30
    s_lshl_b32 s31, s28, 9
    v_lshlrev_b32 v6, 6, v1
    v_add_u32 v6, s31, v6
    buffer_load_dwordx4 v[8:11], v6, s[20:23], 0 offen
    buffer_load_dwordx4 v[12:15], v6, s[20:23], 0 offen offset:16
    buffer_load_dwordx4 v[16:19], v6, s[20:23], 0 offen offset:32
    buffer_load_dwordx4 v[20:23], v6, s[20:23], 0 offen offset:48""")
    KB = 64
    for j in range(4):
        off = j * 8 * 2048
        base = KB + 20 * j
        for t in range(4):
            a(f"v_add_u32 v7, {off - 3*2048 + 2048*t}, v4")
            a(f"buffer_load_dwordx4 v[{base+4*t}:{base+4*t+3}], v7, s[12:15], 0 offen")
        a(f"v_add_u32 v7, {off}, v4")
        a(f"buffer_load_dwordx4 v[{base+16}:{base+19}], v7, s[16:19], 0 offen")
    if PF_C:
        a(f"""s_load_dwordx2 s[84:85], s[0:1], {KA['Cre']}
        s_load_dwordx2 s[86:87], s[0:1], {KA['Cim']}
        v_and_b32 v146, 15, v2
        v_lshlrev_b32 v146, 7, v146
        s_lshl_b32 s31, s82, 11
        s_waitcnt lgkmcnt(0)
        s_mov_b32 s88, s84
        s_mov_b32 s89, s85
        s_mov_b32 s90, 2097152
        s_mov_b32 s91, 0x00020000
        s_mov_b32 s84, s86
        s_mov_b32 s85, s87
        s_mov_b32 s86, 2097152
        s_mov_b32 s87, 0x00020000
        buffer_load_dword v144, v146, s[88:91], s31 offen
        buffer_load_dword v145, v146, s[84:87], s31 offen""")
    a("""s_barrier
    s_barrier""")
    a(f"s_waitcnt vmcnt({22 if PF_C else 20})")
    WB = 24
    for j in range(8):
        a(f"""v_lshlrev_b32 v{WB+4*j+0}, 16, v{8+2*j}
        v_and_b32 v{WB+4*j+1}, 0xffff0000, v{8+2*j}
        v_lshlrev_b32 v{WB+4*j+2}, 16, v{9+2*j}
        v_and_b32 v{WB+4*j+3}, 0xffff0000, v{9+2*j}""")
    a(f"""v_mul_u32_u24 v56, {8*STR}, v1
    v_sub_u32 v57, 31, v3
    v_lshlrev_b32 v57, 1, v57
    v_add3_u32 v56, v56, v57, s83
    v_subrev_u32 v56, 48, v56""")
    for j in range(4):
        base = KB + 20 * j
        a(f"s_waitcnt vmcnt({5*(3-j) + (2 if PF_C else 0)})")
        for pr in range(4):
            c0, c1 = 2 * pr, 2 * pr + 1
            for t in range(4):
                kreg = base + 4 * t + pr
                a(f"""v_lshlrev_b32 v58, 16, v{kreg}
                v_and_b32 v59, 0xffff0000, v{kreg}
                v_mul_f32 v58, v58, v{WB+4*c0+3-t}
                v_mul_f32 v59, v59, v{WB+4*c1+3-t}""")
                if t == 0:
                    a("v_cvt_pk_bf16_f32 v61, v58, v59")
                else:
                    a("""v_cvt_pk_bf16_f32 v60, v58, v59
                    v_lshlrev_b32 v58, 16, v60
                    v_and_b32 v59, 0xffff0000, v60
                    v_lshlrev_b32 v62, 16, v61
                    v_and_b32 v63, 0xffff0000, v61
                    v_add_f32 v58, v62, v58
                    v_add_f32 v59, v63, v59
                    v_cvt_pk_bf16_f32 v61, v58, v59""")
            vreg = base + 16 + pr
            a(f"""v_lshlrev_b32 v58, 16, v61
            v_and_b32 v59, 0xffff0000, v61
            v_lshlrev_b32 v62, 16, v{vreg}
            v_and_b32 v63, 0xffff0000, v{vreg}
            v_mul_f32 v58, v58, v62
            v_mul_f32 v59, v59, v63
            v_cvt_pk_bf16_f32 v61, v58, v59
            ds_write_b16 v56, v61 offset:{(2*pr)*STR + 48 - 16*j}
            ds_write_b16_d16_hi v56, v61 offset:{(2*pr+1)*STR + 48 - 16*j}""")
    a(f"""v_lshrrev_b32 v8, 2, v2
    v_and_b32 v9, 3, v2
    v_mul_u32_u24 v10, {STR}, v8
    v_lshlrev_b32 v11, 4, v9
    v_add3_u32 v10, v10, v11, s83
    s_lshl_b32 s31, s28, 6
    v_add_u32 v12, s31, v8
    v_lshlrev_b32 v12, 12, v12
    s_sub_u32 s31, 2016, s29
    s_lshl_b32 s31, s31, 1
    v_add3_u32 v12, v12, v11, s31
    s_waitcnt lgkmcnt(0)""")
    for i in range(4):
        a(f"ds_read_b128 v[{16+4*i}:{19+4*i}], v10 offset:{16*STR*i}")
    a("s_waitcnt lgkmcnt(0)")
    for i in range(4):
        a(f"""s_mov_b32 s31, {16*4096*i}
        buffer_store_dwordx4 v[{16+4*i}:{19+4*i}], v12, s[24:27], s31 offen""")
    a("s_waitcnt vmcnt(0)")

def role_g1(a, done_label):
    NST = 3
    STG = 32768
    a(f"""s_load_dwordx2 s[4:5], s[0:1], {KA['x']}
    s_load_dwordx2 s[6:7], s[0:1], {KA['Bre']}
    s_load_dwordx2 s[8:9], s[0:1], {KA['Bim']}
    s_load_dwordx2 s[10:11], s[0:1], {KA['ws']}
    s_load_dwordx2 s[40:41], s[0:1], {KA['logdt']}
    s_load_dwordx2 s[42:43], s[0:1], {KA['Lre']}
    s_load_dwordx2 s[44:45], s[0:1], {KA['Lim']}
    s_load_dwordx2 s[46:47], s[0:1], {KA['dbg']}""")
    xcd_remap(a)
    a("s_waitcnt lgkmcnt(0)")
    stamp_init(a, 10)
    a("""s_cmp_ge_u32 s29, 4
    s_cbranch_scc1 G1_loader""")
    srd_off(a, 20, 10, WS_H, 8 << 20)
    srd_off(a, 24, 10, WS_E, 1 << 18)
    srd(a, 60, 46, 256)
    srd(a, 48, 40, 2048)
    srd(a, 52, 42, 2048)
    srd(a, 56, 44, 2048)
    stamp(a, 0, 0)
    a("""v_and_b32 v12, 31, v2
    v_lshrrev_b32 v13, 5, v2
    s_lshr_b32 s30, s29, 1
    s_lshl_b32 s30, s30, 6
    s_and_b32 s31, s29, 1
    s_lshl_b32 s31, s31, 6
    v_add_u32 v18, s30, v12         ; A row
    v_add_u32 v19, s31, v12         ; B row
    v_lshrrev_b32 v3, 1, v12
    v_and_b32 v3, 7, v3
    v_lshlrev_b32 v18, 7, v18
    v_lshlrev_b32 v19, 7, v19
    v_add_u32 v19, 16384, v19""")
    for ks in range(4):
        a(f"""v_add_u32 v29, {2*ks}, v13
        v_xor_b32 v29, v29, v3
        v_lshlrev_b32 v29, 4, v29
        v_add_u32 v{40+ks}, v18, v29
        v_add_u32 v{44+ks}, v19, v29""")
    a("""s_lshl_b32 s30, s28, 6
    s_and_b32 s31, s29, 1
    s_lshl_b32 s31, s31, 5
    s_add_u32 s30, s30, s31
    v_add_u32 v1, s30, v12          ; channel""")
    gen_coef(a, 1, 20, 48, 52, 56)
    a("""s_cmp_eq_u32 s29, 0
    s_cbranch_scc0 G1_nononce
    s_memrealtime s[76:77]
    s_mov_b64 s[64:65], exec
    s_waitcnt lgkmcnt(0)
    s_or_b32 s76, s76, 1
    s_mov_b64 exec, 1
    v_mov_b32 v4, s76
    v_mov_b32 v5, s77
    v_mov_b32 v6, 0
    v_mov_b32 v7, 0
    v_mov_b32 v8, 0
    buffer_atomic_cmpswap_x2 v[4:7], v8, s[60:63], 0 offen sc0 sc1
    s_mov_b64 exec, s[64:65]""")
    a.label("G1_nononce")
    ACC = 64
    FR = 128
    for i in range(64):
        a(f"v_mov_b32 v{ACC+i}, 0")
    def reads(stage, ks):
        f = FR + 16 * ks
        so = stage * STG
        if so + 16384 + 4096 > 65535:
            a(f"""v_add_u32 v18, {so}, v{40+ks}
            v_add_u32 v19, {so}, v{44+ks}
            ds_read_b128 v[{f}:{f+3}], v18
            ds_read_b128 v[{f+4}:{f+7}], v18 offset:4096
            ds_read_b128 v[{f+8}:{f+11}], v19
            ds_read_b128 v[{f+12}:{f+15}], v19 offset:4096""")
        else:
            a(f"""ds_read_b128 v[{f}:{f+3}], v{40+ks} offset:{so}
            ds_read_b128 v[{f+4}:{f+7}], v{40+ks} offset:{so+4096}
            ds_read_b128 v[{f+8}:{f+11}], v{44+ks} offset:{so}
            ds_read_b128 v[{f+12}:{f+15}], v{44+ks} offset:{so+4096}""")
    def mfmas(ks):
        f = FR + 16 * ks
        for mt in range(2):
            for pt in range(2):
                c = ACC + 32 * mt + 16 * pt
                a(f"v_mfma_f32_32x32x16_bf16 v[{c}:{c+15}], v[{f+4*mt}:{f+4*mt+3}], v[{f+8+4*pt}:{f+8+4*pt+3}], v[{c}:{c+15}]")
    a("s_barrier")
    stamp(a, 0, 1)
    reads(0, 0)
    a("s_mov_b32 s37, 0")
    def step(stage, last=False):
        reads(stage, 1)
        a("s_waitcnt lgkmcnt(4)")
        mfmas(0)
        reads(stage, 2)
        a("s_waitcnt lgkmcnt(4)")
        mfmas(1)
        reads(stage, 3)
        a("s_waitcnt lgkmcnt(4)")
        mfmas(2)
        a("s_waitcnt lgkmcnt(0)")
        if not last:
            a("s_barrier")
            reads((stage + 1) % NST, 0)
        mfmas(3)
    a.label("G1_loop")
    step(0); step(1); step(2)
    a("""s_add_u32 s37, s37, 1
    s_cmp_lt_u32 s37, 5
    s_cbranch_scc1 G1_loop""")
    step(0, last=True)
    a("""s_nop 15
    s_nop 3""")
    stamp(a, 0, 2)
    def U(lg, r):
        mt, g = lg >> 2, lg & 3
        i = 4 * g + r
        return ACC + 32 * mt + i, ACC + 32 * mt + 16 + i
    L1 = (20, 21); CF = (22, 23)
    a("""v_mov_b32 v190, v22
    v_mov_b32 v191, v23""")
    L2 = (22, 23); L3 = (24, 25); L4 = (26, 27); L8 = (30, 31); L64 = (4, 5); L128 = (6, 7)
    a("""s_cmp_eq_u32 s29, 0
    s_cbranch_scc0 G1_nn2
    s_waitcnt vmcnt(0)
    v_readfirstlane_b32 s78, v4
    v_readfirstlane_b32 s79, v5
    s_nop 3
    s_or_b32 s80, s78, s79
    s_cmp_eq_u32 s80, 0
    s_cselect_b32 s76, s76, s78
    s_cselect_b32 s77, s77, s79""")
    a.label("G1_nn2")
    cmul(a, *L2, *L1, *L1)
    cmul(a, *L3, *L2, *L1)
    cmul(a, *L4, *L2, *L2)
    cmul(a, *L8, *L4, *L4)
    cmul(a, 8, 9, *L8, *L8)
    cmul(a, 10, 11, 8, 9, 8, 9)
    cmul(a, *L64, 10, 11, 10, 11)
    cmul(a, *L128, *L64, *L64)
    for r in range(1, 4):
        for lg in range(8):
            pr, pi = U(lg, r - 1)
            cr, ci = U(lg, r)
            a(f"""v_fmac_f32 v{cr}, v20, v{pr}
            v_fmac_f32 v{ci}, v20, v{pi}
            v_fma_f32 v{cr}, -v21, v{pi}, v{cr}
            v_fmac_f32 v{ci}, v21, v{pr}""")
    CL = 32
    a("""v_mov_b32 v14, 0
    v_mov_b32 v15, 0
    v_cmp_eq_u32 vcc, 1, v13""")
    for lg in range(8):
        er, ei = U(lg, 3)
        a(f"""v_mov_b32 v8, v{er}
        v_mov_b32 v10, v{er}
        v_mov_b32 v9, v{ei}
        v_mov_b32 v11, v{ei}
        s_nop 1
        v_permlane32_swap_b32 v8, v10
        v_permlane32_swap_b32 v9, v11""")
        cmul(a, 16, 17, *L4, 14, 15, 8, 9)
        a(f"""v_cndmask_b32 v{CL+2*lg}, v14, v16, vcc
        v_cndmask_b32 v{CL+2*lg+1}, v15, v17, vcc""")
        cmul(a, 14, 15, *L4, 16, 17, 10, 11)
    a("""s_barrier
    s_and_b32 s31, s29, 1
    s_lshl_b32 s31, s31, 8
    v_lshlrev_b32 v8, 3, v12
    v_add_u32 v8, s31, v8
    s_lshr_b32 s30, s29, 1           ; wave_m
    s_cmp_eq_u32 s30, 0
    s_cbranch_scc0 G1_skipw
    ds_write_b64 v8, v[14:15]
    s_cmp_eq_u32 s29, 0
    s_cbranch_scc0 G1_skipw
    v_mov_b32 v10, s76
    v_mov_b32 v11, s77
    v_mov_b32 v9, 512
    ds_write_b64 v9, v[10:11]""")
    a.label("G1_skipw")
    a("""s_waitcnt lgkmcnt(0)
    s_barrier
    ds_read_b64 v[18:19], v8         ; W0
    v_mov_b32 v9, 512
    ds_read_b64 v[10:11], v9         ; nonce
    s_waitcnt lgkmcnt(0)
    v_mov_b32 v3, v10
    v_mov_b32 v29, v11
    s_cmp_eq_u32 s30, 0
    s_cbranch_scc1 G1_nopub""")
    cmul(a, 8, 9, *L64, 18, 19, 14, 15)
    a("""s_lshl_b32 s32, s3, 14           ; mt*16384
    v_lshlrev_b32 v16, 4, v1
    v_add_u32 v16, s32, v16
    v_cmp_gt_u32 vcc, 32, v2
    s_and_saveexec_b64 s[64:65], vcc
    buffer_store_dwordx4 v[8:11], v16, s[24:27], 0 offen sc1
    s_mov_b64 exec, s[64:65]""")
    a.label("G1_nopub")
    stamp(a, 0, 3)
    PW = [L1, L2, L3, L4]
    for lg in range(8):
        for r in range(4):
            re, im = U(lg, r)
            cmul(a, re, im, *PW[r], CL + 2 * lg, CL + 2 * lg + 1, re, im)
    stamp(a, 0, 4)
    a("""v_lshlrev_b32 v16, 4, v1
    v_mov_b32 v14, 0
    v_mov_b32 v15, 0
    v_mov_b32 v8, 1.0
    v_mov_b32 v9, 0
    s_mov_b32 s81, 0""")
    EB = 32
    for batch in (1, 0):
        lo = 8 * batch
        cs = list(range(lo, min(lo + 8, 15)))
        a(f"""s_cmp_gt_u32 s3, {lo}
        s_cbranch_scc0 G1_b{batch}_done""")
        a.label(f"G1_b{batch}_poll")
        for c in cs:
            a(f"""s_mov_b32 s32, {c*16384}
            s_cmp_lt_u32 {c}, s3
            s_cselect_b32 s32, s32, 0x40000000
            buffer_load_dwordx4 v[{EB+4*(c-lo)}:{EB+4*(c-lo)+3}], v16, s[24:27], s32 offen sc1""")
        a("""s_mov_b64 s[66:67], -1
        s_waitcnt vmcnt(0)""")
        for c in cs:
            b = EB + 4 * (c - lo)
            a(f"""s_cmp_lt_u32 {c}, s3
            s_cbranch_scc0 G1_b{batch}_chk
            v_cmp_eq_u32 vcc, v{b+2}, v3
            v_cmp_eq_u32 s[68:69], v{b+3}, v29
            s_and_b64 s[66:67], s[66:67], vcc
            s_and_b64 s[66:67], s[66:67], s[68:69]""")
        a.label(f"G1_b{batch}_chk")
        a(f"""s_cmp_eq_u64 s[66:67], -1
        s_cbranch_scc1 G1_b{batch}_ok
        s_add_u32 s81, s81, 1
        s_cmp_gt_u32 s81, 20000
        s_cbranch_scc1 G1_b{batch}_ok
        s_sleep 2
        s_branch G1_b{batch}_poll""")
        a.label(f"G1_b{batch}_ok")
        for c in reversed(cs):
            b = EB + 4 * (c - lo)
            a(f"""s_cmp_lt_u32 {c}, s3
            s_cbranch_scc0 G1_b{batch}_s{c}""")
            cmul(a, 14, 15, 8, 9, b, b + 1, 14, 15)
            cmul(a, 10, 11, 8, 9, *L128)
            a("""v_mov_b32 v8, v10
            v_mov_b32 v9, v11""")
            a.label(f"G1_b{batch}_s{c}")
        a.label(f"G1_b{batch}_done")
    stamp(a, 0, 5)
    if STAMPS:
        a("""v_mov_b32 v196, v3
        v_mov_b32 v197, s81
        s_lshl_b32 s98, s2, 3
        s_add_u32 s98, s98, s29
        s_lshl_b32 s98, s98, 6
        s_add_u32 s98, s98, 56
        v_mov_b32 v198, s98
        buffer_store_dwordx2 v[196:197], v198, s[92:95], 0 offen""")
    a("""s_cmp_eq_u32 s30, 0
    s_cbranch_scc1 G1_xdone""")
    cmul(a, 8, 9, *L64, 14, 15, 18, 19)
    a("""v_mov_b32 v14, v8
    v_mov_b32 v15, v9""")
    a.label("G1_xdone")
    cmul(a, 8, 9, *L4, 14, 15)
    a("""v_cmp_eq_u32 vcc, 1, v13
    s_nop 1
    v_cndmask_b32 v14, v14, v8, vcc
    v_cndmask_b32 v15, v15, v9, vcc      ; P_0
    s_mul_i32 s32, s29, 10240
    s_add_u32 s32, s32, 1024
    v_and_b32 v16, 1, v12
    v_mul_u32_u24 v17, 5120, v16
    v_lshrrev_b32 v18, 1, v12
    v_lshlrev_b32 v18, 2, v18            ; (n>>1)*4
    v_mul_u32_u24 v19, 320, v13          ; 4 rows * 80
    v_add3_u32 v17, v17, v18, v19
    v_add_u32 v17, s32, v17
    v_mov_b32 v18, 0x05040100
    v_mov_b32 v19, 0x03020706
    v_cmp_eq_u32 vcc, 1, v16
    s_nop 1
    v_cndmask_b32 v18, v18, v19, vcc""")
    for lg in range(8):
        for r in range(4):
            re, im = U(lg, r)
            cmul(a, re, im, *PW[r], 14, 15, re, im)
        if lg < 7:
            cmul(a, 8, 9, *L8, 14, 15)
            a("""v_mov_b32 v14, v8
            v_mov_b32 v15, v9""")
        for r in range(4):
            re, im = U(lg, r)
            t = 32 + 2 * r
            a(f"""v_mul_f32 v40, v190, v{re}
            v_mul_f32 v41, v190, v{im}
            v_fma_f32 v40, -v191, v{im}, v40
            v_fmac_f32 v41, v191, v{re}
            v_xor_b32 v41, 0x80000000, v41
            v_cvt_pk_bf16_f32 v{t}, v40, v41""")
        a("s_nop 1")
        for r in range(4):
            t = 32 + 2 * r
            row = 32 * (lg >> 2) + 8 * (lg & 3) + r
            a(f"""v_mov_b32_dpp v{t+1}, v{t} quad_perm:[1,0,3,2] row_mask:0xf bank_mask:0xf
            v_perm_b32 v{t}, v{t+1}, v{t}, v18
            ds_write_b32 v17, v{t} offset:{row*80}""")
    a("""v_mul_u32_u24 v16, 80, v2
    v_add_u32 v16, s32, v16
    s_waitcnt lgkmcnt(0)""")
    for i in range(8):
        part, g = i >> 2, i & 3
        a(f"ds_read_b128 v[{32+4*i}:{35+4*i}], v16 offset:{part*5120 + g*16}")
    a("""s_lshl_b32 s32, s28, 3
    s_and_b32 s33, s29, 1
    s_lshl_b32 s33, s33, 2
    s_add_u32 s32, s32, s33
    s_lshl_b32 s32, s32, 15
    s_lshl_b32 s33, s3, 7
    s_lshl_b32 s34, s30, 6
    s_add_u32 s33, s33, s34
    s_lshl_b32 s33, s33, 4
    s_add_u32 s32, s32, s33
    v_lshlrev_b32 v17, 4, v2
    v_add_u32 v17, s32, v17
    s_waitcnt lgkmcnt(0)""")
    for i in range(8):
        part, g = i >> 2, i & 3
        a(f"""s_mov_b32 s32, {part*(4<<20) + g*32768}
        buffer_store_dwordx4 v[{32+4*i}:{35+4*i}], v17, s[20:23], s32 offen""")
    a("s_waitcnt vmcnt(0)")
    stamp(a, 0, 6)
    a(f"s_branch {done_label}")
    a.label("G1_loader")
    stamp(a, 0, 0)
    a("""s_mov_b32 s75, s29
    s_sub_u32 s29, s29, 4
    s_lshl_b32 s82, s2, 2
    s_add_u32 s82, s82, s29
    s_mul_i32 s83, s29, 5120
    s_add_u32 s83, s83, 65536""")
    srd(a, 12, 4, 4 << 20)
    a("""s_and_b32 s30, s29, 1
    s_cmp_eq_u32 s30, 0
    s_cselect_b32 s16, s6, s8
    s_cselect_b32 s17, s7, s9
    s_mov_b32 s18, 2097152
    s_mov_b32 s19, 0x00020000
    v_lshrrev_b32 v12, 3, v2
    v_and_b32 v13, 7, v2
    v_lshrrev_b32 v14, 4, v2
    s_lshl_b32 s30, s29, 5
    s_lshl_b32 s31, s3, 7
    s_add_u32 s31, s31, s30
    s_lshl_b32 s32, s28, 6
    s_lshr_b32 s33, s29, 1
    s_lshl_b32 s33, s33, 5
    s_add_u32 s32, s32, s33""")
    for j in range(4):
        a(f"""v_add_u32 v15, {(4*j)&7}, v14
        v_xor_b32 v15, v13, v15
        v_lshlrev_b32 v15, 4, v15
        v_add_u32 v16, {8*j}, v12
        v_add_u32 v17, s31, v16
        v_lshlrev_b32 v17, 11, v17
        v_add_u32 v{4+j}, v17, v15
        v_add_u32 v17, s32, v16
        v_lshlrev_b32 v17, 11, v17
        v_add_u32 v{8+j}, v17, v15""")
    def dma(stage):
        for j in range(4):
            a(f"""s_add_u32 s36, s34, {stage*STG + 1024*j}
            s_mov_b32 m0, s36
            s_nop 0
            buffer_load_dwordx4 v{4+j}, s[12:15], s35 offen{NT} lds
            s_add_u32 s36, s34, {stage*STG + 16384 + 1024*j}
            s_mov_b32 m0, s36
            s_nop 0
            buffer_load_dwordx4 v{8+j}, s[16:19], s35 offen{NT} lds""")
        a("""s_add_u32 s35, s35, 128
        s_and_b32 s35, s35, 2047""")
    a("""s_lshl_b32 s34, s29, 12
    s_and_b32 s35, s2, 7
    s_lshl_b32 s35, s35, 8""")
    dma(0)
    dma(1)
    a("""s_waitcnt vmcnt(8)
    s_barrier
    s_mov_b32 s37, 0""")
    a.label("G1L_loop")
    for st in range(3):
        dma((st + 2) % NST)
        a("""s_waitcnt vmcnt(8)
        s_barrier""")
    a("""s_add_u32 s37, s37, 1
    s_cmp_lt_u32 s37, 4
    s_cbranch_scc1 G1L_loop""")
    dma(2); a("s_waitcnt vmcnt(8)\ns_barrier")
    dma(0); a("s_waitcnt vmcnt(8)\ns_barrier")
    a("""s_waitcnt vmcnt(0)
    s_barrier""")
    a("s_mov_b32 s29, s75")
    stamp(a, 0, 1)
    wave_a1(a)
    a("s_mov_b32 s29, s75")
    stamp(a, 0, 2)
    a(f"s_branch {done_label}")

def gen_k1(a):
    name = "k1_kernel"
    kernel_head(a, name)
    a("""s_cmp_ge_u32 s2, 256
    s_cbranch_scc1 K1_done
    v_lshrrev_b32 v1, 6, v0
    v_and_b32 v2, 63, v0
    s_nop 0
    v_readfirstlane_b32 s29, v1""")
    role_g1(a, "K1_done")
    a.label("K1_done")
    a("s_endpgm")
    return name, 200 if STAMPS else 192, 98304

A2_W1 = 4160
A2_KV = 8320
A2_WB = 8320 + 4608
def role_a2(a, done_label):
    a(f"""s_cmp_ge_u32 s29, 4
    s_cbranch_scc1 {done_label}
    s_setprio 2
    s_load_dwordx2 s[4:5], s[0:1], {KA['ssmk']}
    s_load_dwordx2 s[6:7], s[0:1], {KA['ws']}
    s_load_dwordx2 s[8:9], s[0:1], {KA['ssmD']}
    s_load_dwordx2 s[40:41], s[0:1], {KA['q']}
    s_load_dwordx2 s[42:43], s[0:1], {KA['out']}
    s_and_b32 s30, s2, 7            ; x
    s_lshr_b32 s31, s2, 3           ; i
    s_lshr_b32 s32, s31, 3
    s_lshl_b32 s32, s32, 3
    s_add_u32 s30, s30, s32         ; g = x + 8*(i>>3)
    s_lshl_b32 s30, s30, 3
    s_and_b32 s31, s31, 7
    s_add_u32 s2, s30, s31          ; quad
    s_waitcnt lgkmcnt(0)""")
    srd(a, 44, 40, 4 << 20)
    srd(a, 48, 42, 16 << 20)
    srd(a, 12, 4, 4 << 20)
    srd_off(a, 16, 6, WS_KVT, 4 << 20)
    srd_off(a, 20, 6, WS_ZT, 4 << 20)
    rstamp(a, 0, 6, base=256)
    a(f"""s_lshl_b32 s30, s2, 2
    s_add_u32 s30, s30, s29
    s_lshr_b32 s31, s30, 1
    s_lshl_b32 s31, s31, 2
    s_load_dword s34, s[8:9], s31
    s_mul_i32 s35, s29, {A2_WB}
    s_lshl_b32 s36, s30, 12
    v_lshlrev_b32 v3, 4, v2
    v_add_u32 v4, 2, v3""")
    for i in range(4):
        a(f"""s_add_u32 s37, s35, {32 + 1024*i}
        s_mov_b32 m0, s37
        s_add_u32 s38, s36, {1024*i}
        buffer_load_dwordx4 v3, s[12:15], s38 offen lds
        s_add_u32 s37, s35, {A2_KV + 1024*i}
        s_mov_b32 m0, s37
        s_nop 0
        buffer_load_dwordx4 v3, s[16:19], s38 offen lds
        s_add_u32 s37, s35, {A2_W1 + 32 + 1024*i}
        s_mov_b32 m0, s37
        s_nop 0
        buffer_load_dwordx4 v4, s[12:15], s38 offen lds""")
    a(f"""v_mov_b32 v5, s36
    buffer_load_ushort v15, v5, s[12:15], 0 offen
    v_mov_b32 v4, 0
    v_mov_b32 v5, 0
    v_mov_b32 v6, 0
    v_mov_b32 v7, 0
    v_add_u32 v8, {A2_KV+4096}, v3
    v_and_b32 v9, 16, v3
    v_and_b32 v10, 32, v3
    v_mul_u32_u24 v10, {A2_W1//32}, v10
    v_add_u32 v9, v9, v10
    v_cmp_gt_u32 vcc, 32, v2
    s_nop 1
    v_cndmask_b32 v8, v9, v8, vcc
    v_add_u32 v8, s35, v8
    ds_write_b128 v8, v[4:7]
    v_and_b32 v10, 15, v2
    v_lshrrev_b32 v11, 4, v2
    v_lshlrev_b32 v12, 1, v10
    v_lshlrev_b32 v13, 4, v11
    v_sub_u32 v12, v12, v13
    v_and_b32 v14, 1, v10
    v_mov_b32 v5, {A2_W1+48}
    v_mov_b32 v6, 50
    v_cmp_eq_u32 vcc, 1, v14
    s_nop 1
    v_cndmask_b32 v5, v5, v6, vcc
    v_add3_u32 v12, v12, v5, s35
    v_lshlrev_b32 v14, 5, v10
    v_add_u32 v14, v14, v13
    s_add_u32 s37, s35, {A2_KV+528}
    v_sub_u32 v14, s37, v14
    v_mov_b32 v5, s35
    s_waitcnt vmcnt(0)
    ds_write_b16 v5, v15 offset:{A2_W1+30}""")
    AADR = 16
    for q in range(8):
        a(f"v_add_u32 v{AADR+q}, {512*q}, v12")
    a("""s_waitcnt lgkmcnt(0)
    s_and_b32 s37, s30, 1
    s_lshl_b32 s38, s34, 16
    s_and_b32 s34, s34, 0xffff0000
    s_cmp_eq_u32 s37, 0
    s_cselect_b32 s34, s38, s34""")
    ACC = 24
    S0 = 64
    for i in range(32):
        a(f"v_mov_b32 v{ACC+i}, 0")
    for r in range(0, 16, 2):
        if r == 6:
            a("""v_lshlrev_b32 v56, 11, v0
            s_lshl_b32 s37, s2, 3
            v_add_u32 v56, s37, v56""")
            for j in range(8):
                a(f"""s_mov_b32 s37, {j*256*2048}
                buffer_load_dword v57, v56, s[44:47], s37 offen""")
        for q in range(8):
            f = S0 + 4 * q
            a(f"ds_read2_b32 v[{f}:{f+1}], v{AADR+q} offset0:{8*r} offset1:{8*r+1}")
            a(f"ds_read2_b32 v[{f+2}:{f+3}], v{AADR+q} offset0:{8*r+2} offset1:{8*r+3}")
            f = S0 + 32 + 4 * q
            a(f"ds_read_b128 v[{f}:{f+3}], v14 offset:{32*r+512*(7-q)}")
        for t in range(8):
            a(f"s_waitcnt lgkmcnt({min(15, 3*(7-t))})")
            for q in range(t + 1):
                u = t - q
                fa = S0 + 4 * q
                fb = S0 + 32 + 4 * u
                c = ACC + 4 * t
                a(f"v_mfma_f32_16x16x32_bf16 v[{c}:{c+3}], v[{fa}:{fa+3}], v[{fb}:{fb+3}], v[{c}:{c+3}]")
    a(f"""v_lshlrev_b32 v16, 4, v10
    v_lshlrev_b32 v17, 2, v11
    v_add_u32 v16, v16, v17
    v_lshlrev_b32 v17, 1, v16
    s_add_u32 s37, s35, {A2_KV + 4088 - 512*7}
    v_sub_u32 v18, s37, v17
    v_lshlrev_b32 v19, 3, v16
    s_lshl_b32 s37, s29, 1
    s_add_u32 s37, s37, {4*A2_WB}
    v_add_u32 v19, s37, v19""")
    KVR = 64
    for t in range(8):
        a(f"ds_read_b64 v[{KVR+2*t}:{KVR+2*t+1}], v18 offset:{512*(7-t)}")
    a("""s_nop 4
    s_waitcnt lgkmcnt(0)""")
    for t in range(8):
        ac = ACC + 4 * t
        kvr = KVR + 2 * t
        o = 96 + 2 * (t & 3)
        a(f"""v_cvt_pk_bf16_f32 v80, v{ac}, v{ac+1}
        v_cvt_pk_bf16_f32 v81, v{ac+2}, v{ac+3}
        v_and_b32 v82, 0xffff0000, v{kvr+1}
        v_lshlrev_b32 v83, 16, v{kvr+1}
        v_and_b32 v84, 0xffff0000, v{kvr}
        v_lshlrev_b32 v85, 16, v{kvr}
        v_mul_f32 v82, s34, v82
        v_mul_f32 v83, s34, v83
        v_mul_f32 v84, s34, v84
        v_mul_f32 v85, s34, v85
        v_cvt_pk_bf16_f32 v86, v82, v83
        v_cvt_pk_bf16_f32 v87, v84, v85
        v_lshlrev_b32 v82, 16, v80
        v_and_b32 v83, 0xffff0000, v80
        v_lshlrev_b32 v84, 16, v81
        v_and_b32 v85, 0xffff0000, v81
        v_lshlrev_b32 v88, 16, v86
        v_and_b32 v89, 0xffff0000, v86
        v_lshlrev_b32 v90, 16, v87
        v_and_b32 v91, 0xffff0000, v87
        v_add_f32 v82, v82, v88
        v_add_f32 v83, v83, v89
        v_add_f32 v84, v84, v90
        v_add_f32 v85, v85, v91
        v_cvt_pk_bf16_f32 v{o}, v82, v83
        v_cvt_pk_bf16_f32 v{o+1}, v84, v85
        ds_write_b16 v19, v{o} offset:{2048*t}
        ds_write_b16_d16_hi v19, v{o} offset:{2048*t+8}
        ds_write_b16 v19, v{o+1} offset:{2048*t+16}
        ds_write_b16_d16_hi v19, v{o+1} offset:{2048*t+24}""")
    rstamp(a, 1, 6, base=256)
    a(f"""s_waitcnt lgkmcnt(0)
    s_barrier
    v_lshlrev_b32 v4, 3, v0
    v_add_u32 v4, {4*A2_WB}, v4
    v_lshlrev_b32 v5, 11, v0
    s_lshl_b32 s37, s2, 3
    v_add_u32 v5, s37, v5
    v_lshlrev_b32 v6, 13, v0
    s_lshl_b32 s37, s2, 4
    v_add_u32 v6, s37, v6""")
    for j in range(8):
        a(f"""s_mov_b32 s37, {j*256*2048}
        buffer_load_dwordx2 v[{64+2*j}:{65+2*j}], v5, s[44:47], s37 offen
        ds_read_b64 v[{80+2*j}:{81+2*j}], v4 offset:{2048*j}""")
    a("s_waitcnt lgkmcnt(0)")
    for j in range(8):
        o = 96 + 4 * (j & 3)
        a(f"s_waitcnt vmcnt({7-j if j < 4 else 7 - j + 4})" if False else f"s_waitcnt vmcnt({7 - j + min(j, 4) if False else 0})" if False else "")
        a(f"s_waitcnt vmcnt({7})" if False else "")
    a("s_waitcnt vmcnt(0)")
    for j in range(8):
        o = 96 + 4 * (j & 3)
        for h in range(2):
            z = 80 + 2 * j + h
            qq = 64 + 2 * j + h
            a(f"""v_lshlrev_b32 v8, 16, v{z}
            v_and_b32 v9, 0xffff0000, v{z}
            v_lshlrev_b32 v10, 16, v{qq}
            v_and_b32 v11, 0xffff0000, v{qq}
            v_mul_f32 v8, v8, v10
            v_mul_f32 v9, v9, v11
            v_cvt_pk_bf16_f32 v8, v8, v9
            v_lshlrev_b32 v{o+2*h}, 16, v8
            v_and_b32 v{o+2*h+1}, 0xffff0000, v8""")
        a(f"""s_mov_b32 s37, {j*256*8192}
        buffer_store_dwordx4 v[{o}:{o+3}], v6, s[48:51], s37 offen""")
    a("s_waitcnt vmcnt(0)")
    rstamp(a, 2, 6, base=256)
    a(f"s_branch {done_label}")

def role_g2(a, done_label):
    NST = 3
    STG = 24576
    a(f"""s_load_dwordx2 s[4:5], s[0:1], {KA['x']}
    s_load_dwordx2 s[6:7], s[0:1], {KA['Cre']}
    s_load_dwordx2 s[8:9], s[0:1], {KA['Cim']}
    s_load_dwordx2 s[10:11], s[0:1], {KA['ws']}
    s_load_dwordx2 s[40:41], s[0:1], {KA['Dskip']}
    s_load_dwordx2 s[42:43], s[0:1], {KA['out']}""")
    xcd_remap(a)
    a("s_waitcnt lgkmcnt(0)")
    stamp_init(a, 10)
    a("""s_cmp_ge_u32 s29, 4
    s_cbranch_scc1 G2_loader""")
    srd(a, 20, 42, 16 << 20)
    srd(a, 48, 4, 4 << 20)
    srd(a, 52, 40, 2048)
    rstamp(a, 0, 10)
    stamp(a, 1, 0)
    a("""v_and_b32 v12, 31, v2
    v_lshrrev_b32 v13, 5, v2
    s_lshr_b32 s30, s29, 1
    s_lshl_b32 s30, s30, 6
    s_and_b32 s31, s29, 1
    s_lshl_b32 s31, s31, 5
    v_add_u32 v14, s30, v12
    v_lshlrev_b32 v14, 4, v14
    v_lshlrev_b32 v15, 11, v13
    v_add_u32 v20, v14, v15
    v_add_u32 v15, s31, v12
    v_lshrrev_b32 v16, 1, v15
    v_and_b32 v16, 7, v16
    v_lshlrev_b32 v15, 7, v15
    v_add_u32 v15, 16384, v15""")
    for ks in range(4):
        a(f"""v_add_u32 v17, {2*ks}, v13
        v_xor_b32 v17, v17, v16
        v_lshlrev_b32 v17, 4, v17
        v_add_u32 v{24+ks}, v15, v17""")
    ACC = 64
    FX, FY = 36, 48
    XR = 96
    a("""s_lshl_b32 s30, s28, 6
    s_and_b32 s31, s29, 1
    s_lshl_b32 s31, s31, 5
    s_add_u32 s30, s30, s31
    v_add_u32 v28, s30, v12
    s_lshl_b32 s30, s3, 7
    s_lshr_b32 s31, s29, 1
    s_lshl_b32 s31, s31, 6
    s_add_u32 s30, s30, s31
    v_lshlrev_b32 v29, 2, v13
    v_add_u32 v29, s30, v29
    v_lshlrev_b32 v30, 1, v28
    buffer_load_ushort v31, v30, s[52:55], 0 offen
    v_lshlrev_b32 v32, 11, v29
    v_add_u32 v32, v32, v30
    v_lshlrev_b32 v33, 13, v29
    v_lshlrev_b32 v34, 2, v28
    v_add3_u32 v33, v33, v34, 0
    v_add_u32 v33, 4096, v33""")
    for mt in range(2):
        for i in range(16):
            row = 32 * mt + 8 * (i >> 2) + (i & 3)
            a(f"""s_mov_b32 s30, {row*2048}
            buffer_load_ushort v{XR+16*mt+i}, v32, s[48:51], s30 offen""")
    for i in range(32):
        a(f"v_mov_b32 v{ACC+i}, 0")
    a("s_barrier")
    stamp(a, 1, 1)
    def reads(stage, ks, f):
        so = stage * STG
        a(f"""ds_read_b128 v[{f}:{f+3}], v20 offset:{so + ks*4096}
        ds_read_b128 v[{f+4}:{f+7}], v20 offset:{so + ks*4096 + 512}
        ds_read_b128 v[{f+8}:{f+11}], v{24+ks} offset:{so}""")
    def mfmas(f):
        for mt in range(2):
            c = ACC + 16 * mt
            a(f"v_mfma_f32_32x32x16_bf16 v[{c}:{c+15}], v[{f+4*mt}:{f+4*mt+3}], v[{f+8}:{f+11}], v[{c}:{c+15}]")
    reads(0, 0, FX)
    a("s_mov_b32 s37, 0")
    def step(stage, last=False):
        reads(stage, 1, FY)
        a("s_waitcnt lgkmcnt(3)")
        mfmas(FX)
        reads(stage, 2, FX)
        a("s_waitcnt lgkmcnt(3)")
        mfmas(FY)
        reads(stage, 3, FY)
        a("s_waitcnt lgkmcnt(3)")
        mfmas(FX)
        a("s_waitcnt lgkmcnt(0)")
        if not last:
            a("s_barrier")
            reads((stage + 1) % NST, 0, FX)
        mfmas(FY)
    a.label("G2_loop")
    step(0); step(1); step(2)
    a("""s_add_u32 s37, s37, 1
    s_cmp_lt_u32 s37, 10
    s_cbranch_scc1 G2_loop""")
    step(0); step(1, last=True)
    a("""s_waitcnt vmcnt(0)
    v_lshlrev_b32 v31, 16, v31
    s_nop 15""")
    stamp(a, 1, 2)
    for mt in range(2):
        for i in range(16):
            row = 32 * mt + 8 * (i >> 2) + (i & 3)
            x = XR + 16 * mt + i
            c = ACC + 16 * mt + i
            a(f"""v_lshlrev_b32 v{x}, 16, v{x}
            v_mul_f32 v{x}, v{x}, v31
            v_cvt_pk_bf16_f32 v{x}, v{x}, v{x}
            v_lshlrev_b32 v{x}, 16, v{x}
            v_fmac_f32 v{x}, 2.0, v{c}
            s_mov_b32 s30, {row*8192}
            buffer_store_dword v{x}, v33, s[20:23], s30 offen""")
    a("s_waitcnt vmcnt(0)")
    stamp(a, 1, 3)
    rstamp(a, 1, 10)
    a(f"s_branch {done_label}")
    a.label("G2_loader")
    a("s_sub_u32 s29, s29, 4")
    if PRIO: a("s_setprio 3")
    srd_off(a, 12, 10, WS_H, 8 << 20)
    srd(a, 16, 6, 2 << 20)
    a("""s_lshl_b32 s30, s3, 11
    v_lshlrev_b32 v4, 4, v2
    v_add_u32 v4, s30, v4
    v_lshrrev_b32 v12, 3, v2
    v_and_b32 v13, 7, v2
    v_lshrrev_b32 v14, 4, v2
    s_lshl_b32 s30, s29, 4
    s_lshl_b32 s31, s28, 6
    s_add_u32 s31, s31, s30""")
    for j in range(2):
        a(f"""v_add_u32 v15, {4*j}, v14
        v_xor_b32 v15, v13, v15
        v_lshlrev_b32 v15, 4, v15
        v_add_u32 v16, {8*j}, v12
        v_add_u32 v17, s31, v16
        v_lshlrev_b32 v17, 11, v17
        v_add_u32 v{8+j}, v17, v15""")
    def dma(stage):
        a(f"""s_cmp_ge_u32 s38, 16
        s_cselect_b32 s16, s8, s6
        s_cselect_b32 s17, s9, s7
        s_and_b32 s35, s38, 15
        s_lshl_b32 s35, s35, 7
        s_lshl_b32 s34, s38, 18
        s_lshl_b32 s36, s29, 16
        s_add_u32 s34, s34, s36""")
        for g in range(2):
            for hh in range(2):
                a(f"""s_lshl_b32 s36, s29, 12
                s_add_u32 s36, s36, {stage*STG + g*2048 + hh*1024}
                s_mov_b32 m0, s36
                s_add_u32 s39, s34, {g*32768 + hh*1024}
                buffer_load_dwordx4 v4, s[12:15], s39 offen{NT} lds""")
        for j in range(2):
            a(f"""s_lshl_b32 s36, s29, 11
            s_add_u32 s36, s36, {stage*STG + 16384 + 1024*j}
            s_mov_b32 m0, s36
            s_nop 0
            buffer_load_dwordx4 v{8+j}, s[16:19], s35 offen{NT} lds""")
        a("""s_add_u32 s38, s38, 1
        s_and_b32 s38, s38, 31""")
    a("""s_and_b32 s38, s2, 7
    s_lshl_b32 s38, s38, 2""")
    dma(0)
    dma(1)
    a("""s_waitcnt vmcnt(6)
    s_barrier
    s_mov_b32 s37, 0""")
    a.label("G2L_loop")
    for st in range(3):
        dma((st + 2) % NST)
        a("""s_waitcnt vmcnt(6)
        s_barrier""")
    a("""s_add_u32 s37, s37, 1
    s_cmp_lt_u32 s37, 10
    s_cbranch_scc1 G2L_loop
    s_waitcnt vmcnt(0)
    s_barrier""")
    a(f"s_branch {done_label}")

def gen_k2(a):
    name = "k2_kernel"
    kernel_head(a, name)
    a("""s_cmp_ge_u32 s2, 512
    s_cbranch_scc1 K2_done
    v_lshrrev_b32 v1, 6, v0
    v_and_b32 v2, 63, v0
    s_nop 0
    v_readfirstlane_b32 s29, v1
    s_cmp_ge_u32 s2, 256
    s_cbranch_scc0 K2_g2
    s_sub_u32 s2, s2, 256""")
    role_a2(a, "K2_done")
    a.label("K2_g2")
    role_g2(a, "K2_done")
    a.label("K2_done")
    a("s_endpgm")
    return name, 200 if STAMPS else 128, 73728

def gen_k3(a):
    name = "k3_kernel"
    STR = 144
    kernel_head(a, name)
    a(f"""s_cmp_ge_u32 s2, 512
    s_cbranch_scc1 A3_done
    s_load_dwordx2 s[4:5], s[0:1], {KA['q']}
    s_load_dwordx2 s[6:7], s[0:1], {KA['out']}
    s_load_dwordx2 s[10:11], s[0:1], {KA['ws']}
    s_and_b32 s3, s2, 31
    s_lshr_b32 s28, s2, 5
    s_waitcnt lgkmcnt(0)""")
    srd(a, 12, 4, 4 << 20)
    srd(a, 16, 6, 16 << 20)
    srd_off(a, 24, 10, WS_ZT, 4 << 20)
    a(f"""v_and_b32 v1, 7, v0
    v_lshrrev_b32 v2, 3, v0
    s_lshl_b32 s29, s3, 6
    s_lshl_b32 s30, s28, 6
    v_add_u32 v3, s30, v2
    v_lshlrev_b32 v3, 12, v3
    v_lshlrev_b32 v4, 4, v1
    s_lshl_b32 s31, s29, 1
    v_add3_u32 v3, v3, v4, s31
    v_add_u32 v5, {32*4096}, v3
    buffer_load_dwordx4 v[8:11], v3, s[24:27], 0 offen
    buffer_load_dwordx4 v[12:15], v5, s[24:27], 0 offen
    v_add_u32 v6, s29, v2
    v_lshlrev_b32 v7, 11, v6
    s_lshl_b32 s31, s30, 1
    v_add3_u32 v7, v7, v4, s31
    v_add_u32 v5, {32*2048}, v7
    buffer_load_dwordx4 v[16:19], v7, s[12:15], 0 offen
    buffer_load_dwordx4 v[20:23], v5, s[12:15], 0 offen
    v_mul_u32_u24 v24, {8*STR}, v1
    v_lshlrev_b32 v25, 1, v2
    v_add_u32 v24, v24, v25
    s_waitcnt vmcnt(2)""")
    for hh in range(2):
        for e in range(4):
            r = 8 + 4 * hh + e
            a(f"""ds_write_b16 v24, v{r} offset:{(2*e)*STR + 64*hh}
            ds_write_b16_d16_hi v24, v{r} offset:{(2*e+1)*STR + 64*hh}""")
    a(f"""s_waitcnt lgkmcnt(0)
    s_barrier
    v_mul_u32_u24 v24, {STR}, v2
    v_add_u32 v24, v24, v4
    ds_read_b128 v[8:11], v24
    ds_read_b128 v[12:15], v24 offset:{32*STR}
    v_lshlrev_b32 v26, 13, v6
    v_lshlrev_b32 v27, 5, v1
    s_lshl_b32 s31, s30, 2
    v_add3_u32 v26, v26, v27, s31
    v_add_u32 v27, {32*8192}, v26
    s_waitcnt vmcnt(0) lgkmcnt(0)""")
    for hh in range(2):
        o = 32 + 8 * hh
        for i in range(4):
            z = 8 + 4 * hh + i
            qq = 16 + 4 * hh + i
            a(f"""v_lshlrev_b32 v28, 16, v{z}
            v_and_b32 v29, 0xffff0000, v{z}
            v_lshlrev_b32 v30, 16, v{qq}
            v_and_b32 v31, 0xffff0000, v{qq}
            v_mul_f32 v28, v28, v30
            v_mul_f32 v29, v29, v31
            v_cvt_pk_bf16_f32 v28, v28, v29
            v_lshlrev_b32 v{o+2*i}, 16, v28
            v_and_b32 v{o+2*i+1}, 0xffff0000, v28""")
        ad = 26 + hh
        a(f"""buffer_store_dwordx4 v[{o}:{o+3}], v{ad}, s[16:19], 0 offen
        buffer_store_dwordx4 v[{o+4}:{o+7}], v{ad}, s[16:19], 0 offen offset:16""")
    a("s_waitcnt vmcnt(0)")
    a.label("A3_done")
    a("s_endpgm")
    return name, 64, 64 * STR

def main():
    a = Asm()
    kernels = [(gen_k1(a), 256, 512), (gen_k2(a), 512, 512)]
    hdr = open("/code/" + NAME + ".s.ref").read().split("\n")
    out = []
    for ln in hdr:
        if ln.startswith("; @launch") or ln.startswith(".amdgcn"):
            break
        if ln.startswith("; Override") or ln.startswith("; grid="):
            continue
        out.append(ln)
    for (name, vg, lds), grid, blk in kernels:
        out.append(f"; @launch kernel={name} grid=({grid},1,1) block=({blk},1,1) lds={lds}")
    out.append('.amdgcn_target "amdgcn-amd-amdhsa--gfx950"')
    out.append(".text")
    out += a.l
    out.append('.section .rodata,"a"')
    for (name, vg, lds), grid, blk in kernels:
        out.append(kernel_desc(name, vg))
    open(("stamp.s" if (STAMPS or RST) else ("prio.s" if PRIO else "/code/" + NAME + ".s")), "w").write("\n".join(out) + "\n")
main()
```

```python
import sys, re
sys.argv = [sys.argv[0]] + sys.argv[1:]
SPIN = int(sys.argv[1]); dst = sys.argv[2]
src = open("gen2.py").read().replace("\nmain()\n", "\n")
sys.argv = [sys.argv[0]]
exec(src)
a = Asm()
name = NAME + "_kernel"
kernel_head(a, name)
a("""s_memrealtime s[92:93]
s_cmp_ge_u32 s2, 256
s_cbranch_scc1 F_done
s_mov_b32 s99, s2
v_mov_b32 v195, v0
v_lshrrev_b32 v1, 6, v0
v_and_b32 v2, 63, v0
s_nop 0
v_readfirstlane_b32 s29, v1
s_nop 3
s_mov_b32 s98, s29""")
role_g1(a, "F_p1")
a.label("F_p1")
a(f"""s_waitcnt vmcnt(0) lgkmcnt(0)
s_barrier
s_cmp_eq_u32 s98, 0
s_cbranch_scc0 F_wait
s_load_dwordx2 s[4:5], s[0:1], 128
s_waitcnt lgkmcnt(0)
s_mov_b32 s8, s4
s_mov_b32 s9, s5
s_mov_b32 s10, 256
s_mov_b32 s11, 0x00020000
buffer_wbl2 sc1
s_waitcnt vmcnt(0)
s_mov_b64 exec, 1
v_mov_b32 v4, 1
v_mov_b32 v5, 128
buffer_atomic_add v4, v5, s[8:11], 0 offen sc1
s_waitcnt vmcnt(0)
s_mov_b32 s12, 0""")
a.label("F_poll")
a("""buffer_load_dword v4, v5, s[8:11], 0 offen sc1
s_waitcnt vmcnt(0)
v_readfirstlane_b32 s13, v4
s_add_u32 s12, s12, 1
s_cmp_gt_u32 s12, 200000
s_cbranch_scc1 F_pdone
s_sleep 4
s_cmp_lt_u32 s13, 256
s_cbranch_scc1 F_poll""")
a.label("F_pdone")
a("""s_mov_b64 exec, -1
buffer_inv sc1
s_waitcnt vmcnt(0)""")
a.label("F_wait")
a("""s_barrier
s_mov_b32 s2, s99
v_mov_b32 v0, v195
v_lshrrev_b32 v1, 6, v0
v_and_b32 v2, 63, v0
s_mov_b32 s29, s98""")
role_g2(a, "F_p2")
a.label("F_p2")
a("""s_waitcnt vmcnt(0) lgkmcnt(0)
s_barrier
s_mov_b32 s2, s99
v_mov_b32 v0, v195
v_lshrrev_b32 v1, 6, v0
v_and_b32 v2, 63, v0
s_mov_b32 s29, s98""")
role_a2(a, "F_p3")
a.label("F_p3")
if SPIN:
    a(f"""s_cmp_eq_u32 s99, 0
    s_cbranch_scc0 F_done
    s_cmp_eq_u32 s98, 0
    s_cbranch_scc0 F_done
    s_mov_b32 s44, 0""")
    a.label("F_spin")
    a(f"""s_memrealtime s[42:43]
    s_waitcnt lgkmcnt(0)
    s_sub_u32 s42, s42, s92
    s_add_u32 s44, s44, 1
    s_cmp_gt_u32 s44, 100000
    s_cbranch_scc1 F_done
    s_cmp_lt_u32 s42, {SPIN}
    s_cbranch_scc1 F_spin""")
a.label("F_done")
a("s_endpgm")
hdr = open("/code/" + NAME + ".s.ref").read().split("\n")
out = []
for ln in hdr:
    if ln.startswith("; @launch") or ln.startswith(".amdgcn"):
        break
    if ln.startswith("; Override") or ln.startswith("; grid="):
        continue
    out.append(ln)
out.append(f"; @launch grid=(256,1,1) block=(512,1,1) lds=98304")
out.append('.amdgcn_target "amdgcn-amd-amdhsa--gfx950"')
out.append(".text")
out += a.l
out.append('.section .rodata,"a"')
out.append(kernel_desc(name, 200))
open(dst, "w").write("\n".join(out) + "\n")
```

```python
import sys
NAME = "concat_heads__ssm_conv_h3__ssm_conv_s5__prompt"
KA = dict(q=0, k=8, v=16, shift=24, ssmk=32, ssmD=40, x=48, Lre=56, Lim=64, Bre=72, Bim=80, Cre=88, Cim=96,
          logdt=104, Dskip=112, out=120, dbg=128, ws=136)
STB = 0x4000000
def desc(name, vgpr=64, sgpr=64):
    return f"""
.p2align 6
.amdhsa_kernel {name}
  .amdhsa_next_free_vgpr {vgpr}
  .amdhsa_next_free_sgpr {sgpr}
  .amdhsa_accum_offset {vgpr}
  .amdhsa_group_segment_fixed_size 0
  .amdhsa_kernarg_size 144
  .amdhsa_user_sgpr_count 2
  .amdhsa_user_sgpr_kernarg_segment_ptr 1
  .amdhsa_system_sgpr_workgroup_id_x 1
.end_amdhsa_kernel
"""
def head(name):
    return f""".p2align 8
.globl {name}
.type {name},@function
{name}:
"""
def probe_wrap(name, pid, nwg, nwaves, body):
    return head(name) + f"""    s_memrealtime s[94:95]
    s_cmp_ge_u32 s2, {nwg}
    s_cbranch_scc1 {name}_done
    v_lshrrev_b32 v1, 6, v0
    v_and_b32 v2, 63, v0
    s_nop 0
    v_readfirstlane_b32 s29, v1
{body}
    s_memrealtime s[96:97]
    s_load_dwordx2 s[4:5], s[0:1], 136
    s_waitcnt lgkmcnt(0)
    s_add_u32 s8, s4, {STB + pid*0x10000}
    s_addc_u32 s9, s5, 0
    s_mov_b32 s10, 0x10000
    s_mov_b32 s11, 0x00020000
    s_mul_i32 s12, s2, {nwaves}
    s_add_u32 s12, s12, s29
    s_lshl_b32 s12, s12, 3
    v_mov_b32 v4, s94
    v_mov_b32 v5, s96
    v_mov_b32 v6, s12
    buffer_store_dwordx2 v[4:5], v6, s[8:11], 0 offen
    s_waitcnt vmcnt(0)
{name}_done:
    s_endpgm
"""
def report(slots):
    k3 = head("rep_kernel") + """    s_cmp_ge_u32 s2, 1
    s_cbranch_scc1 K3_done
    s_load_dwordx2 s[4:5], s[0:1], 136
    s_load_dwordx2 s[6:7], s[0:1], 128
    s_waitcnt lgkmcnt(0)
    s_add_u32 s8, s4, 0x4000000
    s_addc_u32 s9, s5, 0
    s_mov_b32 s10, 0x1000000
    s_mov_b32 s11, 0x00020000
    s_mov_b32 s16, s6
    s_mov_b32 s17, s7
    s_mov_b32 s18, 256
    s_mov_b32 s19, 0x00020000
    v_lshlrev_b32 v1, 3, v0
"""
    for kid, n in enumerate(slots):
        base = kid * 0x10000
        k3 += f"""    v_mov_b32 v10, -1
    v_mov_b32 v11, 0
    v_mov_b32 v12, -1
    v_mov_b32 v13, 0
    s_mov_b32 s20, {base}
K3_l{kid}:
    buffer_load_dwordx2 v[4:5], v1, s[8:11], s20 offen
    s_waitcnt vmcnt(0)
    v_min_u32 v10, v10, v4
    v_max_u32 v11, v11, v4
    v_min_u32 v12, v12, v5
    v_max_u32 v13, v13, v5
    s_add_u32 s20, s20, 512
    s_cmp_lt_u32 s20, {base + n*8}
    s_cbranch_scc1 K3_l{kid}
    s_mov_b32 s24, -1
    s_mov_b32 s25, 0
    s_mov_b32 s26, -1
    s_mov_b32 s27, 0
    s_mov_b32 s21, 0
K3_r{kid}:
    s_nop 4
    v_readlane_b32 s28, v10, s21
    v_readlane_b32 s29, v11, s21
    v_readlane_b32 s30, v12, s21
    v_readlane_b32 s31, v13, s21
    s_nop 4
    s_min_u32 s24, s24, s28
    s_max_u32 s25, s25, s29
    s_min_u32 s26, s26, s30
    s_max_u32 s27, s27, s31
    s_add_u32 s21, s21, 1
    s_cmp_lt_u32 s21, 64
    s_cbranch_scc1 K3_r{kid}
    s_sub_u32 s25, s25, s24
    s_sub_u32 s26, s26, s24
    s_sub_u32 s27, s27, s24
    s_mul_i32 s25, s25, 10000
    s_add_u32 s25, s25, s26
    v_mov_b32 v4, s25
    v_mov_b32 v5, s27
    v_mov_b32 v8, {8*kid}
    buffer_store_dwordx2 v[4:5], v8, s[16:19], 0 offen
    s_waitcnt vmcnt(0)
"""
    k3 += """K3_done:
    s_endpgm
"""
    return k3
def build(probes, dst, src="/code/" + NAME + ".s"):
    s = open(src).read()
    code = ""; descs = ""; launches = ""
    for pid, (name, nwg, nw, lds, vg, body) in enumerate(probes):
        code += probe_wrap(name, pid, nwg, nw, body)
        descs += desc(name, vg, 100)
        launches += f"; @launch kernel={name} grid=({nwg},1,1) block=({64*nw},1,1) lds={lds}\n"
    code += report([p[1] * p[2] for p in probes])
    descs += desc("rep_kernel", 32, 64)
    s = s.replace("; @launch kernel=k1_kernel", launches + "; @launch kernel=k1_kernel", 1)
    s = s.replace('.amdgcn_target', '; @launch kernel=rep_kernel grid=(1,1,1) block=(64,1,1) lds=0\n.amdgcn_target', 1)
    s = s.replace('.section .rodata,"a"', code + '.section .rodata,"a"', 1)
    s += descs
    open(dst, "w").write(s)
def rd(bufs, nwaves, flags, nper):
    body = ""
    r = 8
    per = 16384 // nwaves // 1024
    for bi, b in enumerate(bufs):
        body += f"""    s_load_dwordx2 s[4:5], s[0:1], {KA[b]}
    s_waitcnt lgkmcnt(0)
    s_mov_b32 s{12+4*bi}, s4
    s_mov_b32 s{13+4*bi}, s5
    s_mov_b32 s{14+4*bi}, 4194304
    s_mov_b32 s{15+4*bi}, 0x00020000
"""
    body += f"""    s_lshl_b32 s3, s2, 14
    s_mul_i32 s30, s29, {16384//nwaves}
    s_add_u32 s3, s3, s30
    v_lshlrev_b32 v3, 4, v2
    v_add_u32 v3, s3, v3
"""
    for bi, b in enumerate(bufs):
        for i in range(per):
            body += f"    buffer_load_dwordx4 v[{r}:{r+3}], v3, s[{12+4*bi}:{15+4*bi}], 0 offen offset:{1024*i if i < 4 else 0}{flags}\n" if per <= 4 else f"    s_mov_b32 s31, {1024*i}\n    buffer_load_dwordx4 v[{r}:{r+3}], v3, s[{12+4*bi}:{15+4*bi}], s31 offen{flags}\n"
            r += 4
    body += "    s_waitcnt vmcnt(0)\n"
    return body, r
if __name__ == "__main__":
    P = []
    b, r = rd(["q", "k"], 8, "", 0); P.append(("p0_kernel", 256, 8, 0, 64, b))
    b, r = rd(["v", "ssmk"], 8, " nt", 0); P.append(("p1_kernel", 256, 8, 0, 64, b))
    b, r = rd(["x"], 8, " sc1", 0); P.append(("p2_kernel", 256, 8, 0, 64, b))
    b, r = rd(["q", "k"], 8, "", 0); P.append(("p3_kernel", 256, 8, 0, 64, b))
    b, r = rd(["q", "k", "v", "ssmk"], 8, "", 0); P.append(("p4_kernel", 256, 8, 0, 64, b))
    P.append(("p5_kernel", 256, 8, 0, 64, ""))
    build(P, "probe1.s")
```

```python
import sys
sys.path.insert(0, "exp")
import probe
from probe import *
def report2(slots):
    k3 = head("rep_kernel") + """    s_cmp_ge_u32 s2, 1
    s_cbranch_scc1 K3_done
    s_load_dwordx2 s[4:5], s[0:1], 136
    s_load_dwordx2 s[6:7], s[0:1], 128
    s_waitcnt lgkmcnt(0)
    s_add_u32 s8, s4, 0x4000000
    s_addc_u32 s9, s5, 0
    s_mov_b32 s10, 0x1000000
    s_mov_b32 s11, 0x00020000
    s_mov_b32 s16, s6
    s_mov_b32 s17, s7
    s_mov_b32 s18, 256
    s_mov_b32 s19, 0x00020000
    v_lshlrev_b32 v1, 3, v0
"""
    for kid, n in enumerate(slots):
        base = kid * 0x10000
        import math
        k3 += f"""    v_mov_b32 v11, 0
    v_mov_b32 v13, 0
    s_mov_b32 s20, {base}
K3_l{kid}:
    buffer_load_dwordx2 v[4:5], v1, s[8:11], s20 offen
    s_waitcnt vmcnt(0)
    v_sub_u32 v4, v5, v4
    v_add_u32 v11, v11, v4
    v_max_u32 v13, v13, v4
    s_add_u32 s20, s20, 512
    s_cmp_lt_u32 s20, {base + n*8}
    s_cbranch_scc1 K3_l{kid}
    s_mov_b32 s25, 0
    s_mov_b32 s27, 0
    s_mov_b32 s21, 0
K3_r{kid}:
    s_nop 4
    v_readlane_b32 s29, v11, s21
    v_readlane_b32 s31, v13, s21
    s_nop 4
    s_add_u32 s25, s25, s29
    s_max_u32 s27, s27, s31
    s_add_u32 s21, s21, 1
    s_cmp_lt_u32 s21, 64
    s_cbranch_scc1 K3_r{kid}
    s_lshr_b32 s25, s25, {int(math.log2(n))}
    s_mul_i32 s25, s25, 10000
    s_add_u32 s25, s25, s27
    v_mov_b32 v4, s25
    v_mov_b32 v8, {4*kid}
    buffer_store_dword v4, v8, s[16:19], 0 offen
    s_waitcnt vmcnt(0)
"""
    k3 += """K3_done:
    s_endpgm
"""
    return k3
probe.report = report2
def rd2(bufs, nwaves, flags, rot, sz=4194304, mode="contig"):
    body = ""
    r = 8
    ch = sz // 256
    per = ch // nwaves // 1024
    for bi, b in enumerate(bufs):
        body += f"""    s_load_dwordx2 s[{12+4*bi}:{13+4*bi}], s[0:1], {KA[b]}
"""
    body += "    s_waitcnt lgkmcnt(0)\n"
    for bi, b in enumerate(bufs):
        body += f"""    s_mov_b32 s{14+4*bi}, {sz}
    s_mov_b32 s{15+4*bi}, 0x00020000
"""
    body += f"""    s_add_u32 s3, s2, {rot}
    s_and_b32 s3, s3, 255
"""
    if mode == "contig":
        body += f"""    s_mul_i32 s3, s3, {ch}
    s_mul_i32 s30, s29, {ch//nwaves}
    s_add_u32 s3, s3, s30
    v_lshlrev_b32 v3, 4, v2
    v_add_u32 v3, s3, v3
"""
        step = 1024
    else:
        R = sz // 2048 // 16
        body += f"""    s_and_b32 s30, s3, 15
    s_lshl_b32 s30, s30, 7
    s_lshr_b32 s3, s3, 4
    s_mul_i32 s3, s3, {R*2048}
    s_add_u32 s3, s3, s30
    s_mul_i32 s30, s29, {R//nwaves*2048}
    s_add_u32 s3, s3, s30
    v_lshrrev_b32 v3, 3, v2
    v_lshlrev_b32 v3, 11, v3
    v_and_b32 v4, 7, v2
    v_lshlrev_b32 v4, 4, v4
    v_add3_u32 v3, v3, v4, s3
"""
        step = 8 * 2048
    body += "    s_memrealtime s[94:95]\n    s_waitcnt lgkmcnt(0)\n"
    for bi, b in enumerate(bufs):
        for i in range(per):
            body += f"    s_mov_b32 s31, {step*i}\n    buffer_load_dwordx4 v[{r}:{r+3}], v3, s[{12+4*bi}:{15+4*bi}], s31 offen{flags}\n"
            r += 4
    body += "    s_waitcnt vmcnt(0)\n"
    return body
if __name__ == "__main__":
    P = []
    def add(*a, **k):
        P.append((f"p{len(P)}_kernel", 256, 8, 0, 64, rd2(*a, **k)))
    A = ["q", "k", "v", "ssmk"]
    add(A, 8, "", 0)
    add(A, 8, "", 0)
    add(A, 8, "", 1)
    add(A, 8, "", 2)
    add(A, 8, "", 3, mode="str")
    add(["x"], 8, "", 0, mode="str")
    add(["Bre", "Bim", "Cre", "Cim"], 8, "", 0, sz=2097152)
    add(["Bre", "Bim", "Cre", "Cim"], 8, "", 1, sz=2097152)
    add(A, 8, " nt", 4)
    add(A, 8, " sc1", 5)
    build(P, "probe2.s")
```

```python
import sys
NAME = "concat_heads__ssm_conv_h3__ssm_conv_s5__prompt"
OPT = dict(out="/code/" + NAME + ".s", stamp=0, roll1=1, a1ld=1, a1c=5, kvw=2, poll=12, a3ld=4, a3c=8, xsite=2,
           rep=0)
for arg in sys.argv[1:]:
    k, v = arg.split("=")
    OPT[k] = v if k == "out" else int(v)
STAMP = OPT["stamp"]
P = dict(q=32, k=34, v=36, shift=38, ssmk=40, ssmD=42, x=44, Lre=46, Lim=48, Bre=50, Bim=52, Cre=54, Cim=56,
         logdt=58, Dskip=60, out=62, dbg=64, ws=66)
WS_KVT = 0
WS_ZT = 4 << 20
WS_H = 8 << 20
WS_E = 16 << 20
WS_FLG = 17 << 20
WS_STAMP = 64 << 20
SPIN = 4096

class Asm:
    def __init__(self):
        self.l = []
    def __call__(self, s):
        for ln in s.strip("\n").split("\n"):
            ln = ln.strip()
            if ln:
                self.l.append("    " + ln)
    def label(self, s):
        self.l.append(s + ":")

class VM:
    def __init__(self):
        self.ops = []
    def add(self, tag, n=1):
        self.ops += [tag] * n
    def cnt(self, *tags):
        last = max(i for i, t in enumerate(self.ops) if t in tags)
        return min(63, len(self.ops) - 1 - last)

def kernel_head(a, name):
    a.l += [".p2align 8", f".globl {name}", f".type {name},@function"]
    a.label(name)

def kernel_desc(name, vgpr, sgpr=102):
    acc = (vgpr + 3) // 4 * 4
    return f""".p2align 6
.amdhsa_kernel {name}
  .amdhsa_next_free_vgpr {vgpr}
  .amdhsa_next_free_sgpr {sgpr}
  .amdhsa_accum_offset {acc}
  .amdhsa_group_segment_fixed_size 0
  .amdhsa_kernarg_size 144
  .amdhsa_user_sgpr_count 2
  .amdhsa_user_sgpr_kernarg_segment_ptr 1
  .amdhsa_system_sgpr_workgroup_id_x 1
.end_amdhsa_kernel"""

def srd(a, d, name, nbytes, off=0):
    b = P[name]
    if off:
        a(f"s_add_u32 s{d}, s{b}, {off}\ns_addc_u32 s{d+1}, s{b+1}, 0")
    else:
        a(f"s_mov_b32 s{d}, s{b}\ns_mov_b32 s{d+1}, s{b+1}")
    a(f"s_mov_b32 s{d+2}, {nbytes}\ns_mov_b32 s{d+3}, 0x00020000")

def S(d):
    return f"s[{d}:{d+3}]"
def V(d, n):
    return f"v[{d}:{d+n-1}]"

def stamp(a, i):
    if STAMP:
        a(f"s_memrealtime s[{84+2*i}:{85+2*i}]")
def stamp_out(a, kid):
    if not STAMP: return
    a("s_waitcnt vmcnt(0) lgkmcnt(0)")
    stamp(a, 7)
    srd(a, 8, "ws", 1 << 20, WS_STAMP + kid * 65536)
    a("""s_lshl_b32 s6, s2, 3
    s_add_u32 s6, s6, s5
    s_lshl_b32 s6, s6, 5
    v_mov_b32 v1, s6
    s_waitcnt lgkmcnt(0)""")
    for i in range(8):
        a(f"v_mov_b32 v{4+i}, s{84+2*i}")
    a("""s_mov_b64 exec, 1
    buffer_store_dwordx4 v[4:7], v1, s[8:11], 0 offen
    buffer_store_dwordx4 v[8:11], v1, s[8:11], 0 offen offset:16
    s_waitcnt vmcnt(0)""")

def cmul(a, d, x, y, c=None):
    if c is None:
        a(f"v_mul_f32 v{d}, v{x}, v{y}\nv_mul_f32 v{d+1}, v{x}, v{y+1}")
    else:
        a(f"v_fma_f32 v{d}, v{x}, v{y}, v{c}\nv_fma_f32 v{d+1}, v{x}, v{y+1}, v{c+1}")
    a(f"v_fma_f32 v{d}, -v{x+1}, v{y+1}, v{d}\nv_fmac_f32 v{d+1}, v{x+1}, v{y}")

def entry(a, done, other):
    stamp(a, 0)
    a(f"""s_cmp_ge_u32 s2, 256
    s_cbranch_scc1 {done}
    s_load_dwordx16 s[32:47], s[0:1], 0
    s_load_dwordx16 s[48:63], s[0:1], 64
    s_load_dwordx4 s[64:67], s[0:1], 128
    v_lshrrev_b32 v1, 6, v0
    v_and_b32 v2, 63, v0
    s_and_b32 s6, s2, 3
    v_readfirstlane_b32 s5, v1
    s_lshl_b32 s6, s6, 2
    s_lshr_b32 s7, s2, 3
    s_and_b32 s3, s7, 3
    s_add_u32 s3, s3, s6            ; mt
    s_and_b32 s6, s2, 4
    s_lshl_b32 s6, s6, 1
    s_lshr_b32 s4, s7, 2
    s_add_u32 s4, s4, s6            ; nt
    s_cmp_lt_u32 s5, 4
    s_cbranch_scc1 {other}""")

def interleave(a, main, fill, per):
    fill = list(fill)
    for m in main:
        a(m)
        for _ in range(per):
            if fill: a(fill.pop(0))
    for f in fill: a(f)

SL1 = [98304, 0, 32768, 65536]
L_O = 98304
L_U = 114944
L_N = 133376
L_E = 133440
L_ST = 147456

def k1_loader(a):
    vm = VM()
    X, BR, BI, KS, VS, SH, SK, KV, FL, ZT = 8, 12, 16, 20, 24, 28, 68, 72, 76, 80
    a("""s_sub_u32 s6, s5, 4             ; lw
    v_lshrrev_b32 v12, 3, v2        ; r
    v_and_b32 v13, 7, v2
    v_lshrrev_b32 v14, 4, v2        ; r>>1
    v_xor_b32 v13, v13, v14
    v_lshlrev_b32 v13, 4, v13
    v_lshrrev_b32 v14, 5, v2        ; r>>2
    v_lshlrev_b32 v14, 5, v14
    v_and_b32 v15, 3, v12
    v_add_u32 v14, v14, v15
    v_lshl_add_u32 v14, v14, 11, v13   ; ve
    v_lshl_add_u32 v15, v12, 11, v13   ; vb
    s_lshl_b32 s7, s3, 4
    s_add_u32 s7, s7, s6
    s_lshl_b32 s7, s7, 14           ; (128mt+8lw)*2048
    v_add_u32 v4, s7, v14
    v_xor_b32 v5, 64, v4
    v_add_u32 v5, 0x1fc00, v5
    v_add_u32 v6, 0x1800, v4
    v_add_u32 v7, 0x1800, v5
    s_lshl_b32 s7, s4, 2
    s_add_u32 s7, s7, s6
    s_lshl_b32 s7, s7, 15           ; (64nt+16lw)*2048
    v_add_u32 v8, s7, v15
    v_xor_b32 v9, 64, v8
    v_add_u32 v9, 0x3c00, v9
    s_and_b32 s30, s2, 3
    s_lshl_b32 s30, s30, 2
    s_and_b32 s31, s2, 4
    s_lshl_b32 s31, s31, 1
    s_add_u32 s30, s30, s31
    s_add_u32 s31, s3, s4
    s_and_b32 s31, s31, 1
    s_lshl_b32 s31, s31, 1
    s_add_u32 s30, s30, s31
    s_and_b32 s30, s30, 15
    s_lshl_b32 s100, s30, 7         ; koff
    s_lshl_b32 s101, s6, 12         ; lw*4096
    s_waitcnt lgkmcnt(0)""")
    srd(a, X, "x", 4 << 20)
    srd(a, BR, "Bre", 2 << 20)
    srd(a, BI, "Bim", 2 << 20)
    def dma(s):
        sl = SL1[s % 4]
        L = []
        L.append(f"s_add_u32 m0, s101, {sl}\ns_nop 0\nbuffer_load_dwordx4 v4, {S(X)}, s100 offen lds")
        for j in range(1, 4):
            L.append(f"buffer_load_dwordx4 v{4+j}, {S(X)}, s100 offen offset:{1024*j} lds")
        L.append(f"s_add_u32 m0, s101, {sl+16384}\ns_nop 0\nbuffer_load_dwordx4 v8, {S(BR)}, s100 offen lds")
        L.append(f"buffer_load_dwordx4 v9, {S(BR)}, s100 offen offset:1024 lds")
        L.append(f"s_add_u32 m0, s101, {sl+16384+2048}\ns_nop 0\nbuffer_load_dwordx4 v8, {S(BI)}, s100 offen lds")
        L.append(f"buffer_load_dwordx4 v9, {S(BI)}, s100 offen offset:1024 lds\ns_add_u32 s100, s100, 128\ns_and_b32 s100, s100, 2047")
        vm.add(f"d{s}", 8)
        return L
    for s in (0, 1):
        for x in dma(s): a(x)
    srd(a, KS, "k", 4 << 20)
    srd(a, VS, "v", 4 << 20)
    srd(a, SH, "shift", 8192)
    srd(a, SK, "ssmk", 4 << 20)
    srd(a, KV, "ws", 4 << 20, WS_KVT)
    srd(a, FL, "ws", 2048, WS_FLG)
    srd(a, ZT, "ws", 4 << 20, WS_ZT)
    WRAW, WF, KR, VR, KT, AC, OUT = 16, 24, 40, 62, 78, 90, 98
    a(f"""s_lshr_b32 s7, s2, 3
    s_and_b32 s32, s7, 15           ; a_mt
    s_lshr_b32 s7, s7, 4
    s_and_b32 s33, s2, 7
    s_lshl_b32 s33, s33, 1
    s_add_u32 s33, s33, s7          ; a_nt
    s_lshl_b32 s34, s33, 4
    s_add_u32 s34, s34, s32
    s_lshl_b32 s34, s34, 2
    s_add_u32 s34, s34, s6          ; A2 channel
    s_lshl_b32 s35, s34, 12         ; ch*4096
    s_load_dword s36, s[{P['ssmk']}:{P['ssmk']+1}], s35
    s_lshr_b32 s7, s34, 1
    s_lshl_b32 s7, s7, 2
    s_load_dword s37, s[{P['ssmD']}:{P['ssmD']+1}], s7
    v_and_b32 v12, 15, v2           ; cq / n / m
    v_lshrrev_b32 v13, 4, v2        ; tg / g
    s_lshl_b32 s7, s32, 2
    s_add_u32 s7, s7, s6
    s_lshl_b32 s7, s7, 16           ; t0*2048
    s_lshl_b32 s38, s33, 7
    s_add_u32 s7, s7, s38
    v_lshlrev_b32 v10, 14, v13
    v_lshl_add_u32 v10, v12, 3, v10
    v_add_u32 v10, s7, v10
    v_subrev_u32 v11, 0x1800, v10
    v_bfrev_b32 v14, 1
    v_cmp_gt_i32 vcc, 0, v11
    s_lshl_b32 s7, s33, 9
    v_lshlrev_b32 v15, 5, v12
    v_cndmask_b32 v11, v11, v14, vcc
    v_add_u32 v14, s7, v15
    s_lshl_b32 s7, s6, 2
    v_add_u32 v15, s7, v13
    v_sub_u32 v15, 15, v15
    v_xor_b32 v15, v15, v12
    v_lshlrev_b32 v15, 4, v15
    v_lshl_add_u32 v15, v12, 10, v15
    v_add_u32 v15, {L_ST}, v15
    s_mov_b32 s38, 4096
    s_mov_b32 s39, 8192
    s_mov_b32 s44, 12288""")
    SOFF = ["0", "s38", "s39", "s44"]
    ld = []
    ld.append(f"buffer_load_dwordx4 {V(WRAW,4)}, v14, {S(SH)}, 0 offen")
    ld.append(f"buffer_load_dwordx4 {V(WRAW+4,4)}, v14, {S(SH)}, 0 offen offset:16")
    for i in range(3):
        ld.append(f"buffer_load_dwordx2 {V(KR+2*i,2)}, v11, {S(KS)}, {SOFF[i>>1]} offen offset:{2048*(i&1)}")
    for i in range(8):
        ld.append(f"buffer_load_dwordx2 {V(KR+6+2*i,2)}, v10, {S(KS)}, {SOFF[i>>1]} offen offset:{2048*(i&1)}")
    for i in range(8):
        ld.append(f"buffer_load_dwordx2 {V(VR+2*i,2)}, v10, {S(VS)}, {SOFF[i>>1]} offen offset:{2048*(i&1)}")
    def unp(d, s, hi):
        return f"v_and_b32 v{d}, 0xffff0000, v{s}" if hi else f"v_lshlrev_b32 v{d}, 16, v{s}"
    def a1_chan(c):
        L = []
        for j in range(4):
            L.append(unp(WF + j, WRAW + 2 * c + (j >> 1), j & 1))
        for i in range(11):
            L.append(unp(KT + i, KR + 2 * i + (c >> 1), c & 1))
        for t in range(8):
            L.append(f"v_mul_f32 v{AC+t}, v{WF}, v{KT+t+3}")
        for j in range(1, 4):
            for t in range(8):
                L.append(f"v_fmac_f32 v{AC+t}, v{WF+j}, v{KT+t+3-j}")
        for t in range(8):
            L.append(unp(KT + t, VR + 2 * t + (c >> 1), c & 1))
        for t in range(8):
            L.append(f"v_mul_f32 v{AC+t}, v{AC+t}, v{KT+t}")
        o = OUT + 4 * (c & 1)
        for i in range(4):
            L.append(f"v_cvt_pk_bf16_f32 v{o+i}, v{AC+7-2*i}, v{AC+6-2*i}")
        L.append(f"ds_write_b128 v15, {V(o,4)} offset:{256*c}")
        return L
    a(f"s_waitcnt vmcnt({vm.cnt('d0')})\ns_barrier")
    stamp(a, 1)
    LD, C0, POLL = OPT["a1ld"], OPT["a1c"], OPT["poll"]
    assert POLL - 1 >= C0 + 3 and C0 + 5 <= 12
    AAD, BAD, DFR, ZAD, PLL, NON, KVR = 16, 20, 24, 21, 22, 28, 192
    def a2_setup():
        L = f"""s_waitcnt lgkmcnt(0)
        s_mul_i32 s45, s6, 4160
        s_mul_i32 s46, s6, 4608
        v_lshlrev_b32 v{AAD}, 4, v13
        v_lshl_add_u32 v{AAD}, v12, 1, v{AAD}
        v_and_b32 v1, 1, v12
        v_mov_b32 v3, {L_O}
        v_mov_b32 v14, {L_E + 2}
        v_cmp_eq_u32 vcc, 1, v1
        s_and_b32 s7, s34, 1
        s_lshl_b32 s7, s7, 4
        v_cndmask_b32 v3, v3, v14, vcc
        v_add3_u32 v{AAD}, v{AAD}, v3, s45
        v_add_u32 v{AAD+1}, 1024, v{AAD}
        v_add_u32 v{AAD+2}, 2048, v{AAD}
        v_add_u32 v{AAD+3}, 3072, v{AAD}
        s_add_u32 s47, s46, {L_U + 480}
        v_lshlrev_b32 v1, 4, v13
        v_lshlrev_b32 v3, 5, v12
        v_sub_u32 v1, v1, v3
        v_add_u32 v{BAD}, s47, v1
        s_lshr_b32 s37, s37, s7
        s_and_b32 s37, s37, 0xffff
        v_lshlrev_b32 v1, 3, v13
        v_add_u32 v1, v1, v12
        v_sub_u32 v1, 15, v1
        v_and_b32 v3, 1, v1
        v_lshlrev_b32 v3, 4, v3
        v_lshlrev_b32 v3, v3, s37
        v_lshrrev_b32 v1, 1, v1""".split("\n")
        for j in range(4):
            L += [f"v_cmp_eq_u32 vcc, {j}, v1", "s_nop 1", f"v_cndmask_b32 v{DFR+j}, 0, v3, vcc"]
        L += f"""v_and_b32 v1, 1, v13
        v_lshlrev_b32 v1, 9, v1
        v_lshrrev_b32 v3, 1, v13
        v_lshl_add_u32 v1, v3, 8, v1
        v_lshl_add_u32 v1, v12, 4, v1
        v_add_u32 v{ZAD}, s35, v1
        v_lshlrev_b32 v10, 4, v2
        v_add_u32 v11, 2, v10
        s_lshl_b32 s7, s33, 7
        v_lshlrev_b32 v14, 3, v12
        v_add_u32 v14, s7, v14
        v_mov_b32 v1, {L_N}
        ds_read_b64 v[{NON}:{NON+1}], v1""".split("\n")
        return L
    for s in range(16):
        steps = [2, 3] if s == 0 else ([s + 3] if s + 3 <= 15 else [])
        pre = []
        if s == LD: pre = ld[:11]
        if s == LD + 1: pre = ld[11:]
        for x in pre: a(x)
        vm.add("a1", len(pre))
        fill = []
        if C0 <= s < C0 + 4:
            if s == C0:
                a(f"s_waitcnt vmcnt({vm.cnt('a1')})")
            fill = a1_chan(s - C0)
        if s == POLL - 1:
            fill = fill + a2_setup()
        main = []
        for st in steps: main += dma(st)
        interleave(a, main, fill, 9)
        if s == POLL:
            a(f"buffer_load_dwordx2 {V(PLL,2)}, v14, {S(FL)}, 0 offen sc1")
            vm.add("poll")
        if s == 12:
            a(f"s_add_u32 m0, s45, {L_E + 32}\ns_nop 0")
            for j in range(4):
                a(f"buffer_load_dwordx4 v10, {S(SK)}, s35 offen offset:{1024*j} lds")
            vm.add("E", 4)
        if s == 13:
            a(f"s_add_u32 m0, s45, {L_O + 32}\ns_nop 0")
            for j in range(4):
                a(f"buffer_load_dwordx4 v11, {S(SK)}, s35 offen offset:{1024*j} lds")
            vm.add("O", 4)
            a(f"""v_mov_b32 v32, 0
            v_mov_b32 v33, 0
            v_mov_b32 v34, 0
            v_mov_b32 v35, 0
            s_add_u32 s47, s46, {L_U + 4096}
            v_add_u32 v1, s47, v10
            v_and_b32 v3, 16, v10
            v_and_b32 v15, 32, v10
            v_mul_u32_u24 v15, {(L_E - L_O) // 32}, v15
            v_add3_u32 v3, v3, v15, s45
            v_add_u32 v3, {L_O}, v3
            v_cmp_gt_u32 vcc, 32, v2
            s_add_u32 s47, s45, {L_O + 30}
            v_mov_b32 v15, s36
            v_cndmask_b32 v1, v3, v1, vcc
            v_mov_b32 v3, s47
            ds_write_b128 v1, v[32:35]
            ds_write_b16 v3, v15""")
        if s == min(POLL + 2, 14):
            a(f"""s_waitcnt vmcnt({vm.cnt('poll', f'd{s+1}')}) lgkmcnt(0)
            v_cmp_eq_u32 vcc, v{PLL}, v{NON}
            v_cmp_eq_u32 s[48:49], v{PLL+1}, v{NON+1}
            v_bfrev_b32 v1, 1
            s_and_b64 s[48:49], s[48:49], vcc
            s_cmp_eq_u64 s[48:49], -1
            s_cselect_b32 s50, 1, 0
            s_cselect_b64 vcc, -1, 0
            s_nop 1
            v_cndmask_b32 v1, v1, v10, vcc""")
            for j in range(4):
                a(f"buffer_load_dwordx4 {V(KVR+4*j,4)}, v1, {S(KV)}, s35 offen offset:{1024*j} sc1")
            vm.add("kv", 4)
            stamp(a, 2)
        w = ""
        if C0 <= s < C0 + 4: w = " lgkmcnt(0)"
        if s < 15:
            a(f"s_waitcnt vmcnt({vm.cnt(f'd{s+1}')}){w}")
        a("s_barrier")
    stamp(a, 3)
    a(f"""s_cmp_eq_u32 s50, 1
    s_cbranch_scc1 K1L_have
    s_mov_b32 s51, 0""")
    a.label("K1L_spin")
    a(f"""buffer_load_dwordx2 {V(PLL,2)}, v14, {S(FL)}, 0 offen sc1
    s_add_u32 s51, s51, 1
    s_waitcnt vmcnt(0)
    v_cmp_eq_u32 vcc, v{PLL}, v{NON}
    v_cmp_eq_u32 s[48:49], v{PLL+1}, v{NON+1}
    s_cmp_gt_u32 s51, {SPIN}
    s_cbranch_scc1 K1L_go
    s_and_b64 s[48:49], s[48:49], vcc
    s_cmp_eq_u64 s[48:49], -1
    s_cbranch_scc0 K1L_spin""")
    a.label("K1L_go")
    for j in range(4):
        a(f"buffer_load_dwordx4 {V(KVR+4*j,4)}, v10, {S(KV)}, s35 offen offset:{1024*j} sc1")
    a.label("K1L_have")
    a(f"""s_add_u32 s47, s46, {L_U}
    v_add_u32 v1, s47, v10
    s_waitcnt vmcnt(0)""")
    for j in range(4):
        a(f"ds_write_b128 v1, {V(KVR+4*j,4)} offset:{1024*j}")
    stamp(a, 4)
    ACC = 32
    FB = [64, 128]
    def reads(buf, r):
        L = []
        f = FB[buf]
        for q in range(8):
            o = 128 * (q & 1) + 16 * r
            L.append(f"ds_read_b128 {V(f+32+4*q,4)}, v{BAD} offset:{512*(7-q) + 64*r}")
            L.append(f"ds_read2_b32 {V(f+4*q,2)}, v{AAD+(q>>1)} offset0:{o} offset1:{o+1}")
            L.append(f"ds_read2_b32 {V(f+4*q+2,2)}, v{AAD+(q>>1)} offset0:{o+2} offset1:{o+3}")
        return L
    def mfmas(buf):
        f = FB[buf]
        L = []
        for q in range(8):
            for u in range(8 - q):
                c = ACC + 4 * (q + u)
                L.append(f"v_mfma_f32_16x16x32_bf16 {V(c,4)}, {V(f+4*q,4)}, {V(f+32+4*u,4)}, {V(c,4)}")
        return L
    a("s_waitcnt lgkmcnt(0)")
    for x in reads(0, 0): a(x)
    a("s_waitcnt lgkmcnt(0)")
    for u in range(8):
        a(f"v_mfma_f32_16x16x32_bf16 {V(ACC+4*u,4)}, {V(DFR,4)}, {V(FB[0]+32+4*u,4)}, 0")
    a("s_mov_b32 s51, 0")
    a.label("K1L_conv")
    interleave(a, mfmas(0), reads(1, 1), 1)
    a("s_waitcnt lgkmcnt(0)")
    adv = [f"v_add_u32 v{AAD+i}, 128, v{AAD+i}" for i in range(4)] + [f"v_add_u32 v{BAD}, 128, v{BAD}"]
    interleave(a, mfmas(1), reads(0, 2) + adv, 1)
    a("""s_add_u32 s51, s51, 1
    s_waitcnt lgkmcnt(0)
    s_cmp_lt_u32 s51, 4
    s_cbranch_scc1 K1L_conv
    s_nop 4""")
    stamp(a, 5)
    for t in range(8):
        c = ACC + 4 * t
        a(f"v_cvt_pk_bf16_f32 v{64+2*t}, v{c}, v{c+1}\nv_cvt_pk_bf16_f32 v{65+2*t}, v{c+2}, v{c+3}")
    a("s_nop 1")
    for p in range(4):
        a(f"v_permlane16_swap_b32 v{64+4*p}, v{66+4*p}\nv_permlane16_swap_b32 v{65+4*p}, v{67+4*p}")
    for p in range(4):
        a(f"buffer_store_dwordx4 {V(64+4*p,4)}, v{ZAD}, {S(ZT)}, 0 offen offset:{1024*p}")
    stamp(a, 6)

def k1_compute(a):
    HS, ES, DB, LD_, LR_, LI_, KV, FL = 8, 12, 16, 20, 24, 28, 68, 72
    AA, BA = 4, 8
    L, NLI, C2, NC2, L32, M1, G128, L512 = 16, 18, 20, 42, 22, 24, 26, 28
    LBK, PUB, HEV, HOD, STA, KVG = 30, 34, 35, 36, 37, 41
    ACC, FR, STG, NLD = 64, 128, 208, 224
    a("""v_and_b32 v12, 15, v2
    v_lshrrev_b32 v13, 4, v2
    v_lshrrev_b32 v3, 1, v12
    v_xor_b32 v3, v3, v13
    v_lshlrev_b32 v3, 4, v3
    v_lshl_add_u32 v4, v12, 7, v3
    v_xor_b32 v6, 64, v4
    v_add_u32 v5, 0x10000, v4
    v_add_u32 v7, 0x10000, v6
    s_lshl_b32 s6, s5, 12
    s_add_u32 s6, s6, 16384
    v_add_u32 v8, s6, v4
    v_add_u32 v9, s6, v5
    v_add_u32 v10, s6, v6
    v_add_u32 v11, s6, v7
    s_lshl_b32 s6, s4, 2
    s_add_u32 s6, s6, s5
    s_lshl_b32 s6, s6, 4
    v_add_u32 v14, s6, v12          ; channel
    v_lshlrev_b32 v44, 1, v14
    s_waitcnt lgkmcnt(0)""")
    srd(a, LD_, "logdt", 2048)
    srd(a, LR_, "Lre", 2048)
    srd(a, LI_, "Lim", 2048)
    a(f"""buffer_load_ushort v45, v44, {S(LD_)}, 0 offen
    buffer_load_ushort v46, v44, {S(LR_)}, 0 offen
    buffer_load_ushort v47, v44, {S(LI_)}, 0 offen""")
    srd(a, DB, "dbg", 256)
    a(f"""s_or_b32 s6, s2, s5
    s_cmp_eq_u32 s6, 0
    s_cbranch_scc0 K1C_nonce_w
    s_memrealtime s[6:7]
    v_mov_b32 v1, 0
    s_waitcnt lgkmcnt(0)
    s_or_b32 s6, s6, 1
    v_mov_b32 v48, s6
    v_mov_b32 v49, s7
    s_mov_b64 exec, 1
    buffer_store_dwordx2 v[48:49], v1, {S(DB)}, 0 offen sc1
    s_mov_b64 exec, -1""")
    a.label("K1C_nonce_w")
    srd(a, HS, "ws", 8 << 20, WS_H)
    srd(a, ES, "ws", 1 << 18, WS_E)
    srd(a, KV, "ws", 4 << 20, WS_KVT)
    srd(a, FL, "ws", 2048, WS_FLG)
    a(f"""s_lshr_b32 s7, s2, 3
    s_and_b32 s32, s7, 15           ; a_mt
    s_lshr_b32 s7, s7, 4
    s_and_b32 s33, s2, 7
    s_lshl_b32 s33, s33, 1
    s_add_u32 s33, s33, s7          ; a_nt
    s_lshl_b32 s34, s33, 4
    s_add_u32 s34, s34, s32
    s_lshl_b32 s34, s34, 3
    s_mov_b32 s36, 16384
    s_mov_b32 s37, 32768
    s_mov_b32 s38, 49152
    s_lshl_b32 s6, s5, 2
    v_xor_b32 v1, s6, v12
    v_lshlrev_b32 v1, 4, v1
    v_lshl_add_u32 v1, v13, 8, v1
    s_lshl_b32 s6, s5, 12
    s_add_u32 s6, s6, {L_ST}
    v_add_u32 v{STA}, s6, v1
    v_xor_b32 v{STA+1}, 16, v{STA}
    v_xor_b32 v{STA+2}, 32, v{STA}
    v_xor_b32 v{STA+3}, 48, v{STA}
    s_lshl_b32 s6, s33, 2
    s_add_u32 s6, s6, s5
    s_lshl_b32 s6, s6, 16           ; (64 a_nt + 16 w)*4096
    s_lshl_b32 s7, s32, 8
    s_sub_u32 s7, 3840, s7
    s_add_u32 s6, s6, s7
    v_lshlrev_b32 v1, 12, v13
    v_lshl_add_u32 v1, v12, 4, v1
    v_add_u32 v{KVG}, s6, v1
    s_lshl_b32 s6, s3, 14
    v_lshlrev_b32 v1, 4, v14
    v_add_u32 v{PUB}, s6, v1
    v_lshlrev_b32 v1, 14, v13
    v_sub_u32 v1, v{PUB}, v1
    v_subrev_u32 v{LBK}, 0x4000, v1
    v_subrev_u32 v{LBK+1}, 0x14000, v1
    v_subrev_u32 v{LBK+2}, 0x24000, v1
    v_subrev_u32 v{LBK+3}, 0x34000, v1
    v_cmp_gt_i32 s[40:41], 0, v{LBK}
    v_cmp_gt_i32 s[42:43], 0, v{LBK+1}
    v_cmp_gt_i32 s[44:45], 0, v{LBK+2}
    v_cmp_gt_i32 s[46:47], 0, v{LBK+3}
    s_lshl_b32 s6, s3, 4
    s_add_u32 s6, s6, s4
    s_lshl_b32 s6, s6, 15
    s_lshl_b32 s7, s5, 8
    s_add_u32 s6, s6, s7
    v_lshlrev_b32 v1, 12, v13
    v_lshl_add_u32 v1, v12, 4, v1
    v_add_u32 v{HEV}, s6, v1
    v_xor_b32 v{HOD}, 64, v{HEV}
    v_cmp_eq_u32 s[48:49], 1, v13
    v_cmp_eq_u32 s[50:51], 2, v13
    v_cmp_eq_u32 s[52:53], 3, v13""")
    for i in range(64):
        a(f"v_mov_b32 v{ACC+i}, 0")
    a(f"""s_waitcnt vmcnt(0)
    v_lshlrev_b32 v45, 16, v45
    v_lshlrev_b32 v46, 16, v46
    v_lshlrev_b32 v47, 16, v47
    v_mul_f32 v45, 0x3fb8aa3b, v45
    v_exp_f32 v45, v45
    s_nop 0
    v_cvt_pk_bf16_f32 v45, v45, v45
    v_lshlrev_b32 v45, 16, v45
    v_mul_f32 v48, v45, v46
    v_mul_f32 v49, v45, v47
    v_mul_f32 v48, 0x3fb8aa3b, v48
    v_exp_f32 v48, v48
    v_mul_f32 v49, 0.15915494, v49
    v_cos_f32 v50, v49
    v_sin_f32 v51, v49
    s_nop 0
    v_mul_f32 v{L}, v48, v50
    v_mul_f32 v{L+1}, v48, v51
    v_add_f32 v48, -1.0, v{L}
    v_mul_f32 v49, v46, v46
    v_fmac_f32 v49, v47, v47
    v_rcp_f32 v49, v49
    v_mul_f32 v50, v48, v46
    v_fmac_f32 v50, v{L+1}, v47
    v_mul_f32 v51, v{L+1}, v46
    v_fma_f32 v51, -v48, v47, v51
    v_add_f32 v49, v49, v49
    v_mul_f32 v{C2}, v50, v49
    v_mul_f32 v{C2+1}, v51, v49
    v_xor_b32 v{NLI}, 0x80000000, v{L+1}
    v_xor_b32 v{NC2}, 0x80000000, v{C2}
    v_xor_b32 v{NC2+1}, 0x80000000, v{C2+1}""")
    cmul(a, 44, L, L)
    cmul(a, 46, 44, 44)
    cmul(a, 44, 46, 46)
    cmul(a, 46, 44, 44)
    cmul(a, L32, 46, 46)
    cmul(a, 44, L32, L32)
    cmul(a, 46, 44, L32)
    def sel(d, x1, x2, x3):
        a(f"""v_mov_b32 v{d}, 1.0
        v_mov_b32 v{d+1}, 0
        v_cndmask_b32 v{d}, v{d}, v{x1}, s[48:49]
        v_cndmask_b32 v{d+1}, v{d+1}, v{x1+1}, s[48:49]
        v_cndmask_b32 v{d}, v{d}, v{x2}, s[50:51]
        v_cndmask_b32 v{d+1}, v{d+1}, v{x2+1}, s[50:51]
        v_cndmask_b32 v{d}, v{d}, v{x3}, s[52:53]
        v_cndmask_b32 v{d+1}, v{d+1}, v{x3+1}, s[52:53]""")
    sel(48, L32, 44, 46)
    cmul(a, M1, C2, 48)
    cmul(a, 46, 44, 44)
    cmul(a, 44, 46, 46)
    cmul(a, 48, 44, 46)
    cmul(a, L512, 44, 44)
    sel(G128, 46, 44, 48)
    def reads(s, h):
        sl = SL1[s % 4]
        grp, so = divmod(sl, 65536)
        f = FR + 40 * h
        R = [f"ds_read_b128 {V(f+32+4*p,4)}, v{BA+2*h+grp} offset:{so+2048*p}" for p in range(2)]
        R += [f"ds_read_b128 {V(f+4*i,4)}, v{AA+2*h+grp} offset:{so+2048*i}" for i in range(8)]
        return R
    def mfmas(h):
        f = FR + 40 * h
        M = []
        for r in range(8):
            for p in ((0, 1) if not (r & 1) else (1, 0)):
                c = ACC + 8 * r + 4 * p
                M.append(f"v_mfma_f32_16x16x32_bf16 {V(c,4)}, {V(f+4*r,4)}, {V(f+32+4*p,4)}, {V(c,4)}")
        return M
    a("s_barrier")
    stamp(a, 1)
    for x in reads(0, 0): a(x)
    a(f"""s_cmp_eq_u32 s5, 0
    s_cbranch_scc0 K1C_nonce_l
    v_mov_b32 v1, 0
    s_mov_b64 exec, 1
    buffer_load_dwordx2 {V(NLD,2)}, v1, {S(DB)}, 0 offen sc1
    s_mov_b64 exec, -1""")
    a.label("K1C_nonce_l")
    ROLL = OPT["roll1"]
    KB = OPT["a1c"] + 4
    KW = KB + OPT["kvw"]
    nsite = [0]
    def site(s, body, w0=False):
        lbl = f"K1C_s{nsite[0]}"; nsite[0] += 1
        need = False
        if ROLL and w0:
            a(f"s_cmp_eq_u32 s31, {(s >> 2) * 8}\ns_cbranch_scc0 {lbl}"); need = True
        elif ROLL:
            a(f"s_cmp_eq_u32 s30, {s >> 2}\ns_cbranch_scc0 {lbl}"); need = True
        elif w0:
            a(f"s_cmp_eq_u32 s5, 0\ns_cbranch_scc0 {lbl}"); need = True
        body()
        if need: a.label(lbl)
    def kv_reads():
        for i in range(4):
            a(f"ds_read_b128 {V(STG+4*i,4)}, v{STA+i} offset:{1024*i}")
    def kv_stores():
        for i in range(4):
            a(f"buffer_store_dwordx4 {V(STG+4*i,4)}, v{KVG}, {S(KV)}, {['0','s36','s37','s38'][i]} offen sc1")
    def nonce_chk():
        a(f"""s_mov_b32 s39, 0
        s_mov_b64 exec, 1
        v_mov_b32 v1, 0""")
        a.label("K1C_nspin")
        a(f"""s_waitcnt vmcnt(0)
        v_readfirstlane_b32 s6, v{NLD}
        s_add_u32 s39, s39, 1
        s_cmp_lg_u32 s6, 0
        s_cbranch_scc1 K1C_nok
        s_cmp_gt_u32 s39, {SPIN}
        s_cbranch_scc1 K1C_nok
        buffer_load_dwordx2 {V(NLD,2)}, v1, {S(DB)}, 0 offen sc1
        s_branch K1C_nspin""")
        a.label("K1C_nok")
        a(f"""v_mov_b32 v1, {L_N}
        ds_write_b64 v1, {V(NLD,2)}
        s_mov_b64 exec, -1
        s_nop 3""")
    def flag_store():
        a(f"""v_mov_b32 v1, s34
        s_mov_b64 exec, 1
        buffer_store_dwordx2 {V(NLD,2)}, v1, {S(FL)}, 0 offen sc1
        s_mov_b64 exec, -1
        s_nop 3""")
    def match(s, x):
        return (s % 4 == x % 4) if ROLL else (s == x)
    def step(s):
        a("s_waitcnt lgkmcnt(0)")
        if match(s, KB): site(KB, kv_stores)
        if match(s, 4): site(4, nonce_chk, True)
        interleave(a, mfmas(0), reads(s, 1), 1)
        if match(s, KW - 1):
            if ROLL: site(KW - 1, lambda: a("s_waitcnt vmcnt(0)"))
            else: a("s_waitcnt vmcnt(0)")
        a("s_waitcnt lgkmcnt(0)\ns_barrier")
        if match(s, KB - 1): site(KB - 1, kv_reads)
        if match(s, KW - 1): site(KW - 1, flag_store, True)
        interleave(a, mfmas(1), reads(s + 1, 0) if (ROLL or s < 15) else [], 1)
    if ROLL:
        a("s_mov_b32 s30, 0\ns_mov_b32 s31, s5")
        a.label("K1C_loop")
        for s in range(4): step(s)
        a("""s_add_u32 s30, s30, 1
        s_add_u32 s31, s31, 8
        s_cmp_lt_u32 s30, 4
        s_cbranch_scc1 K1C_loop""")
    else:
        for s in range(16): step(s)
    stamp(a, 2)
    def Ur(j): return ACC + 8 * (j >> 2) + (j & 3)
    def Ui(j): return Ur(j) + 4
    GR = 52
    a(f"""v_mov_b32 v1, {L_N}
    ds_read_b64 v[{GR+2}:{GR+3}], v1""")
    er, ei = Ur(0), Ui(0)
    for j in range(1, 32):
        d = 44 + 2 * (j & 1)
        a(f"""v_fma_f32 v{d}, v{L}, v{er}, v{Ur(j)}
        v_fma_f32 v{d+1}, v{L}, v{ei}, v{Ui(j)}
        v_fmac_f32 v{d}, v{NLI}, v{ei}
        v_fmac_f32 v{d+1}, v{L+1}, v{er}""")
        er, ei = d, d + 1
    a("""v_mov_b32 v44, v46
    v_mov_b32 v45, v47
    s_nop 1
    v_permlane32_swap_b32 v46, v44
    v_permlane32_swap_b32 v47, v45
    v_mov_b32 v48, v46
    v_mov_b32 v49, v47
    v_mov_b32 v50, v44
    v_mov_b32 v51, v45
    s_nop 0
    v_permlane16_swap_b32 v46, v48
    v_permlane16_swap_b32 v47, v49
    v_permlane16_swap_b32 v44, v50
    v_permlane16_swap_b32 v45, v51""")
    cmul(a, 48, 46, L32, 48)
    cmul(a, 44, 48, L32, 44)
    cmul(a, GR, 44, L32, 50)
    PL = 192
    a(f"""s_waitcnt lgkmcnt(0)
    s_mov_b64 exec, 0xffff
    buffer_store_dwordx4 {V(GR,4)}, v{PUB}, {S(ES)}, 0 offen sc1
    s_mov_b64 exec, -1""")
    for j in range(4):
        a(f"buffer_load_dwordx4 {V(PL+4*j,4)}, v{LBK+j}, {S(ES)}, 0 offen sc1")
    stamp(a, 3)
    a("""v_cndmask_b32 v50, 0, v46, s[48:49]
    v_cndmask_b32 v51, 0, v47, s[48:49]
    v_cndmask_b32 v50, v50, v48, s[50:51]
    v_cndmask_b32 v51, v51, v49, s[50:51]
    v_cndmask_b32 v50, v50, v44, s[52:53]
    v_cndmask_b32 v51, v51, v45, s[52:53]""")
    cmul(a, 56, C2, 50)
    U2 = 128
    for j in range(32):
        a(f"""v_mul_f32 v{U2+j}, v{C2}, v{Ur(j)}
        v_fmac_f32 v{U2+j}, v{NC2+1}, v{Ui(j)}
        v_mul_f32 v{Ui(j)}, v{NC2}, v{Ui(j)}
        v_fmac_f32 v{Ui(j)}, v{NC2+1}, v{Ur(j)}""")
    stamp(a, 4)
    a("s_mov_b32 s39, 0")
    a.label("K1C_chk")
    a("s_waitcnt vmcnt(0)")
    for j in range(4):
        b = PL + 4 * j
        a(f"""v_cmp_eq_u32 vcc, v{b+2}, v{GR+2}
        v_cmp_eq_u32 s[54:55], v{b+3}, v{GR+3}
        s_and_b64 s[54:55], s[54:55], vcc
        s_or_b64 s[{56+2*j}:{57+2*j}], s[54:55], s[{40+2*j}:{41+2*j}]""")
    a(f"""s_and_b64 s[56:57], s[56:57], s[58:59]
    s_and_b64 s[60:61], s[60:61], s[62:63]
    s_and_b64 s[56:57], s[56:57], s[60:61]
    s_cmp_eq_u64 s[56:57], -1
    s_cbranch_scc1 K1C_ok
    s_add_u32 s39, s39, 1
    s_cmp_gt_u32 s39, {SPIN}
    s_cbranch_scc1 K1C_ok""")
    for j in range(4):
        a(f"buffer_load_dwordx4 {V(PL+4*j,4)}, v{LBK+j}, {S(ES)}, 0 offen sc1")
    a("s_branch K1C_chk")
    a.label("K1C_ok")
    stamp(a, 5)
    cmul(a, PL + 8, PL + 12, L512, PL + 8)
    cmul(a, PL + 4, PL + 8, L512, PL + 4)
    cmul(a, PL, PL + 4, L512, PL)
    cmul(a, 44, PL, G128)
    a("""v_mov_b32 v46, v44
    v_mov_b32 v47, v45
    s_nop 1
    v_permlane32_swap_b32 v44, v46
    v_permlane32_swap_b32 v45, v47
    v_add_f32 v44, v44, v46
    v_add_f32 v45, v45, v47
    v_mov_b32 v46, v44
    v_mov_b32 v47, v45
    s_nop 1
    v_permlane16_swap_b32 v44, v46
    v_permlane16_swap_b32 v45, v47
    v_add_f32 v44, v44, v46
    v_add_f32 v45, v45, v47""")
    cmul(a, 56, M1, 44, 56)
    a("v_xor_b32 v57, 0x80000000, v57")
    PK = 160
    pr, pi = 56, 57
    for j in range(32):
        r_, i_ = U2 + j, Ui(j)
        a(f"""v_fmac_f32 v{r_}, v{L}, v{pr}
        v_fmac_f32 v{i_}, v{L}, v{pi}
        v_fmac_f32 v{r_}, v{L+1}, v{pi}
        v_fmac_f32 v{i_}, v{NLI}, v{pr}""")
        pr, pi = r_, i_
        if j & 1:
            c = j >> 3
            a(f"""v_cvt_pk_bf16_f32 v{PK+8*c+((j>>1)&3)}, v{U2+j-1}, v{U2+j}
            v_cvt_pk_bf16_f32 v{PK+8*c+4+((j>>1)&3)}, v{Ui(j-1)}, v{Ui(j)}""")
        if (j & 7) == 7:
            c = j >> 3
            ad = HOD if c & 1 else HEV
            a(f"""buffer_store_dwordx4 {V(PK+8*c,4)}, v{ad}, {S(HS)}, 0 offen offset:{1024*c}
            buffer_store_dwordx4 {V(PK+8*c+4,4)}, v{ad}, {S(HS)}, s36 offen offset:{1024*c}""")
    stamp(a, 6)

def gen_k1(a):
    name = "k1_kernel"
    kernel_head(a, name)
    entry(a, "K1_done", "K1_compute")
    k1_loader(a)
    if STAMP: a("s_branch K1_fin")
    else: a("s_endpgm")
    a.label("K1_compute")
    k1_compute(a)
    a.label("K1_fin")
    stamp_out(a, 0)
    a.label("K1_done")
    a("s_endpgm")
    return name, 228, 163840

STG2 = 24576
L2_X = 98304
L2_Z = 114688
L2_Q = 131072
def k2_loader(a):
    vm = VM()
    HS, CR, CI, XS, QS, ZS, OS = 8, 12, 16, 20, 24, 28, 68
    a("""s_sub_u32 s6, s5, 4             ; lw
    s_lshl_b32 s101, s6, 12
    s_lshl_b32 s100, s6, 11
    s_lshl_b32 s7, s3, 19
    s_add_u32 s7, s7, s101
    v_lshlrev_b32 v4, 4, v2
    v_add_u32 v4, s7, v4            ; H offset
    v_lshrrev_b32 v12, 3, v2        ; r
    v_and_b32 v13, 7, v2
    v_lshrrev_b32 v14, 4, v2
    v_xor_b32 v13, v13, v14
    v_lshlrev_b32 v13, 4, v13
    v_lshl_add_u32 v15, v12, 11, v13
    s_lshl_b32 s7, s4, 2
    s_add_u32 s7, s7, s6
    s_lshl_b32 s7, s7, 15
    v_add_u32 v5, s7, v15
    v_xor_b32 v6, 64, v5
    v_add_u32 v6, 0x3c00, v6
    s_and_b32 s30, s2, 3
    s_lshl_b32 s30, s30, 2
    s_and_b32 s31, s2, 4
    s_lshl_b32 s31, s31, 1
    s_add_u32 s30, s30, s31
    s_add_u32 s31, s3, s4
    s_and_b32 s31, s31, 3
    s_add_u32 s30, s30, s31
    s_and_b32 s30, s30, 15
    s_lshl_b32 s72, s30, 7
    s_lshl_b32 s73, s30, 15
    s_waitcnt lgkmcnt(0)""")
    srd(a, HS, "ws", 8 << 20, WS_H)
    srd(a, CR, "Cre", 2 << 20)
    srd(a, CI, "Cim", 2 << 20)
    def dma(s, track=True):
        sl = STG2 * (s % 4)
        L = []
        L.append(f"s_add_u32 m0, s101, {sl}\ns_nop 0\nbuffer_load_dwordx4 v4, {S(HS)}, s73 offen lds")
        for j in range(1, 4):
            L.append(f"buffer_load_dwordx4 v4, {S(HS)}, s73 offen offset:{1024*j} lds")
        C = CI if s & 1 else CR
        L.append(f"s_add_u32 m0, s100, {sl+16384}\ns_add_u32 s73, s73, 16384\nbuffer_load_dwordx4 v5, {S(C)}, s72 offen lds")
        x = f"buffer_load_dwordx4 v6, {S(C)}, s72 offen offset:1024 lds"
        if s & 1:
            x += "\ns_add_u32 s72, s72, 128\ns_and_b32 s72, s72, 2047\ns_lshl_b32 s73, s72, 8"
        L.append(x)
        if track: vm.add(f"d{s}", 6)
        return L
    for s in (0, 1):
        for x in dma(s): a(x)
    srd(a, XS, "x", 4 << 20)
    srd(a, QS, "q", 4 << 20)
    srd(a, ZS, "ws", 4 << 20, WS_ZT)
    srd(a, OS, "out", 16 << 20)
    a(f"""s_lshl_b32 s7, s3, 2
    s_add_u32 s7, s7, s6
    s_lshl_b32 s74, s7, 18          ; (128mt+32lw)*8192
    s_lshl_b32 s7, s7, 16
    s_lshl_b32 s75, s4, 7
    s_add_u32 s7, s7, s75
    v_add_u32 v8, s7, v15
    v_xor_b32 v9, 64, v8
    v_add_u32 v9, 0x3c00, v9
    v_add_u32 v10, 0x7800, v8
    v_add_u32 v11, 0x7800, v9       ; x / q offsets v8..11
    v_and_b32 v12, 15, v2
    v_xor_b32 v13, v12, v14         ; u0
    v_and_b32 v1, 7, v13
    v_lshlrev_b32 v1, 4, v1
    v_lshrrev_b32 v3, 3, v13
    v_lshl_add_u32 v1, v3, 8, v1
    v_lshl_add_u32 v1, v14, 12, v1
    s_lshl_b32 s7, s4, 2
    s_add_u32 s7, s7, s6
    s_lshl_b32 s7, s7, 16
    s_lshr_b32 s76, s3, 1
    s_lshl_b32 s76, s76, 9
    s_add_u32 s7, s7, s76
    s_and_b32 s76, s3, 1
    s_lshl_b32 s76, s76, 7
    s_add_u32 s7, s7, s76
    v_add_u32 v16, s7, v1
    v_xor_b32 v17, 64, v16
    v_add_u32 v17, {16384-1024}, v17
    v_xor_b32 v18, 0x100, v16
    v_add_u32 v18, {2*(16384-1024)}, v18
    v_xor_b32 v19, 0x140, v16
    v_add_u32 v19, {3*(16384-1024)}, v19
    s_lshl_b32 s7, s6, 1
    v_xor_b32 v1, s7, v12
    v_lshlrev_b32 v1, 4, v1
    v_lshl_add_u32 v1, v2, 8, v1
    v_add_u32 v20, {L2_Z}, v1
    v_xor_b32 v21, 0x80, v20
    v_xor_b32 v22, 16, v20
    v_xor_b32 v23, 0x90, v20
    v_bfe_u32 v1, v2, 2, 2          ; r4
    v_bfe_u32 v3, v2, 1, 1          ; q>>1
    v_lshl_add_u32 v3, v14, 1, v3   ; chunk
    v_bfe_u32 v7, v2, 3, 1          ; r4>>1
    v_xor_b32 v3, v3, v7
    v_lshlrev_b32 v3, 4, v3
    v_lshl_add_u32 v3, v1, 7, v3
    v_and_b32 v1, 1, v2
    v_lshl_add_u32 v3, v1, 3, v3
    s_add_u32 s7, s101, {L2_Q}
    v_add_u32 v24, s7, v3
    v_xor_b32 v25, 32, v24
    v_xor_b32 v26, 64, v24
    v_xor_b32 v27, 0x60, v24
    s_lshl_b32 s7, s4, 8
    s_add_u32 s7, s7, s74
    v_lshlrev_b32 v28, 2, v2
    v_add_u32 v28, s7, v28          ; out offset""")
    a(f"s_waitcnt vmcnt({vm.cnt('d0')})\ns_barrier")
    stamp(a, 1)
    A3L, A3C = OPT["a3ld"], OPT["a3c"]
    def a3_group(gi):
        b, hh = gi >> 1, gi & 1
        Z, Q, T, O = 32, 36, 40, 48 + 8 * (gi & 1)
        a(f"""ds_read_b128 {V(Z,4)}, v{20+2*b+hh}
        ds_read_b64_tr_b16 {V(Q,2)}, v{24+((2*gi)&3)} offset:{512*(2*gi)}
        ds_read_b64_tr_b16 {V(Q+2,2)}, v{24+((2*gi+1)&3)} offset:{512*(2*gi+1)}""")
        L = ["s_waitcnt lgkmcnt(0)"]
        for e in range(8):
            if e & 1:
                L += [f"v_and_b32 v{T}, 0xffff0000, v{Z+(e>>1)}", f"v_and_b32 v{O+e}, 0xffff0000, v{Q+(e>>1)}"]
            else:
                L += [f"v_lshlrev_b32 v{T}, 16, v{Z+(e>>1)}", f"v_lshlrev_b32 v{O+e}, 16, v{Q+(e>>1)}"]
            L.append(f"v_mul_f32 v{O+e}, v{O+e}, v{T}")
        St = []
        for e in range(8):
            St.append(f"s_mov_b32 s7, {(8*gi+e)*8192}\nbuffer_store_dword v{O+e}, v28, {S(OS)}, s7 offen")
        return L, St
    NUN = 13
    def interval(s):
        steps = [2, 3] if s == 0 else ([s + 3] if s + 3 <= 31 else [])
        fill, St = [], []
        if A3C <= s < A3C + 4:
            fill, St = a3_group(s - A3C)
        main = []
        for st in steps: main += dma(st)
        interleave(a, main, fill, 5)
        for x in St: a(x)
        vm.add("st", len(St))
        if s == A3L:
            a(f"s_add_u32 m0, s101, {L2_Z}\ns_nop 0")
            for j in range(4): a(f"buffer_load_dwordx4 v{16+j}, {S(ZS)}, 0 offen offset:{1024*j} lds")
            a(f"s_add_u32 m0, s101, {L2_X}\ns_nop 0")
            for j in range(4): a(f"buffer_load_dwordx4 v{8+j}, {S(XS)}, 0 offen offset:{1024*j} lds")
            a(f"s_add_u32 m0, s101, {L2_Q}\ns_nop 0")
            for j in range(4): a(f"buffer_load_dwordx4 v{8+j}, {S(QS)}, 0 offen offset:{1024*j} lds")
            vm.add("a3", 12)
        tags = [f"d{s+1}"]
        if s >= A3C - 1: tags.append("a3")
        a(f"s_waitcnt vmcnt({vm.cnt(*tags)})\ns_barrier")
    assert A3C + 4 <= NUN - 1 and 4 * OPT["xsite"] + 3 >= A3C - 1
    for s in range(NUN): interval(s)
    stamp(a, 2)
    a("s_mov_b32 s77, 0")
    a.label("K2L_loop")
    for s in range(NUN, NUN + 4):
        for x in dma(s + 3, False): a(x)
        a("s_waitcnt vmcnt(12)\ns_barrier")
    a("""s_add_u32 s77, s77, 1
    s_cmp_lt_u32 s77, 4
    s_cbranch_scc1 K2L_loop
    s_waitcnt vmcnt(6)
    s_barrier
    s_waitcnt vmcnt(0)
    s_barrier""")
    stamp(a, 3)

def k2_compute(a):
    OS, DS = 8, 12
    HA, CA, XA = 4, 8, 14
    ACC, FR, DG, XF = 32, 64, 112, 128
    a("""v_and_b32 v12, 15, v2
    v_lshrrev_b32 v13, 4, v2
    s_lshl_b32 s6, s4, 7
    v_lshlrev_b32 v1, 1, v12
    v_add_u32 v1, s6, v1
    s_waitcnt lgkmcnt(0)""")
    srd(a, DS, "Dskip", 2048)
    for b in range(4):
        a(f"buffer_load_ushort v{20+b}, v1, {S(DS)}, 0 offen offset:{32*b}")
    srd(a, OS, "out", 16 << 20)
    a(f"""v_bfe_u32 v1, v2, 1, 1          ; q>>1
    v_bfe_u32 v3, v2, 2, 2          ; r
    v_lshl_add_u32 v3, v13, 3, v3
    v_lshl_add_u32 v3, v1, 2, v3
    v_lshlrev_b32 v3, 4, v3
    v_lshl_add_u32 v3, v1, 10, v3
    v_and_b32 v1, 1, v2
    v_lshl_add_u32 v3, v1, 3, v3
    s_lshl_b32 s6, s5, 12
    v_add_u32 v{HA}, s6, v3
    v_xor_b32 v{HA+2}, 64, v{HA}
    v_add_u32 v{HA+1}, {2*STG2}, v{HA}
    v_add_u32 v{HA+3}, {2*STG2}, v{HA+2}
    v_lshrrev_b32 v3, 1, v12
    v_xor_b32 v3, v3, v13
    v_lshlrev_b32 v3, 4, v3
    v_lshl_add_u32 v3, v12, 7, v3
    v_add_u32 v{CA}, 16384, v3
    v_xor_b32 v{CA+2}, 64, v{CA}
    v_add_u32 v{CA+1}, {2*STG2}, v{CA}
    v_add_u32 v{CA+3}, {2*STG2}, v{CA+2}
    s_add_u32 s6, s6, {L2_X}
    v_add_u32 v{XA}, s6, v3
    v_xor_b32 v{XA+1}, 64, v{XA}
    s_lshl_b32 s6, s3, 2
    s_add_u32 s6, s6, s5
    s_lshl_b32 s6, s6, 18
    s_lshl_b32 s7, s4, 8
    s_add_u32 s6, s6, s7
    s_add_u32 s6, s6, 4096
    v_lshlrev_b32 v16, 15, v13
    v_lshl_add_u32 v16, v12, 2, v16
    v_add_u32 v16, s6, v16          ; out offset
    v_lshlrev_b32 v17, 3, v13
    v_sub_u32 v17, v12, v17         ; n - 8g
    v_and_b32 v18, 1, v12
    v_lshlrev_b32 v18, 4, v18""")
    for i in range(32):
        a(f"v_mov_b32 v{ACC+i}, 0")
    a("s_waitcnt vmcnt(0)")
    for b in range(4):
        a(f"""v_lshlrev_b32 v{20+b}, v18, v{20+b}
        v_add_u32 v1, {16*(b&1)}, v17
        v_lshrrev_b32 v1, 1, v1""")
        for j in range(4):
            a(f"v_cmp_eq_u32 vcc, {j}, v1\ns_nop 1\nv_cndmask_b32 v{DG+4*b+j}, 0, v{20+b}, vcc")
    def reads(s, h):
        grp, so = divmod(s % 4, 2)
        so *= STG2
        f = FR + 24 * h
        R = []
        for t in range(2):
            R.append(f"ds_read_b64_tr_b16 {V(f+4*t,2)}, v{HA+grp} offset:{so+2048*t+512*h}")
            R.append(f"ds_read_b64_tr_b16 {V(f+4*t+2,2)}, v{HA+2+grp} offset:{so+2048*t+512*h}")
        for b in range(4):
            R.append(f"ds_read_b128 {V(f+8+4*b,4)}, v{CA+2*h+grp} offset:{so+2048*b}")
        return R
    def mfmas(h):
        f = FR + 24 * h
        M = []
        for t in range(2):
            for b in (range(4) if t == 0 else reversed(range(4))):
                c = ACC + 16 * t + 4 * b
                M.append(f"v_mfma_f32_16x16x32_bf16 {V(c,4)}, {V(f+4*t,4)}, {V(f+8+4*b,4)}, {V(c,4)}")
        return M
    a("s_barrier")
    stamp(a, 1)
    for x in reads(0, 0): a(x)
    a("s_mov_b32 s30, 0")
    a.label("K2C_loop")
    for s in range(4):
        a("s_waitcnt lgkmcnt(0)")
        interleave(a, mfmas(0), reads(s, 1), 1)
        a("s_waitcnt lgkmcnt(0)\ns_barrier")
        interleave(a, mfmas(1), reads(s + 1, 0), 1)
    a(f"""s_cmp_eq_u32 s30, {OPT['xsite']}
    s_cbranch_scc0 K2C_nox""")
    for t in range(2):
        for h in range(2):
            a(f"ds_read_b128 {V(XF+8*t+4*h,4)}, v{XA+h} offset:{2048*t}")
    a("s_waitcnt lgkmcnt(0)")
    for t in range(2):
        for b in range(4):
            c = ACC + 16 * t + 4 * b
            a(f"v_mfma_f32_16x16x32_bf16 {V(c,4)}, {V(XF+8*t+4*(b>>1),4)}, {V(DG+4*b,4)}, {V(c,4)}")
    a.label("K2C_nox")
    a("""s_add_u32 s30, s30, 1
    s_cmp_lt_u32 s30, 8
    s_cbranch_scc1 K2C_loop
    s_nop 4""")
    stamp(a, 2)
    for t in range(2):
        for i in range(4):
            a(f"s_mov_b32 s6, {(16*t+i)*8192}")
            for b in range(4):
                a(f"buffer_store_dword v{ACC+16*t+4*b+i}, v16, {S(OS)}, s6 offen offset:{64*b}")
    stamp(a, 3)

def gen_k2(a):
    name = "k2_kernel"
    kernel_head(a, name)
    entry(a, "K2_done", "K2_compute")
    k2_loader(a)
    if STAMP: a("s_branch K2_fin")
    else: a("s_endpgm")
    a.label("K2_compute")
    k2_compute(a)
    a.label("K2_fin")
    stamp_out(a, 1)
    a.label("K2_done")
    a("s_endpgm")
    return name, 144, 147456

def main():
    a = Asm()
    kernels = [(gen_k1(a), 256, 512), (gen_k2(a), 256, 512)]
    if OPT["rep"]:
        import rep3
        kernels.append(rep3.gen(a, kernel_head, OPT["rep"]))
    hdr = open("/code/" + NAME + ".s.ref").read().split("\n")
    out = []
    for ln in hdr:
        if ln.startswith("; @launch") or ln.startswith(".amdgcn"):
            break
        if ln.startswith("; Override") or ln.startswith("; grid="):
            continue
        out.append(ln)
    for (name, vg, lds), grid, blk in kernels:
        out.append(f"; @launch kernel={name} grid=({grid},1,1) block=({blk},1,1) lds={lds}")
    out.append('.amdgcn_target "amdgcn-amd-amdhsa--gfx950"')
    out.append(".text")
    out += a.l
    out.append('.section .rodata,"a"')
    for (name, vg, lds), grid, blk in kernels:
        out.append(kernel_desc(name, vg))
    open(OPT["out"], "w").write("\n".join(out) + "\n")
main()
```

```python
import sys
NAME = "concat_heads__ssm_conv_h3__ssm_conv_s5__prompt"
OPT = dict(out="/code/" + NAME + ".s", stamp=0, roll1=1, a1c=0, a1n=4, kvw=5, poll=12, oint=15,
           n0=16, xld=9, xsite=3, k2n0=12, a3c=0, a3n=4, spf=0, ntx=0, ntb=0, ntk=1, nte=1, nto=1, ntq=1, kfirst=0, win=16, a1pos=0, a1np=21, a1per=0, epos=15, kvpos=15, kvn=4, kvs=1, kvsp=0, setup=1, a1cost=5, pollmin=0, touch=0, en=4, i0mix=12, npos=3, kvfl=1, hl=0, hs=1, lt=3, st=0, st0=6, stn=8, st64=0, prioc=3,
           rep=0, trace=0, noa1=0, noa3=0)
for arg in sys.argv[1:]:
    k, v = arg.split("=")
    OPT[k] = v if k == "out" else int(v)
STAMP = OPT["stamp"]
def NT(k): return " nt" if OPT["nt" + k] else ""
P = dict(q=32, k=34, v=36, shift=38, ssmk=40, ssmD=42, x=44, Lre=46, Lim=48, Bre=50, Bim=52, Cre=54, Cim=56,
         logdt=58, Dskip=60, out=62, dbg=64, ws=66)
WS_KVT = 0
WS_ZT = 4 << 20
WS_H = 8 << 20
WS_E = 16 << 20
WS_FLG = 17 << 20
WS_STAMP = 64 << 20
SPIN = 4096

class Asm:
    def __init__(self):
        self.l = []
    def __call__(self, s):
        for ln in s.strip("\n").split("\n"):
            ln = ln.strip()
            if ln:
                self.l.append("    " + ln)
    def label(self, s):
        self.l.append(s + ":")

class VM:
    def __init__(self):
        self.ops = []
    def add(self, tag, n=1):
        self.ops += [tag] * n
    def cnt(self, *tags):
        last = max(i for i, t in enumerate(self.ops) if t in tags)
        return min(63, len(self.ops) - 1 - last)

def kernel_head(a, name):
    a.l += [".p2align 8", f".globl {name}", f".type {name},@function"]
    a.label(name)

def kernel_desc(name, vgpr, sgpr=102):
    acc = (vgpr + 3) // 4 * 4
    return f""".p2align 6
.amdhsa_kernel {name}
  .amdhsa_next_free_vgpr {vgpr}
  .amdhsa_next_free_sgpr {sgpr}
  .amdhsa_accum_offset {acc}
  .amdhsa_group_segment_fixed_size 0
  .amdhsa_kernarg_size 144
  .amdhsa_user_sgpr_count 2
  .amdhsa_user_sgpr_kernarg_segment_ptr 1
  .amdhsa_system_sgpr_workgroup_id_x 1
.end_amdhsa_kernel"""

def srd(a, d, name, nbytes, off=0):
    b = P[name]
    if off:
        a(f"s_add_u32 s{d}, s{b}, {off}\ns_addc_u32 s{d+1}, s{b+1}, 0")
    else:
        a(f"s_mov_b32 s{d}, s{b}\ns_mov_b32 s{d+1}, s{b+1}")
    a(f"s_mov_b32 s{d+2}, {nbytes}\ns_mov_b32 s{d+3}, 0x00020000")

def S(d):
    return f"s[{d}:{d+3}]"
def V(d, n):
    return f"v[{d}:{d+n-1}]"

def stamp(a, i):
    if STAMP:
        a(f"s_memrealtime s[{84+2*i}:{85+2*i}]")
def stamp_out(a, kid):
    if not STAMP: return
    a("s_waitcnt vmcnt(0) lgkmcnt(0)")
    stamp(a, 7)
    srd(a, 8, "ws", 1 << 20, WS_STAMP + kid * 65536)
    a("""s_lshl_b32 s6, s2, 3
    s_add_u32 s6, s6, s5
    s_lshl_b32 s6, s6, 5
    v_mov_b32 v1, s6
    s_waitcnt lgkmcnt(0)""")
    for i in range(8):
        a(f"v_mov_b32 v{4+i}, s{84+2*i}")
    a("""s_mov_b64 exec, 1
    buffer_store_dwordx4 v[4:7], v1, s[8:11], 0 offen
    buffer_store_dwordx4 v[8:11], v1, s[8:11], 0 offen offset:16
    s_waitcnt vmcnt(0)""")

TRACE = OPT["trace"]
def tr_begin(a):
    if TRACE: a("s_memrealtime s[60:61]")
def tr_end(a, i):
    if TRACE: a(f"s_waitcnt lgkmcnt(0)\nv_writelane_b32 v220, s60, {i}")
def tr_out(a, kid):
    if not TRACE: return
    srd(a, 8, "ws", 1 << 20, WS_STAMP + (1 << 20) + kid * 524288)
    a("""s_lshl_b32 s6, s2, 3
    s_add_u32 s6, s6, s5
    s_lshl_b32 s6, s6, 8
    v_lshlrev_b32 v1, 2, v2
    buffer_store_dword v220, v1, s[8:11], s6 offen""")

def cmul(a, d, x, y, c=None):
    if c is None:
        a(f"v_mul_f32 v{d}, v{x}, v{y}\nv_mul_f32 v{d+1}, v{x}, v{y+1}")
    else:
        a(f"v_fma_f32 v{d}, v{x}, v{y}, v{c}\nv_fma_f32 v{d+1}, v{x}, v{y+1}, v{c+1}")
    a(f"v_fma_f32 v{d}, -v{x+1}, v{y+1}, v{d}\nv_fmac_f32 v{d+1}, v{x+1}, v{y}")

def entry(a, done, other):
    stamp(a, 0)
    a(f"""s_cmp_ge_u32 s2, 256
    s_cbranch_scc1 {done}
    s_load_dwordx16 s[32:47], s[0:1], 0
    s_load_dwordx16 s[48:63], s[0:1], 64
    s_load_dwordx4 s[64:67], s[0:1], 128
    v_lshrrev_b32 v1, 6, v0
    v_and_b32 v2, 63, v0
    s_and_b32 s6, s2, 3
    v_readfirstlane_b32 s5, v1
    s_lshl_b32 s6, s6, 2
    s_lshr_b32 s7, s2, 3
    s_and_b32 s3, s7, 3
    s_add_u32 s3, s3, s6            ; mt
    s_and_b32 s6, s2, 4
    s_lshl_b32 s6, s6, 1
    s_lshr_b32 s4, s7, 2
    s_add_u32 s4, s4, s6            ; nt
    s_cmp_lt_u32 s5, 4
    s_cbranch_scc1 {other}""")

def interleave(a, main, fill, per, vm=None):
    fill = list(fill)
    for m in main:
        if isinstance(m, tuple):
            vm.add(m[1]); m = m[0]
        a(m)
        for _ in range(per):
            if fill: a(fill.pop(0))
    for f in fill: a(f)

SL1 = [98304, 0, 32768, 65536]
L_O = 98304
L_U = 114944
L_N = 133376
L_E = 133440
L_ST = 147456

def k1_loader(a):
    vm = VM()
    X, BR, BI, KS, VS, SH, SK, KV, FL, ZT = 8, 12, 16, 20, 24, 28, 68, 72, 76, 80
    a("""s_sub_u32 s6, s5, 4             ; lw
    v_lshrrev_b32 v12, 3, v2        ; r
    v_and_b32 v13, 7, v2
    v_lshrrev_b32 v14, 4, v2        ; r>>1
    v_xor_b32 v13, v13, v14
    v_lshlrev_b32 v13, 4, v13
    v_lshrrev_b32 v14, 5, v2        ; r>>2
    v_lshlrev_b32 v14, 5, v14
    v_and_b32 v15, 3, v12
    v_add_u32 v14, v14, v15
    v_lshl_add_u32 v14, v14, 11, v13   ; ve
    v_lshl_add_u32 v15, v12, 11, v13   ; vb
    s_lshl_b32 s7, s3, 4
    s_add_u32 s7, s7, s6
    s_lshl_b32 s7, s7, 14           ; (128mt+8lw)*2048
    v_add_u32 v4, s7, v14
    v_xor_b32 v5, 64, v4
    v_add_u32 v5, 0x1fc00, v5
    v_add_u32 v6, 0x1800, v4
    v_add_u32 v7, 0x1800, v5
    s_lshl_b32 s7, s4, 2
    s_add_u32 s7, s7, s6
    s_lshl_b32 s7, s7, 15           ; (64nt+16lw)*2048
    v_add_u32 v8, s7, v15
    v_xor_b32 v9, 64, v8
    v_add_u32 v9, 0x3c00, v9
    s_and_b32 s30, s2, 3
    s_lshl_b32 s30, s30, 2
    s_and_b32 s31, s2, 4
    s_lshl_b32 s31, s31, 1
    s_add_u32 s30, s30, s31
    s_add_u32 s31, s3, s4
    s_and_b32 s31, s31, 1
    s_lshl_b32 s31, s31, 1
    s_add_u32 s30, s30, s31
    s_and_b32 s30, s30, 15
    s_lshl_b32 s100, s30, 7         ; koff
    s_lshl_b32 s101, s6, 12         ; lw*4096
    s_waitcnt lgkmcnt(0)""")
    srd(a, X, "x", 4 << 20)
    srd(a, BR, "Bre", 2 << 20)
    srd(a, BI, "Bim", 2 << 20)
    def dma(s):
        sl = SL1[s % 4]
        L = []
        L.append(f"s_add_u32 m0, s101, {sl}\ns_nop 0\nbuffer_load_dwordx4 v4, {S(X)}, s100 offen{NT('x')} lds")
        for j in range(1, 4):
            L.append(f"buffer_load_dwordx4 v{4+j}, {S(X)}, s100 offen offset:{1024*j}{NT('x')} lds")
        L.append(f"s_add_u32 m0, s101, {sl+16384}\ns_nop 0\nbuffer_load_dwordx4 v8, {S(BR)}, s100 offen{NT('b')} lds")
        L.append(f"buffer_load_dwordx4 v9, {S(BR)}, s100 offen offset:1024{NT('b')} lds")
        L.append(f"s_add_u32 m0, s101, {sl+16384+2048}\ns_nop 0\nbuffer_load_dwordx4 v8, {S(BI)}, s100 offen{NT('b')} lds")
        L.append(f"buffer_load_dwordx4 v9, {S(BI)}, s100 offen offset:1024{NT('b')} lds\ns_add_u32 s100, s100, 128\ns_and_b32 s100, s100, 2047")
        return [(x, f"d{s}") for x in L]
    D = [dma(s) for s in range(16)]
    interleave(a, D[0], [], 0, vm)
    srd(a, KS, "k", 4 << 20)
    srd(a, VS, "v", 4 << 20)
    srd(a, SH, "shift", 8192)
    if OPT["st"] & 2:
        a(f"""s_lshl_b32 s7, s3, 2
        s_add_u32 s7, s7, s6
        s_lshl_b32 s7, s7, 16
        s_lshl_b32 s54, s4, 7
        s_add_u32 s7, s7, s54
        s_add_u32 s54, s{P['q']}, s7
        s_addc_u32 s55, s{P['q']+1}, 0""")
    TS = 52
    if OPT["lt"]:
        a(f"""s_cmp_eq_u32 s6, 0
        s_cselect_b32 s52, s{P['Cre']}, s{P['Cim']}
        s_cselect_b32 s53, s{P['Cre']+1}, s{P['Cim']+1}
        s_cmp_lt_u32 s6, 2
        s_cselect_b32 s52, s52, s{P['q']}
        s_cselect_b32 s53, s53, s{P['q']+1}
        s_cselect_b32 s54, 1, 2
        s_lshl_b32 s54, s54, 21
        s_mov_b32 s55, 0x00020000""")
    WRAW, WF, KR, VR, KT, AC, OUT = 16, 24, 40, 62, 78, 90, 98
    a(f"""s_lshr_b32 s7, s2, 3
    s_and_b32 s32, s7, 15           ; a_mt
    s_lshr_b32 s7, s7, 4
    s_and_b32 s33, s2, 7
    s_lshl_b32 s33, s33, 1
    s_add_u32 s33, s33, s7          ; a_nt
    s_lshl_b32 s34, s33, 4
    s_add_u32 s34, s34, s32
    s_lshl_b32 s34, s34, 2
    s_add_u32 s34, s34, s6          ; A2 channel
    s_lshl_b32 s35, s34, 12         ; ch*4096
    s_lshr_b32 s7, s34, 1
    s_lshl_b32 s7, s7, 2
    s_load_dword s37, s[{P['ssmD']}:{P['ssmD']+1}], s7
    v_and_b32 v12, 15, v2           ; cq / n / m
    v_lshrrev_b32 v13, 4, v2        ; tg / g
    s_lshl_b32 s7, s32, 2
    s_add_u32 s7, s7, s6
    s_lshl_b32 s7, s7, 16           ; t0*2048
    s_lshl_b32 s38, s33, 7
    s_add_u32 s7, s7, s38
    v_lshlrev_b32 v10, 14, v13
    v_lshl_add_u32 v10, v12, 3, v10
    v_add_u32 v10, s7, v10
    v_subrev_u32 v11, 0x1800, v10
    v_bfrev_b32 v14, 1
    v_cmp_gt_i32 vcc, 0, v11
    s_lshl_b32 s7, s33, 9
    v_lshlrev_b32 v15, 5, v12
    v_cndmask_b32 v11, v11, v14, vcc
    v_add_u32 v14, s7, v15
    s_lshl_b32 s7, s6, 2
    v_add_u32 v15, s7, v13
    v_sub_u32 v15, 15, v15
    v_xor_b32 v15, v15, v12
    v_lshlrev_b32 v15, 4, v15
    v_lshl_add_u32 v15, v12, 10, v15
    v_add_u32 v15, {L_ST}, v15
    s_mov_b32 s38, 4096
    s_mov_b32 s39, 8192
    s_mov_b32 s44, 12288""")
    SOFF = ["0", "s38", "s39", "s44"]
    ld = []
    ld.append(f"buffer_load_dwordx4 {V(WRAW,4)}, v14, {S(SH)}, 0 offen")
    ld.append(f"buffer_load_dwordx4 {V(WRAW+4,4)}, v14, {S(SH)}, 0 offen offset:16")
    for i in range(3):
        ld.append(f"buffer_load_dwordx2 {V(KR+2*i,2)}, v11, {S(KS)}, {SOFF[i>>1]} offen offset:{2048*(i&1)}{NT('k')}")
    for i in range(8):
        ld.append(f"buffer_load_dwordx2 {V(KR+6+2*i,2)}, v10, {S(KS)}, {SOFF[i>>1]} offen offset:{2048*(i&1)}{NT('k')}")
    for i in range(8):
        ld.append(f"buffer_load_dwordx2 {V(VR+2*i,2)}, v10, {S(VS)}, {SOFF[i>>1]} offen offset:{2048*(i&1)}{NT('k')}")
    def unp(d, s, hi):
        return f"v_and_b32 v{d}, 0xffff0000, v{s}" if hi else f"v_lshlrev_b32 v{d}, 16, v{s}"
    def a1_chan(c):
        L = []
        for j in range(4):
            L.append(unp(WF + j, WRAW + 2 * c + (j >> 1), j & 1))
        for i in range(11):
            L.append(unp(KT + i, KR + 2 * i + (c >> 1), c & 1))
        for t in range(8):
            L.append(f"v_mul_f32 v{AC+t}, v{WF}, v{KT+t+3}")
        for j in range(1, 4):
            for t in range(8):
                L.append(f"v_fmac_f32 v{AC+t}, v{WF+j}, v{KT+t+3-j}")
        for t in range(8):
            L.append(unp(KT + t, VR + 2 * t + (c >> 1), c & 1))
        for t in range(8):
            L.append(f"v_mul_f32 v{AC+t}, v{AC+t}, v{KT+t}")
        o = OUT + 4 * (c & 1)
        for i in range(4):
            L.append(f"v_cvt_pk_bf16_f32 v{o+i}, v{AC+7-2*i}, v{AC+6-2*i}")
        L.append(f"ds_write_b128 v15, {V(o,4)} offset:{256*c}")
        return L
    if OPT["noa1"] & 1: ld = ld[:1]
    C0, POLL = OPT["a1c"], OPT["poll"]
    a1all = [] if OPT["noa1"] & 2 else sum((a1_chan(c) for c in range(4)), [])
    PER = OPT["a1per"] or len(a1all) or 1
    NI = max(1, -(-len(a1all) // PER))
    OPT["kb"] = C0 + NI
    SETUP = OPT["setup"]
    assert SETUP >= C0 + NI - 1
    AAD, BAD, DFR, ZAD, PLL, NON, KVR = 16, 20, 24, 21, 22, 28, 192
    def a2_setup():
        L = f"""s_waitcnt lgkmcnt(0)
        s_mul_i32 s45, s6, 4160
        s_mul_i32 s46, s6, 4608
        v_lshlrev_b32 v{AAD}, 4, v13
        v_lshl_add_u32 v{AAD}, v12, 1, v{AAD}
        v_and_b32 v1, 1, v12
        v_mov_b32 v3, {L_O + 4}
        v_mov_b32 v14, {L_E + 2}
        v_cmp_eq_u32 vcc, 1, v1
        s_and_b32 s7, s34, 1
        s_lshl_b32 s7, s7, 4
        v_cndmask_b32 v3, v3, v14, vcc
        v_add3_u32 v{AAD}, v{AAD}, v3, s45
        v_add_u32 v{AAD+1}, 1024, v{AAD}
        v_add_u32 v{AAD+2}, 2048, v{AAD}
        v_add_u32 v{AAD+3}, 3072, v{AAD}
        s_add_u32 s47, s46, {L_U + 480}
        v_lshlrev_b32 v1, 4, v13
        v_lshlrev_b32 v3, 5, v12
        v_sub_u32 v1, v1, v3
        v_add_u32 v{BAD}, s47, v1
        s_lshr_b32 s37, s37, s7
        s_and_b32 s37, s37, 0xffff
        v_lshlrev_b32 v1, 3, v13
        v_add_u32 v1, v1, v12
        v_sub_u32 v1, 15, v1
        v_and_b32 v3, 1, v1
        v_lshlrev_b32 v3, 4, v3
        v_lshlrev_b32 v3, v3, s37
        v_lshrrev_b32 v1, 1, v1""".split("\n")
        for j in range(4):
            L += [f"v_cmp_eq_u32 vcc, {j}, v1", "s_nop 1", f"v_cndmask_b32 v{DFR+j}, 0, v3, vcc"]
        L += f"""v_and_b32 v1, 1, v13
        v_lshlrev_b32 v1, 9, v1
        v_lshrrev_b32 v3, 1, v13
        v_lshl_add_u32 v1, v3, 8, v1
        v_lshl_add_u32 v1, v12, 4, v1
        v_add_u32 v{ZAD}, s35, v1
        v_lshlrev_b32 v10, 4, v2
        s_lshl_b32 s7, s33, 7
        v_lshlrev_b32 v14, 3, v12
        v_add_u32 v14, s7, v14""".split("\n")
        if OPT["lt"]:
            L += f"""s_and_b32 s7, s2, 7
            s_lshl_b32 s7, s7, 5
            s_lshr_b32 s56, s2, 3
            s_add_u32 s7, s7, s56
            s_lshl_b32 s7, s7, 13
            v_lshlrev_b32 v30, 7, v2
            v_add_u32 v30, s7, v30
            s_lshl_b32 s7, s3, 1
            s_and_b32 s56, s6, 1
            s_add_u32 s7, s7, s56
            s_lshl_b32 s7, s7, 17
            s_lshl_b32 s56, s4, 7
            s_add_u32 s7, s7, s56
            v_lshlrev_b32 v31, 11, v2
            v_add_u32 v31, s7, v31""".split("\n")
        return L
    def check():
        a(f"""v_bfrev_b32 v11, 1
        s_waitcnt vmcnt({vm.cnt('poll')})
        v_cmp_eq_u32 vcc, v{PLL}, v{NON}
        v_cmp_eq_u32 s[48:49], v{PLL+1}, v{NON+1}
        s_nop 0
        s_and_b64 s[48:49], s[48:49], vcc
        s_cmp_eq_u64 s[48:49], -1
        s_cselect_b32 s50, 1, 0
        s_cselect_b64 vcc, -1, 0
        s_nop 1
        v_cndmask_b32 v11, v11, v10, vcc""")
        stamp(a, 2)
    KW = max(OPT["kb"], OPT["kvs"]) + OPT["kvw"]
    DB, NLD = 20, 210
    def nonce_chk():
        a(f"""s_cmp_eq_u32 s6, 0
        s_cbranch_scc0 K1L_nskip
        s_mov_b32 s51, 0
        s_mov_b64 exec, 1
        s_waitcnt vmcnt({vm.cnt('nonce')})""")
        a.label("K1L_nspin")
        a(f"""v_readfirstlane_b32 s7, v{NLD}
        s_add_u32 s51, s51, 1
        s_cmp_lg_u32 s7, 0
        s_cbranch_scc1 K1L_nok
        s_cmp_gt_u32 s51, {SPIN}
        s_cbranch_scc1 K1L_nok
        buffer_load_dwordx2 {V(NLD,2)}, v212, {S(DB)}, 0 offen sc1
        s_waitcnt vmcnt(0)
        s_branch K1L_nspin""")
        a.label("K1L_nok")
        a(f"""v_mov_b32 v1, {L_N}
        ds_write_b64 v1, {V(NLD,2)}
        s_mov_b64 exec, -1
        s_waitcnt lgkmcnt(0)""")
        a.label("K1L_nskip")
    after = {k: [] for k in range(16)}
    after[OPT["npos"]].append((f"s_mov_b64 exec, 1\nbuffer_load_dwordx2 {V(NLD,2)}, v212, {S(DB)}, 0 offen sc1\ns_mov_b64 exec, -1", "nonce", 0.1, 0, None))
    for i, x in enumerate(ld):
        after[OPT["a1pos"] + i // OPT["a1np"]].append((x, "a1", OPT["a1cost"] / 10, -1, None))
    for j in range(4):
        after[min(15, OPT["epos"] + j // OPT["en"])].append((f"s_add_u32 m0, s45, {L_E + 32}\ns_nop 0\nbuffer_load_dwordx4 v10, {S(SK)}, s35 offen offset:{1024*j}{NT('e')} lds",
                                    "E", 1, max(SETUP + 1, max(OPT["kb"], OPT["kvs"]) + 1), None))
    after[POLL].append((f"buffer_load_dwordx2 {V(PLL,2)}, v14, {S(FL)}, 0 offen sc1", "poll", 0.2, max(SETUP + 1, OPT["pollmin"]), None))
    for j in range(4):
        after[min(15, OPT["kvpos"] + j // OPT["kvn"])].append((f"buffer_load_dwordx4 {V(KVR+4*j,4)}, v11, {S(KV)}, s35 offen offset:{1024*j} sc1",
                                    "kv", 1, OPT["pollmin"] + 1, check if j == 0 else None))
    ST = list(after[0])
    for k in range(1, 16):
        ST += [(x, t, 1, k - 3 if k > 3 else (-1 if k == 1 else 0), None) for x, t in D[k]] + after[k]
    cum = [0]
    for it in ST: cum.append(cum[-1] + it[2])
    endof = {0: 0}
    for i, it in enumerate(ST):
        if it[1][0] == "d": endof[int(it[1][1:])] = i + 1
    pos = [0]
    def emit(s, fill, per):
        lim = cum[endof[min(15, s + 1)]] + (OPT["n0"] if s == 0 else OPT["win"])
        fill = list(fill)
        while pos[0] < len(ST):
            x, t, c, e, hook = ST[pos[0]]
            must = pos[0] < endof[min(15, s + 1)]
            assert not (must and e > s), (s, t)
            if not must and s < 15 and (e > s or cum[pos[0] + 1] > lim + 1e-6): break
            if hook: hook()
            a(x); vm.add(t); pos[0] += 1
            for _ in range(per):
                if fill: a(fill.pop(0))
        for f in fill: a(f)
    while pos[0] < endof[1]:
        a(ST[pos[0]][0]); vm.add(ST[pos[0]][1]); pos[0] += 1
    srd(a, SK, "ssmk", 4 << 20)
    srd(a, KV, "ws", 4 << 20, WS_KVT)
    srd(a, FL, "ws", 2048, WS_FLG)
    srd(a, ZT, "ws", 4 << 20, WS_ZT)
    assert OPT["a1pos"] == 0
    srd(a, DB, "dbg", 256)
    a(f"""s_lshl_b32 s7, s6, 29
    v_mov_b32 v212, s7              ; out of range unless lw == 0
    s_lshl_b32 s36, s34, 1
    s_or_b32 s7, s7, s36
    v_mov_b32 v213, s7""")
    stl = []
    if OPT["st"] & 1:
        a(f"s_add_u32 s52, s{P['ssmk']}, s35\ns_addc_u32 s53, s{P['ssmk']+1}, 0")
        for j in range(32):
            stl.append(f"s_load_dword s56, s[52:53], {128*j}")
            if OPT["st64"]: stl.append(f"s_load_dword s56, s[52:53], {128*j+64}")
    if OPT["st"] & 2:
        for j in range(32):
            stl.append(f"s_load_dword s56, s[54:55], {2048*j}")
            if OPT["st64"]: stl.append(f"s_load_dword s56, s[54:55], {2048*j+64}")
    a(f"s_waitcnt vmcnt({vm.cnt('d0')})\ns_barrier")
    stamp(a, 1)
    for s in range(16):
        tr_begin(a)
        if s == KW:
            a(f"s_mov_b64 exec, 1\nbuffer_store_dwordx2 {V(NLD,2)}, v213, {S(FL)}, 0 offen sc1\ns_mov_b64 exec, -1")
            vm.add("flag")
        fill = []
        if C0 <= s < C0 + NI:
            fill = a1all[(s - C0) * PER:(s - C0 + 1) * PER]
        if s == SETUP:
            fill = fill + a2_setup()
        if s == OPT["npos"] + 1:
            assert s <= KW - 1
            nonce_chk()
        if s == OPT["npos"] + 2:
            assert s > SETUP and s < OPT["st0"]
            a(f"v_mov_b32 v1, {L_N}\nds_read_b64 v[{NON}:{NON+1}], v1")
        if s == 14:
            fill = fill + (f"""v_mov_b32 v32, 0
            v_mov_b32 v33, 0
            v_mov_b32 v34, 0
            v_mov_b32 v35, 0
            s_add_u32 s47, s46, {L_U + 4096}
            v_add_u32 v1, s47, v10
            v_and_b32 v3, 16, v10
            v_and_b32 v15, 32, v10
            v_mul_u32_u24 v15, {(L_E - L_O) // 32}, v15
            v_add3_u32 v3, v3, v15, s45
            v_add_u32 v3, {L_O}, v3
            v_cmp_gt_u32 vcc, 32, v2
            s_add_u32 s47, s45, {L_E + 28}
            v_add_u32 v15, s47, v10
            v_cndmask_b32 v1, v3, v1, vcc
            ds_write_b128 v1, v[32:35]""").split("\n")
        if s >= OPT["st0"] and stl:
            tr_end(a, s)
            n = OPT["stn"] if s < 15 else len(stl)
            fill = stl[:n] + fill
            del stl[:n]
            did = True
        else:
            did = False
        if s == C0 and OPT["a1pos"] == 0 and not OPT["i0mix"]:
            emit(s, [], 0)
            a(f"s_waitcnt vmcnt({vm.cnt('a1')})")
            for f in fill: a(f)
        else:
            if s == C0:
                assert vm.ops.count("a1") == len(ld)
                a(f"s_waitcnt vmcnt({vm.cnt('a1')})")
            emit(s, fill, -(-len(fill) // (OPT["i0mix"] if s == 0 and OPT["i0mix"] else 8)))
        if s == OPT["oint"]:
            a(f"s_waitcnt vmcnt({vm.cnt('E')})")
            for j in range(4):
                a(f"ds_read_b32 v{64+8*j}, v15 offset:{1024*j}\nds_read_b128 {V(68+8*j,4)}, v15 offset:{1024*j+4}")
            a(f"v_subrev_u32 v15, {L_E - L_O - 4}, v15\ns_waitcnt lgkmcnt(0)")
            for j in range(4):
                b = 64 + 8 * j
                a(f"""v_alignbit_b32 v{b}, v{b+4}, v{b}, 16
                v_alignbit_b32 v{b+1}, v{b+5}, v{b+4}, 16
                v_alignbit_b32 v{b+2}, v{b+6}, v{b+5}, 16
                v_alignbit_b32 v{b+3}, v{b+7}, v{b+6}, 16
                ds_write_b128 v15, {V(b,4)} offset:{1024*j}""")
        if not did: tr_end(a, s)
        w = ""
        if C0 <= s < C0 + NI or s == OPT["npos"] + 2: w = " lgkmcnt(0)"
        if s < 15:
            a(f"s_waitcnt vmcnt({vm.cnt(f'd{s+1}')}){w}")
            a("s_barrier")
    assert pos[0] == len(ST)
    a(f"""s_cmp_eq_u32 s50, 1
    s_cbranch_scc1 K1L_have
    s_mov_b32 s51, 0""")
    a.label("K1L_spin")
    a(f"""buffer_load_dwordx2 {V(PLL,2)}, v14, {S(FL)}, 0 offen sc1
    s_add_u32 s51, s51, 1
    s_waitcnt vmcnt(0)
    v_cmp_eq_u32 vcc, v{PLL}, v{NON}
    v_cmp_eq_u32 s[48:49], v{PLL+1}, v{NON+1}
    s_cmp_gt_u32 s51, {SPIN}
    s_cbranch_scc1 K1L_go
    s_and_b64 s[48:49], s[48:49], vcc
    s_cmp_eq_u64 s[48:49], -1
    s_cbranch_scc0 K1L_spin""")
    a.label("K1L_go")
    for j in range(4):
        a(f"buffer_load_dwordx4 {V(KVR+4*j,4)}, v10, {S(KV)}, s35 offen offset:{1024*j} sc1")
    a("s_waitcnt vmcnt(0)")
    a.label("K1L_have")
    a(f"""s_add_u32 s47, s46, {L_U}
    v_add_u32 v1, s47, v10
    s_waitcnt vmcnt({vm.cnt('kv', 'E')})""")
    if OPT["lt"]:
        a(f"""s_cmp_lt_u32 s6, 2
        s_cbranch_scc1 K1L_tc""")
        if OPT["lt"] & 2: a(f"buffer_load_dword v208, v31, {S(TS)}, 0 offen{' nt' if OPT['lt'] & 4 else ''}")
        a("s_branch K1L_td")
        a.label("K1L_tc")
        if OPT["lt"] & 1: a(f"buffer_load_dword v208, v30, {S(TS)}, 0 offen")
        if OPT["lt"] & 8: a(f"buffer_load_dword v209, v31, {S(X)}, 0 offen")
        a.label("K1L_td")
    for j in range(4):
        a(f"ds_write_b128 v1, {V(KVR+4*j,4)} offset:{1024*j}")
    stamp(a, 3)
    ACC = 32
    FB = [64, 128]
    def reads(buf, r):
        L = []
        f = FB[buf]
        for q in range(8):
            o = 128 * (q & 1) + 16 * r
            L.append(f"ds_read_b128 {V(f+32+4*q,4)}, v{BAD} offset:{512*(7-q) + 64*r}")
            L.append(f"ds_read2_b32 {V(f+4*q,2)}, v{AAD+(q>>1)} offset0:{o} offset1:{o+1}")
            L.append(f"ds_read2_b32 {V(f+4*q+2,2)}, v{AAD+(q>>1)} offset0:{o+2} offset1:{o+3}")
        return L
    def mfmas(buf):
        f = FB[buf]
        L = []
        for q in range(8):
            for u in range(8 - q):
                c = ACC + 4 * (q + u)
                L.append(f"v_mfma_f32_16x16x32_bf16 {V(c,4)}, {V(f+4*q,4)}, {V(f+32+4*u,4)}, {V(c,4)}")
        return L
    a("s_waitcnt lgkmcnt(0)")
    for x in reads(0, 0): a(x)
    a("s_waitcnt lgkmcnt(0)")
    stamp(a, 4)
    for u in range(8):
        a(f"v_mfma_f32_16x16x32_bf16 {V(ACC+4*u,4)}, {V(DFR,4)}, {V(FB[0]+32+4*u,4)}, 0")
    a("s_mov_b32 s51, 0")
    a.label("K1L_conv")
    interleave(a, mfmas(0), reads(1, 1), 1)
    a("s_waitcnt lgkmcnt(0)")
    adv = [f"v_add_u32 v{AAD+i}, 128, v{AAD+i}" for i in range(4)] + [f"v_add_u32 v{BAD}, 128, v{BAD}"]
    interleave(a, mfmas(1), reads(0, 2) + adv, 1)
    a("""s_add_u32 s51, s51, 1
    s_waitcnt lgkmcnt(0)
    s_cmp_lt_u32 s51, 4
    s_cbranch_scc1 K1L_conv
    s_nop 4""")
    stamp(a, 5)
    for t in range(8):
        c = ACC + 4 * t
        a(f"v_cvt_pk_bf16_f32 v{64+2*t}, v{c}, v{c+1}\nv_cvt_pk_bf16_f32 v{65+2*t}, v{c+2}, v{c+3}")
    a("s_nop 1")
    for p in range(4):
        a(f"v_permlane16_swap_b32 v{64+4*p}, v{66+4*p}\nv_permlane16_swap_b32 v{65+4*p}, v{67+4*p}")
    for p in range(4):
        a(f"buffer_store_dwordx4 {V(64+4*p,4)}, v{ZAD}, {S(ZT)}, 0 offen offset:{1024*p}{' sc1' if OPT['hs'] else ''}")
    stamp(a, 6)
    tr_out(a, 0)

def k1_compute(a):
    HS, ES, DB, LD_, LR_, LI_, KV, FL = 8, 12, 16, 20, 24, 28, 68, 72
    AA, BA = 4, 8
    L, NLI, C2, NC2, L32, M1, G128, L512 = 16, 18, 20, 42, 22, 24, 26, 28
    LBK, PUB, HEV, HOD, STA, KVG = 30, 34, 35, 36, 37, 41
    ACC, FR, STG, NLD = 64, 128, 208, 224
    a("""v_and_b32 v12, 15, v2
    v_lshrrev_b32 v13, 4, v2
    v_lshrrev_b32 v3, 1, v12
    v_xor_b32 v3, v3, v13
    v_lshlrev_b32 v3, 4, v3
    v_lshl_add_u32 v4, v12, 7, v3
    v_xor_b32 v6, 64, v4
    v_add_u32 v5, 0x10000, v4
    v_add_u32 v7, 0x10000, v6
    s_lshl_b32 s6, s5, 12
    s_add_u32 s6, s6, 16384
    v_add_u32 v8, s6, v4
    v_add_u32 v9, s6, v5
    v_add_u32 v10, s6, v6
    v_add_u32 v11, s6, v7
    s_lshl_b32 s6, s4, 2
    s_add_u32 s6, s6, s5
    s_lshl_b32 s6, s6, 4
    v_add_u32 v14, s6, v12          ; channel
    v_lshlrev_b32 v44, 1, v14
    s_waitcnt lgkmcnt(0)""")
    srd(a, LD_, "logdt", 2048)
    srd(a, LR_, "Lre", 2048)
    srd(a, LI_, "Lim", 2048)
    a(f"""buffer_load_ushort v45, v44, {S(LD_)}, 0 offen
    buffer_load_ushort v46, v44, {S(LR_)}, 0 offen
    buffer_load_ushort v47, v44, {S(LI_)}, 0 offen""")
    srd(a, DB, "dbg", 256)
    a(f"""s_or_b32 s6, s2, s5
    s_cmp_eq_u32 s6, 0
    s_cbranch_scc0 K1C_nonce_w
    s_memrealtime s[6:7]
    v_mov_b32 v1, 0
    s_waitcnt lgkmcnt(0)
    s_or_b32 s6, s6, 1
    v_mov_b32 v48, s6
    v_mov_b32 v49, s7
    s_mov_b64 exec, 1
    buffer_store_dwordx2 v[48:49], v1, {S(DB)}, 0 offen sc1
    s_mov_b64 exec, -1""")
    a.label("K1C_nonce_w")
    srd(a, HS, "ws", 8 << 20, WS_H)
    srd(a, ES, "ws", 1 << 18, WS_E)
    srd(a, KV, "ws", 4 << 20, WS_KVT)
    TS, TX = 72, 76
    if OPT["touch"]:
        srd(a, TX, "x", 4 << 20)
        a(f"""s_cmp_eq_u32 s5, 0
        s_cselect_b32 s72, s{P['Cre']}, s{P['Cim']}
        s_cselect_b32 s73, s{P['Cre']+1}, s{P['Cim']+1}
        s_cmp_lt_u32 s5, 2
        s_cselect_b32 s72, s72, s{P['q']}
        s_cselect_b32 s73, s73, s{P['q']+1}
        s_cselect_b32 s74, 1, 2
        s_cselect_b64 vcc, -1, 0
        s_lshl_b32 s74, s74, 21
        s_mov_b32 s75, 0x00020000
        s_and_b32 s7, s2, 7
        s_lshl_b32 s7, s7, 5
        s_lshr_b32 s6, s2, 3
        s_add_u32 s7, s7, s6
        s_lshl_b32 s7, s7, 13
        v_lshlrev_b32 v224, 7, v2
        v_add_u32 v224, s7, v224
        s_lshl_b32 s7, s3, 1
        s_and_b32 s6, s5, 1
        s_add_u32 s7, s7, s6
        s_lshl_b32 s7, s7, 17
        s_lshl_b32 s6, s4, 7
        s_add_u32 s7, s7, s6
        v_lshlrev_b32 v225, 11, v2
        v_add_u32 v225, s7, v225
        v_cndmask_b32 v224, v225, v224, vcc
        v_lshrrev_b32 v1, 5, v2
        s_lshr_b32 s7, s5, 1
        v_xor_b32 v1, s7, v1
        v_lshlrev_b32 v1, 31, v1
        v_or_b32 v225, v225, v1""")
    stc = []
    if OPT["st"] & 4:
        a(f"""s_cmp_lt_u32 s5, 2
        s_cselect_b32 s80, s{P['Cre']}, s{P['Cim']}
        s_cselect_b32 s81, s{P['Cre']+1}, s{P['Cim']+1}
        s_and_b32 s7, s2, 7
        s_lshl_b32 s7, s7, 5
        s_lshr_b32 s6, s2, 3
        s_add_u32 s7, s7, s6
        s_lshl_b32 s7, s7, 1
        s_and_b32 s6, s5, 1
        s_add_u32 s7, s7, s6
        s_lshl_b32 s7, s7, 12
        s_add_u32 s80, s80, s7
        s_addc_u32 s81, s81, 0""")
        for j in range(32):
            stc.append(f"s_load_dword s35, s[80:81], {128*j}")
            if OPT["st64"]: stc.append(f"s_load_dword s35, s[80:81], {128*j+64}")
    if OPT["st"] & 8:
        a(f"""s_lshl_b32 s7, s3, 2
        s_add_u32 s7, s7, s5
        s_lshl_b32 s7, s7, 16
        s_lshl_b32 s6, s4, 7
        s_add_u32 s7, s7, s6
        s_add_u32 s82, s{P['x']}, s7
        s_addc_u32 s83, s{P['x']+1}, 0""")
        for j in range(32):
            stc.append(f"s_load_dword s35, s[82:83], {2048*j}")
    def stouch(n):
        for x in stc[:n]: a(x)
        del stc[:n]
    def touch():
        if OPT["touch"]: a(f"buffer_load_dword v226, v224, {S(TS)}, 0 offen")
        if OPT["touch"] & 2: a(f"buffer_load_dword v227, v225, {S(TX)}, 0 offen")
    a(f"""s_lshr_b32 s7, s2, 3
    s_and_b32 s32, s7, 15           ; a_mt
    s_lshr_b32 s7, s7, 4
    s_and_b32 s33, s2, 7
    s_lshl_b32 s33, s33, 1
    s_add_u32 s33, s33, s7          ; a_nt
    s_mov_b32 s36, 16384
    s_mov_b32 s37, 32768
    s_mov_b32 s38, 49152
    s_lshl_b32 s6, s5, 2
    v_xor_b32 v1, s6, v12
    v_lshlrev_b32 v1, 4, v1
    v_lshl_add_u32 v1, v13, 8, v1
    s_lshl_b32 s6, s5, 12
    s_add_u32 s6, s6, {L_ST}
    v_add_u32 v{STA}, s6, v1
    v_xor_b32 v{STA+1}, 16, v{STA}
    v_xor_b32 v{STA+2}, 32, v{STA}
    v_xor_b32 v{STA+3}, 48, v{STA}
    s_lshl_b32 s6, s33, 2
    s_add_u32 s6, s6, s5
    s_lshl_b32 s6, s6, 16           ; (64 a_nt + 16 w)*4096
    s_lshl_b32 s7, s32, 8
    s_sub_u32 s7, 3840, s7
    s_add_u32 s6, s6, s7
    v_lshlrev_b32 v1, 12, v13
    v_lshl_add_u32 v1, v12, 4, v1
    v_add_u32 v{KVG}, s6, v1
    s_lshl_b32 s6, s3, 14
    v_lshlrev_b32 v1, 4, v14
    v_add_u32 v{PUB}, s6, v1
    v_lshlrev_b32 v1, 14, v13
    v_sub_u32 v1, v{PUB}, v1
    v_subrev_u32 v{LBK}, 0x4000, v1
    v_subrev_u32 v{LBK+1}, 0x14000, v1
    v_subrev_u32 v{LBK+2}, 0x24000, v1
    v_subrev_u32 v{LBK+3}, 0x34000, v1
    v_cmp_gt_i32 s[40:41], 0, v{LBK}
    v_cmp_gt_i32 s[42:43], 0, v{LBK+1}
    v_cmp_gt_i32 s[44:45], 0, v{LBK+2}
    v_cmp_gt_i32 s[46:47], 0, v{LBK+3}
    s_lshl_b32 s6, s3, 4
    s_add_u32 s6, s6, s4
    s_lshl_b32 s6, s6, 15
    s_lshl_b32 s7, s5, 8
    s_add_u32 s6, s6, s7
    v_lshlrev_b32 v1, 12, v13
    v_lshl_add_u32 v1, v12, 4, v1
    v_add_u32 v{HEV}, s6, v1
    v_xor_b32 v{HOD}, 64, v{HEV}
    v_cmp_eq_u32 s[48:49], 1, v13
    v_cmp_eq_u32 s[50:51], 2, v13
    v_cmp_eq_u32 s[52:53], 3, v13""")
    for i in range(64):
        a(f"v_mov_b32 v{ACC+i}, 0")
    a(f"""s_waitcnt vmcnt(0)
    v_lshlrev_b32 v45, 16, v45
    v_lshlrev_b32 v46, 16, v46
    v_lshlrev_b32 v47, 16, v47
    v_mul_f32 v45, 0x3fb8aa3b, v45
    v_exp_f32 v45, v45
    s_nop 0
    v_cvt_pk_bf16_f32 v45, v45, v45
    v_lshlrev_b32 v45, 16, v45
    v_mul_f32 v48, v45, v46
    v_mul_f32 v49, v45, v47
    v_mul_f32 v48, 0x3fb8aa3b, v48
    v_exp_f32 v48, v48
    v_mul_f32 v49, 0.15915494, v49
    v_cos_f32 v50, v49
    v_sin_f32 v51, v49
    s_nop 0
    v_mul_f32 v{L}, v48, v50
    v_mul_f32 v{L+1}, v48, v51
    v_add_f32 v48, -1.0, v{L}
    v_mul_f32 v49, v46, v46
    v_fmac_f32 v49, v47, v47
    v_rcp_f32 v49, v49
    v_mul_f32 v50, v48, v46
    v_fmac_f32 v50, v{L+1}, v47
    v_mul_f32 v51, v{L+1}, v46
    v_fma_f32 v51, -v48, v47, v51
    v_add_f32 v49, v49, v49
    v_mul_f32 v{C2}, v50, v49
    v_mul_f32 v{C2+1}, v51, v49
    v_xor_b32 v{NLI}, 0x80000000, v{L+1}
    v_xor_b32 v{NC2}, 0x80000000, v{C2}
    v_xor_b32 v{NC2+1}, 0x80000000, v{C2+1}""")
    cmul(a, 44, L, L)
    cmul(a, 46, 44, 44)
    cmul(a, 44, 46, 46)
    cmul(a, 46, 44, 44)
    cmul(a, L32, 46, 46)
    cmul(a, 44, L32, L32)
    cmul(a, 46, 44, L32)
    def sel(d, x1, x2, x3):
        a(f"""v_mov_b32 v{d}, 1.0
        v_mov_b32 v{d+1}, 0
        v_cndmask_b32 v{d}, v{d}, v{x1}, s[48:49]
        v_cndmask_b32 v{d+1}, v{d+1}, v{x1+1}, s[48:49]
        v_cndmask_b32 v{d}, v{d}, v{x2}, s[50:51]
        v_cndmask_b32 v{d+1}, v{d+1}, v{x2+1}, s[50:51]
        v_cndmask_b32 v{d}, v{d}, v{x3}, s[52:53]
        v_cndmask_b32 v{d+1}, v{d+1}, v{x3+1}, s[52:53]""")
    sel(48, L32, 44, 46)
    cmul(a, M1, C2, 48)
    cmul(a, 46, 44, 44)
    cmul(a, 44, 46, 46)
    cmul(a, 48, 44, 46)
    cmul(a, L512, 44, 44)
    sel(G128, 46, 44, 48)
    def reads(s, h):
        sl = SL1[s % 4]
        grp, so = divmod(sl, 65536)
        f = FR + 40 * h
        R = [f"ds_read_b128 {V(f+32+4*p,4)}, v{BA+2*h+grp} offset:{so+2048*p}" for p in range(2)]
        R += [f"ds_read_b128 {V(f+4*i,4)}, v{AA+2*h+grp} offset:{so+2048*i}" for i in range(8)]
        return R
    def mfmas(h):
        f = FR + 40 * h
        M = []
        for r in range(8):
            for p in ((0, 1) if not (r & 1) else (1, 0)):
                c = ACC + 8 * r + 4 * p
                M.append(f"v_mfma_f32_16x16x32_bf16 {V(c,4)}, {V(f+4*r,4)}, {V(f+32+4*p,4)}, {V(c,4)}")
        return M
    a("s_barrier")
    stamp(a, 1)
    for x in reads(0, 0): a(x)
    ROLL = OPT["roll1"]
    if OPT["prioc"]: a(f"s_setprio {OPT['prioc']}")
    KB = max(OPT["kb"], OPT["kvs"])
    KW = KB + OPT["kvw"]
    nsite = [0]
    def site(s, body, w0=False):
        lbl = f"K1C_s{nsite[0]}"; nsite[0] += 1
        need = False
        if ROLL and w0:
            a(f"s_cmp_eq_u32 s31, {(s >> 2) * 8}\ns_cbranch_scc0 {lbl}"); need = True
        elif ROLL:
            a(f"s_cmp_eq_u32 s30, {s >> 2}\ns_cbranch_scc0 {lbl}"); need = True
        elif w0:
            a(f"s_cmp_eq_u32 s5, 0\ns_cbranch_scc0 {lbl}"); need = True
        body()
        if need: a.label(lbl)
    def kv_reads():
        for i in range(4):
            a(f"ds_read_b128 {V(STG+4*i,4)}, v{STA+i} offset:{1024*i}")
    def kv_stores(rng=range(4)):
        for i in rng:
            if OPT["kvfl"] == 3: continue
            a(f"buffer_store_dwordx4 {V(STG+4*i,4)}, v{KVG}, {S(KV)}, {['0','s36','s37','s38'][i]} offen{['',' sc1',' sc0 sc1'][OPT['kvfl']]}")
    def match(s, x):
        return (s % 4 == x % 4) if ROLL else (s == x)
    def step(s):
        a("s_waitcnt lgkmcnt(0)")
        if match(s, KB) and not OPT["kvsp"]: site(KB, kv_stores)
        interleave(a, mfmas(0), reads(s, 1), 1)
        if OPT["kvsp"]:
            for z in range(2):
                if match(s, KB + z): site(KB + z, lambda: kv_stores([2 * z]))
        if match(s, KW - 1):
            if ROLL: site(KW - 1, lambda: a("s_waitcnt vmcnt(0)"))
            else: a("s_waitcnt vmcnt(0)")
        if ROLL and s == 3:
            a("s_cmp_eq_u32 s30, 3\ns_waitcnt lgkmcnt(0)\ns_cbranch_scc1 K1C_nobar\ns_barrier")
            a.label("K1C_nobar")
        elif s == 15:
            a("s_waitcnt lgkmcnt(0)")
        else:
            a("s_waitcnt lgkmcnt(0)\ns_barrier")
        if match(s, KB - 1): site(KB - 1, kv_reads)
        interleave(a, mfmas(1), reads(s + 1, 0) if (ROLL or s < 15) else [], 1)
        if OPT["kvsp"]:
            for z in range(2):
                if match(s, KB + z): site(KB + z, lambda: kv_stores([2 * z + 1]))
    if ROLL:
        a("s_mov_b32 s30, 0\ns_mov_b32 s31, s5")
        a.label("K1C_loop")
        for s in range(4): step(s)
        a("""s_add_u32 s30, s30, 1
        s_add_u32 s31, s31, 8
        s_cmp_lt_u32 s30, 4
        s_cbranch_scc1 K1C_loop""")
    else:
        for s in range(16): step(s)
    stamp(a, 2)
    def Ur(j): return ACC + 8 * (j >> 2) + (j & 3)
    def Ui(j): return Ur(j) + 4
    GR = 52
    a(f"""v_mov_b32 v1, {L_N}
    ds_read_b64 v[{GR+2}:{GR+3}], v1""")
    er, ei = Ur(0), Ui(0)
    for j in range(1, 32):
        d = 44 + 2 * (j & 1)
        a(f"""v_fma_f32 v{d}, v{L}, v{er}, v{Ur(j)}
        v_fma_f32 v{d+1}, v{L}, v{ei}, v{Ui(j)}
        v_fmac_f32 v{d}, v{NLI}, v{ei}
        v_fmac_f32 v{d+1}, v{L+1}, v{er}""")
        er, ei = d, d + 1
        if j == 6: a("s_waitcnt lgkmcnt(0)")
        if j > 6 and j % 2 == 1 and j < 30: stouch(1)
    a("""v_mov_b32 v44, v46
    v_mov_b32 v45, v47
    s_nop 1
    v_permlane32_swap_b32 v46, v44
    v_permlane32_swap_b32 v47, v45
    v_mov_b32 v48, v46
    v_mov_b32 v49, v47
    v_mov_b32 v50, v44
    v_mov_b32 v51, v45
    s_nop 0
    v_permlane16_swap_b32 v46, v48
    v_permlane16_swap_b32 v47, v49
    v_permlane16_swap_b32 v44, v50
    v_permlane16_swap_b32 v45, v51""")
    cmul(a, 48, 46, L32, 48)
    cmul(a, 44, 48, L32, 44)
    cmul(a, GR, 44, L32, 50)
    PL = 192
    a(f"""s_mov_b64 exec, 0xffff
    buffer_store_dwordx4 {V(GR,4)}, v{PUB}, {S(ES)}, 0 offen sc1
    s_mov_b64 exec, -1""")
    for j in range(4):
        a(f"buffer_load_dwordx4 {V(PL+4*j,4)}, v{LBK+j}, {S(ES)}, 0 offen sc1")
    stamp(a, 3)
    a("""v_cndmask_b32 v50, 0, v46, s[48:49]
    v_cndmask_b32 v51, 0, v47, s[48:49]
    v_cndmask_b32 v50, v50, v48, s[50:51]
    v_cndmask_b32 v51, v51, v49, s[50:51]
    v_cndmask_b32 v50, v50, v44, s[52:53]
    v_cndmask_b32 v51, v51, v45, s[52:53]""")
    cmul(a, 56, C2, 50)
    U2 = 128
    for j in range(32):
        a(f"""v_mul_f32 v{U2+j}, v{C2}, v{Ur(j)}
        v_fmac_f32 v{U2+j}, v{NC2+1}, v{Ui(j)}
        v_mul_f32 v{Ui(j)}, v{NC2}, v{Ui(j)}
        v_fmac_f32 v{Ui(j)}, v{NC2+1}, v{Ur(j)}""")
        if j >= 12 and j % 2 == 1: stouch(1)
    stamp(a, 4)
    a("s_mov_b32 s39, 0")
    a.label("K1C_chk")
    a("s_waitcnt vmcnt(0)")
    for j in range(4):
        b = PL + 4 * j
        a(f"""v_cmp_eq_u32 vcc, v{b+2}, v{GR+2}
        v_cmp_eq_u32 s[54:55], v{b+3}, v{GR+3}
        s_and_b64 s[54:55], s[54:55], vcc
        s_or_b64 s[{56+2*j}:{57+2*j}], s[54:55], s[{40+2*j}:{41+2*j}]""")
    a(f"""s_and_b64 s[56:57], s[56:57], s[58:59]
    s_and_b64 s[60:61], s[60:61], s[62:63]
    s_and_b64 s[56:57], s[56:57], s[60:61]
    s_cmp_eq_u64 s[56:57], -1
    s_cbranch_scc1 K1C_ok
    s_add_u32 s39, s39, 1
    s_cmp_gt_u32 s39, {SPIN}
    s_cbranch_scc1 K1C_ok""")
    for j in range(4):
        a(f"buffer_load_dwordx4 {V(PL+4*j,4)}, v{LBK+j}, {S(ES)}, 0 offen sc1")
    a("s_branch K1C_chk")
    a.label("K1C_ok")
    stamp(a, 5)
    if not OPT["touch"] & 4: touch()
    cmul(a, PL + 8, PL + 12, L512, PL + 8)
    cmul(a, PL + 4, PL + 8, L512, PL + 4)
    cmul(a, PL, PL + 4, L512, PL)
    cmul(a, 44, PL, G128)
    a("""v_mov_b32 v46, v44
    v_mov_b32 v47, v45
    s_nop 1
    v_permlane32_swap_b32 v44, v46
    v_permlane32_swap_b32 v45, v47
    v_add_f32 v44, v44, v46
    v_add_f32 v45, v45, v47
    v_mov_b32 v46, v44
    v_mov_b32 v47, v45
    s_nop 1
    v_permlane16_swap_b32 v44, v46
    v_permlane16_swap_b32 v45, v47
    v_add_f32 v44, v44, v46
    v_add_f32 v45, v45, v47""")
    cmul(a, 56, M1, 44, 56)
    a("v_xor_b32 v57, 0x80000000, v57")
    PK = 160
    pr, pi = 56, 57
    for j in range(32):
        r_, i_ = U2 + j, Ui(j)
        a(f"""v_fmac_f32 v{r_}, v{L}, v{pr}
        v_fmac_f32 v{i_}, v{L}, v{pi}
        v_fmac_f32 v{r_}, v{L+1}, v{pi}
        v_fmac_f32 v{i_}, v{NLI}, v{pr}""")
        pr, pi = r_, i_
        if j % 2 == 0 and j < 24: stouch(1)
        if j & 1:
            c = j >> 3
            a(f"""v_cvt_pk_bf16_f32 v{PK+8*c+((j>>1)&3)}, v{U2+j-1}, v{U2+j}
            v_cvt_pk_bf16_f32 v{PK+8*c+4+((j>>1)&3)}, v{Ui(j-1)}, v{Ui(j)}""")
        if (j & 7) == 7:
            c = j >> 3
            ad = HOD if c & 1 else HEV
            a(f"""buffer_store_dwordx4 {V(PK+8*c,4)}, v{ad}, {S(HS)}, 0 offen offset:{1024*c}{' sc1' if OPT['hs'] else ''}
            buffer_store_dwordx4 {V(PK+8*c+4,4)}, v{ad}, {S(HS)}, s36 offen offset:{1024*c}{' sc1' if OPT['hs'] else ''}""")
    if OPT["touch"] & 4: touch()
    stouch(99)
    stamp(a, 6)

def gen_k1(a):
    name = "k1_kernel"
    kernel_head(a, name)
    entry(a, "K1_done", "K1_compute")
    k1_loader(a)
    if STAMP: a("s_branch K1_fin")
    else: a("s_endpgm")
    a.label("K1_compute")
    k1_compute(a)
    a.label("K1_fin")
    stamp_out(a, 0)
    a.label("K1_done")
    a("s_endpgm")
    return name, 228, 163840

STG2 = 24576
L2_X = 98304
L2_Z = 114688
L2_Q = 131072
def k2_loader(a):
    vm = VM()
    HS, CR, CI, XS, QS, ZS, OS = 8, 12, 16, 20, 24, 28, 68
    a("""s_sub_u32 s6, s5, 4             ; lw
    s_lshl_b32 s101, s6, 12
    s_lshl_b32 s100, s6, 11
    s_lshl_b32 s7, s3, 19
    s_add_u32 s7, s7, s101
    v_lshlrev_b32 v4, 4, v2
    v_add_u32 v4, s7, v4            ; H offset
    v_lshrrev_b32 v12, 3, v2        ; r
    v_and_b32 v13, 7, v2
    v_lshrrev_b32 v14, 4, v2
    v_xor_b32 v13, v13, v14
    v_lshlrev_b32 v13, 4, v13
    v_lshl_add_u32 v15, v12, 11, v13
    s_lshl_b32 s7, s4, 2
    s_add_u32 s7, s7, s6
    s_lshl_b32 s7, s7, 15
    v_add_u32 v5, s7, v15
    v_xor_b32 v6, 64, v5
    v_add_u32 v6, 0x3c00, v6
    s_and_b32 s30, s2, 3
    s_lshl_b32 s30, s30, 2
    s_and_b32 s31, s2, 4
    s_lshl_b32 s31, s31, 1
    s_add_u32 s30, s30, s31
    s_add_u32 s31, s3, s4
    s_and_b32 s31, s31, 3
    s_add_u32 s30, s30, s31
    s_and_b32 s30, s30, 15
    s_lshl_b32 s72, s30, 7
    s_lshl_b32 s73, s30, 15
    s_waitcnt lgkmcnt(0)""")
    srd(a, HS, "ws", 8 << 20, WS_H)
    srd(a, CR, "Cre", 2 << 20)
    srd(a, CI, "Cim", 2 << 20)
    def dma(s, track=True):
        sl = STG2 * (s % 4)
        L = []
        L.append(f"s_add_u32 m0, s101, {sl}\ns_nop 0\nbuffer_load_dwordx4 v4, {S(HS)}, s73 offen{' sc1' if OPT['hl'] else ''} lds")
        for j in range(1, 4):
            L.append(f"buffer_load_dwordx4 v4, {S(HS)}, s73 offen offset:{1024*j}{' sc1' if OPT['hl'] else ''} lds")
        C = CI if s & 1 else CR
        L.append(f"s_add_u32 m0, s100, {sl+16384}\ns_add_u32 s73, s73, 16384\nbuffer_load_dwordx4 v5, {S(C)}, s72 offen lds")
        x = f"buffer_load_dwordx4 v6, {S(C)}, s72 offen offset:1024 lds"
        if s & 1:
            x += "\ns_add_u32 s72, s72, 128\ns_and_b32 s72, s72, 2047\ns_lshl_b32 s73, s72, 8"
        L.append(x)
        return [(x, f"d{s}") for x in L] if track else L
    Q = []
    for s in range(32): Q += dma(s)
    def take(n):
        r = Q[:n]; del Q[:n]; return r
    interleave(a, take(6), [], 0, vm)
    srd(a, XS, "x", 4 << 20)
    srd(a, QS, "q", 4 << 20)
    srd(a, ZS, "ws", 4 << 20, WS_ZT)
    srd(a, OS, "out", 16 << 20)
    a(f"""s_lshl_b32 s7, s3, 2
    s_add_u32 s7, s7, s6
    s_lshl_b32 s74, s7, 18          ; (128mt+32lw)*8192
    s_lshl_b32 s7, s7, 16
    s_lshl_b32 s75, s4, 7
    s_add_u32 s7, s7, s75
    v_add_u32 v8, s7, v15
    v_xor_b32 v9, 64, v8
    v_add_u32 v9, 0x3c00, v9
    v_add_u32 v10, 0x7800, v8
    v_add_u32 v11, 0x7800, v9       ; x / q offsets v8..11
    v_and_b32 v12, 15, v2
    v_xor_b32 v13, v12, v14         ; u0
    v_and_b32 v1, 7, v13
    v_lshlrev_b32 v1, 4, v1
    v_lshrrev_b32 v3, 3, v13
    v_lshl_add_u32 v1, v3, 8, v1
    v_lshl_add_u32 v1, v14, 12, v1
    s_lshl_b32 s7, s4, 2
    s_add_u32 s7, s7, s6
    s_lshl_b32 s7, s7, 16
    s_lshr_b32 s76, s3, 1
    s_lshl_b32 s76, s76, 9
    s_add_u32 s7, s7, s76
    s_and_b32 s76, s3, 1
    s_lshl_b32 s76, s76, 7
    s_add_u32 s7, s7, s76
    v_add_u32 v16, s7, v1
    v_xor_b32 v17, 64, v16
    v_add_u32 v17, {16384-1024}, v17
    v_xor_b32 v18, 0x100, v16
    v_add_u32 v18, {2*(16384-1024)}, v18
    v_xor_b32 v19, 0x140, v16
    v_add_u32 v19, {3*(16384-1024)}, v19
    s_add_u32 m0, s101, {L2_Z}
    s_nop 0""")
    for j in range(4): a(f"buffer_load_dwordx4 v{16+j}, {S(ZS)}, 0 offen offset:{1024*j} lds")
    a(f"s_add_u32 m0, s101, {L2_Q}\ns_nop 0")
    for j in range(4): a(f"buffer_load_dwordx4 v{8+j}, {S(QS)}, 0 offen offset:{1024*j}{NT('q')} lds")
    vm.add("a3", 8)
    interleave(a, take(6), [], 0, vm)
    a(f"""    ; z read addresses v20..23 : (b, hh)
    s_lshl_b32 s7, s6, 1
    v_xor_b32 v1, s7, v12
    v_lshlrev_b32 v1, 4, v1
    v_lshl_add_u32 v1, v2, 8, v1
    v_add_u32 v20, {L2_Z}, v1
    v_xor_b32 v21, 0x80, v20
    v_xor_b32 v22, 16, v20
    v_xor_b32 v23, 0x90, v20
    v_bfe_u32 v1, v2, 2, 2          ; r4
    v_bfe_u32 v3, v2, 1, 1          ; q>>1
    v_lshl_add_u32 v3, v14, 1, v3   ; chunk
    v_bfe_u32 v7, v2, 3, 1          ; r4>>1
    v_xor_b32 v3, v3, v7
    v_lshlrev_b32 v3, 4, v3
    v_lshl_add_u32 v3, v1, 7, v3
    v_and_b32 v1, 1, v2
    v_lshl_add_u32 v3, v1, 3, v3
    s_add_u32 s7, s101, {L2_Q}
    v_add_u32 v24, s7, v3
    v_xor_b32 v25, 32, v24
    v_xor_b32 v26, 64, v24
    v_xor_b32 v27, 0x60, v24
    s_lshl_b32 s7, s4, 8
    s_add_u32 s7, s7, s74
    v_lshlrev_b32 v28, 2, v2
    v_add_u32 v28, s7, v28          ; out offset""")
    A3C, A3N = OPT["a3c"], OPT["a3n"]
    a(f"s_waitcnt vmcnt({vm.cnt('a3' if A3C == 0 else 'd0')})\ns_barrier")
    stamp(a, 1)
    def a3_group(gi):
        b, hh = gi >> 1, gi & 1
        Z, Q, T, O = 32, 36, 40, 48 + 8 * (gi & 1)
        a(f"""ds_read_b128 {V(Z,4)}, v{20+2*b+hh}
        ds_read_b64_tr_b16 {V(Q,2)}, v{24+((2*gi)&3)} offset:{512*(2*gi)}
        ds_read_b64_tr_b16 {V(Q+2,2)}, v{24+((2*gi+1)&3)} offset:{512*(2*gi+1)}""")
        L = ["s_waitcnt lgkmcnt(0)"]
        for e in range(8):
            if e & 1:
                L += [f"v_and_b32 v{T}, 0xffff0000, v{Z+(e>>1)}", f"v_and_b32 v{O+e}, 0xffff0000, v{Q+(e>>1)}"]
            else:
                L += [f"v_lshlrev_b32 v{T}, 16, v{Z+(e>>1)}", f"v_lshlrev_b32 v{O+e}, 16, v{Q+(e>>1)}"]
            L.append(f"v_mul_f32 v{O+e}, v{O+e}, v{T}")
        St = []
        for e in range(8):
            St.append(f"s_mov_b32 s7, {(8*gi+e)*8192}\nbuffer_store_dword v{O+e}, v28, {S(OS)}, s7 offen")
        return L, St
    NUN = 29 if TRACE else 13
    def interval(s):
        tr_begin(a)
        want = min(32, s + 4) * 6 - (12 - OPT["k2n0"] if s == 0 else 0)
        main = take(want - (192 - len(Q)))
        interleave(a, main, [], 0, vm)
        if A3C <= s < A3C + 4 // A3N and not OPT["noa3"]:
            for gi in range(A3N * (s - A3C), A3N * (s - A3C + 1)):
                fill, St = a3_group(gi)
                for x in fill + St: a(x)
                vm.add("st", len(St))
        if s == OPT["xld"]:
            a(f"s_add_u32 m0, s101, {L2_X}\ns_nop 0")
            for j in range(4): a(f"buffer_load_dwordx4 v{8+j}, {S(XS)}, 0 offen offset:{1024*j} lds")
            vm.add("x", 4)
        tr_end(a, s)
        a(f"s_waitcnt vmcnt({vm.cnt(f'd{s+1}')})\ns_barrier")
    assert OPT["xld"] < NUN and 4 * OPT["xsite"] + 4 >= OPT["xld"] + 4
    for s in range(NUN): interval(s)
    stamp(a, 2)
    if not TRACE:
        a("s_mov_b32 s77, 0")
        a.label("K2L_loop")
        for s in range(NUN, NUN + 4):
            for x in dma(s + 3, False): a(x)
            a("s_waitcnt vmcnt(12)\ns_barrier")
        a("""s_add_u32 s77, s77, 1
        s_cmp_lt_u32 s77, 4
        s_cbranch_scc1 K2L_loop""")
    a("""s_waitcnt vmcnt(6)
    s_barrier
    s_waitcnt vmcnt(0)
    s_barrier""")
    stamp(a, 3)
    tr_out(a, 1)

def k2_compute(a):
    OS, DS = 8, 12
    HA, CA, XA = 4, 8, 14
    ACC, FR, DG, XF = 32, 64, 112, 128
    a("""v_and_b32 v12, 15, v2
    v_lshrrev_b32 v13, 4, v2
    s_lshl_b32 s6, s4, 7
    v_lshlrev_b32 v1, 1, v12
    v_add_u32 v1, s6, v1
    s_waitcnt lgkmcnt(0)""")
    srd(a, DS, "Dskip", 2048)
    for b in range(4):
        a(f"buffer_load_ushort v{20+b}, v1, {S(DS)}, 0 offen offset:{32*b}")
    srd(a, OS, "out", 16 << 20)
    a(f"""v_bfe_u32 v1, v2, 1, 1          ; q>>1
    v_bfe_u32 v3, v2, 2, 2          ; r
    v_lshl_add_u32 v3, v13, 3, v3
    v_lshl_add_u32 v3, v1, 2, v3
    v_lshlrev_b32 v3, 4, v3
    v_lshl_add_u32 v3, v1, 10, v3
    v_and_b32 v1, 1, v2
    v_lshl_add_u32 v3, v1, 3, v3
    s_lshl_b32 s6, s5, 12
    v_add_u32 v{HA}, s6, v3
    v_xor_b32 v{HA+2}, 64, v{HA}
    v_add_u32 v{HA+1}, {2*STG2}, v{HA}
    v_add_u32 v{HA+3}, {2*STG2}, v{HA+2}
    v_lshrrev_b32 v3, 1, v12
    v_xor_b32 v3, v3, v13
    v_lshlrev_b32 v3, 4, v3
    v_lshl_add_u32 v3, v12, 7, v3
    v_add_u32 v{CA}, 16384, v3
    v_xor_b32 v{CA+2}, 64, v{CA}
    v_add_u32 v{CA+1}, {2*STG2}, v{CA}
    v_add_u32 v{CA+3}, {2*STG2}, v{CA+2}
    s_add_u32 s6, s6, {L2_X}
    v_add_u32 v{XA}, s6, v3
    v_xor_b32 v{XA+1}, 64, v{XA}
    s_lshl_b32 s6, s3, 2
    s_add_u32 s6, s6, s5
    s_lshl_b32 s6, s6, 18
    s_lshl_b32 s7, s4, 8
    s_add_u32 s6, s6, s7
    s_add_u32 s6, s6, 4096
    v_lshlrev_b32 v16, 15, v13
    v_lshl_add_u32 v16, v12, 2, v16
    v_add_u32 v16, s6, v16          ; out offset
    v_lshlrev_b32 v17, 3, v13
    v_sub_u32 v17, v12, v17         ; n - 8g
    v_and_b32 v18, 1, v12
    v_lshlrev_b32 v18, 4, v18""")
    for i in range(32):
        a(f"v_mov_b32 v{ACC+i}, 0")
    a("s_waitcnt vmcnt(0)")
    for b in range(4):
        a(f"""v_lshlrev_b32 v{20+b}, v18, v{20+b}
        v_add_u32 v1, {16*(b&1)}, v17
        v_lshrrev_b32 v1, 1, v1""")
        for j in range(4):
            a(f"v_cmp_eq_u32 vcc, {j}, v1\ns_nop 1\nv_cndmask_b32 v{DG+4*b+j}, 0, v{20+b}, vcc")
    def reads(s, h):
        grp, so = divmod(s % 4, 2)
        so *= STG2
        f = FR + 24 * h
        R = []
        for t in range(2):
            R.append(f"ds_read_b64_tr_b16 {V(f+4*t,2)}, v{HA+grp} offset:{so+2048*t+512*h}")
            R.append(f"ds_read_b64_tr_b16 {V(f+4*t+2,2)}, v{HA+2+grp} offset:{so+2048*t+512*h}")
        for b in range(4):
            R.append(f"ds_read_b128 {V(f+8+4*b,4)}, v{CA+2*h+grp} offset:{so+2048*b}")
        return R
    def mfmas(h):
        f = FR + 24 * h
        M = []
        for t in range(2):
            for b in (range(4) if t == 0 else reversed(range(4))):
                c = ACC + 16 * t + 4 * b
                M.append(f"v_mfma_f32_16x16x32_bf16 {V(c,4)}, {V(f+4*t,4)}, {V(f+8+4*b,4)}, {V(c,4)}")
        return M
    a("s_barrier")
    stamp(a, 1)
    for x in reads(0, 0): a(x)
    a("s_mov_b32 s30, 0")
    a.label("K2C_loop")
    for s in range(4):
        a("s_waitcnt lgkmcnt(0)")
        interleave(a, mfmas(0), reads(s, 1), 1)
        a("s_waitcnt lgkmcnt(0)\ns_barrier")
        interleave(a, mfmas(1), reads(s + 1, 0), 1)
    a(f"""s_cmp_eq_u32 s30, {OPT['xsite']}
    s_cbranch_scc0 K2C_nox""")
    for t in range(2):
        for h in range(2):
            a(f"ds_read_b128 {V(XF+8*t+4*h,4)}, v{XA+h} offset:{2048*t}")
    a("s_waitcnt lgkmcnt(0)")
    for t in range(2):
        for b in range(4):
            c = ACC + 16 * t + 4 * b
            a(f"v_mfma_f32_16x16x32_bf16 {V(c,4)}, {V(XF+8*t+4*(b>>1),4)}, {V(DG+4*b,4)}, {V(c,4)}")
    a.label("K2C_nox")
    a("""s_add_u32 s30, s30, 1
    s_cmp_lt_u32 s30, 8
    s_cbranch_scc1 K2C_loop
    s_nop 4""")
    stamp(a, 2)
    for t in range(2):
        for i in range(4):
            a(f"s_mov_b32 s6, {(16*t+i)*8192}")
            for b in range(4):
                a(f"buffer_store_dword v{ACC+16*t+4*b+i}, v16, {S(OS)}, s6 offen offset:{64*b}")
    stamp(a, 3)

def gen_k2(a):
    name = "k2_kernel"
    kernel_head(a, name)
    entry(a, "K2_done", "K2_compute")
    k2_loader(a)
    if STAMP: a("s_branch K2_fin")
    else: a("s_endpgm")
    a.label("K2_compute")
    k2_compute(a)
    a.label("K2_fin")
    stamp_out(a, 1)
    a.label("K2_done")
    a("s_endpgm")
    return name, 228 if TRACE else 144, 147456

def main():
    a = Asm()
    kernels = [(gen_k1(a), 256, 512), (gen_k2(a), 256, 512)]
    if OPT["rep"]:
        import rep3
        kernels.append(rep3.gen(a, kernel_head, OPT["rep"]))
    hdr = open("/code/" + NAME + ".s.ref").read().split("\n")
    out = []
    for ln in hdr:
        if ln.startswith("; @launch") or ln.startswith(".amdgcn"):
            break
        if ln.startswith("; Override") or ln.startswith("; grid="):
            continue
        out.append(ln)
    for (name, vg, lds), grid, blk in kernels:
        out.append(f"; @launch kernel={name} grid=({grid},1,1) block=({blk},1,1) lds={lds}")
    out.append('.amdgcn_target "amdgcn-amd-amdhsa--gfx950"')
    out.append(".text")
    out += a.l
    out.append('.section .rodata,"a"')
    for (name, vg, lds), grid, blk in kernels:
        out.append(kernel_desc(name, vg))
    open(OPT["out"], "w").write("\n".join(out) + "\n")
main()
```

```python
import sys
NAME = "concat_heads__ssm_conv_h3__ssm_conv_s5__prompt"
OPT = dict(out="/code/" + NAME + ".s", stamp=0, trace=0, single=0,
           kvw=5, poll=12, n0=16, win=16, kvs=1, setup=1, a1cost=5, i0mix=12, npos=3,
           ntk=1, nte=1, ntq=1, prioc=3, prio2=0, lt=1, ltpos=3, g2set=14, ltk=8, lts=8, qw=0, qe=15,
           zfw=2, zpoll=22, zchk=25, a3c=28, osa=0, osb=2, noa3=0, cpos=3, epoll=0, fr2=2, ztp=1, fsh=7, ffull=1, fwg=1)
for arg in sys.argv[1:]:
    k, v = arg.split("=")
    assert k in OPT, k
    OPT[k] = v if k == "out" else int(v)
STAMP = OPT["stamp"]
TRACE = OPT["trace"]
FLV = ['', ' sc1', ' nt', ' sc0 sc1', ' sc0 sc1 nt', ' sc1 nt', ' sc0 nt']
def NT(k): return " nt" if OPT["nt" + k] else ""
P = dict(q=32, k=34, v=36, shift=38, ssmk=40, ssmD=42, x=44, Lre=46, Lim=48, Bre=50, Bim=52, Cre=54, Cim=56,
         logdt=58, Dskip=60, out=62, dbg=64, ws=66, q2=58)
WS_KVT = 0
WS_ZT = 4 << 20
WS_H = 8 << 20
WS_E = 16 << 20
WS_FLG = 17 << 20
FL_H = 1 << 17
FL_Z = 2 << 17
FL_SZ = 3 << 17
FSH = OPT['fsh']
FEX = '0xffff' if OPT['ffull'] else '1'
WS_STAMP = 64 << 20
SPIN = 4096

class Asm:
    def __init__(self):
        self.l = []
    def __call__(self, s):
        for ln in s.strip("\n").split("\n"):
            ln = ln.strip()
            if ln:
                self.l.append("    " + ln)
    def label(self, s):
        self.l.append(s + ":")

class VM:
    def __init__(self):
        self.ops = []
    def add(self, tag, n=1):
        self.ops += [tag] * n
    def cnt(self, *tags):
        last = max(i for i, t in enumerate(self.ops) if t in tags)
        return min(63, len(self.ops) - 1 - last)

def kernel_head(a, name):
    a.l += [".p2align 8", f".globl {name}", f".type {name},@function"]
    a.label(name)

def kernel_desc(name, vgpr, sgpr=102):
    acc = (vgpr + 3) // 4 * 4
    return f""".p2align 6
.amdhsa_kernel {name}
  .amdhsa_next_free_vgpr {vgpr}
  .amdhsa_next_free_sgpr {sgpr}
  .amdhsa_accum_offset {acc}
  .amdhsa_group_segment_fixed_size 0
  .amdhsa_kernarg_size 144
  .amdhsa_user_sgpr_count 2
  .amdhsa_user_sgpr_kernarg_segment_ptr 1
  .amdhsa_system_sgpr_workgroup_id_x 1
.end_amdhsa_kernel"""

def srd(a, d, name, nbytes, off=0):
    b = P[name]
    if off:
        a(f"s_add_u32 s{d}, s{b}, {off}\ns_addc_u32 s{d+1}, s{b+1}, 0")
    else:
        a(f"s_mov_b32 s{d}, s{b}\ns_mov_b32 s{d+1}, s{b+1}")
    a(f"s_mov_b32 s{d+2}, {nbytes}\ns_mov_b32 s{d+3}, 0x00020000")

def S(d):
    return f"s[{d}:{d+3}]"
def V(d, n):
    return f"v[{d}:{d+n-1}]"

def stamp(a, i):
    if STAMP:
        i &= 7
        a(f"s_memrealtime s[{84+2*i}:{85+2*i}]")
def stamp_dump(a, base):
    if STAMP:
        a("s_waitcnt lgkmcnt(0)")
        for i in range(8):
            a(f"v_writelane_b32 v250, s{84+2*i}, {base+i}")
def stamp_out(a):
    if not STAMP: return
    a("s_waitcnt vmcnt(0) lgkmcnt(0)")
    stamp(a, 15)
    stamp_dump(a, 8)
    srd(a, 8, "ws", 2 << 20, WS_STAMP)
    a("""s_lshl_b32 s6, s2, 3
    s_add_u32 s6, s6, s5
    s_lshl_b32 s7, s6, 8
    s_lshl_b32 s6, s6, 6
    s_add_u32 s7, s7, 0x100000
    v_lshlrev_b32 v1, 2, v2""")
    if TRACE: a("buffer_store_dword v251, v1, s[8:11], s7 offen")
    a("""s_mov_b64 exec, 0xffff
    buffer_store_dword v250, v1, s[8:11], s6 offen
    s_waitcnt vmcnt(0)""")

def tr_begin(a):
    if TRACE: a("s_memrealtime s[60:61]")
def tr_end(a, i):
    if TRACE: a(f"s_waitcnt lgkmcnt(0)\nv_writelane_b32 v251, s60, {i}")

def cmul(a, d, x, y, c=None):
    if c is None:
        a(f"v_mul_f32 v{d}, v{x}, v{y}\nv_mul_f32 v{d+1}, v{x}, v{y+1}")
    else:
        a(f"v_fma_f32 v{d}, v{x}, v{y}, v{c}\nv_fma_f32 v{d+1}, v{x}, v{y+1}, v{c+1}")
    a(f"v_fma_f32 v{d}, -v{x+1}, v{y+1}, v{d}\nv_fmac_f32 v{d+1}, v{x+1}, v{y}")

def entry(a, done, other):
    stamp(a, 0)
    a(f"""s_cmp_ge_u32 s2, 256
    s_cbranch_scc1 {done}
    s_load_dwordx16 s[32:47], s[0:1], 0
    s_load_dwordx16 s[48:63], s[0:1], 64
    s_load_dwordx4 s[64:67], s[0:1], 128
    v_lshrrev_b32 v1, 6, v0
    v_and_b32 v2, 63, v0
    s_and_b32 s6, s2, 3
    v_readfirstlane_b32 s5, v1
    s_lshl_b32 s6, s6, 2
    s_lshr_b32 s7, s2, 3
    s_and_b32 s3, s7, 3
    s_add_u32 s3, s3, s6            ; mt
    s_and_b32 s6, s2, 4
    s_lshl_b32 s6, s6, 1
    s_lshr_b32 s4, s7, 2
    s_add_u32 s4, s4, s6            ; nt
    s_cmp_lt_u32 s5, 4
    s_cbranch_scc1 {other}""")

def interleave(a, main, fill, per, vm=None):
    fill = list(fill)
    for m in main:
        if isinstance(m, tuple):
            vm.add(m[1]); m = m[0]
        a(m)
        for _ in range(per):
            if fill: a(fill.pop(0))
    for f in fill: a(f)

SL1 = [98304, 0, 32768, 65536]
L_R = 98304
L_O = L_R
L_E = L_O + 4160
L_U = L_E + 4160
L_N = 147392
L_ST = 147456
L_Z = L_R + 8192
L_F = L_N + 16
OOL = []

def rot1(a, d, t):
    a(f"""s_and_b32 s{d}, s2, 3
    s_lshl_b32 s{d}, s{d}, 2
    s_and_b32 s{t}, s2, 4
    s_lshl_b32 s{t}, s{t}, 1
    s_add_u32 s{d}, s{d}, s{t}
    s_add_u32 s{t}, s3, s4
    s_and_b32 s{t}, s{t}, 1
    s_lshl_b32 s{t}, s{t}, 1
    s_add_u32 s{d}, s{d}, s{t}
    s_and_b32 s{d}, s{d}, 15""")

def spin_flags(a, lbl, PLL, NON, AD, FL, mask=None):
    a("s_mov_b32 s51, 0")
    a.label(lbl)
    a(f"""buffer_load_dwordx2 {V(PLL,2)}, v{AD}, {S(FL)}, 0 offen sc1
    s_add_u32 s51, s51, 1
    s_waitcnt vmcnt(0)
    v_cmp_eq_u32 vcc, v{PLL}, v{NON}
    v_cmp_eq_u32 s[48:49], v{PLL+1}, v{NON+1}
    s_cmp_gt_u32 s51, {SPIN}
    s_cbranch_scc1 {lbl}_go
    s_and_b64 s[48:49], s[48:49], vcc
    {f"s_or_b64 s[48:49], s[48:49], {mask}" if mask else ""}
    s_cmp_eq_u64 s[48:49], -1
    s_cbranch_scc0 {lbl}""")
    a.label(lbl + "_go")

def loader(a):
    vm = VM()
    X, BR, BI, KS, VS, SH, SK, KV, FL = 8, 12, 16, 20, 24, 28, 68, 72, 76
    HS, CR, CI = 80, 24, 28
    a("""s_sub_u32 s6, s5, 4             ; lw
    v_lshrrev_b32 v12, 3, v2        ; r
    v_and_b32 v13, 7, v2
    v_lshrrev_b32 v14, 4, v2        ; r>>1
    v_xor_b32 v13, v13, v14
    v_lshlrev_b32 v13, 4, v13
    v_lshrrev_b32 v14, 5, v2        ; r>>2
    v_lshlrev_b32 v14, 5, v14
    v_and_b32 v15, 3, v12
    v_add_u32 v14, v14, v15
    v_lshl_add_u32 v14, v14, 11, v13   ; ve
    v_lshl_add_u32 v15, v12, 11, v13   ; vb
    s_lshl_b32 s7, s3, 4
    s_add_u32 s7, s7, s6
    s_lshl_b32 s7, s7, 14           ; (128mt+8lw)*2048
    v_add_u32 v4, s7, v14
    v_xor_b32 v5, 64, v4
    v_add_u32 v5, 0x1fc00, v5
    v_add_u32 v6, 0x1800, v4
    v_add_u32 v7, 0x1800, v5
    s_lshl_b32 s7, s4, 2
    s_add_u32 s7, s7, s6
    s_lshl_b32 s7, s7, 15           ; (64nt+16lw)*2048
    v_add_u32 v8, s7, v15
    v_xor_b32 v9, 64, v8
    v_add_u32 v9, 0x3c00, v9""")
    rot1(a, 30, 31)
    a("""s_lshl_b32 s100, s30, 7         ; koff
    s_lshl_b32 s101, s6, 12         ; lw*4096
    s_waitcnt lgkmcnt(0)""")
    srd(a, X, "x", 4 << 20)
    srd(a, BR, "Bre", 2 << 20)
    srd(a, BI, "Bim", 2 << 20)
    def dma(s):
        sl = SL1[s % 4]
        L = []
        L.append(f"s_add_u32 m0, s101, {sl}\ns_nop 0\nbuffer_load_dwordx4 v4, {S(X)}, s100 offen lds")
        for j in range(1, 4):
            L.append(f"buffer_load_dwordx4 v{4+j}, {S(X)}, s100 offen offset:{1024*j} lds")
        L.append(f"s_add_u32 m0, s101, {sl+16384}\ns_nop 0\nbuffer_load_dwordx4 v8, {S(BR)}, s100 offen lds")
        L.append(f"buffer_load_dwordx4 v9, {S(BR)}, s100 offen offset:1024 lds")
        L.append(f"s_add_u32 m0, s101, {sl+16384+2048}\ns_nop 0\nbuffer_load_dwordx4 v8, {S(BI)}, s100 offen lds")
        L.append(f"buffer_load_dwordx4 v9, {S(BI)}, s100 offen offset:1024 lds\ns_add_u32 s100, s100, 128\ns_and_b32 s100, s100, 2047")
        return [(x, f"d{s}") for x in L]
    D = [dma(s) for s in range(16)]
    interleave(a, D[0], [], 0, vm)
    srd(a, KS, "k", 4 << 20)
    srd(a, VS, "v", 4 << 20)
    srd(a, SH, "shift", 8192)
    WRAW, WF, KR, VR, KT, AC, OUT = 16, 24, 40, 62, 78, 90, 98
    a(f"""s_mov_b32 s{P['q2']}, s{P['q']}
    s_mov_b32 s{P['q2']+1}, s{P['q']+1}
    s_lshr_b32 s7, s2, 3
    s_and_b32 s32, s7, 15           ; a_mt
    s_lshr_b32 s7, s7, 4
    s_and_b32 s33, s2, 7
    s_lshl_b32 s33, s33, 1
    s_add_u32 s33, s33, s7          ; a_nt
    s_lshl_b32 s34, s33, 4
    s_add_u32 s34, s34, s32
    s_lshl_b32 s34, s34, 2
    s_add_u32 s34, s34, s6          ; A2 channel
    s_lshl_b32 s35, s34, 12         ; ch*4096
    s_lshr_b32 s7, s34, 1
    s_lshl_b32 s7, s7, 2
    s_load_dword s37, s[{P['ssmD']}:{P['ssmD']+1}], s7
    v_and_b32 v12, 15, v2           ; cq / n / m
    v_lshrrev_b32 v13, 4, v2        ; tg / g
    s_lshl_b32 s7, s32, 2
    s_add_u32 s7, s7, s6
    s_lshl_b32 s7, s7, 16           ; t0*2048
    s_lshl_b32 s38, s33, 7
    s_add_u32 s7, s7, s38
    v_lshlrev_b32 v10, 14, v13
    v_lshl_add_u32 v10, v12, 3, v10
    v_add_u32 v10, s7, v10
    v_subrev_u32 v11, 0x1800, v10
    v_bfrev_b32 v14, 1
    v_cmp_gt_i32 vcc, 0, v11
    s_lshl_b32 s7, s33, 9
    v_lshlrev_b32 v15, 5, v12
    v_cndmask_b32 v11, v11, v14, vcc
    v_add_u32 v14, s7, v15
    s_lshl_b32 s7, s6, 2
    v_add_u32 v15, s7, v13
    v_sub_u32 v15, 15, v15
    v_xor_b32 v15, v15, v12
    v_lshlrev_b32 v15, 4, v15
    v_lshl_add_u32 v15, v12, 10, v15
    v_add_u32 v15, {L_ST}, v15
    s_mov_b32 s38, 4096
    s_mov_b32 s39, 8192
    s_mov_b32 s44, 12288""")
    SOFF = ["0", "s38", "s39", "s44"]
    ld = []
    ld.append(f"buffer_load_dwordx4 {V(WRAW,4)}, v14, {S(SH)}, 0 offen")
    ld.append(f"buffer_load_dwordx4 {V(WRAW+4,4)}, v14, {S(SH)}, 0 offen offset:16")
    for i in range(3):
        ld.append(f"buffer_load_dwordx2 {V(KR+2*i,2)}, v11, {S(KS)}, {SOFF[i>>1]} offen offset:{2048*(i&1)}{NT('k')}")
    for i in range(8):
        ld.append(f"buffer_load_dwordx2 {V(KR+6+2*i,2)}, v10, {S(KS)}, {SOFF[i>>1]} offen offset:{2048*(i&1)}{NT('k')}")
    for i in range(8):
        ld.append(f"buffer_load_dwordx2 {V(VR+2*i,2)}, v10, {S(VS)}, {SOFF[i>>1]} offen offset:{2048*(i&1)}{NT('k')}")
    def unp(d, s, hi):
        return f"v_and_b32 v{d}, 0xffff0000, v{s}" if hi else f"v_lshlrev_b32 v{d}, 16, v{s}"
    def a1_chan(c):
        L = []
        for j in range(4):
            L.append(unp(WF + j, WRAW + 2 * c + (j >> 1), j & 1))
        for i in range(11):
            L.append(unp(KT + i, KR + 2 * i + (c >> 1), c & 1))
        for t in range(8):
            L.append(f"v_mul_f32 v{AC+t}, v{WF}, v{KT+t+3}")
        for j in range(1, 4):
            for t in range(8):
                L.append(f"v_fmac_f32 v{AC+t}, v{WF+j}, v{KT+t+3-j}")
        for t in range(8):
            L.append(unp(KT + t, VR + 2 * t + (c >> 1), c & 1))
        for t in range(8):
            L.append(f"v_mul_f32 v{AC+t}, v{AC+t}, v{KT+t}")
        o = OUT + 4 * (c & 1)
        for i in range(4):
            L.append(f"v_cvt_pk_bf16_f32 v{o+i}, v{AC+7-2*i}, v{AC+6-2*i}")
        L.append(f"ds_write_b128 v15, {V(o,4)} offset:{256*c}")
        return L
    POLL = OPT["poll"]
    a1all = sum((a1_chan(c) for c in range(4)), [])
    SETUP = OPT["setup"]
    AAD, BAD, DFR, ZAD, PLL, NON, KVR = 16, 20, 24, 21, 22, 28, 192
    HAD, CAD, HFP, QAD, QL = 214, 215, 217, 218, 220
    QS = 40
    def a2_setup():
        L = f"""s_waitcnt lgkmcnt(0)
        s_lshl_b32 s45, s6, 14
        v_lshlrev_b32 v{AAD}, 4, v13
        v_lshl_add_u32 v{AAD}, v12, 1, v{AAD}
        v_and_b32 v1, 1, v12
        v_mov_b32 v3, {L_O + 4}
        v_mov_b32 v14, {L_E + 2}
        v_cmp_eq_u32 vcc, 1, v1
        s_and_b32 s7, s34, 1
        s_lshl_b32 s7, s7, 4
        v_cndmask_b32 v3, v3, v14, vcc
        v_add3_u32 v{AAD}, v{AAD}, v3, s45
        v_add_u32 v{AAD+1}, 1024, v{AAD}
        v_add_u32 v{AAD+2}, 2048, v{AAD}
        v_add_u32 v{AAD+3}, 3072, v{AAD}
        s_add_u32 s47, s45, {L_U + 480}
        v_lshlrev_b32 v1, 4, v13
        v_lshlrev_b32 v3, 5, v12
        v_sub_u32 v1, v1, v3
        v_add_u32 v{BAD}, s47, v1
        s_lshr_b32 s37, s37, s7
        s_and_b32 s37, s37, 0xffff
        v_lshlrev_b32 v1, 3, v13
        v_add_u32 v1, v1, v12
        v_sub_u32 v1, 15, v1
        v_and_b32 v3, 1, v1
        v_lshlrev_b32 v3, 4, v3
        v_lshlrev_b32 v3, v3, s37
        v_lshrrev_b32 v1, 1, v1""".split("\n")
        for j in range(4):
            L += [f"v_cmp_eq_u32 vcc, {j}, v1", "s_nop 1", f"v_cndmask_b32 v{DFR+j}, 0, v3, vcc"]
        L += f"""s_add_u32 s7, s45, {L_Z}
        v_lshlrev_b32 v1, 3, v2
        v_add_u32 v{ZAD}, s7, v1
        s_lshl_b32 s7, s3, {6 + FSH}
        s_add_u32 s7, s7, {FL_H}
        v_and_b32 v1, {60 if OPT['fwg'] else 63}, v2
        v_lshlrev_b32 v1, {FSH}, v1
        v_add_u32 v{HFP}, s7, v1
        v_lshlrev_b32 v10, 4, v2
        s_lshl_b32 s7, s3, 19
        s_add_u32 s7, s7, s101
        v_add_u32 v{HAD}, s7, v10
        v_lshrrev_b32 v1, 3, v2
        v_and_b32 v3, 7, v2
        v_xor_b32 v3, v3, v13
        v_lshlrev_b32 v3, 4, v3
        v_lshl_add_u32 v3, v1, 13, v3
        s_lshl_b32 s7, s4, 6
        s_add_u32 s7, s7, s6
        s_lshl_b32 s7, s7, 11
        v_add_u32 v{CAD}, s7, v3
        v_xor_b32 v{CAD+1}, 64, v{CAD}
        v_add_u32 v{CAD+1}, {65536-1024}, v{CAD+1}
        s_lshl_b32 s44, s4, 7
        v_lshlrev_b32 v3, 11, v13
        v_lshl_add_u32 v3, v12, 3, v3
        s_lshl_b32 s7, s4, 2
        s_lshl_b64 s[56:57], 15, s7
        s_lshl_b32 s7, s3, 2
        s_add_u32 s7, s7, s6
        s_lshl_b32 s7, s7, 16
        s_add_u32 s7, s7, s44
        v_add_u32 v{QAD}, s7, v3
        s_lshr_b32 s46, s2, 3
        s_and_b32 s46, s46, {max(0, OPT['lts'] - 1)}
        s_add_u32 s38, s4, 1
        s_and_b32 s38, s38, 15
        s_lshl_b32 s38, s38, 15
        s_lshl_b32 s39, s6, 13
        s_lshl_b32 s7, s33, 7
        v_lshlrev_b32 v14, 3, v12
        v_add_u32 v14, s7, v14""".split("\n")
        if OPT["lt"]:
            L += f"""s_and_b32 s7, s2, 7
            s_lshl_b32 s7, s7, 5
            s_lshr_b32 s47, s2, 3
            s_add_u32 s7, s7, s47
            s_lshl_b32 s7, s7, 1
            s_and_b32 s47, s6, 1
            s_add_u32 s7, s7, s47
            s_lshl_b32 s7, s7, 12
            v_lshlrev_b32 v30, 6, v2
            v_add_u32 v30, s7, v30""".split("\n")
        return L
    def dmaC(s):
        sl = 2048 * (s % 8)
        C = CI if s & 1 else CR
        x = f"buffer_load_dwordx4 v{CAD+1}, {S(C)}, s44 offen offset:1024 lds"
        if s & 1: x += "\ns_add_u32 s44, s44, 128\ns_and_b32 s44, s44, 2047"
        return [(f"s_add_u32 m0, s45, {sl}\ns_nop 0\nbuffer_load_dwordx4 v{CAD}, {S(C)}, s44 offen lds", f"c{s}"), (x, f"c{s}")]
    def dmaH(s):
        m = f"s_add_u32 m0, s45, {L_R + 4096*(s&1)}" if s & 2 else f"s_add_u32 m0, s39, {65536 + 4096*(s&1)}"
        L = [f"{m}\ns_nop 0\nbuffer_load_dwordx4 v{HAD}, {S(HS)}, s38 offen sc1 lds"]
        for j in range(1, 4):
            L.append(f"buffer_load_dwordx4 v{HAD}, {S(HS)}, s38 offen offset:{1024*j} sc1 lds")
        L[3] += "\ns_add_u32 s38, s38, 16384"
        if s & 1: L[3] += "\ns_and_b32 s38, s38, 0x7ffff"
        return [(x, f"h{s}") for x in L]
    TS = 52
    TCH = f"buffer_load_dword v208, v30, {S(TS)}, 0 offen"
    def touch():
        if not OPT["lt"]: return
        a(TCH)
        vm.add("touch")
    def check():
        a(f"""v_bfrev_b32 v11, 1
        s_waitcnt vmcnt({vm.cnt('poll')})
        v_cmp_eq_u32 vcc, v{PLL}, v{NON}
        v_cmp_eq_u32 s[48:49], v{PLL+1}, v{NON+1}
        s_nop 0
        s_and_b64 s[48:49], s[48:49], vcc
        s_cmp_eq_u64 s[48:49], -1
        s_cselect_b32 s50, 1, 0
        s_cselect_b64 vcc, -1, 0
        s_nop 1
        v_cndmask_b32 v11, v11, v10, vcc""")
        stamp(a, 2)
    KW = max(1, OPT["kvs"]) + OPT["kvw"]
    DB, NLD = 20, 210
    def nonce_chk():
        a(f"""s_cmp_eq_u32 s6, 0
        s_cbranch_scc0 L_nskip
        s_mov_b32 s51, 0
        s_mov_b64 exec, 1
        s_waitcnt vmcnt({vm.cnt('nonce')})""")
        a.label("L_nspin")
        a(f"""v_readfirstlane_b32 s7, v{NLD}
        s_add_u32 s51, s51, 1
        s_cmp_lg_u32 s7, 0
        s_cbranch_scc1 L_nok
        s_cmp_gt_u32 s51, {SPIN}
        s_cbranch_scc1 L_nok
        buffer_load_dwordx2 {V(NLD,2)}, v212, {S(DB)}, 0 offen sc1
        s_waitcnt vmcnt(0)
        s_branch L_nspin""")
        a.label("L_nok")
        a(f"""v_mov_b32 v1, {L_N}
        ds_write_b64 v1, {V(NLD,2)}
        s_mov_b64 exec, -1
        s_waitcnt lgkmcnt(0)""")
        a.label("L_nskip")
    after = {k: [] for k in range(16)}
    after[OPT["npos"]].append((f"s_mov_b64 exec, 1\nbuffer_load_dwordx2 {V(NLD,2)}, v212, {S(DB)}, 0 offen sc1\ns_mov_b64 exec, -1", "nonce", 0.1, 0, None))
    for i, x in enumerate(ld):
        after[0].append((x, "a1", OPT["a1cost"] / 10, -1, None))
    QLD = [f"s_mov_b32 s36, {8192*j}\nbuffer_load_dwordx2 {V(QL+2*j,2)}, v{QAD}, {S(QS)}, s36 offen{NT('q')}" for j in range(8)]
    if OPT["lt"] and OPT["ltpos"] == 3:
        if OPT["lts"]:
            for i in range(OPT["lts"]):
                x = "\n".join([TCH] + (QLD if OPT["qw"] == -1 else []))
                after[OPT["ltk"] + i].append((f"s_cmp_eq_u32 s46, {i}\ns_cbranch_scc0 L_t{i}\n{x}\nL_t{i}:", "", 0, SETUP + 1, None))
        else:
            after[OPT["ltk"]].append((TCH, "touch", 0, SETUP + 1, None))
    for j in range(4):
        after[15].append((f"s_add_u32 m0, s45, {L_E + 32}\ns_nop 0\nbuffer_load_dwordx4 v10, {S(SK)}, s35 offen offset:{1024*j}{NT('e')} lds",
                          "E", 1, 13, None))
    after[POLL].append((f"buffer_load_dwordx2 {V(PLL,2)}, v14, {S(FL)}, 0 offen sc1", "poll", 0.2, SETUP + 1, None))
    for j in range(4):
        after[15].append((f"buffer_load_dwordx4 {V(KVR+4*j,4)}, v11, {S(KV)}, s35 offen offset:{1024*j} sc1",
                          "kv", 1, 1, check if j == 0 else None))
    if OPT["qw"] == 0:
        for x in QLD: after[15].append((x, "q", 0, OPT["qe"], None))
    ST = list(after[0])
    for k in range(1, 16):
        ST += [(x, t, 1, k - 3 if k > 3 else (-1 if k == 1 else 0), None) for x, t in D[k]] + after[k]
    cum = [0]
    for it in ST: cum.append(cum[-1] + it[2])
    endof = {0: 0}
    for i, it in enumerate(ST):
        if it[1][:1] == "d": endof[int(it[1][1:])] = i + 1
    pos = [0]
    def emit(s, fill, per):
        lim = cum[endof[min(15, s + 1)]] + (OPT["n0"] if s == 0 else OPT["win"])
        fill = list(fill)
        while pos[0] < len(ST):
            x, t, c, e, hook = ST[pos[0]]
            must = pos[0] < endof[min(15, s + 1)]
            assert not (must and e > s), (s, t)
            if not must and s < 15 and (e > s or cum[pos[0] + 1] > lim + 1e-6): break
            if hook: hook()
            a(x); pos[0] += 1
            if t: vm.add(t)
            for _ in range(per):
                if fill: a(fill.pop(0))
        for f in fill: a(f)
    while pos[0] < endof[1]:
        a(ST[pos[0]][0]); vm.add(ST[pos[0]][1]); pos[0] += 1
    srd(a, SK, "ssmk", 4 << 20)
    srd(a, KV, "ws", 4 << 20, WS_KVT)
    srd(a, FL, "ws", FL_SZ, WS_FLG)
    srd(a, HS, "ws", 8 << 20, WS_H)
    srd(a, DB, "dbg", 256)
    srd(a, CR, "Cre", 2 << 20)
    srd(a, CI, "Cim", 2 << 20)
    srd(a, QS, "q2", 4 << 20)
    a(f"""s_cmp_lt_u32 s6, 2
    s_cselect_b32 s{TS}, s{P['Cre']}, s{P['Cim']}
    s_cselect_b32 s{TS+1}, s{P['Cre']+1}, s{P['Cim']+1}
    s_mov_b32 s{TS+2}, {2 << 20}
    s_mov_b32 s{TS+3}, 0x00020000
    s_lshl_b32 s7, s6, 29
    v_mov_b32 v212, s7              ; out of range unless lw == 0
    s_lshl_b32 s36, s34, 1
    s_or_b32 s7, s7, s36
    v_mov_b32 v213, s7""")
    a(f"s_waitcnt vmcnt({vm.cnt('d0')})\ns_barrier")
    stamp(a, 1)
    for s in range(16):
        tr_begin(a)
        if s == KW:
            a(f"s_mov_b64 exec, 1\nbuffer_store_dwordx2 {V(NLD,2)}, v213, {S(FL)}, 0 offen sc1\ns_mov_b64 exec, -1")
            vm.add("flag")
        fill = []
        if s == 0: fill = a1all
        if s == SETUP:
            fill = fill + a2_setup()
        if s == OPT["npos"] + 1:
            assert s <= KW - 1
            nonce_chk()
        if s == OPT["npos"] + 2:
            assert s > SETUP
            a(f"v_mov_b32 v1, {L_N}\nds_read_b64 v[{NON}:{NON+1}], v1")
        if s == 14:
            fill = fill + (f"""v_mov_b32 v32, 0
            v_mov_b32 v33, 0
            v_mov_b32 v34, 0
            v_mov_b32 v35, 0
            s_add_u32 s47, s45, {L_U + 4096}
            v_add_u32 v1, s47, v10
            v_and_b32 v3, 16, v10
            v_and_b32 v15, 32, v10
            v_mul_u32_u24 v15, {(L_E - L_O) // 32}, v15
            v_add3_u32 v3, v3, v15, s45
            v_add_u32 v3, {L_O}, v3
            v_cmp_gt_u32 vcc, 32, v2
            s_add_u32 s47, s45, {L_E + 28}
            v_add_u32 v15, s47, v10
            v_cndmask_b32 v1, v3, v1, vcc
            ds_write_b128 v1, v[32:35]""").split("\n")
        if s == 0:
            assert vm.ops.count("a1") == len(ld)
            a(f"s_waitcnt vmcnt({vm.cnt('a1')})")
        emit(s, fill, -(-len(fill) // (OPT["i0mix"] if s == 0 else 8)))
        if s == OPT["g2set"]:
            assert pos[0] >= endof[15]
            if OPT["ltpos"] == 1: touch()
        if s == 15:
            if OPT["cpos"] == 0:
                for c in range(8): interleave(a, dmaC(c), [], 0, vm)
            if OPT["ltpos"] == 2: touch()
            a(f"s_waitcnt vmcnt({vm.cnt('E')})")
            for j in range(4):
                a(f"ds_read_b32 v{64+8*j}, v15 offset:{1024*j}\nds_read_b128 {V(68+8*j,4)}, v15 offset:{1024*j+4}")
            a(f"v_subrev_u32 v15, {L_E - L_O - 4}, v15\ns_waitcnt lgkmcnt(0)")
            for j in range(4):
                b = 64 + 8 * j
                a(f"""v_alignbit_b32 v{b}, v{b+4}, v{b}, 16
                v_alignbit_b32 v{b+1}, v{b+5}, v{b+4}, 16
                v_alignbit_b32 v{b+2}, v{b+6}, v{b+5}, 16
                v_alignbit_b32 v{b+3}, v{b+7}, v{b+6}, 16
                ds_write_b128 v15, {V(b,4)} offset:{1024*j}""")
        tr_end(a, s)
        w = ""
        if s == 0 or s == OPT["npos"] + 2: w = " lgkmcnt(0)"
        if s < 15:
            a(f"s_waitcnt vmcnt({vm.cnt(f'd{s+1}')}){w}")
            a("s_barrier")
    assert pos[0] == len(ST)
    a(f"""s_cmp_eq_u32 s50, 1
    s_cbranch_scc1 L_have""")
    spin_flags(a, "L_spin", PLL, NON, 14, FL)
    for j in range(4):
        a(f"buffer_load_dwordx4 {V(KVR+4*j,4)}, v10, {S(KV)}, s35 offen offset:{1024*j} sc1")
    a("s_waitcnt vmcnt(0)")
    a.label("L_have")
    a(f"""s_add_u32 s47, s45, {L_U}
    v_add_u32 v1, s47, v10
    s_waitcnt vmcnt({vm.cnt('kv', 'E')})""")
    if OPT["cpos"] == 1:
        for c in range(8): interleave(a, dmaC(c), [], 0, vm)
    if OPT["ltpos"] == 0: touch()
    for j in range(4):
        a(f"ds_write_b128 v1, {V(KVR+4*j,4)} offset:{1024*j}")
    stamp(a, 3)
    ACC = 32
    FB = [64, 128]
    def reads(buf, r):
        L = []
        f = FB[buf]
        for q in range(8):
            o = 128 * (q & 1) + 16 * r
            L.append(f"ds_read_b128 {V(f+32+4*q,4)}, v{BAD} offset:{512*(7-q) + 64*r}")
            L.append(f"ds_read2_b32 {V(f+4*q,2)}, v{AAD+(q>>1)} offset0:{o} offset1:{o+1}")
            L.append(f"ds_read2_b32 {V(f+4*q+2,2)}, v{AAD+(q>>1)} offset0:{o+2} offset1:{o+3}")
        return L
    def mfmas(buf):
        f = FB[buf]
        L = []
        for q in range(8):
            for u in range(8 - q):
                c = ACC + 4 * (q + u)
                L.append(f"v_mfma_f32_16x16x32_bf16 {V(c,4)}, {V(f+4*q,4)}, {V(f+32+4*u,4)}, {V(c,4)}")
        return L
    a("s_waitcnt lgkmcnt(0)")
    for x in reads(0, 0): a(x)
    a("s_waitcnt lgkmcnt(0)")
    stamp(a, 4)
    for u in range(8):
        a(f"v_mfma_f32_16x16x32_bf16 {V(ACC+4*u,4)}, {V(DFR,4)}, {V(FB[0]+32+4*u,4)}, 0")
    a("s_mov_b32 s51, 0\ns_mov_b32 m0, s45")
    def cl(odd):
        if OPT["cpos"] != 3: return []
        L = [x[0].split("\n")[-1] if i == 0 else x[0] for i, x in enumerate(dmaC(odd))]
        L[1] += "\ns_add_u32 m0, m0, 2048"
        return L
    HPOLL = f"buffer_load_dwordx2 {V(PLL,2)}, v{HFP}, {S(FL)}, 0 offen sc1"
    a.label("L_conv")
    interleave(a, mfmas(0), reads(1, 1) + cl(0), 1)
    a("s_waitcnt lgkmcnt(0)")
    adv = [f"v_add_u32 v{AAD+i}, 128, v{AAD+i}" for i in range(4)] + [f"v_add_u32 v{BAD}, 128, v{BAD}"]
    interleave(a, mfmas(1), cl(1) + reads(0, 2) + adv + ([HPOLL] if OPT["epoll"] == 1 else []), 1)
    a("""s_add_u32 s51, s51, 1
    s_waitcnt lgkmcnt(0)
    s_cmp_lt_u32 s51, 4
    s_cbranch_scc1 L_conv""")
    stamp(a, 5)
    if OPT["cpos"] == 2:
        for c in range(8): interleave(a, dmaC(c), [], 0, vm)
    if OPT["epoll"] == 2: a(HPOLL)
    a("s_nop 4")
    for t in range(8):
        c = ACC + 4 * t
        a(f"""v_cvt_pk_bf16_f32 v{64+2*t}, v{c}, v{c+1}
        v_cvt_pk_bf16_f32 v{65+2*t}, v{c+2}, v{c+3}
        ds_write_b64 v{ZAD}, {V(64+2*t,2)} offset:{512*t}""")
    stamp(a, 6)
    a("s_waitcnt vmcnt(0)")
    vm.ops = [f"c{i}" for i in range(8)] + ["q"]
    if OPT["epoll"]:
        a(f"""v_cmp_eq_u32 vcc, v{PLL}, v{NON}
        v_cmp_eq_u32 s[48:49], v{PLL+1}, v{NON+1}
        s_nop 0
        s_and_b64 s[48:49], s[48:49], vcc
        s_or_b64 s[48:49], s[48:49], s[56:57]
        s_cmp_eq_u64 s[48:49], -1
        s_cbranch_scc0 L_late""")
        for x, _ in dmaH(2) + dmaH(3): a(x)
        a("s_waitcnt lgkmcnt(0)\ns_barrier\ns_barrier")
        stamp(a, 7)
        stamp_dump(a, 0)
        stamp(a, 8)
        a("s_branch L_join")
        a.label("L_late")
    a("s_waitcnt lgkmcnt(0)\ns_barrier\ns_barrier")
    stamp(a, 7)
    stamp_dump(a, 0)
    spin_flags(a, "L_hspin", PLL, NON, HFP, FL, "s[56:57]")
    stamp(a, 8)
    interleave(a, dmaH(2) + dmaH(3), [], 0, vm)
    a.label("L_join")
    ZS, OS = 8, 12
    ZFP, ZLD, ZRD, OA, ZB, OB = 32, 33, 37, 41, 44, 64
    def a3_setup():
        srd(a, ZS, "ws", 4 << 20, WS_ZT)
        srd(a, OS, "out", 16 << 20)
        a(f"""s_lshr_b32 s7, s3, 2
        s_lshl_b32 s7, s7, 4
        s_add_u32 s7, s7, s4
        s_lshl_b32 s7, s7, {4 + FSH}
        s_add_u32 s7, s7, {FL_Z}
        v_lshlrev_b32 v1, {FSH}, v12
        v_add_u32 v{ZFP}, s7, v1
        v_xor_b32 v1, v12, v13
        v_lshlrev_b32 v1, 4, v1
        v_lshl_add_u32 v3, v13, 14, v1
        s_lshl_b32 s47, s3, 2
        s_add_u32 s47, s47, s6
        s_lshl_b32 s7, s4, 10
        s_add_u32 s7, s7, s47
        s_lshl_b32 s7, s7, 8
        v_add_u32 v{ZLD}, s7, v3
        v_xor_b32 v{ZLD+1}, 64, v{ZLD}
        v_add_u32 v{ZLD+1}, {65536-1024}, v{ZLD+1}
        v_xor_b32 v{ZLD+2}, 128, v{ZLD}
        v_add_u32 v{ZLD+2}, {2*(65536-1024)}, v{ZLD+2}
        v_xor_b32 v{ZLD+3}, 192, v{ZLD}
        v_add_u32 v{ZLD+3}, {3*(65536-1024)}, v{ZLD+3}
        s_add_u32 s35, s45, {L_Z}
        v_lshl_add_u32 v1, v12, 8, v1
        v_add_u32 v{ZRD}, s35, v1
        v_xor_b32 v{ZRD+1}, 64, v{ZRD}
        v_xor_b32 v{ZRD+2}, 128, v{ZRD}
        v_xor_b32 v{ZRD+3}, 192, v{ZRD}
        s_lshl_b32 s47, s47, 10
        s_add_u32 s47, s47, s4
        s_lshl_b32 s47, s47, 8
        v_lshlrev_b32 v1, 13, v13
        v_lshl_add_u32 v1, v12, 4, v1
        v_add_u32 v{OA}, s47, v1""")
    def a3(k):
        if k == 0:
            a(f"s_waitcnt vmcnt({vm.cnt('z', 'q')})")
            for i in range(4): a(f"ds_read_b128 {V(ZB+4*i,4)}, v{ZRD+i}")
        a(f"s_waitcnt lgkmcnt({0 if TRACE else 3-k})")
        for hf in range(2):
            idx = 4 * hf + k
            o = OB + 4 * idx
            for e in range(4):
                z, q = ZB + 4 * k + 2 * hf + (e >> 1), QL + 2 * idx + (e >> 1)
                if e & 1: a(f"v_and_b32 v1, 0xffff0000, v{z}\nv_and_b32 v{o+e}, 0xffff0000, v{q}")
                else: a(f"v_lshlrev_b32 v1, 16, v{z}\nv_lshlrev_b32 v{o+e}, 16, v{q}")
                a(f"v_mul_f32 v{o+e}, v{o+e}, v1")
            a(f"s_mov_b32 s7, {32768*idx}\nbuffer_store_dwordx4 {V(o,4)}, v{OA}, {S(OS)}, s7 offen{FLV[OPT['osa']]}")
            vm.add("st")
    A3 = not OPT["noa3"]
    assert 4 * OPT["zfw"] < OPT["zpoll"] < OPT["zchk"] < OPT["a3c"]
    for s in range(1, 35):
        if s < 31: tr_begin(a)
        if A3 and s == OPT["zchk"]:
            a(f"""s_waitcnt vmcnt({vm.cnt('zp')})
            v_cmp_eq_u32 vcc, v{PLL}, v{NON}
            v_cmp_eq_u32 s[48:49], v{PLL+1}, v{NON+1}
            s_mov_b32 m0, s35
            s_and_b64 s[48:49], s[48:49], vcc
            s_cmp_eq_u64 s[48:49], -1
            s_cbranch_scc1 L_zspin_go""")
            spin_flags(a, "L_zspin", PLL, NON, ZFP, FL)
            stamp(a, 10)
            for j in range(4):
                a(f"buffer_load_dwordx4 v{ZLD+j}, {S(ZS)}, 0 offen offset:{1024*j} sc1 lds")
            vm.add("z", 4)
        main = []
        if s + 3 < 32: main += dmaH(s + 3)
        if s + 7 < 32: main += dmaC(s + 7)
        if s == OPT["qw"]: main += [(x, "q") for x in QLD]
        interleave(a, main, [], 0, vm)
        if s == 1: a3_setup()
        if A3 and s == OPT["zpoll"]:
            a(f"buffer_load_dwordx2 {V(PLL,2)}, v{ZFP}, {S(FL)}, 0 offen sc1")
            vm.add("zp")
        if A3 and 0 <= s - OPT["a3c"] < 4: a3(s - OPT["a3c"])
        if s < 31:
            tr_end(a, 16 + s)
            a(f"s_waitcnt vmcnt({vm.cnt(f'h{s+1}', f'c{s+1}')})\ns_barrier")
        if s == 1: stamp(a, 9)
    stamp(a, 11)

def compute(a):
    HS, ES, DB, LD_, LR_, LI_, KV, FL, OS, DS = 8, 12, 16, 20, 24, 28, 68, 72, 76, 80
    AA, BA = 4, 8
    L, NLI, C2, NC2, L32, M1, G128, L512 = 16, 18, 20, 42, 22, 24, 26, 28
    LBK, PUB, HEV, HOD, STA, KVG = 30, 34, 35, 36, 37, 41
    ACC, FR, STG = 64, 128, 208
    XA, NA, XF, DSK, LEV, FA = 58, 60, 228, 244, 61, 63
    GR = 52
    a("""v_and_b32 v12, 15, v2
    v_lshrrev_b32 v13, 4, v2
    v_lshrrev_b32 v3, 1, v12
    v_xor_b32 v3, v3, v13
    v_lshlrev_b32 v3, 4, v3
    v_lshl_add_u32 v4, v12, 7, v3
    v_xor_b32 v6, 64, v4
    v_add_u32 v5, 0x10000, v4
    v_add_u32 v7, 0x10000, v6
    s_lshl_b32 s6, s5, 12
    s_add_u32 s6, s6, 16384
    v_add_u32 v8, s6, v4
    v_add_u32 v9, s6, v5
    v_add_u32 v10, s6, v6
    v_add_u32 v11, s6, v7
    s_lshl_b32 s6, s4, 2
    s_add_u32 s6, s6, s5
    s_lshl_b32 s6, s6, 4
    v_add_u32 v14, s6, v12          ; channel
    v_lshlrev_b32 v44, 1, v14
    s_lshl_b32 s6, s4, 7
    v_lshlrev_b32 v1, 3, v12
    v_add_u32 v1, s6, v1
    s_waitcnt lgkmcnt(0)""")
    srd(a, LD_, "logdt", 2048)
    srd(a, LR_, "Lre", 2048)
    srd(a, LI_, "Lim", 2048)
    srd(a, DS, "Dskip", 2048)
    a(f"""buffer_load_ushort v45, v44, {S(LD_)}, 0 offen
    buffer_load_ushort v46, v44, {S(LR_)}, 0 offen
    buffer_load_ushort v47, v44, {S(LI_)}, 0 offen
    buffer_load_dwordx2 {V(DSK,2)}, v1, {S(DS)}, 0 offen""")
    srd(a, DB, "dbg", 256)
    a(f"""s_or_b32 s6, s2, s5
    s_cmp_eq_u32 s6, 0
    s_cbranch_scc0 C_nonce_w
    s_memrealtime s[6:7]
    v_mov_b32 v1, 0
    s_waitcnt lgkmcnt(0)
    s_or_b32 s6, s6, 1
    v_mov_b32 v48, s6
    v_mov_b32 v49, s7
    s_mov_b64 exec, 1
    buffer_store_dwordx2 v[48:49], v1, {S(DB)}, 0 offen sc1
    s_mov_b64 exec, -1""")
    a.label("C_nonce_w")
    srd(a, HS, "ws", 8 << 20, WS_H)
    srd(a, ES, "ws", 1 << 18, WS_E)
    srd(a, KV, "ws", 4 << 20, WS_KVT)
    srd(a, FL, "ws", FL_SZ, WS_FLG)
    srd(a, OS, "out", 16 << 20)
    ZS = 80
    srd(a, ZS, "ws", 4 << 20, WS_ZT)
    rot1(a, 34, 35)
    a(f"""s_sub_u32 s34, s4, s34
    s_and_b32 s34, s34, 15
    s_add_u32 s35, s34, 3
    s_and_b32 s35, s35, 3
    s_lshl_b32 s35, s35, 15
    s_lshl_b32 s6, s5, 9
    s_add_u32 s35, s35, s6
    v_lshrrev_b32 v1, 2, v12
    v_lshlrev_b32 v1, 11, v1
    v_and_b32 v3, 3, v12
    v_lshl_add_u32 v1, v3, 7, v1
    v_lshrrev_b32 v3, 1, v3
    s_lshl_b32 s6, s5, 1
    v_add_u32 v3, s6, v3
    v_xor_b32 v3, v3, v13
    v_lshl_add_u32 v1, v3, 4, v1
    v_add_u32 v{XA}, s35, v1
    v_xor_b32 v{XA+1}, 64, v{XA}
    v_mov_b32 v{NA}, {L_N}
    s_lshr_b32 s7, s2, 3
    s_and_b32 s32, s7, 15           ; a_mt
    s_lshr_b32 s7, s7, 4
    s_and_b32 s33, s2, 7
    s_lshl_b32 s33, s33, 1
    s_add_u32 s33, s33, s7          ; a_nt
    s_mov_b32 s36, 16384
    s_mov_b32 s37, 32768
    s_mov_b32 s38, 49152
    s_lshl_b32 s6, s5, 2
    v_xor_b32 v1, s6, v12
    v_lshlrev_b32 v1, 4, v1
    v_lshl_add_u32 v1, v13, 8, v1
    s_lshl_b32 s6, s5, 12
    s_add_u32 s6, s6, {L_ST}
    v_add_u32 v{STA}, s6, v1
    v_xor_b32 v{STA+1}, 16, v{STA}
    v_xor_b32 v{STA+2}, 32, v{STA}
    v_xor_b32 v{STA+3}, 48, v{STA}
    s_lshl_b32 s6, s33, 2
    s_add_u32 s6, s6, s5
    s_lshl_b32 s6, s6, 16           ; (64 a_nt + 16 w)*4096
    s_lshl_b32 s7, s32, 8
    s_sub_u32 s7, 3840, s7
    s_add_u32 s6, s6, s7
    v_lshlrev_b32 v1, 12, v13
    v_lshl_add_u32 v1, v12, 4, v1
    v_add_u32 v{KVG}, s6, v1
    s_lshl_b32 s6, s3, 14
    v_lshlrev_b32 v1, 4, v14
    v_add_u32 v{PUB}, s6, v1
    v_lshlrev_b32 v1, 14, v13
    v_sub_u32 v1, v{PUB}, v1
    v_subrev_u32 v{LBK}, 0x4000, v1
    v_subrev_u32 v{LBK+1}, 0x14000, v1
    v_subrev_u32 v{LBK+2}, 0x24000, v1
    v_subrev_u32 v{LBK+3}, 0x34000, v1
    v_cmp_gt_i32 s[40:41], 0, v{LBK}
    v_cmp_gt_i32 s[42:43], 0, v{LBK+1}
    v_cmp_gt_i32 s[44:45], 0, v{LBK+2}
    v_cmp_gt_i32 s[46:47], 0, v{LBK+3}
    s_lshl_b32 s6, s3, 4
    s_add_u32 s6, s6, s4
    s_lshl_b32 s6, s6, 15
    s_lshl_b32 s7, s5, 8
    s_add_u32 s6, s6, s7
    v_lshlrev_b32 v1, 12, v13
    v_lshl_add_u32 v1, v12, 4, v1
    v_add_u32 v{HEV}, s6, v1
    v_xor_b32 v{HOD}, 64, v{HEV}
    s_add_u32 s7, s7, 65536
    v_lshlrev_b32 v1, 13, v13
    v_lshl_add_u32 v1, v12, 4, v1
    v_add_u32 v{LEV}, s7, v1
    s_lshl_b32 s7, s5, 2
    v_add_u32 v{FA}, s7, v{NA}
    v_xor_b32 v{LEV+1}, 64, v{LEV}
    v_cmp_eq_u32 s[48:49], 1, v13
    v_cmp_eq_u32 s[50:51], 2, v13
    v_cmp_eq_u32 s[52:53], 3, v13""")
    for i in range(64):
        a(f"v_mov_b32 v{ACC+i}, 0")
    a(f"""s_waitcnt vmcnt(0)
    v_lshlrev_b32 v45, 16, v45
    v_lshlrev_b32 v46, 16, v46
    v_lshlrev_b32 v47, 16, v47
    v_mul_f32 v45, 0x3fb8aa3b, v45
    v_exp_f32 v45, v45
    s_nop 0
    v_cvt_pk_bf16_f32 v45, v45, v45
    v_lshlrev_b32 v45, 16, v45
    v_mul_f32 v48, v45, v46
    v_mul_f32 v49, v45, v47
    v_mul_f32 v48, 0x3fb8aa3b, v48
    v_exp_f32 v48, v48
    v_mul_f32 v49, 0.15915494, v49
    v_cos_f32 v50, v49
    v_sin_f32 v51, v49
    s_nop 0
    v_mul_f32 v{L}, v48, v50
    v_mul_f32 v{L+1}, v48, v51
    v_add_f32 v48, -1.0, v{L}
    v_mul_f32 v49, v46, v46
    v_fmac_f32 v49, v47, v47
    v_rcp_f32 v49, v49
    v_mul_f32 v50, v48, v46
    v_fmac_f32 v50, v{L+1}, v47
    v_mul_f32 v51, v{L+1}, v46
    v_fma_f32 v51, -v48, v47, v51
    v_add_f32 v49, v49, v49
    v_mul_f32 v{C2}, v50, v49
    v_mul_f32 v{C2+1}, v51, v49
    v_xor_b32 v{NLI}, 0x80000000, v{L+1}
    v_xor_b32 v{NC2}, 0x80000000, v{C2}
    v_xor_b32 v{NC2+1}, 0x80000000, v{C2+1}""")
    cmul(a, 44, L, L)
    cmul(a, 46, 44, 44)
    cmul(a, 44, 46, 46)
    cmul(a, 46, 44, 44)
    cmul(a, L32, 46, 46)
    cmul(a, 44, L32, L32)
    cmul(a, 46, 44, L32)
    def sel(d, x1, x2, x3):
        a(f"""v_mov_b32 v{d}, 1.0
        v_mov_b32 v{d+1}, 0
        v_cndmask_b32 v{d}, v{d}, v{x1}, s[48:49]
        v_cndmask_b32 v{d+1}, v{d+1}, v{x1+1}, s[48:49]
        v_cndmask_b32 v{d}, v{d}, v{x2}, s[50:51]
        v_cndmask_b32 v{d+1}, v{d+1}, v{x2+1}, s[50:51]
        v_cndmask_b32 v{d}, v{d}, v{x3}, s[52:53]
        v_cndmask_b32 v{d+1}, v{d+1}, v{x3+1}, s[52:53]""")
    sel(48, L32, 44, 46)
    cmul(a, M1, C2, 48)
    cmul(a, 46, 44, 44)
    cmul(a, 44, 46, 46)
    cmul(a, 48, 44, 46)
    cmul(a, L512, 44, 44)
    sel(G128, 46, 44, 48)
    def reads(s, h):
        sl = SL1[s % 4]
        grp, so = divmod(sl, 65536)
        f = FR + 40 * h
        R = [f"ds_read_b128 {V(f+32+4*p,4)}, v{BA+2*h+grp} offset:{so+2048*p}" for p in range(2)]
        R += [f"ds_read_b128 {V(f+4*i,4)}, v{AA+2*h+grp} offset:{so+2048*i}" for i in range(8)]
        return R
    def mfmas(h):
        f = FR + 40 * h
        M = []
        for r in range(8):
            for p in ((0, 1) if not (r & 1) else (1, 0)):
                c = ACC + 8 * r + 4 * p
                M.append(f"v_mfma_f32_16x16x32_bf16 {V(c,4)}, {V(f+4*r,4)}, {V(f+32+4*p,4)}, {V(c,4)}")
        return M
    a("s_barrier")
    stamp(a, 1)
    for x in reads(0, 0): a(x)
    if OPT["prioc"]: a(f"s_setprio {OPT['prioc']}")
    KB = max(1, OPT["kvs"])
    KW = KB + OPT["kvw"]
    nsite = [0]
    def site(s, body):
        lbl = f"C_s{nsite[0]}"; nsite[0] += 1
        a(f"s_cmp_eq_u32 s30, {s >> 2}\ns_cbranch_scc0 {lbl}")
        body()
        a.label(lbl)
    def kv_reads():
        for i in range(4):
            a(f"ds_read_b128 {V(STG+4*i,4)}, v{STA+i} offset:{1024*i}")
    def kv_stores():
        for i in range(4):
            a(f"buffer_store_dwordx4 {V(STG+4*i,4)}, v{KVG}, {S(KV)}, {['0','s36','s37','s38'][i]} offen sc1")
    def match(s, x):
        return s % 4 == x % 4
    def step(s):
        a(f"s_cmp_eq_u32 s34, {s}\ns_waitcnt lgkmcnt(0)\ns_cbranch_scc0 C_x{s}")
        for t in range(2):
            for h in range(2):
                a(f"ds_read_b128 {V(XF+8*t+4*h,4)}, v{XA+h} offset:{8192*t}")
        a.label(f"C_x{s}")
        if match(s, KB): site(KB, kv_stores)
        interleave(a, mfmas(0), reads(s, 1) + ([f"ds_read_b64 v[{GR+2}:{GR+3}], v{NA}"] if s == 1 else []), 1)
        if match(s, KW - 1): site(KW - 1, lambda: a("s_waitcnt vmcnt(0)"))
        if s == 3:
            a("s_cmp_eq_u32 s30, 3\ns_waitcnt lgkmcnt(0)\ns_cbranch_scc1 C_nobar\ns_barrier")
            a.label("C_nobar")
        else:
            a("s_waitcnt lgkmcnt(0)\ns_barrier")
        if match(s, KB - 1): site(KB - 1, kv_reads)
        interleave(a, mfmas(1), reads(s + 1, 0), 1)
    a("s_mov_b32 s30, 0")
    a.label("C_loop")
    for s in range(4): step(s)
    a("""s_add_u32 s30, s30, 1
    s_sub_u32 s34, s34, 4
    s_cmp_lt_u32 s30, 4
    s_cbranch_scc1 C_loop""")
    stamp(a, 2)
    a(f"ds_write_b32 v{FA}, v{GR+2} offset:{L_F - L_N}")
    def Ur(j): return ACC + 8 * (j >> 2) + (j & 3)
    def Ui(j): return Ur(j) + 4
    er, ei = Ur(0), Ui(0)
    for j in range(1, 32):
        d = 44 + 2 * (j & 1)
        a(f"""v_fma_f32 v{d}, v{L}, v{er}, v{Ur(j)}
        v_fma_f32 v{d+1}, v{L}, v{ei}, v{Ui(j)}
        v_fmac_f32 v{d}, v{NLI}, v{ei}
        v_fmac_f32 v{d+1}, v{L+1}, v{er}""")
        er, ei = d, d + 1
        if j == 6: a("s_waitcnt lgkmcnt(0)")
    a("""v_mov_b32 v44, v46
    v_mov_b32 v45, v47
    s_nop 1
    v_permlane32_swap_b32 v46, v44
    v_permlane32_swap_b32 v47, v45
    v_mov_b32 v48, v46
    v_mov_b32 v49, v47
    v_mov_b32 v50, v44
    v_mov_b32 v51, v45
    s_nop 0
    v_permlane16_swap_b32 v46, v48
    v_permlane16_swap_b32 v47, v49
    v_permlane16_swap_b32 v44, v50
    v_permlane16_swap_b32 v45, v51""")
    cmul(a, 48, 46, L32, 48)
    cmul(a, 44, 48, L32, 44)
    cmul(a, GR, 44, L32, 50)
    PL = 192
    a(f"""s_mov_b64 exec, 0xffff
    buffer_store_dwordx4 {V(GR,4)}, v{PUB}, {S(ES)}, 0 offen sc1
    s_mov_b64 exec, -1""")
    for j in range(4):
        a(f"buffer_load_dwordx4 {V(PL+4*j,4)}, v{LBK+j}, {S(ES)}, 0 offen sc1")
    stamp(a, 3)
    a("""v_cndmask_b32 v50, 0, v46, s[48:49]
    v_cndmask_b32 v51, 0, v47, s[48:49]
    v_cndmask_b32 v50, v50, v48, s[50:51]
    v_cndmask_b32 v51, v51, v49, s[50:51]
    v_cndmask_b32 v50, v50, v44, s[52:53]
    v_cndmask_b32 v51, v51, v45, s[52:53]""")
    cmul(a, 56, C2, 50)
    U2 = 128
    for j in range(32):
        a(f"""v_mul_f32 v{U2+j}, v{C2}, v{Ur(j)}
        v_fmac_f32 v{U2+j}, v{NC2+1}, v{Ui(j)}
        v_mul_f32 v{Ui(j)}, v{NC2}, v{Ui(j)}
        v_fmac_f32 v{Ui(j)}, v{NC2+1}, v{Ur(j)}""")
    stamp(a, 4)
    a("s_mov_b32 s39, 0")
    a.label("C_chk")
    a("s_waitcnt vmcnt(0)")
    for j in range(4):
        b = PL + 4 * j
        a(f"""v_cmp_eq_u32 vcc, v{b+2}, v{GR+2}
        v_cmp_eq_u32 s[54:55], v{b+3}, v{GR+3}
        s_and_b64 s[54:55], s[54:55], vcc
        s_or_b64 s[{56+2*j}:{57+2*j}], s[54:55], s[{40+2*j}:{41+2*j}]""")
    a(f"""s_and_b64 s[56:57], s[56:57], s[58:59]
    s_and_b64 s[60:61], s[60:61], s[62:63]
    s_and_b64 s[56:57], s[56:57], s[60:61]
    s_cmp_eq_u64 s[56:57], -1
    s_cbranch_scc1 C_ok
    s_add_u32 s39, s39, 1
    s_cmp_gt_u32 s39, {SPIN}
    s_cbranch_scc1 C_ok""")
    for j in range(4):
        a(f"buffer_load_dwordx4 {V(PL+4*j,4)}, v{LBK+j}, {S(ES)}, 0 offen sc1")
    a("s_branch C_chk")
    a.label("C_ok")
    stamp(a, 5)
    cmul(a, PL + 8, PL + 12, L512, PL + 8)
    cmul(a, PL + 4, PL + 8, L512, PL + 4)
    cmul(a, PL, PL + 4, L512, PL)
    cmul(a, 44, PL, G128)
    a("""v_mov_b32 v46, v44
    v_mov_b32 v47, v45
    s_nop 1
    v_permlane32_swap_b32 v44, v46
    v_permlane32_swap_b32 v45, v47
    v_add_f32 v44, v44, v46
    v_add_f32 v45, v45, v47
    v_mov_b32 v46, v44
    v_mov_b32 v47, v45
    s_nop 1
    v_permlane16_swap_b32 v44, v46
    v_permlane16_swap_b32 v45, v47
    v_add_f32 v44, v44, v46
    v_add_f32 v45, v45, v47""")
    cmul(a, 56, M1, 44, 56)
    a("v_xor_b32 v57, 0x80000000, v57")
    PK = 160
    pr, pi = 56, 57
    for j in range(32):
        r_, i_ = U2 + j, Ui(j)
        a(f"""v_fmac_f32 v{r_}, v{L}, v{pr}
        v_fmac_f32 v{i_}, v{L}, v{pi}
        v_fmac_f32 v{r_}, v{L+1}, v{pi}
        v_fmac_f32 v{i_}, v{NLI}, v{pr}""")
        pr, pi = r_, i_
        if j & 1:
            c = j >> 3
            a(f"""v_cvt_pk_bf16_f32 v{PK+8*c+((j>>1)&3)}, v{U2+j-1}, v{U2+j}
            v_cvt_pk_bf16_f32 v{PK+8*c+4+((j>>1)&3)}, v{Ui(j-1)}, v{Ui(j)}""")
        if (j & 7) == 7:
            c = j >> 3
            ad = HOD if c & 1 else HEV
            a(f"""buffer_store_dwordx4 {V(PK+8*c,4)}, v{ad}, {S(HS)}, 0 offen offset:{1024*c} sc1
            buffer_store_dwordx4 {V(PK+8*c+4,4)}, v{ad}, {S(HS)}, s36 offen offset:{1024*c} sc1""")
    stamp(a, 6)
    a("s_mov_b32 s39, 0")
    a.label("C_fsp")
    a(f"""ds_read_b128 v[44:47], v{NA} offset:{L_F - L_N}
    s_add_u32 s39, s39, 1
    s_waitcnt lgkmcnt(0)
    v_xor_b32 v44, v44, v{GR+2}
    v_xor_b32 v45, v45, v{GR+2}
    v_xor_b32 v46, v46, v{GR+2}
    v_xor_b32 v47, v47, v{GR+2}
    v_or3_b32 v44, v44, v45, v46
    v_or_b32 v44, v44, v47
    s_cmp_gt_u32 s39, {SPIN}
    s_cbranch_scc1 C_fok
    v_cmp_ne_u32 vcc, 0, v44
    s_cbranch_vccnz C_fsp""")
    a.label("C_fok")
    for c in range(4):
        a(f"""ds_write_b128 v{LEV+(c&1)}, {V(PK+8*c,4)} offset:{1024*c}
        ds_write_b128 v{LEV+(c&1)}, {V(PK+8*c+4,4)} offset:{4096+1024*c}""")
    HA, CA, OA2 = 4, 8, 10
    ACC, FR, DG = 64, 96, 96
    ZX, ZG, ZFS, ZB = 16, 17, 18, 144
    a(f"""v_bfe_u32 v1, v2, 1, 1          ; q>>1
    v_bfe_u32 v3, v2, 2, 2          ; r
    v_lshl_add_u32 v3, v13, 3, v3
    v_lshl_add_u32 v3, v1, 2, v3
    v_lshlrev_b32 v3, 4, v3
    v_lshl_add_u32 v3, v1, 10, v3
    v_and_b32 v1, 1, v2
    v_lshl_add_u32 v3, v1, 3, v3
    v_mov_b32 v{CA}, v4
    v_mov_b32 v{CA+1}, v6
    s_lshl_b32 s6, s5, 13
    s_add_u32 s6, s6, 65536
    v_add_u32 v{HA}, s6, v3
    v_xor_b32 v{HA+2}, 64, v{HA}
    s_lshl_b32 s6, s5, 14
    s_add_u32 s6, s6, {L_R}
    v_add_u32 v{HA+1}, s6, v3
    v_xor_b32 v{HA+3}, 64, v{HA+1}
    s_lshl_b32 s6, s3, 2
    s_add_u32 s6, s6, s5
    s_lshl_b32 s6, s6, 18
    s_lshl_b32 s7, s4, 8
    s_add_u32 s6, s6, s7
    s_add_u32 s6, s6, 4096
    v_lshlrev_b32 v{OA2}, 15, v13
    v_lshl_add_u32 v{OA2}, v12, 4, v{OA2}
    v_add_u32 v{OA2}, s6, v{OA2}          ; out offset
    v_lshlrev_b32 v1, 1, v13
    v_sub_u32 v1, v12, v1           ; n - 2g = 8h + e
    v_cmp_eq_u32 s[40:41], 0, v1
    v_cmp_eq_u32 s[42:43], 1, v1
    v_cmp_eq_u32 s[44:45], 8, v1
    v_cmp_eq_u32 s[46:47], 9, v1
    v_and_b32 v44, 0xffff, v{DSK}
    v_and_b32 v45, 0xffff0000, v{DSK}
    v_and_b32 v46, 0xffff, v{DSK+1}
    v_and_b32 v47, 0xffff0000, v{DSK+1}
    s_lshl_b32 s6, s3, 4
    s_add_u32 s6, s6, s4
    s_lshl_b32 s6, s6, 2
    {"" if OPT['fwg'] else "s_add_u32 s6, s6, s5"}
    s_lshl_b32 s6, s6, {FSH}
    s_add_u32 s6, s6, {FL_H}
    v_lshl_add_u32 v11, v12, 3, s6""")
    for b in range(4):
        for h in range(2):
            for r in range(4):
                d = DG + 8 * b + 4 * h + r
                if (r & 1) == (b >> 1):
                    m = 40 + 4 * h + 2 * (r >> 1)
                    a(f"v_cndmask_b32 v{d}, 0, v{44+b}, s[{m}:{m+1}]")
                else:
                    a(f"v_mov_b32 v{d}, 0")
    a(f"""v_bfe_u32 v1, v2, 2, 2
    v_lshlrev_b32 v1, 14, v1
    v_and_b32 v3, 3, v2
    v_lshl_add_u32 v1, v3, 7, v1
    v_lshl_add_u32 v1, v13, 4, v1
    s_lshl_b32 s6, s5, 10
    s_add_u32 s6, s6, {L_Z}
    v_add_u32 v{ZX}, s6, v1
    s_lshl_b32 s6, s33, 4
    s_add_u32 s6, s6, s32
    s_lshl_b32 s7, s6, 2
    s_add_u32 s7, s7, s5
    s_lshl_b32 s7, s7, 12
    v_lshlrev_b32 v1, 4, v2
    v_add_u32 v{ZG}, s7, v1
    s_lshl_b32 s7, s5, 8
    s_add_u32 s7, s7, s6
    s_lshl_b32 s7, s7, {FSH}
    s_add_u32 s7, s7, {FL_Z}
    v_lshl_add_u32 v{ZFS}, v12, 3, s7""")
    a("s_nop 1")
    for h in range(2):
        for t in range(2):
            for b in range(4):
                c = ACC + 16 * t + 4 * b
                a(f"v_mfma_f32_16x16x32_bf16 {V(c,4)}, {V(XF+8*t+4*h,4)}, {V(DG+8*b+4*h,4)}, {V(c,4) if h else 0}")
    a("s_waitcnt vmcnt(0)")
    if OPT["fwg"]:
        a(f"""ds_write_b32 v{FA}, v{GR+2} offset:{L_F + 16 - L_N}
        ds_read_b128 v[44:47], v{NA} offset:{L_F + 16 - L_N}
        s_waitcnt lgkmcnt(0)
        v_xor_b32 v44, v44, v{GR+2}
        v_xor_b32 v45, v45, v{GR+2}
        v_xor_b32 v46, v46, v{GR+2}
        v_xor_b32 v47, v47, v{GR+2}
        v_or3_b32 v44, v44, v45, v46
        v_or_b32 v44, v44, v47
        v_cmp_ne_u32 vcc, 0, v44
        s_cbranch_vccnz C_nofl""")
    a(f"""s_mov_b64 exec, {FEX}
    buffer_store_dwordx2 {V(GR+2,2)}, v11, {S(FL)}, 0 offen sc1
    s_mov_b64 exec, -1""")
    a.label("C_nofl")
    stamp(a, 7)
    stamp_dump(a, 0)
    a(f"s_setprio {OPT['prio2']}")
    def reads(s, h):
        s %= 4
        f = FR + 24 * h
        R = []
        for t in range(2):
            R.append(f"ds_read_b64_tr_b16 {V(f+4*t,2)}, v{HA+(s>>1)} offset:{4096*(s&1)+2048*t+512*h}")
            R.append(f"ds_read_b64_tr_b16 {V(f+4*t+2,2)}, v{HA+2+(s>>1)} offset:{4096*(s&1)+2048*t+512*h}")
        for b in range(4):
            R.append(f"ds_read_b128 {V(f+8+4*b,4)}, v{CA+h} offset:{2048*s+16384*b}")
        return R
    def mfmas(h):
        f = FR + 24 * h
        M = []
        for t in range(2):
            for b in (range(4) if t == 0 else reversed(range(4))):
                c = ACC + 16 * t + 4 * b
                M.append(f"v_mfma_f32_16x16x32_bf16 {V(c,4)}, {V(f+4*t,4)}, {V(f+8+4*b,4)}, {V(c,4)}")
        return M
    def ool(it, name, body):
        a(f"s_cmp_eq_u32 s30, {it}\ns_cbranch_scc1 C2_{name}")
        a.label(f"C2_{name}_r")
        b = Asm()
        b.label(f"C2_{name}")
        body(b)
        b(f"s_branch C2_{name}_r")
        OOL.extend(b.l)
    def zt_out(a):
        for j in range(4):
            for ab in range(2):
                a(f"ds_read_b64_tr_b16 {V(ZB+4*j+2*ab,2)}, v{ZX} offset:{512*(j>>1) + 8*(8*(j&1)+ab)}")
        a("s_waitcnt lgkmcnt(0)")
        for j in range(4):
            a(f"buffer_store_dwordx4 {V(ZB+4*j,4)}, v{ZG}, {S(ZS)}, 0 offen offset:{1024*j} sc1")
    def z_flag(a):
        a(f"""s_waitcnt vmcnt(0)
        s_mov_b64 exec, {FEX}
        buffer_store_dwordx2 {V(GR+2,2)}, v{ZFS}, {S(FL)}, 0 offen sc1
        s_mov_b64 exec, -1""")
    a("s_waitcnt lgkmcnt(0)\ns_barrier")
    stamp(a, 8)
    for x in reads(0, 0): a(x)
    a("s_mov_b32 s30, 0")
    a.label("C2_loop")
    assert OPT["ztp"] < 4 * OPT["zfw"] - 1
    for s in range(4):
        a("s_waitcnt lgkmcnt(0)")
        interleave(a, mfmas(0), reads(s, 1), OPT["fr2"])
        if s == OPT["ztp"] % 4 and not OPT["noa3"]: ool(OPT["ztp"] // 4, "zt", zt_out)
        if s == 3:
            a(f"""v_xor_b32 v{CA}, 8192, v{CA}
            v_xor_b32 v{CA+1}, 8192, v{CA+1}
            s_cmp_eq_u32 s30, 7
            s_waitcnt lgkmcnt(0)
            s_cbranch_scc1 C2_nobar
            s_barrier""")
            a.label("C2_nobar")
        else:
            a("s_waitcnt lgkmcnt(0)\ns_barrier")
        interleave(a, mfmas(1), reads(s + 1, 0), OPT["fr2"])
    if not OPT["noa3"]: ool(OPT["zfw"] - 1, "zf", z_flag)
    a("""s_add_u32 s30, s30, 1
    s_cmp_lt_u32 s30, 8
    s_cbranch_scc1 C2_loop
    s_nop 5""")
    stamp(a, 10)
    OB = 160
    for t in range(2):
        for i in range(4):
            o = OB + 16 * t + 4 * i
            for b in range(4):
                a(f"v_mov_b32 v{o+b}, v{ACC+16*t+4*b+i}")
            a(f"s_mov_b32 s6, {(16*t+i)*8192}")
            a(f"buffer_store_dwordx4 {V(o,4)}, v{OA2}, {S(OS)}, s6 offen{FLV[OPT['osb']]}")
    stamp(a, 11)

def main():
    a = Asm()
    name = NAME + "_kernel" if OPT["single"] else "f_kernel"
    kernel_head(a, name)
    entry(a, "K_done", "K_compute")
    loader(a)
    if STAMP: a("s_branch K_fin")
    else: a("s_endpgm")
    a.label("K_compute")
    compute(a)
    a.label("K_fin")
    stamp_out(a)
    a.label("K_done")
    a("s_endpgm")
    a.l += OOL
    vg = 252 if STAMP else 246
    hdr = open("/code/" + NAME + ".s.ref").read().split("\n")
    out = []
    for ln in hdr:
        if ln.startswith("; @launch") or ln.startswith(".amdgcn"):
            break
        if ln.startswith("; Override") or ln.startswith("; grid="):
            continue
        out.append(ln)
    out.append(f"; @launch {'' if OPT['single'] else 'kernel=' + name + ' '}grid=(256,1,1) block=(512,1,1) lds=163840")
    out.append('.amdgcn_target "amdgcn-amd-amdhsa--gfx950"')
    out.append(".text")
    out += a.l
    out.append('.section .rodata,"a"')
    out.append(kernel_desc(name, vg))
    open(OPT["out"], "w").write("\n".join(out) + "\n")
main()
```

```python
import sys, json
sys.path.insert(0, "exp")
from probe import head, desc, STB
def kern(name, pid, W, crot, nb, flags, win):
    lpr = W // 16
    rows = 64 // lpr
    sh = {8: 3, 16: 4, 32: 5, 64: 6}[lpr]
    s = head(name) + f"""    s_memrealtime s[70:71]
    s_cmp_ge_u32 s2, 256
    s_cbranch_scc1 {name}_done
    v_lshrrev_b32 v1, 6, v0
    v_and_b32 v2, 63, v0
    s_load_dwordx2 s[4:5], s[0:1], 136
    s_load_dwordx4 s[20:23], s[0:1], 88
    v_readfirstlane_b32 s29, v1
    s_waitcnt lgkmcnt(0)
"""
    for i, b in enumerate((20, 22)):
        s += f"    s_mov_b32 s{32+4*i}, s{b}\n    s_mov_b32 s{33+4*i}, s{b+1}\n    s_mov_b32 s{34+4*i}, 0x200000\n    s_mov_b32 s{35+4*i}, 0x20000\n"
    s += f"""    s_lshr_b32 s7, s2, 3
    s_and_b32 s3, s7, 3
    s_and_b32 s6, s2, 4
    s_lshl_b32 s6, s6, 1
    s_lshr_b32 s30, s7, 2
    s_add_u32 s30, s30, s6         ; nt
    s_mul_i32 s3, s3, {crot}
    s_add_u32 s3, s3, s30
    s_lshl_b32 s3, s3, 7
    s_and_b32 s3, s3, {2047 & ~(W - 1)}
    s_lshl_b32 s30, s30, 6
    s_add_u32 s30, s30, s29
    s_lshl_b32 s30, s30, 11
    v_lshrrev_b32 v3, {sh}, v2
    v_and_b32 v4, {lpr - 1}, v2
    v_lshlrev_b32 v4, 4, v4
    v_lshl_add_u32 v3, v3, 13, v4
    v_add_u32 v3, s30, v3
    v_mov_b32 v5, 0x1ffffc
    buffer_load_dword v6, v5, s[32:35], 0 offen
    buffer_load_dword v7, v5, s[36:39], 0 offen
    s_waitcnt vmcnt(0)
    s_barrier
    s_memrealtime s[74:75]
"""
    n = 0
    per = 16 // rows
    for k in range(nb * 128 // W):
        for arr in range(2):
            for j in range(per):
                r = 8 + 4 * (n % 28)
                if win and n >= win: s += f"    s_waitcnt vmcnt({win - 1})\n"
                s += f"    s_add_u32 s31, s3, {j * rows * 8192}\n    buffer_load_dwordx4 v[{r}:{r+3}], v3, s[{32+4*arr}:{35+4*arr}], s31 offen{flags}\n"
                n += 1
        s += f"    s_add_u32 s3, s3, {W}\n    s_and_b32 s3, s3, 2047\n"
        if (k + 1) * W == nb * 64: s += "    s_memrealtime s[76:77]\n"
    s += f"""    s_waitcnt vmcnt(0)
    s_memrealtime s[72:73]
    s_waitcnt lgkmcnt(0)
    s_add_u32 s8, s4, {STB + pid*0x10000}
    s_addc_u32 s9, s5, 0
    s_mov_b32 s10, 0x10000
    s_mov_b32 s11, 0x00020000
    s_mul_i32 s12, s2, 8
    s_add_u32 s12, s12, s29
    s_lshl_b32 s12, s12, 4
    v_mov_b32 v4, s70
    v_mov_b32 v5, s74
    v_mov_b32 v6, s72
    v_mov_b32 v7, s76
    v_mov_b32 v8, s12
    buffer_store_dwordx4 v[4:7], v8, s[8:11], 0 offen
    s_waitcnt vmcnt(0)
{name}_done:
    s_endpgm
"""
    return s
cfg = []
for W in (128, 256, 512):
    for crot in (0, 4):
        for nb in (8, 16):
            cfg.append((W, crot, nb, "", 0))
cfg += [(128, 0, 8, "", 4), (128, 0, 8, "", 8), (128, 1, 8, "", 0), (128, 2, 8, "", 0), (128, 0, 8, " nt", 0), (128, 4, 16, " nt", 0), (128, 0, 8, " sc1", 0), (1024, 0, 16, "", 0), (1024, 8, 16, "", 0)]
s = ""
for i, c in enumerate(cfg):
    s += f"; @launch kernel=c{i}_kernel grid=(256,1,1) block=(256,1,1) lds=131072\n"
s += '.amdgcn_target "amdgcn-amd-amdhsa--gfx950"\n.text\n'
for i, c in enumerate(cfg):
    s += kern(f"c{i}_kernel", i, *c)
s += '.section .rodata,"a"\n'
for i, c in enumerate(cfg):
    s += desc(f"c{i}_kernel", 128, 100)
open("fab.s", "w").write(s)
json.dump(cfg, open("fab.json", "w"))
```

```python
import sys
NAME = "concat_heads__ssm_conv_h3__ssm_conv_s5__prompt"
OPT = dict(out="/code/" + NAME + ".s", stamp=0, trace=0, single=0,
           kvw=5, poll=12, win=16, kvs=0, npos=3, kfirst=1, npre=4,
           ntk=1, nte=1, ntq=1, prioc=3, prio2=0, lt=1, ltpos=3, g2set=14, ltk=8, lts=8, qw=0, qe=15,
           zfw=2, zpoll=22, zchk=25, a3c=28, osa=2, osb=2, noa3=0, cpos=3, epoll=0, fr2=2, ztp=1, fsh=7, ffull=1, fwg=1, st0=0, rotm=1, rots=1, rotx=1, tpar=0)
for arg in sys.argv[1:]:
    k, v = arg.split("=")
    assert k in OPT, k
    OPT[k] = v if k == "out" else int(v)
STAMP = OPT["stamp"]
TRACE = OPT["trace"]
FLV = ['', ' sc1', ' nt', ' sc0 sc1', ' sc0 sc1 nt', ' sc1 nt', ' sc0 nt']
def NT(k): return " nt" if OPT["nt" + k] else ""
P = dict(q=32, k=34, v=36, shift=38, ssmk=40, ssmD=42, x=44, Lre=46, Lim=48, Bre=50, Bim=52, Cre=54, Cim=56,
         logdt=58, Dskip=60, out=62, dbg=64, ws=66, q2=58)
WS_KVT = 0
WS_ZT = 4 << 20
WS_H = 8 << 20
WS_E = 16 << 20
WS_FLG = 17 << 20
FL_H = 1 << 17
FL_Z = 2 << 17
FL_SZ = 3 << 17
FSH = OPT['fsh']
FEX = '0xffff' if OPT['ffull'] else '1'
WS_STAMP = 64 << 20
SPIN = 4096

class Asm:
    def __init__(self):
        self.l = []
    def __call__(self, s):
        for ln in s.strip("\n").split("\n"):
            ln = ln.strip()
            if ln:
                self.l.append("    " + ln)
    def label(self, s):
        self.l.append(s + ":")

class VM:
    def __init__(self):
        self.ops = []
    def add(self, tag, n=1):
        self.ops += [tag] * n
    def cnt(self, *tags):
        last = max(i for i, t in enumerate(self.ops) if t in tags)
        return min(63, len(self.ops) - 1 - last)

def kernel_head(a, name):
    a.l += [".p2align 8", f".globl {name}", f".type {name},@function"]
    a.label(name)

def kernel_desc(name, vgpr, sgpr=102):
    acc = (vgpr + 3) // 4 * 4
    return f""".p2align 6
.amdhsa_kernel {name}
  .amdhsa_next_free_vgpr {vgpr}
  .amdhsa_next_free_sgpr {sgpr}
  .amdhsa_accum_offset {acc}
  .amdhsa_group_segment_fixed_size 0
  .amdhsa_kernarg_size 144
  .amdhsa_user_sgpr_count 2
  .amdhsa_user_sgpr_kernarg_segment_ptr 1
  .amdhsa_system_sgpr_workgroup_id_x 1
.end_amdhsa_kernel"""

def srd(a, d, name, nbytes, off=0):
    b = P[name]
    if off:
        a(f"s_add_u32 s{d}, s{b}, {off}\ns_addc_u32 s{d+1}, s{b+1}, 0")
    else:
        a(f"s_mov_b32 s{d}, s{b}\ns_mov_b32 s{d+1}, s{b+1}")
    a(f"s_mov_b32 s{d+2}, {nbytes}\ns_mov_b32 s{d+3}, 0x00020000")

def S(d):
    return f"s[{d}:{d+3}]"
def V(d, n):
    return f"v[{d}:{d+n-1}]"

def stamp0(a, i):
    if STAMP and OPT["st0"]: a(f"s_memrealtime s[{84+2*i}:{85+2*i}]")
def stamp(a, i):
    if STAMP and not (OPT["st0"] and 2 <= i <= 7):
        i &= 7
        a(f"s_memrealtime s[{84+2*i}:{85+2*i}]")
def stamp_dump(a, base):
    if STAMP:
        a("s_waitcnt lgkmcnt(0)")
        for i in range(8):
            a(f"v_writelane_b32 v250, s{84+2*i}, {base+i}")
def stamp_out(a):
    if not STAMP: return
    a("s_waitcnt vmcnt(0) lgkmcnt(0)")
    stamp(a, 15)
    stamp_dump(a, 8)
    srd(a, 8, "ws", 2 << 20, WS_STAMP)
    a("""s_lshl_b32 s6, s2, 3
    s_add_u32 s6, s6, s5
    s_lshl_b32 s7, s6, 8
    s_lshl_b32 s6, s6, 6
    s_add_u32 s7, s7, 0x100000
    v_lshlrev_b32 v1, 2, v2""")
    if TRACE: a("buffer_store_dword v251, v1, s[8:11], s7 offen")
    a("""s_mov_b64 exec, 0xffff
    buffer_store_dword v250, v1, s[8:11], s6 offen
    s_waitcnt vmcnt(0)""")

def tr_begin(a):
    if TRACE: a("s_memrealtime s[60:61]")
def tr_end(a, i):
    if TRACE: a(f"s_waitcnt lgkmcnt(0)\nv_writelane_b32 v251, s60, {i}")

def cmul(a, d, x, y, c=None):
    if c is None:
        a(f"v_mul_f32 v{d}, v{x}, v{y}\nv_mul_f32 v{d+1}, v{x}, v{y+1}")
    else:
        a(f"v_fma_f32 v{d}, v{x}, v{y}, v{c}\nv_fma_f32 v{d+1}, v{x}, v{y+1}, v{c+1}")
    a(f"v_fma_f32 v{d}, -v{x+1}, v{y+1}, v{d}\nv_fmac_f32 v{d+1}, v{x+1}, v{y}")

def entry(a, done, other):
    stamp(a, 0)
    a(f"""s_cmp_ge_u32 s2, 256
    s_cbranch_scc1 {done}
    s_load_dwordx16 s[32:47], s[0:1], 0
    s_load_dwordx16 s[48:63], s[0:1], 64
    s_load_dwordx4 s[64:67], s[0:1], 128
    v_lshrrev_b32 v1, 6, v0
    v_and_b32 v2, 63, v0
    s_and_b32 s6, s2, 3
    v_readfirstlane_b32 s5, v1
    s_lshl_b32 s6, s6, 2
    s_lshr_b32 s7, s2, 3
    s_and_b32 s3, s7, 3
    s_add_u32 s3, s3, s6            ; mt
    s_and_b32 s6, s2, 4
    s_lshl_b32 s6, s6, 1
    s_lshr_b32 s4, s7, 2
    s_add_u32 s4, s4, s6            ; nt
    s_cmp_lt_u32 s5, 4
    s_cbranch_scc1 {other}""")

def interleave(a, main, fill, per, vm=None):
    fill = list(fill)
    for m in main:
        if isinstance(m, tuple):
            vm.add(m[1]); m = m[0]
        a(m)
        for _ in range(per):
            if fill: a(fill.pop(0))
    for f in fill: a(f)

SL1 = [98304, 0, 32768, 65536]
L_R = 98304
L_O = L_R
L_E = L_O + 4160
L_U = L_E + 4160
L_N = 147392
L_ST = 147456
L_Z = L_R + 8192
L_F = L_N + 16
OOL = []

def rot1(a, d, t):
    a(f"""s_and_b32 s{d}, s2, 3
    s_lshl_b32 s{d}, s{d}, 2
    s_and_b32 s{t}, s2, 4
    s_lshl_b32 s{t}, s{t}, 1
    s_add_u32 s{d}, s{d}, s{t}
    s_add_u32 s{t}, s3, s4
    s_and_b32 s{t}, s{t}, {OPT['rotm']}
    s_lshl_b32 s{t}, s{t}, {OPT['rots']}
    {"" if OPT['rotx'] else f"s_mov_b32 s{d}, 0"}
    s_add_u32 s{d}, s{d}, s{t}
    s_and_b32 s{d}, s{d}, 15""")

def spin_flags(a, lbl, PLL, NON, AD, FL, mask=None):
    a("s_mov_b32 s51, 0")
    a.label(lbl)
    a(f"""buffer_load_dwordx2 {V(PLL,2)}, v{AD}, {S(FL)}, 0 offen sc1
    s_add_u32 s51, s51, 1
    s_waitcnt vmcnt(0)
    v_cmp_eq_u32 vcc, v{PLL}, v{NON}
    v_cmp_eq_u32 s[48:49], v{PLL+1}, v{NON+1}
    s_cmp_gt_u32 s51, {SPIN}
    s_cbranch_scc1 {lbl}_go
    s_and_b64 s[48:49], s[48:49], vcc
    {f"s_or_b64 s[48:49], s[48:49], {mask}" if mask else ""}
    s_cmp_eq_u64 s[48:49], -1
    s_cbranch_scc0 {lbl}""")
    a.label(lbl + "_go")

def loader(a):
    vm = VM()
    X, BR, BI, SK, KV, FL = 8, 12, 16, 68, 72, 76
    HS, CR, CI = 80, 24, 28
    a("""s_sub_u32 s6, s5, 4             ; lw
    v_lshrrev_b32 v12, 3, v2        ; r
    v_and_b32 v13, 7, v2
    v_lshrrev_b32 v14, 4, v2        ; r>>1
    v_xor_b32 v13, v13, v14
    v_lshlrev_b32 v13, 4, v13
    v_lshrrev_b32 v14, 5, v2        ; r>>2
    v_lshlrev_b32 v14, 5, v14
    v_and_b32 v15, 3, v12
    v_add_u32 v14, v14, v15
    v_lshl_add_u32 v14, v14, 11, v13   ; ve
    v_lshl_add_u32 v15, v12, 11, v13   ; vb
    s_lshl_b32 s7, s3, 4
    s_add_u32 s7, s7, s6
    s_lshl_b32 s7, s7, 14           ; (128mt+8lw)*2048
    v_add_u32 v4, s7, v14
    v_xor_b32 v5, 64, v4
    v_add_u32 v5, 0x1fc00, v5
    v_add_u32 v6, 0x1800, v4
    v_add_u32 v7, 0x1800, v5
    s_lshl_b32 s7, s4, 2
    s_add_u32 s7, s7, s6
    s_lshl_b32 s7, s7, 15           ; (64nt+16lw)*2048
    v_add_u32 v8, s7, v15
    v_xor_b32 v9, 64, v8
    v_add_u32 v9, 0x3c00, v9""")
    rot1(a, 30, 31)
    a("""s_lshl_b32 s100, s30, 7         ; koff
    s_lshl_b32 s101, s6, 12         ; lw*4096""")
    stamp0(a, 2)
    a("s_waitcnt lgkmcnt(0)")
    stamp0(a, 3)
    srd(a, X, "x", 4 << 20)
    srd(a, BR, "Bre", 2 << 20)
    srd(a, BI, "Bim", 2 << 20)
    def dma(s):
        sl = SL1[s % 4]
        L = []
        L.append(f"s_add_u32 m0, s101, {sl}\ns_nop 0\nbuffer_load_dwordx4 v4, {S(X)}, s100 offen lds")
        for j in range(1, 4):
            L.append(f"buffer_load_dwordx4 v{4+j}, {S(X)}, s100 offen offset:{1024*j} lds")
        L.append(f"s_add_u32 m0, s101, {sl+16384}\ns_nop 0\nbuffer_load_dwordx4 v8, {S(BR)}, s100 offen lds")
        L.append(f"buffer_load_dwordx4 v9, {S(BR)}, s100 offen offset:1024 lds")
        L.append(f"s_add_u32 m0, s101, {sl+16384+2048}\ns_nop 0\nbuffer_load_dwordx4 v8, {S(BI)}, s100 offen lds")
        L.append(f"buffer_load_dwordx4 v9, {S(BI)}, s100 offen offset:1024 lds\ns_add_u32 s100, s100, 128\ns_and_b32 s100, s100, 2047")
        return [(x, f"d{s}") for x in L]
    D = [dma(s) for s in range(16)]
    if OPT["kfirst"] == 2: a("s_barrier")
    interleave(a, D[0], [], 0, vm)
    stamp0(a, 4)
    if OPT["kfirst"] == 1: a("s_barrier")
    for k in range(1, OPT["npre"]): interleave(a, D[k], [], 0, vm)
    a(f"""s_mov_b32 s{P['q2']}, s{P['q']}
    s_mov_b32 s{P['q2']+1}, s{P['q']+1}
    s_lshr_b32 s7, s2, 3
    s_and_b32 s32, s7, 15           ; a_mt
    s_lshr_b32 s7, s7, 4
    s_and_b32 s33, s2, 7
    s_lshl_b32 s33, s33, 1
    s_add_u32 s33, s33, s7          ; a_nt
    s_lshl_b32 s34, s33, 4
    s_add_u32 s34, s34, s32
    s_lshl_b32 s34, s34, 2
    s_add_u32 s34, s34, s6          ; A2 channel
    s_lshl_b32 s35, s34, 12         ; ch*4096
    s_lshr_b32 s7, s34, 1
    s_lshl_b32 s7, s7, 2
    s_load_dword s37, s[{P['ssmD']}:{P['ssmD']+1}], s7
    v_and_b32 v12, 15, v2           ; cq / n / m
    v_lshrrev_b32 v13, 4, v2        ; tg / g""")
    POLL = OPT["poll"]
    SETUP = -1
    AAD, BAD, DFR, ZAD, PLL, NON, KVR = 16, 20, 24, 21, 22, 28, 192
    HAD, CAD, HFP, QAD, QL = 214, 215, 217, 218, 220
    QS = 40
    def a2_setup():
        TP = ""
        if OPT["tpar"]:
            TP = f"""s_lshr_b32 s46, s2, 4
            s_and_b32 s46, s46, {max(0, OPT['lts'] - 1)}
            s_add_u32 s7, s3, s4
            s_and_b32 s7, s7, 1
            s_cmp_eq_u32 s7, {OPT["tpar"] - 1}
            s_cselect_b32 s46, s46, 99"""
        L = f"""s_waitcnt lgkmcnt(0)
        s_lshl_b32 s45, s6, 14
        v_lshlrev_b32 v{AAD}, 4, v13
        v_lshl_add_u32 v{AAD}, v12, 1, v{AAD}
        v_and_b32 v1, 1, v12
        v_mov_b32 v3, {L_O + 4}
        v_mov_b32 v14, {L_E + 2}
        v_cmp_eq_u32 vcc, 1, v1
        s_and_b32 s7, s34, 1
        s_lshl_b32 s7, s7, 4
        v_cndmask_b32 v3, v3, v14, vcc
        v_add3_u32 v{AAD}, v{AAD}, v3, s45
        v_add_u32 v{AAD+1}, 1024, v{AAD}
        v_add_u32 v{AAD+2}, 2048, v{AAD}
        v_add_u32 v{AAD+3}, 3072, v{AAD}
        s_add_u32 s47, s45, {L_U + 480}
        v_lshlrev_b32 v1, 4, v13
        v_lshlrev_b32 v3, 5, v12
        v_sub_u32 v1, v1, v3
        v_add_u32 v{BAD}, s47, v1
        s_lshr_b32 s37, s37, s7
        s_and_b32 s37, s37, 0xffff
        v_lshlrev_b32 v1, 3, v13
        v_add_u32 v1, v1, v12
        v_sub_u32 v1, 15, v1
        v_and_b32 v3, 1, v1
        v_lshlrev_b32 v3, 4, v3
        v_lshlrev_b32 v3, v3, s37
        v_lshrrev_b32 v1, 1, v1""".split("\n")
        for j in range(4):
            L += [f"v_cmp_eq_u32 vcc, {j}, v1", "s_nop 1", f"v_cndmask_b32 v{DFR+j}, 0, v3, vcc"]
        L += f"""s_add_u32 s7, s45, {L_Z}
        v_lshlrev_b32 v1, 3, v2
        v_add_u32 v{ZAD}, s7, v1
        s_lshl_b32 s7, s3, {6 + FSH}
        s_add_u32 s7, s7, {FL_H}
        v_and_b32 v1, {60 if OPT['fwg'] else 63}, v2
        v_lshlrev_b32 v1, {FSH}, v1
        v_add_u32 v{HFP}, s7, v1
        v_lshlrev_b32 v10, 4, v2
        s_lshl_b32 s7, s3, 19
        s_add_u32 s7, s7, s101
        v_add_u32 v{HAD}, s7, v10
        v_lshrrev_b32 v1, 3, v2
        v_and_b32 v3, 7, v2
        v_xor_b32 v3, v3, v13
        v_lshlrev_b32 v3, 4, v3
        v_lshl_add_u32 v3, v1, 13, v3
        s_lshl_b32 s7, s4, 6
        s_add_u32 s7, s7, s6
        s_lshl_b32 s7, s7, 11
        v_add_u32 v{CAD}, s7, v3
        v_xor_b32 v{CAD+1}, 64, v{CAD}
        v_add_u32 v{CAD+1}, {65536-1024}, v{CAD+1}
        s_lshl_b32 s44, s4, 7
        v_lshlrev_b32 v3, 11, v13
        v_lshl_add_u32 v3, v12, 3, v3
        s_lshl_b32 s7, s4, 2
        s_lshl_b64 s[56:57], 15, s7
        s_lshl_b32 s7, s3, 2
        s_add_u32 s7, s7, s6
        s_lshl_b32 s7, s7, 16
        s_add_u32 s7, s7, s44
        v_add_u32 v{QAD}, s7, v3
        s_lshr_b32 s46, s2, 3
        s_and_b32 s46, s46, {max(0, OPT['lts'] - 1)}
        {TP}
        s_add_u32 s38, s4, 1
        s_and_b32 s38, s38, 15
        s_lshl_b32 s38, s38, 15
        s_lshl_b32 s39, s6, 13
        s_lshl_b32 s7, s33, 7
        v_lshlrev_b32 v14, 3, v12
        v_add_u32 v14, s7, v14""".split("\n")
        if OPT["lt"]:
            L += f"""s_and_b32 s7, s2, 7
            s_lshl_b32 s7, s7, 5
            s_lshr_b32 s47, s2, 3
            {"s_and_b32 s47, s47, 30" if OPT["tpar"] else ""}
            s_add_u32 s7, s7, s47
            s_lshl_b32 s7, s7, 1
            s_and_b32 s47, s6, 1
            s_add_u32 s7, s7, s47
            s_lshl_b32 s7, s7, 12
            v_lshlrev_b32 v30, 6, v2
            v_add_u32 v30, s7, v30""".split("\n")
        return L
    def dmaC(s):
        sl = 2048 * (s % 8)
        C = CI if s & 1 else CR
        x = f"buffer_load_dwordx4 v{CAD+1}, {S(C)}, s44 offen offset:1024 lds"
        if s & 1: x += "\ns_add_u32 s44, s44, 128\ns_and_b32 s44, s44, 2047"
        return [(f"s_add_u32 m0, s45, {sl}\ns_nop 0\nbuffer_load_dwordx4 v{CAD}, {S(C)}, s44 offen lds", f"c{s}"), (x, f"c{s}")]
    def dmaH(s):
        m = f"s_add_u32 m0, s45, {L_R + 4096*(s&1)}" if s & 2 else f"s_add_u32 m0, s39, {65536 + 4096*(s&1)}"
        L = [f"{m}\ns_nop 0\nbuffer_load_dwordx4 v{HAD}, {S(HS)}, s38 offen sc1 lds"]
        for j in range(1, 4):
            L.append(f"buffer_load_dwordx4 v{HAD}, {S(HS)}, s38 offen offset:{1024*j} sc1 lds")
        L[3] += "\ns_add_u32 s38, s38, 16384"
        if s & 1: L[3] += "\ns_and_b32 s38, s38, 0x7ffff"
        return [(x, f"h{s}") for x in L]
    TS = 52
    TCH = f"buffer_load_dword v208, v30, {S(TS)}, 0 offen"
    if OPT["tpar"]: TCH += f"\ns_mov_b32 s36, 8192\nbuffer_load_dword v209, v30, {S(TS)}, s36 offen"
    def touch():
        if not OPT["lt"]: return
        a(TCH)
        vm.add("touch")
    def check():
        a(f"""v_bfrev_b32 v11, 1
        s_waitcnt vmcnt({vm.cnt('poll')})
        v_cmp_eq_u32 vcc, v{PLL}, v{NON}
        v_cmp_eq_u32 s[48:49], v{PLL+1}, v{NON+1}
        s_nop 0
        s_and_b64 s[48:49], s[48:49], vcc
        s_cmp_eq_u64 s[48:49], -1
        s_cselect_b32 s50, 1, 0
        s_cselect_b64 vcc, -1, 0
        s_nop 1
        v_cndmask_b32 v11, v11, v10, vcc""")
        stamp(a, 2)
    KW = OPT["kvs"] + OPT["kvw"]
    DB, NLD = 20, 210
    def nonce_chk():
        a(f"""s_cmp_eq_u32 s6, 0
        s_cbranch_scc0 L_nskip
        s_mov_b32 s51, 0
        s_mov_b64 exec, 1
        s_waitcnt vmcnt({vm.cnt('nonce')})""")
        a.label("L_nspin")
        a(f"""v_readfirstlane_b32 s7, v{NLD}
        s_add_u32 s51, s51, 1
        s_cmp_lg_u32 s7, 0
        s_cbranch_scc1 L_nok
        s_cmp_gt_u32 s51, {SPIN}
        s_cbranch_scc1 L_nok
        buffer_load_dwordx2 {V(NLD,2)}, v212, {S(DB)}, 0 offen sc1
        s_waitcnt vmcnt(0)
        s_branch L_nspin""")
        a.label("L_nok")
        a(f"""v_mov_b32 v1, {L_N}
        ds_write_b64 v1, {V(NLD,2)}
        s_mov_b64 exec, -1
        s_waitcnt lgkmcnt(0)""")
        a.label("L_nskip")
    after = {k: [] for k in range(16)}
    after[OPT["npos"]].append((f"s_mov_b64 exec, 1\nbuffer_load_dwordx2 {V(NLD,2)}, v212, {S(DB)}, 0 offen sc1\ns_mov_b64 exec, -1", "nonce", 0.1, 0, None))
    QLD = [f"s_mov_b32 s36, {8192*j}\nbuffer_load_dwordx2 {V(QL+2*j,2)}, v{QAD}, {S(QS)}, s36 offen{NT('q')}" for j in range(8)]
    if OPT["lt"] and OPT["ltpos"] == 3:
        if OPT["lts"]:
            for i in range(OPT["lts"]):
                x = "\n".join([TCH] + (QLD if OPT["qw"] == -1 else []))
                after[OPT["ltk"] + i].append((f"s_cmp_eq_u32 s46, {i}\ns_cbranch_scc0 L_t{i}\n{x}\nL_t{i}:", "", 0, SETUP + 1, None))
        else:
            after[OPT["ltk"]].append((TCH, "touch", 0, SETUP + 1, None))
    for j in range(4):
        after[15].append((f"s_add_u32 m0, s45, {L_E + 32}\ns_nop 0\nbuffer_load_dwordx4 v10, {S(SK)}, s35 offen offset:{1024*j}{NT('e')} lds",
                          "E", 1, 13, None))
    after[POLL].append((f"buffer_load_dwordx2 {V(PLL,2)}, v14, {S(FL)}, 0 offen sc1", "poll", 0.2, SETUP + 1, None))
    for j in range(4):
        after[15].append((f"buffer_load_dwordx4 {V(KVR+4*j,4)}, v11, {S(KV)}, s35 offen offset:{1024*j} sc1",
                          "kv", 1, 1, check if j == 0 else None))
    if OPT["qw"] == 0:
        for x in QLD: after[15].append((x, "q", 0, OPT["qe"], None))
    ST = []
    for k in range(16):
        if k >= OPT["npre"]: ST += [(x, t, 1, k - 3, None) for x, t in D[k]]
        ST += after[k]
    cum = [0]
    for it in ST: cum.append(cum[-1] + it[2])
    endof = {k: 0 for k in range(OPT["npre"])}
    for i, it in enumerate(ST):
        if it[1][:1] == "d": endof[int(it[1][1:])] = i + 1
    pos = [0]
    def emit(s, fill, per):
        lim = cum[endof[min(15, s + 1)]] + OPT["win"]
        fill = list(fill)
        while pos[0] < len(ST):
            x, t, c, e, hook = ST[pos[0]]
            must = pos[0] < endof[min(15, s + 1)]
            assert not (must and e > s), (s, t)
            if not must and s < 15 and (e > s or cum[pos[0] + 1] > lim + 1e-6): break
            if hook: hook()
            a(x); pos[0] += 1
            if t: vm.add(t)
            for _ in range(per):
                if fill: a(fill.pop(0))
        for f in fill: a(f)
    srd(a, SK, "ssmk", 4 << 20)
    srd(a, KV, "ws", 4 << 20, WS_KVT)
    srd(a, FL, "ws", FL_SZ, WS_FLG)
    srd(a, HS, "ws", 8 << 20, WS_H)
    srd(a, DB, "dbg", 256)
    srd(a, CR, "Cre", 2 << 20)
    srd(a, CI, "Cim", 2 << 20)
    srd(a, QS, "q2", 4 << 20)
    a(f"""s_cmp_lt_u32 s6, 2
    s_cselect_b32 s{TS}, s{P['Cre']}, s{P['Cim']}
    s_cselect_b32 s{TS+1}, s{P['Cre']+1}, s{P['Cim']+1}
    s_mov_b32 s{TS+2}, {2 << 20}
    s_mov_b32 s{TS+3}, 0x00020000
    s_lshl_b32 s7, s6, 29
    v_mov_b32 v212, s7              ; out of range unless lw == 0
    s_lshl_b32 s36, s34, 1
    s_or_b32 s7, s7, s36
    v_mov_b32 v213, s7""")
    for x in a2_setup(): a(x)
    stamp0(a, 5)
    a(f"s_waitcnt vmcnt({vm.cnt('d0')})")
    stamp0(a, 6)
    a("s_barrier")
    stamp(a, 1)
    for s in range(16):
        tr_begin(a)
        if s == KW:
            a(f"s_mov_b64 exec, 1\nbuffer_store_dwordx2 {V(NLD,2)}, v213, {S(FL)}, 0 offen sc1\ns_mov_b64 exec, -1")
            vm.add("flag")
        fill = []
        if s == OPT["npos"] + 1:
            assert s <= KW - 1
            nonce_chk()
        if s == OPT["npos"] + 2:
            assert s > SETUP
            a(f"v_mov_b32 v1, {L_N}\nds_read_b64 v[{NON}:{NON+1}], v1")
        if s == 14:
            fill = fill + (f"""v_mov_b32 v32, 0
            v_mov_b32 v33, 0
            v_mov_b32 v34, 0
            v_mov_b32 v35, 0
            s_add_u32 s47, s45, {L_U + 4096}
            v_add_u32 v1, s47, v10
            v_and_b32 v3, 16, v10
            v_and_b32 v15, 32, v10
            v_mul_u32_u24 v15, {(L_E - L_O) // 32}, v15
            v_add3_u32 v3, v3, v15, s45
            v_add_u32 v3, {L_O}, v3
            v_cmp_gt_u32 vcc, 32, v2
            s_add_u32 s47, s45, {L_E + 28}
            v_add_u32 v15, s47, v10
            v_cndmask_b32 v1, v3, v1, vcc
            ds_write_b128 v1, v[32:35]""").split("\n")
        emit(s, fill, -(-len(fill) // 8))
        if s == OPT["g2set"]:
            assert pos[0] >= endof[15]
            if OPT["ltpos"] == 1: touch()
        if s == 15:
            if OPT["cpos"] == 0:
                for c in range(8): interleave(a, dmaC(c), [], 0, vm)
            if OPT["ltpos"] == 2: touch()
            a(f"s_waitcnt vmcnt({vm.cnt('E')})")
            for j in range(4):
                a(f"ds_read_b32 v{64+8*j}, v15 offset:{1024*j}\nds_read_b128 {V(68+8*j,4)}, v15 offset:{1024*j+4}")
            a(f"v_subrev_u32 v15, {L_E - L_O - 4}, v15\ns_waitcnt lgkmcnt(0)")
            for j in range(4):
                b = 64 + 8 * j
                a(f"""v_alignbit_b32 v{b}, v{b+4}, v{b}, 16
                v_alignbit_b32 v{b+1}, v{b+5}, v{b+4}, 16
                v_alignbit_b32 v{b+2}, v{b+6}, v{b+5}, 16
                v_alignbit_b32 v{b+3}, v{b+7}, v{b+6}, 16
                ds_write_b128 v15, {V(b,4)} offset:{1024*j}""")
        tr_end(a, s)
        w = ""
        if s == OPT["npos"] + 2: w = " lgkmcnt(0)"
        if s < 15:
            a(f"s_waitcnt vmcnt({vm.cnt(f'd{s+1}')}){w}")
            a("s_barrier")
    assert pos[0] == len(ST)
    a(f"""s_cmp_eq_u32 s50, 1
    s_cbranch_scc1 L_have""")
    spin_flags(a, "L_spin", PLL, NON, 14, FL)
    for j in range(4):
        a(f"buffer_load_dwordx4 {V(KVR+4*j,4)}, v10, {S(KV)}, s35 offen offset:{1024*j} sc1")
    a("s_waitcnt vmcnt(0)")
    a.label("L_have")
    a(f"""s_add_u32 s47, s45, {L_U}
    v_add_u32 v1, s47, v10
    s_waitcnt vmcnt({vm.cnt('kv', 'E')})""")
    if OPT["cpos"] == 1:
        for c in range(8): interleave(a, dmaC(c), [], 0, vm)
    if OPT["ltpos"] == 0: touch()
    for j in range(4):
        a(f"ds_write_b128 v1, {V(KVR+4*j,4)} offset:{1024*j}")
    stamp(a, 3)
    ACC = 32
    FB = [64, 128]
    def reads(buf, r):
        L = []
        f = FB[buf]
        for q in range(8):
            o = 128 * (q & 1) + 16 * r
            L.append(f"ds_read_b128 {V(f+32+4*q,4)}, v{BAD} offset:{512*(7-q) + 64*r}")
            L.append(f"ds_read2_b32 {V(f+4*q,2)}, v{AAD+(q>>1)} offset0:{o} offset1:{o+1}")
            L.append(f"ds_read2_b32 {V(f+4*q+2,2)}, v{AAD+(q>>1)} offset0:{o+2} offset1:{o+3}")
        return L
    def mfmas(buf):
        f = FB[buf]
        L = []
        for q in range(8):
            for u in range(8 - q):
                c = ACC + 4 * (q + u)
                L.append(f"v_mfma_f32_16x16x32_bf16 {V(c,4)}, {V(f+4*q,4)}, {V(f+32+4*u,4)}, {V(c,4)}")
        return L
    a("s_waitcnt lgkmcnt(0)")
    for x in reads(0, 0): a(x)
    a("s_waitcnt lgkmcnt(0)")
    stamp(a, 4)
    for u in range(8):
        a(f"v_mfma_f32_16x16x32_bf16 {V(ACC+4*u,4)}, {V(DFR,4)}, {V(FB[0]+32+4*u,4)}, 0")
    a("s_mov_b32 s51, 0\ns_mov_b32 m0, s45")
    def cl(odd):
        if OPT["cpos"] != 3: return []
        L = [x[0].split("\n")[-1] if i == 0 else x[0] for i, x in enumerate(dmaC(odd))]
        L[1] += "\ns_add_u32 m0, m0, 2048"
        return L
    HPOLL = f"buffer_load_dwordx2 {V(PLL,2)}, v{HFP}, {S(FL)}, 0 offen sc1"
    a.label("L_conv")
    interleave(a, mfmas(0), reads(1, 1) + cl(0), 1)
    a("s_waitcnt lgkmcnt(0)")
    adv = [f"v_add_u32 v{AAD+i}, 128, v{AAD+i}" for i in range(4)] + [f"v_add_u32 v{BAD}, 128, v{BAD}"]
    interleave(a, mfmas(1), cl(1) + reads(0, 2) + adv + ([HPOLL] if OPT["epoll"] == 1 else []), 1)
    a("""s_add_u32 s51, s51, 1
    s_waitcnt lgkmcnt(0)
    s_cmp_lt_u32 s51, 4
    s_cbranch_scc1 L_conv""")
    stamp(a, 5)
    if OPT["cpos"] == 2:
        for c in range(8): interleave(a, dmaC(c), [], 0, vm)
    if OPT["epoll"] == 2: a(HPOLL)
    a("s_nop 4")
    for t in range(8):
        c = ACC + 4 * t
        a(f"""v_cvt_pk_bf16_f32 v{64+2*t}, v{c}, v{c+1}
        v_cvt_pk_bf16_f32 v{65+2*t}, v{c+2}, v{c+3}
        ds_write_b64 v{ZAD}, {V(64+2*t,2)} offset:{512*t}""")
    stamp(a, 6)
    a("s_waitcnt vmcnt(0)")
    vm.ops = [f"c{i}" for i in range(8)] + ["q"]
    if OPT["epoll"]:
        a(f"""v_cmp_eq_u32 vcc, v{PLL}, v{NON}
        v_cmp_eq_u32 s[48:49], v{PLL+1}, v{NON+1}
        s_nop 0
        s_and_b64 s[48:49], s[48:49], vcc
        s_or_b64 s[48:49], s[48:49], s[56:57]
        s_cmp_eq_u64 s[48:49], -1
        s_cbranch_scc0 L_late""")
        for x, _ in dmaH(2) + dmaH(3): a(x)
        a("s_waitcnt lgkmcnt(0)\ns_barrier\ns_barrier")
        stamp(a, 7)
        stamp_dump(a, 0)
        stamp(a, 8)
        a("s_branch L_join")
        a.label("L_late")
    a("s_waitcnt lgkmcnt(0)\ns_barrier\ns_barrier")
    stamp(a, 7)
    stamp_dump(a, 0)
    spin_flags(a, "L_hspin", PLL, NON, HFP, FL, "s[56:57]")
    stamp(a, 8)
    interleave(a, dmaH(2) + dmaH(3), [], 0, vm)
    a.label("L_join")
    ZS, OS = 8, 12
    ZFP, ZLD, ZRD, OA, ZB, OB = 32, 33, 37, 41, 44, 64
    def a3_setup():
        srd(a, ZS, "ws", 4 << 20, WS_ZT)
        srd(a, OS, "out", 16 << 20)
        a(f"""s_lshr_b32 s7, s3, 2
        s_lshl_b32 s7, s7, 4
        s_add_u32 s7, s7, s4
        s_lshl_b32 s7, s7, {4 + FSH}
        s_add_u32 s7, s7, {FL_Z}
        v_lshlrev_b32 v1, {FSH}, v12
        v_add_u32 v{ZFP}, s7, v1
        v_xor_b32 v1, v12, v13
        v_lshlrev_b32 v1, 4, v1
        v_lshl_add_u32 v3, v13, 14, v1
        s_lshl_b32 s47, s3, 2
        s_add_u32 s47, s47, s6
        s_lshl_b32 s7, s4, 10
        s_add_u32 s7, s7, s47
        s_lshl_b32 s7, s7, 8
        v_add_u32 v{ZLD}, s7, v3
        v_xor_b32 v{ZLD+1}, 64, v{ZLD}
        v_add_u32 v{ZLD+1}, {65536-1024}, v{ZLD+1}
        v_xor_b32 v{ZLD+2}, 128, v{ZLD}
        v_add_u32 v{ZLD+2}, {2*(65536-1024)}, v{ZLD+2}
        v_xor_b32 v{ZLD+3}, 192, v{ZLD}
        v_add_u32 v{ZLD+3}, {3*(65536-1024)}, v{ZLD+3}
        s_add_u32 s35, s45, {L_Z}
        v_lshl_add_u32 v1, v12, 8, v1
        v_add_u32 v{ZRD}, s35, v1
        v_xor_b32 v{ZRD+1}, 64, v{ZRD}
        v_xor_b32 v{ZRD+2}, 128, v{ZRD}
        v_xor_b32 v{ZRD+3}, 192, v{ZRD}
        s_lshl_b32 s47, s47, 10
        s_add_u32 s47, s47, s4
        s_lshl_b32 s47, s47, 8
        v_lshlrev_b32 v1, 13, v13
        v_lshl_add_u32 v1, v12, 4, v1
        v_add_u32 v{OA}, s47, v1""")
    def a3(k):
        if k == 0:
            a(f"s_waitcnt vmcnt({vm.cnt('z', 'q')})")
            for i in range(4): a(f"ds_read_b128 {V(ZB+4*i,4)}, v{ZRD+i}")
        a(f"s_waitcnt lgkmcnt({0 if TRACE else 3-k})")
        for hf in range(2):
            idx = 4 * hf + k
            o = OB + 4 * idx
            for e in range(4):
                z, q = ZB + 4 * k + 2 * hf + (e >> 1), QL + 2 * idx + (e >> 1)
                if e & 1: a(f"v_and_b32 v1, 0xffff0000, v{z}\nv_and_b32 v{o+e}, 0xffff0000, v{q}")
                else: a(f"v_lshlrev_b32 v1, 16, v{z}\nv_lshlrev_b32 v{o+e}, 16, v{q}")
                a(f"v_mul_f32 v{o+e}, v{o+e}, v1")
            a(f"s_mov_b32 s7, {32768*idx}\nbuffer_store_dwordx4 {V(o,4)}, v{OA}, {S(OS)}, s7 offen{FLV[OPT['osa']]}")
            vm.add("st")
    A3 = not OPT["noa3"]
    assert 4 * OPT["zfw"] < OPT["zpoll"] < OPT["zchk"] < OPT["a3c"]
    for s in range(1, 35):
        if s < 31: tr_begin(a)
        if A3 and s == OPT["zchk"]:
            a(f"""s_waitcnt vmcnt({vm.cnt('zp')})
            v_cmp_eq_u32 vcc, v{PLL}, v{NON}
            v_cmp_eq_u32 s[48:49], v{PLL+1}, v{NON+1}
            s_mov_b32 m0, s35
            s_and_b64 s[48:49], s[48:49], vcc
            s_cmp_eq_u64 s[48:49], -1
            s_cbranch_scc1 L_zspin_go""")
            spin_flags(a, "L_zspin", PLL, NON, ZFP, FL)
            stamp(a, 10)
            for j in range(4):
                a(f"buffer_load_dwordx4 v{ZLD+j}, {S(ZS)}, 0 offen offset:{1024*j} sc1 lds")
            vm.add("z", 4)
        main = []
        if s + 3 < 32: main += dmaH(s + 3)
        if s + 7 < 32: main += dmaC(s + 7)
        if s == OPT["qw"]: main += [(x, "q") for x in QLD]
        interleave(a, main, [], 0, vm)
        if s == 1: a3_setup()
        if A3 and s == OPT["zpoll"]:
            a(f"buffer_load_dwordx2 {V(PLL,2)}, v{ZFP}, {S(FL)}, 0 offen sc1")
            vm.add("zp")
        if A3 and 0 <= s - OPT["a3c"] < 4: a3(s - OPT["a3c"])
        if s < 31:
            tr_end(a, 16 + s)
            a(f"s_waitcnt vmcnt({vm.cnt(f'h{s+1}', f'c{s+1}')})\ns_barrier")
        if s == 1: stamp(a, 9)
    stamp(a, 11)

def compute(a):
    HS, ES, DB, LD_, LR_, LI_, KV, FL, OS, DS = 8, 12, 16, 20, 24, 28, 68, 72, 76, 80
    AA, BA = 4, 8
    L, NLI, C2, NC2, L32, M1, G128, L512 = 16, 18, 20, 42, 22, 24, 26, 28
    LBK, PUB, HEV, HOD, STA, KVG = 30, 34, 35, 36, 37, 41
    ACC, FR, STG = 64, 128, 208
    XA, NA, XF, DSK, LEV, FA = 58, 60, 228, 244, 61, 63
    GR = 52
    KS, VS, SH = 8, 12, 68
    WRAW, WF, KR, VR, KT, AC, OUT = 128, 136, 140, 162, 178, 190, 224
    a(f"""v_and_b32 v12, 15, v2
    v_lshrrev_b32 v13, 4, v2
    s_lshr_b32 s7, s2, 3
    s_and_b32 s76, s7, 15           ; a_mt
    s_lshr_b32 s7, s7, 4
    s_and_b32 s77, s2, 7
    s_lshl_b32 s77, s77, 1
    s_add_u32 s77, s77, s7          ; a_nt
    s_lshl_b32 s7, s76, 2
    s_add_u32 s7, s7, s5
    s_lshl_b32 s7, s7, 16           ; t0*2048
    s_lshl_b32 s6, s77, 7
    s_add_u32 s7, s7, s6
    v_lshlrev_b32 v10, 14, v13
    v_lshl_add_u32 v10, v12, 3, v10
    v_add_u32 v10, s7, v10
    v_subrev_u32 v11, 0x1800, v10
    v_bfrev_b32 v9, 1
    v_cmp_gt_i32 vcc, 0, v11
    s_lshl_b32 s7, s77, 9
    v_lshlrev_b32 v15, 5, v12
    v_cndmask_b32 v11, v11, v9, vcc
    v_add_u32 v9, s7, v15
    s_mov_b32 s72, 4096
    s_mov_b32 s73, 8192
    s_mov_b32 s74, 12288
    s_lshl_b32 s6, s4, 2
    s_add_u32 s6, s6, s5
    s_lshl_b32 s6, s6, 4
    v_add_u32 v14, s6, v12          ; channel
    v_lshlrev_b32 v44, 1, v14
    s_lshl_b32 s6, s4, 7
    v_lshlrev_b32 v1, 3, v12
    v_add_u32 v1, s6, v1""")
    stamp0(a, 2)
    a("s_waitcnt lgkmcnt(0)")
    stamp0(a, 3)
    SOFF = ["0", "s72", "s73", "s74"]
    srd(a, LD_, "logdt", 2048)
    srd(a, LR_, "Lre", 2048)
    srd(a, LI_, "Lim", 2048)
    a(f"""buffer_load_ushort v45, v44, {S(LD_)}, 0 offen
    buffer_load_ushort v46, v44, {S(LR_)}, 0 offen
    buffer_load_ushort v47, v44, {S(LI_)}, 0 offen""")
    srd(a, KS, "k", 4 << 20)
    for i in range(8):
        a(f"buffer_load_dwordx2 {V(KR+6+2*i,2)}, v10, {S(KS)}, {SOFF[i>>1]} offen offset:{2048*(i&1)}{NT('k')}")
    for i in range(3):
        a(f"buffer_load_dwordx2 {V(KR+2*i,2)}, v11, {S(KS)}, {SOFF[i>>1]} offen offset:{2048*(i&1)}{NT('k')}")
    srd(a, SH, "shift", 8192)
    a(f"buffer_load_dwordx4 {V(WRAW,4)}, v9, {S(SH)}, 0 offen")
    a(f"buffer_load_dwordx4 {V(WRAW+4,4)}, v9, {S(SH)}, 0 offen offset:16")
    srd(a, VS, "v", 4 << 20)
    for i in range(8):
        a(f"buffer_load_dwordx2 {V(VR+2*i,2)}, v10, {S(VS)}, {SOFF[i>>1]} offen offset:{2048*(i&1)}{NT('k')}")
    if OPT["kfirst"]: a("s_barrier")
    srd(a, DS, "Dskip", 2048)
    a(f"""buffer_load_dwordx2 {V(DSK,2)}, v1, {S(DS)}, 0 offen
    s_lshl_b32 s7, s5, 2
    v_add_u32 v15, s7, v13
    v_sub_u32 v15, 15, v15
    v_xor_b32 v15, v15, v12
    v_lshlrev_b32 v15, 4, v15
    v_lshl_add_u32 v15, v12, 10, v15
    v_add_u32 v15, {L_ST}, v15
    v_lshrrev_b32 v3, 1, v12
    v_xor_b32 v3, v3, v13
    v_lshlrev_b32 v3, 4, v3
    v_lshl_add_u32 v4, v12, 7, v3
    v_xor_b32 v6, 64, v4
    v_add_u32 v5, 0x10000, v4
    v_add_u32 v7, 0x10000, v6
    s_lshl_b32 s6, s5, 12
    s_add_u32 s6, s6, 16384
    v_add_u32 v8, s6, v4
    v_add_u32 v9, s6, v5
    v_add_u32 v10, s6, v6
    v_add_u32 v11, s6, v7""")
    def unp(d, s, hi):
        return f"v_and_b32 v{d}, 0xffff0000, v{s}" if hi else f"v_lshlrev_b32 v{d}, 16, v{s}"
    def a1_k(c):
        for j in range(4):
            a(unp(WF + j, WRAW + 2 * c + (j >> 1), j & 1))
        for i in range(11):
            a(unp(KT + i, KR + 2 * i + (c >> 1), c & 1))
        for t in range(8):
            a(f"v_mul_f32 v{AC+8*c+t}, v{WF}, v{KT+t+3}")
        for j in range(1, 4):
            for t in range(8):
                a(f"v_fmac_f32 v{AC+8*c+t}, v{WF+j}, v{KT+t+3-j}")
    def a1_v(c):
        for t in range(8):
            a(unp(KT + t, VR + 2 * t + (c >> 1), c & 1))
        for t in range(8):
            a(f"v_mul_f32 v{AC+8*c+t}, v{AC+8*c+t}, v{KT+t}")
        o = OUT + 4 * c
        for i in range(4):
            a(f"v_cvt_pk_bf16_f32 v{o+i}, v{AC+8*c+7-2*i}, v{AC+8*c+6-2*i}")
        a(f"ds_write_b128 v15, {V(o,4)} offset:{256*c}")
    srd(a, DB, "dbg", 256)
    a(f"""s_or_b32 s6, s2, s5
    s_cmp_eq_u32 s6, 0
    s_cbranch_scc0 C_nonce_w
    s_memrealtime s[6:7]
    v_mov_b32 v1, 0
    s_waitcnt lgkmcnt(0)
    s_or_b32 s6, s6, 1
    v_mov_b32 v48, s6
    v_mov_b32 v49, s7
    s_mov_b64 exec, 1
    buffer_store_dwordx2 v[48:49], v1, {S(DB)}, 0 offen sc1
    s_mov_b64 exec, -1""")
    a.label("C_nonce_w")
    srd(a, HS, "ws", 8 << 20, WS_H)
    srd(a, ES, "ws", 1 << 18, WS_E)
    srd(a, KV, "ws", 4 << 20, WS_KVT)
    srd(a, FL, "ws", FL_SZ, WS_FLG)
    srd(a, OS, "out", 16 << 20)
    ZS = 80
    srd(a, ZS, "ws", 4 << 20, WS_ZT)
    rot1(a, 34, 35)
    a(f"""s_sub_u32 s34, s4, s34
    s_and_b32 s34, s34, 15
    s_add_u32 s35, s34, 3
    s_and_b32 s35, s35, 3
    s_lshl_b32 s35, s35, 15
    s_lshl_b32 s6, s5, 9
    s_add_u32 s35, s35, s6
    v_lshrrev_b32 v1, 2, v12
    v_lshlrev_b32 v1, 11, v1
    v_and_b32 v3, 3, v12
    v_lshl_add_u32 v1, v3, 7, v1
    v_lshrrev_b32 v3, 1, v3
    s_lshl_b32 s6, s5, 1
    v_add_u32 v3, s6, v3
    v_xor_b32 v3, v3, v13
    v_lshl_add_u32 v1, v3, 4, v1
    v_add_u32 v{XA}, s35, v1
    v_xor_b32 v{XA+1}, 64, v{XA}
    v_mov_b32 v{NA}, {L_N}
    s_lshr_b32 s7, s2, 3
    s_and_b32 s32, s7, 15           ; a_mt
    s_lshr_b32 s7, s7, 4
    s_and_b32 s33, s2, 7
    s_lshl_b32 s33, s33, 1
    s_add_u32 s33, s33, s7          ; a_nt
    s_mov_b32 s36, 16384
    s_mov_b32 s37, 32768
    s_mov_b32 s38, 49152
    s_lshl_b32 s6, s5, 2
    v_xor_b32 v1, s6, v12
    v_lshlrev_b32 v1, 4, v1
    v_lshl_add_u32 v1, v13, 8, v1
    s_lshl_b32 s6, s5, 12
    s_add_u32 s6, s6, {L_ST}
    v_add_u32 v{STA}, s6, v1
    v_xor_b32 v{STA+1}, 16, v{STA}
    v_xor_b32 v{STA+2}, 32, v{STA}
    v_xor_b32 v{STA+3}, 48, v{STA}
    s_lshl_b32 s6, s33, 2
    s_add_u32 s6, s6, s5
    s_lshl_b32 s6, s6, 16           ; (64 a_nt + 16 w)*4096
    s_lshl_b32 s7, s32, 8
    s_sub_u32 s7, 3840, s7
    s_add_u32 s6, s6, s7
    v_lshlrev_b32 v1, 12, v13
    v_lshl_add_u32 v1, v12, 4, v1
    v_add_u32 v{KVG}, s6, v1
    s_lshl_b32 s6, s3, 14
    v_lshlrev_b32 v1, 4, v14
    v_add_u32 v{PUB}, s6, v1
    v_lshlrev_b32 v1, 14, v13
    v_sub_u32 v1, v{PUB}, v1
    v_subrev_u32 v{LBK}, 0x4000, v1
    v_subrev_u32 v{LBK+1}, 0x14000, v1
    v_subrev_u32 v{LBK+2}, 0x24000, v1
    v_subrev_u32 v{LBK+3}, 0x34000, v1
    v_cmp_gt_i32 s[40:41], 0, v{LBK}
    v_cmp_gt_i32 s[42:43], 0, v{LBK+1}
    v_cmp_gt_i32 s[44:45], 0, v{LBK+2}
    v_cmp_gt_i32 s[46:47], 0, v{LBK+3}
    s_lshl_b32 s6, s3, 4
    s_add_u32 s6, s6, s4
    s_lshl_b32 s6, s6, 15
    s_lshl_b32 s7, s5, 8
    s_add_u32 s6, s6, s7
    v_lshlrev_b32 v1, 12, v13
    v_lshl_add_u32 v1, v12, 4, v1
    v_add_u32 v{HEV}, s6, v1
    v_xor_b32 v{HOD}, 64, v{HEV}
    s_add_u32 s7, s7, 65536
    v_lshlrev_b32 v1, 13, v13
    v_lshl_add_u32 v1, v12, 4, v1
    v_add_u32 v{LEV}, s7, v1
    s_lshl_b32 s7, s5, 2
    v_add_u32 v{FA}, s7, v{NA}
    v_xor_b32 v{LEV+1}, 64, v{LEV}
    v_cmp_eq_u32 s[48:49], 1, v13
    v_cmp_eq_u32 s[50:51], 2, v13
    v_cmp_eq_u32 s[52:53], 3, v13""")
    for i in range(64):
        a(f"v_mov_b32 v{ACC+i}, 0")
    a("s_waitcnt vmcnt(22)")
    a(f"""v_lshlrev_b32 v45, 16, v45
    v_lshlrev_b32 v46, 16, v46
    v_lshlrev_b32 v47, 16, v47
    v_mul_f32 v45, 0x3fb8aa3b, v45
    v_exp_f32 v45, v45
    s_nop 0
    v_cvt_pk_bf16_f32 v45, v45, v45
    v_lshlrev_b32 v45, 16, v45
    v_mul_f32 v48, v45, v46
    v_mul_f32 v49, v45, v47
    v_mul_f32 v48, 0x3fb8aa3b, v48
    v_exp_f32 v48, v48
    v_mul_f32 v49, 0.15915494, v49
    v_cos_f32 v50, v49
    v_sin_f32 v51, v49
    s_nop 0
    v_mul_f32 v{L}, v48, v50
    v_mul_f32 v{L+1}, v48, v51
    v_add_f32 v48, -1.0, v{L}
    v_mul_f32 v49, v46, v46
    v_fmac_f32 v49, v47, v47
    v_rcp_f32 v49, v49
    v_mul_f32 v50, v48, v46
    v_fmac_f32 v50, v{L+1}, v47
    v_mul_f32 v51, v{L+1}, v46
    v_fma_f32 v51, -v48, v47, v51
    v_add_f32 v49, v49, v49
    v_mul_f32 v{C2}, v50, v49
    v_mul_f32 v{C2+1}, v51, v49
    v_xor_b32 v{NLI}, 0x80000000, v{L+1}
    v_xor_b32 v{NC2}, 0x80000000, v{C2}
    v_xor_b32 v{NC2+1}, 0x80000000, v{C2+1}""")
    cmul(a, 44, L, L)
    cmul(a, 46, 44, 44)
    cmul(a, 44, 46, 46)
    cmul(a, 46, 44, 44)
    cmul(a, L32, 46, 46)
    cmul(a, 44, L32, L32)
    cmul(a, 46, 44, L32)
    def sel(d, x1, x2, x3):
        a(f"""v_mov_b32 v{d}, 1.0
        v_mov_b32 v{d+1}, 0
        v_cndmask_b32 v{d}, v{d}, v{x1}, s[48:49]
        v_cndmask_b32 v{d+1}, v{d+1}, v{x1+1}, s[48:49]
        v_cndmask_b32 v{d}, v{d}, v{x2}, s[50:51]
        v_cndmask_b32 v{d+1}, v{d+1}, v{x2+1}, s[50:51]
        v_cndmask_b32 v{d}, v{d}, v{x3}, s[52:53]
        v_cndmask_b32 v{d+1}, v{d+1}, v{x3+1}, s[52:53]""")
    sel(48, L32, 44, 46)
    cmul(a, M1, C2, 48)
    cmul(a, 46, 44, 44)
    cmul(a, 44, 46, 46)
    cmul(a, 48, 44, 46)
    cmul(a, L512, 44, 44)
    sel(G128, 46, 44, 48)
    def reads(s, h):
        sl = SL1[s % 4]
        grp, so = divmod(sl, 65536)
        f = FR + 40 * h
        R = [f"ds_read_b128 {V(f+32+4*p,4)}, v{BA+2*h+grp} offset:{so+2048*p}" for p in range(2)]
        R += [f"ds_read_b128 {V(f+4*i,4)}, v{AA+2*h+grp} offset:{so+2048*i}" for i in range(8)]
        return R
    def mfmas(h):
        f = FR + 40 * h
        M = []
        for r in range(8):
            for p in ((0, 1) if not (r & 1) else (1, 0)):
                c = ACC + 8 * r + 4 * p
                M.append(f"v_mfma_f32_16x16x32_bf16 {V(c,4)}, {V(f+4*r,4)}, {V(f+32+4*p,4)}, {V(c,4)}")
        return M
    stamp0(a, 4)
    a("s_waitcnt vmcnt(9)")
    stamp0(a, 5)
    for c in range(4): a1_k(c)
    a("s_waitcnt vmcnt(1)")
    stamp0(a, 6)
    for c in range(4): a1_v(c)
    stamp0(a, 7)
    a("s_waitcnt lgkmcnt(0)\ns_barrier")
    stamp(a, 1)
    for x in reads(0, 0): a(x)
    if OPT["prioc"]: a(f"s_setprio {OPT['prioc']}")
    KB = OPT["kvs"]
    KW = KB + OPT["kvw"]
    nsite = [0]
    def site(s, body):
        lbl = f"C_s{nsite[0]}"; nsite[0] += 1
        a(f"s_cmp_eq_u32 s30, {s >> 2}\ns_cbranch_scc0 {lbl}")
        body()
        a.label(lbl)
    def kv_reads():
        for i in range(4):
            a(f"ds_read_b128 {V(STG+4*i,4)}, v{STA+i} offset:{1024*i}")
    def kv_stores():
        for i in range(4):
            a(f"buffer_store_dwordx4 {V(STG+4*i,4)}, v{KVG}, {S(KV)}, {['0','s36','s37','s38'][i]} offen sc1")
    def match(s, x):
        return s % 4 == x % 4
    def step(s):
        a(f"s_cmp_eq_u32 s34, {s}\ns_waitcnt lgkmcnt(0)\ns_cbranch_scc0 C_x{s}")
        for t in range(2):
            for h in range(2):
                a(f"ds_read_b128 {V(XF+8*t+4*h,4)}, v{XA+h} offset:{8192*t}")
        a.label(f"C_x{s}")
        if match(s, KB): site(KB, kv_stores)
        interleave(a, mfmas(0), reads(s, 1) + ([f"ds_read_b64 v[{GR+2}:{GR+3}], v{NA}"] if s == 1 else []), 1)
        if match(s, KW - 1): site(KW - 1, lambda: a("s_waitcnt vmcnt(0)"))
        if s == 3:
            a("s_cmp_eq_u32 s30, 3\ns_waitcnt lgkmcnt(0)\ns_cbranch_scc1 C_nobar\ns_barrier")
            a.label("C_nobar")
        else:
            a("s_waitcnt lgkmcnt(0)\ns_barrier")
        if KB and match(s, KB - 1): site(KB - 1, kv_reads)
        interleave(a, mfmas(1), reads(s + 1, 0), 1)
    if KB == 0: kv_reads()
    a("s_mov_b32 s30, 0")
    a.label("C_loop")
    for s in range(4): step(s)
    a("""s_add_u32 s30, s30, 1
    s_sub_u32 s34, s34, 4
    s_cmp_lt_u32 s30, 4
    s_cbranch_scc1 C_loop""")
    stamp(a, 2)
    a(f"ds_write_b32 v{FA}, v{GR+2} offset:{L_F - L_N}")
    def Ur(j): return ACC + 8 * (j >> 2) + (j & 3)
    def Ui(j): return Ur(j) + 4
    er, ei = Ur(0), Ui(0)
    for j in range(1, 32):
        d = 44 + 2 * (j & 1)
        a(f"""v_fma_f32 v{d}, v{L}, v{er}, v{Ur(j)}
        v_fma_f32 v{d+1}, v{L}, v{ei}, v{Ui(j)}
        v_fmac_f32 v{d}, v{NLI}, v{ei}
        v_fmac_f32 v{d+1}, v{L+1}, v{er}""")
        er, ei = d, d + 1
        if j == 6: a("s_waitcnt lgkmcnt(0)")
    a("""v_mov_b32 v44, v46
    v_mov_b32 v45, v47
    s_nop 1
    v_permlane32_swap_b32 v46, v44
    v_permlane32_swap_b32 v47, v45
    v_mov_b32 v48, v46
    v_mov_b32 v49, v47
    v_mov_b32 v50, v44
    v_mov_b32 v51, v45
    s_nop 0
    v_permlane16_swap_b32 v46, v48
    v_permlane16_swap_b32 v47, v49
    v_permlane16_swap_b32 v44, v50
    v_permlane16_swap_b32 v45, v51""")
    cmul(a, 48, 46, L32, 48)
    cmul(a, 44, 48, L32, 44)
    cmul(a, GR, 44, L32, 50)
    PL = 192
    a(f"""s_mov_b64 exec, 0xffff
    buffer_store_dwordx4 {V(GR,4)}, v{PUB}, {S(ES)}, 0 offen sc1
    s_mov_b64 exec, -1""")
    for j in range(4):
        a(f"buffer_load_dwordx4 {V(PL+4*j,4)}, v{LBK+j}, {S(ES)}, 0 offen sc1")
    stamp(a, 3)
    a("""v_cndmask_b32 v50, 0, v46, s[48:49]
    v_cndmask_b32 v51, 0, v47, s[48:49]
    v_cndmask_b32 v50, v50, v48, s[50:51]
    v_cndmask_b32 v51, v51, v49, s[50:51]
    v_cndmask_b32 v50, v50, v44, s[52:53]
    v_cndmask_b32 v51, v51, v45, s[52:53]""")
    cmul(a, 56, C2, 50)
    U2 = 128
    for j in range(32):
        a(f"""v_mul_f32 v{U2+j}, v{C2}, v{Ur(j)}
        v_fmac_f32 v{U2+j}, v{NC2+1}, v{Ui(j)}
        v_mul_f32 v{Ui(j)}, v{NC2}, v{Ui(j)}
        v_fmac_f32 v{Ui(j)}, v{NC2+1}, v{Ur(j)}""")
    stamp(a, 4)
    a("s_mov_b32 s39, 0")
    a.label("C_chk")
    a("s_waitcnt vmcnt(0)")
    for j in range(4):
        b = PL + 4 * j
        a(f"""v_cmp_eq_u32 vcc, v{b+2}, v{GR+2}
        v_cmp_eq_u32 s[54:55], v{b+3}, v{GR+3}
        s_and_b64 s[54:55], s[54:55], vcc
        s_or_b64 s[{56+2*j}:{57+2*j}], s[54:55], s[{40+2*j}:{41+2*j}]""")
    a(f"""s_and_b64 s[56:57], s[56:57], s[58:59]
    s_and_b64 s[60:61], s[60:61], s[62:63]
    s_and_b64 s[56:57], s[56:57], s[60:61]
    s_cmp_eq_u64 s[56:57], -1
    s_cbranch_scc1 C_ok
    s_add_u32 s39, s39, 1
    s_cmp_gt_u32 s39, {SPIN}
    s_cbranch_scc1 C_ok""")
    for j in range(4):
        a(f"buffer_load_dwordx4 {V(PL+4*j,4)}, v{LBK+j}, {S(ES)}, 0 offen sc1")
    a("s_branch C_chk")
    a.label("C_ok")
    stamp(a, 5)
    cmul(a, PL + 8, PL + 12, L512, PL + 8)
    cmul(a, PL + 4, PL + 8, L512, PL + 4)
    cmul(a, PL, PL + 4, L512, PL)
    cmul(a, 44, PL, G128)
    a("""v_mov_b32 v46, v44
    v_mov_b32 v47, v45
    s_nop 1
    v_permlane32_swap_b32 v44, v46
    v_permlane32_swap_b32 v45, v47
    v_add_f32 v44, v44, v46
    v_add_f32 v45, v45, v47
    v_mov_b32 v46, v44
    v_mov_b32 v47, v45
    s_nop 1
    v_permlane16_swap_b32 v44, v46
    v_permlane16_swap_b32 v45, v47
    v_add_f32 v44, v44, v46
    v_add_f32 v45, v45, v47""")
    cmul(a, 56, M1, 44, 56)
    a("v_xor_b32 v57, 0x80000000, v57")
    PK = 160
    pr, pi = 56, 57
    for j in range(32):
        r_, i_ = U2 + j, Ui(j)
        a(f"""v_fmac_f32 v{r_}, v{L}, v{pr}
        v_fmac_f32 v{i_}, v{L}, v{pi}
        v_fmac_f32 v{r_}, v{L+1}, v{pi}
        v_fmac_f32 v{i_}, v{NLI}, v{pr}""")
        pr, pi = r_, i_
        if j & 1:
            c = j >> 3
            a(f"""v_cvt_pk_bf16_f32 v{PK+8*c+((j>>1)&3)}, v{U2+j-1}, v{U2+j}
            v_cvt_pk_bf16_f32 v{PK+8*c+4+((j>>1)&3)}, v{Ui(j-1)}, v{Ui(j)}""")
        if (j & 7) == 7:
            c = j >> 3
            ad = HOD if c & 1 else HEV
            a(f"""buffer_store_dwordx4 {V(PK+8*c,4)}, v{ad}, {S(HS)}, 0 offen offset:{1024*c} sc1
            buffer_store_dwordx4 {V(PK+8*c+4,4)}, v{ad}, {S(HS)}, s36 offen offset:{1024*c} sc1""")
    stamp(a, 6)
    a("s_mov_b32 s39, 0")
    a.label("C_fsp")
    a(f"""ds_read_b128 v[44:47], v{NA} offset:{L_F - L_N}
    s_add_u32 s39, s39, 1
    s_waitcnt lgkmcnt(0)
    v_xor_b32 v44, v44, v{GR+2}
    v_xor_b32 v45, v45, v{GR+2}
    v_xor_b32 v46, v46, v{GR+2}
    v_xor_b32 v47, v47, v{GR+2}
    v_or3_b32 v44, v44, v45, v46
    v_or_b32 v44, v44, v47
    s_cmp_gt_u32 s39, {SPIN}
    s_cbranch_scc1 C_fok
    v_cmp_ne_u32 vcc, 0, v44
    s_cbranch_vccnz C_fsp""")
    a.label("C_fok")
    for c in range(4):
        a(f"""ds_write_b128 v{LEV+(c&1)}, {V(PK+8*c,4)} offset:{1024*c}
        ds_write_b128 v{LEV+(c&1)}, {V(PK+8*c+4,4)} offset:{4096+1024*c}""")
    HA, CA, OA2 = 4, 8, 10
    ACC, FR, DG = 64, 96, 96
    ZX, ZG, ZFS, ZB = 16, 17, 18, 144
    a(f"""v_bfe_u32 v1, v2, 1, 1          ; q>>1
    v_bfe_u32 v3, v2, 2, 2          ; r
    v_lshl_add_u32 v3, v13, 3, v3
    v_lshl_add_u32 v3, v1, 2, v3
    v_lshlrev_b32 v3, 4, v3
    v_lshl_add_u32 v3, v1, 10, v3
    v_and_b32 v1, 1, v2
    v_lshl_add_u32 v3, v1, 3, v3
    v_mov_b32 v{CA}, v4
    v_mov_b32 v{CA+1}, v6
    s_lshl_b32 s6, s5, 13
    s_add_u32 s6, s6, 65536
    v_add_u32 v{HA}, s6, v3
    v_xor_b32 v{HA+2}, 64, v{HA}
    s_lshl_b32 s6, s5, 14
    s_add_u32 s6, s6, {L_R}
    v_add_u32 v{HA+1}, s6, v3
    v_xor_b32 v{HA+3}, 64, v{HA+1}
    s_lshl_b32 s6, s3, 2
    s_add_u32 s6, s6, s5
    s_lshl_b32 s6, s6, 18
    s_lshl_b32 s7, s4, 8
    s_add_u32 s6, s6, s7
    s_add_u32 s6, s6, 4096
    v_lshlrev_b32 v{OA2}, 15, v13
    v_lshl_add_u32 v{OA2}, v12, 4, v{OA2}
    v_add_u32 v{OA2}, s6, v{OA2}          ; out offset
    v_lshlrev_b32 v1, 1, v13
    v_sub_u32 v1, v12, v1           ; n - 2g = 8h + e
    v_cmp_eq_u32 s[40:41], 0, v1
    v_cmp_eq_u32 s[42:43], 1, v1
    v_cmp_eq_u32 s[44:45], 8, v1
    v_cmp_eq_u32 s[46:47], 9, v1
    v_and_b32 v44, 0xffff, v{DSK}
    v_and_b32 v45, 0xffff0000, v{DSK}
    v_and_b32 v46, 0xffff, v{DSK+1}
    v_and_b32 v47, 0xffff0000, v{DSK+1}
    s_lshl_b32 s6, s3, 4
    s_add_u32 s6, s6, s4
    s_lshl_b32 s6, s6, 2
    {"" if OPT['fwg'] else "s_add_u32 s6, s6, s5"}
    s_lshl_b32 s6, s6, {FSH}
    s_add_u32 s6, s6, {FL_H}
    v_lshl_add_u32 v11, v12, 3, s6""")
    for b in range(4):
        for h in range(2):
            for r in range(4):
                d = DG + 8 * b + 4 * h + r
                if (r & 1) == (b >> 1):
                    m = 40 + 4 * h + 2 * (r >> 1)
                    a(f"v_cndmask_b32 v{d}, 0, v{44+b}, s[{m}:{m+1}]")
                else:
                    a(f"v_mov_b32 v{d}, 0")
    a(f"""v_bfe_u32 v1, v2, 2, 2
    v_lshlrev_b32 v1, 14, v1
    v_and_b32 v3, 3, v2
    v_lshl_add_u32 v1, v3, 7, v1
    v_lshl_add_u32 v1, v13, 4, v1
    s_lshl_b32 s6, s5, 10
    s_add_u32 s6, s6, {L_Z}
    v_add_u32 v{ZX}, s6, v1
    s_lshl_b32 s6, s33, 4
    s_add_u32 s6, s6, s32
    s_lshl_b32 s7, s6, 2
    s_add_u32 s7, s7, s5
    s_lshl_b32 s7, s7, 12
    v_lshlrev_b32 v1, 4, v2
    v_add_u32 v{ZG}, s7, v1
    s_lshl_b32 s7, s5, 8
    s_add_u32 s7, s7, s6
    s_lshl_b32 s7, s7, {FSH}
    s_add_u32 s7, s7, {FL_Z}
    v_lshl_add_u32 v{ZFS}, v12, 3, s7""")
    a("s_nop 1")
    for h in range(2):
        for t in range(2):
            for b in range(4):
                c = ACC + 16 * t + 4 * b
                a(f"v_mfma_f32_16x16x32_bf16 {V(c,4)}, {V(XF+8*t+4*h,4)}, {V(DG+8*b+4*h,4)}, {V(c,4) if h else 0}")
    a("s_waitcnt vmcnt(0)")
    if OPT["fwg"]:
        a(f"""ds_write_b32 v{FA}, v{GR+2} offset:{L_F + 16 - L_N}
        ds_read_b128 v[44:47], v{NA} offset:{L_F + 16 - L_N}
        s_waitcnt lgkmcnt(0)
        v_xor_b32 v44, v44, v{GR+2}
        v_xor_b32 v45, v45, v{GR+2}
        v_xor_b32 v46, v46, v{GR+2}
        v_xor_b32 v47, v47, v{GR+2}
        v_or3_b32 v44, v44, v45, v46
        v_or_b32 v44, v44, v47
        v_cmp_ne_u32 vcc, 0, v44
        s_cbranch_vccnz C_nofl""")
    a(f"""s_mov_b64 exec, {FEX}
    buffer_store_dwordx2 {V(GR+2,2)}, v11, {S(FL)}, 0 offen sc1
    s_mov_b64 exec, -1""")
    a.label("C_nofl")
    stamp(a, 7)
    stamp_dump(a, 0)
    a(f"s_setprio {OPT['prio2']}")
    def reads(s, h):
        s %= 4
        f = FR + 24 * h
        R = []
        for t in range(2):
            R.append(f"ds_read_b64_tr_b16 {V(f+4*t,2)}, v{HA+(s>>1)} offset:{4096*(s&1)+2048*t+512*h}")
            R.append(f"ds_read_b64_tr_b16 {V(f+4*t+2,2)}, v{HA+2+(s>>1)} offset:{4096*(s&1)+2048*t+512*h}")
        for b in range(4):
            R.append(f"ds_read_b128 {V(f+8+4*b,4)}, v{CA+h} offset:{2048*s+16384*b}")
        return R
    def mfmas(h):
        f = FR + 24 * h
        M = []
        for t in range(2):
            for b in (range(4) if t == 0 else reversed(range(4))):
                c = ACC + 16 * t + 4 * b
                M.append(f"v_mfma_f32_16x16x32_bf16 {V(c,4)}, {V(f+4*t,4)}, {V(f+8+4*b,4)}, {V(c,4)}")
        return M
    def ool(it, name, body):
        a(f"s_cmp_eq_u32 s30, {it}\ns_cbranch_scc1 C2_{name}")
        a.label(f"C2_{name}_r")
        b = Asm()
        b.label(f"C2_{name}")
        body(b)
        b(f"s_branch C2_{name}_r")
        OOL.extend(b.l)
    def zt_out(a):
        for j in range(4):
            for ab in range(2):
                a(f"ds_read_b64_tr_b16 {V(ZB+4*j+2*ab,2)}, v{ZX} offset:{512*(j>>1) + 8*(8*(j&1)+ab)}")
        a("s_waitcnt lgkmcnt(0)")
        for j in range(4):
            a(f"buffer_store_dwordx4 {V(ZB+4*j,4)}, v{ZG}, {S(ZS)}, 0 offen offset:{1024*j} sc1")
    def z_flag(a):
        a(f"""s_waitcnt vmcnt(0)
        s_mov_b64 exec, {FEX}
        buffer_store_dwordx2 {V(GR+2,2)}, v{ZFS}, {S(FL)}, 0 offen sc1
        s_mov_b64 exec, -1""")
    a("s_waitcnt lgkmcnt(0)\ns_barrier")
    stamp(a, 8)
    for x in reads(0, 0): a(x)
    a("s_mov_b32 s30, 0")
    a.label("C2_loop")
    assert OPT["ztp"] < 4 * OPT["zfw"] - 1
    for s in range(4):
        a("s_waitcnt lgkmcnt(0)")
        interleave(a, mfmas(0), reads(s, 1), OPT["fr2"])
        if s == OPT["ztp"] % 4 and not OPT["noa3"]: ool(OPT["ztp"] // 4, "zt", zt_out)
        if s == 3:
            a(f"""v_xor_b32 v{CA}, 8192, v{CA}
            v_xor_b32 v{CA+1}, 8192, v{CA+1}
            s_cmp_eq_u32 s30, 7
            s_waitcnt lgkmcnt(0)
            s_cbranch_scc1 C2_nobar
            s_barrier""")
            a.label("C2_nobar")
        else:
            a("s_waitcnt lgkmcnt(0)\ns_barrier")
        interleave(a, mfmas(1), reads(s + 1, 0), OPT["fr2"])
    if not OPT["noa3"]: ool(OPT["zfw"] - 1, "zf", z_flag)
    a("""s_add_u32 s30, s30, 1
    s_cmp_lt_u32 s30, 8
    s_cbranch_scc1 C2_loop
    s_nop 5""")
    stamp(a, 10)
    OB = 160
    for t in range(2):
        for i in range(4):
            o = OB + 16 * t + 4 * i
            for b in range(4):
                a(f"v_mov_b32 v{o+b}, v{ACC+16*t+4*b+i}")
            a(f"s_mov_b32 s6, {(16*t+i)*8192}")
            a(f"buffer_store_dwordx4 {V(o,4)}, v{OA2}, {S(OS)}, s6 offen{FLV[OPT['osb']]}")
    stamp(a, 11)

def main():
    a = Asm()
    name = NAME + "_kernel" if OPT["single"] else "f_kernel"
    kernel_head(a, name)
    entry(a, "K_done", "K_compute")
    loader(a)
    if STAMP: a("s_branch K_fin")
    else: a("s_endpgm")
    a.label("K_compute")
    compute(a)
    a.label("K_fin")
    stamp_out(a)
    a.label("K_done")
    a("s_endpgm")
    a.l += OOL
    vg = 252 if STAMP else 246
    hdr = open("/code/" + NAME + ".s.ref").read().split("\n")
    out = []
    for ln in hdr:
        if ln.startswith("; @launch") or ln.startswith(".amdgcn"):
            break
        if ln.startswith("; Override") or ln.startswith("; grid="):
            continue
        out.append(ln)
    out.append(f"; @launch {'' if OPT['single'] else 'kernel=' + name + ' '}grid=(256,1,1) block=(512,1,1) lds=163840")
    out.append('.amdgcn_target "amdgcn-amd-amdhsa--gfx950"')
    out.append(".text")
    out += a.l
    out.append('.section .rodata,"a"')
    out.append(kernel_desc(name, vg))
    open(OPT["out"], "w").write("\n".join(out) + "\n")
main()
```

```python
import sys
NAME = "concat_heads__ssm_conv_h3__ssm_conv_s5__prompt"
OPT = dict(out="/code/" + NAME + ".s", stamp=0, trace=0, single=0,
           win=12, kfirst=2, npre=3,
           ntk=1, nte=1, ntq=1, prioc=3, prio2=3, lt=1, ltk=5, lts=8,
           osa=2, osb=2, noa3=0, fsh=7, ffull=1, st0=0, rotm=1, rots=1, rotx=1, tpar=1,
           gate=1, hd=7, ncb=2, nh=8, xrot=0, t64=1, gchk=3,
           ra=12,
           ek=3, ow=15,
           fs=9, ps=21, pc=26, kl=31, sa=16,
           qk=15, c15=0, d14=1, d15=1, dr=1, pw=24, pre=8, per=4, zp=6, zc=8, za=10, npl=3, prog=1, lprio=0, dpos=0, shsc=1, roll=1, mord=1, op=8, late=2, hord=1, ht=0, ncc=5, cpl=1, ccd=0, zx=1, su=-2, nob=0, tw=0, lbp=2, hsh=9, spr=3, lp2=0, tc=0, tcn=1, hts=0, pp=3, ppn=3, cpe=4, cpw=0, skb=3, sks=1)
for arg in sys.argv[1:]:
    k, v = arg.split("=")
    assert k in OPT, k
    OPT[k] = v if k == "out" else int(v)
STAMP = OPT["stamp"]
TRACE = OPT["trace"]
FLV = ['', ' sc1', ' nt', ' sc0 sc1', ' sc0 sc1 nt', ' sc1 nt', ' sc0 nt']
def NT(k): return " nt" if OPT["nt" + k] else ""
P = dict(q=32, k=34, v=36, shift=38, ssmk=40, ssmD=42, x=44, Lre=46, Lim=48, Bre=50, Bim=52, Cre=54, Cim=56,
         logdt=58, Dskip=60, out=62, dbg=64, ws=66, q2=58)
WS_KVT = 0
WS_ZT = 4 << 20
WS_H = 8 << 20
WS_E = 16 << 20
WS_FLG = 17 << 20
FL_H = 1 << 17
FL_Z = 2 << 17
FL_SZ = 3 << 17
FSH = OPT['fsh']
FEX = '0xffff' if OPT['ffull'] else '1'
WS_STAMP = 64 << 20
SPIN = 4096

class Asm:
    def __init__(self):
        self.l = []
    def __call__(self, s):
        for ln in s.strip("\n").split("\n"):
            ln = ln.strip()
            if ln:
                self.l.append("    " + ln)
    def label(self, s):
        self.l.append(s + ":")

class VM:
    def __init__(self):
        self.ops = []
    def add(self, tag, n=1):
        self.ops += [tag] * n
    def cnt(self, *tags):
        last = max(i for i, t in enumerate(self.ops) if t in tags)
        return min(63, len(self.ops) - 1 - last)

def kernel_head(a, name):
    a.l += [".p2align 8", f".globl {name}", f".type {name},@function"]
    a.label(name)

def kernel_desc(name, vgpr, sgpr=102):
    acc = (vgpr + 3) // 4 * 4
    return f""".p2align 6
.amdhsa_kernel {name}
  .amdhsa_next_free_vgpr {vgpr}
  .amdhsa_next_free_sgpr {sgpr}
  .amdhsa_accum_offset {acc}
  .amdhsa_group_segment_fixed_size 0
  .amdhsa_kernarg_size 144
  .amdhsa_user_sgpr_count 2
  .amdhsa_user_sgpr_kernarg_segment_ptr 1
  .amdhsa_system_sgpr_workgroup_id_x 1
.end_amdhsa_kernel"""

def srd(a, d, name, nbytes, off=0):
    b = P[name]
    if off:
        a(f"s_add_u32 s{d}, s{b}, {off}\ns_addc_u32 s{d+1}, s{b+1}, 0")
    else:
        a(f"s_mov_b32 s{d}, s{b}\ns_mov_b32 s{d+1}, s{b+1}")
    a(f"s_mov_b32 s{d+2}, {nbytes}\ns_mov_b32 s{d+3}, 0x00020000")

def S(d):
    return f"s[{d}:{d+3}]"
def V(d, n):
    return f"v[{d}:{d+n-1}]"

def stamp0(a, i, lev=1):
    if STAMP and (OPT["st0"] == lev or (OPT["st0"] and i < 4 and lev == 1)): a(f"s_memrealtime s[{84+2*i}:{85+2*i}]")
def stamp(a, i):
    if STAMP and not (OPT["st0"] and 2 <= i <= 7):
        i &= 7
        a(f"s_memrealtime s[{84+2*i}:{85+2*i}]")
def stamp_dump(a, base):
    if STAMP:
        a("s_waitcnt lgkmcnt(0)")
        for i in range(8):
            a(f"v_writelane_b32 v250, s{84+2*i}, {base+i}")
def stamp_out(a):
    if not STAMP: return
    a("s_waitcnt vmcnt(0) lgkmcnt(0)")
    stamp(a, 15)
    stamp_dump(a, 8)
    srd(a, 8, "ws", 2 << 20, WS_STAMP)
    a("""s_lshl_b32 s6, s2, 3
    s_add_u32 s6, s6, s5
    s_lshl_b32 s7, s6, 8
    s_lshl_b32 s6, s6, 6
    s_add_u32 s7, s7, 0x100000
    v_lshlrev_b32 v1, 2, v2""")
    if TRACE: a("buffer_store_dword v251, v1, s[8:11], s7 offen")
    a("""s_mov_b64 exec, 0xffff
    buffer_store_dword v250, v1, s[8:11], s6 offen
    s_waitcnt vmcnt(0)""")

def tp(i):
    return f"\ns_memrealtime s[60:61]\ns_waitcnt lgkmcnt(0)\nv_writelane_b32 v251, s60, {i}" if TRACE == 2 else ""
def tr_begin(a):
    if TRACE == 1: a("s_memrealtime s[60:61]")
def tr_end(a, i):
    if TRACE == 1: a(f"s_waitcnt lgkmcnt(0)\nv_writelane_b32 v251, s60, {i}")

def cmul(a, d, x, y, c=None):
    if c is None:
        a(f"v_mul_f32 v{d}, v{x}, v{y}\nv_mul_f32 v{d+1}, v{x}, v{y+1}")
    else:
        a(f"v_fma_f32 v{d}, v{x}, v{y}, v{c}\nv_fma_f32 v{d+1}, v{x}, v{y+1}, v{c+1}")
    a(f"v_fma_f32 v{d}, -v{x+1}, v{y+1}, v{d}\nv_fmac_f32 v{d+1}, v{x+1}, v{y}")

def entry(a, done, other):
    stamp(a, 0)
    a(f"""s_cmp_ge_u32 s2, 256
    s_cbranch_scc1 {done}
    s_load_dwordx16 s[32:47], s[0:1], 0
    s_load_dwordx16 s[48:63], s[0:1], 64
    s_load_dwordx4 s[64:67], s[0:1], 128
    v_lshrrev_b32 v1, 6, v0
    v_and_b32 v2, 63, v0
    s_and_b32 s6, s2, 3
    v_readfirstlane_b32 s5, v1
    s_lshl_b32 s6, s6, 2
    s_lshr_b32 s7, s2, 3
    s_and_b32 s3, s7, 3
    s_add_u32 s3, s3, s6            ; mt
    s_and_b32 s6, s2, 4
    s_lshl_b32 s6, s6, 1
    s_lshr_b32 s4, s7, 2
    s_add_u32 s4, s4, s6            ; nt
    s_cmp_lt_u32 s5, 4
    s_cbranch_scc1 {other}""")

def interleave(a, main, fill, per, vm=None):
    fill = list(fill)
    for m in main:
        if isinstance(m, tuple):
            vm.add(m[1]); m = m[0]
        a(m)
        for _ in range(per):
            if fill: a(fill.pop(0))
    for f in fill: a(f)

SLOT, EARLY = [], []
for t_ in range(16):
    if t_ <= OPT["ra"]: SLOT.append([98304, 0, 32768, 65536][t_ % 4])
    else: SLOT.append([0, 32768, 65536][(t_ - OPT["ra"] - 1) % 3])
    prev = [u for u in range(t_) if SLOT[u] == SLOT[t_]]
    EARLY.append(prev[-1] + 1 if prev else -1)
assert OPT["ra"] % 4 == 0
RFREE = OPT["ra"] + 1
SA = OPT["sa"]
assert OPT["kl"] // 2 + 1 <= SA <= 16
L_R = 98304
L_O = L_R
L_E = L_O + 4160
L_U = L_E + 4160
L_N = 147328
L_ST = 147456
L_Z = L_R + 8192
L_F = L_N + 16
L_ZI = L_R
OOL = []

def rot1(a, d, t):
    a(f"""s_and_b32 s{d}, s2, 3
    s_lshl_b32 s{d}, s{d}, 2
    s_and_b32 s{t}, s2, 4
    s_lshl_b32 s{t}, s{t}, 1
    s_add_u32 s{d}, s{d}, s{t}
    s_add_u32 s{t}, s3, s4
    s_and_b32 s{t}, s{t}, {OPT['rotm']}
    s_lshl_b32 s{t}, s{t}, {OPT['rots']}
    {"" if OPT['rotx'] else f"s_mov_b32 s{d}, 0"}
    s_add_u32 s{d}, s{d}, s{t}
    s_and_b32 s{d}, s{d}, 15""")

def spin_flags(a, lbl, PLL, NON, AD, FL, mask=None):
    a("s_mov_b32 s51, 0")
    a.label(lbl)
    a(f"""buffer_load_dwordx2 {V(PLL,2)}, v{AD}, {S(FL)}, 0 offen sc1
    s_add_u32 s51, s51, 1
    s_waitcnt vmcnt(0)
    v_cmp_eq_u32 vcc, v{PLL}, v{NON}
    v_cmp_eq_u32 s[48:49], v{PLL+1}, v{NON+1}
    s_cmp_gt_u32 s51, {SPIN}
    s_cbranch_scc1 {lbl}_go
    s_and_b64 s[48:49], s[48:49], vcc
    {f"s_or_b64 s[48:49], s[48:49], {mask}" if mask else ""}
    s_cmp_eq_u64 s[48:49], -1
    s_cbranch_scc0 {lbl}""")
    a.label(lbl + "_go")

def loader(a):
    vm = VM()
    X, BR, BI, SK, KV, FL = 8, 12, 16, 68, 72, 76
    CR, CI = 24, 28
    a("""s_sub_u32 s6, s5, 4             ; lw
    v_lshrrev_b32 v12, 3, v2        ; r
    v_and_b32 v13, 7, v2
    v_lshrrev_b32 v14, 4, v2        ; r>>1
    v_xor_b32 v13, v13, v14
    v_lshlrev_b32 v13, 4, v13
    v_lshrrev_b32 v14, 5, v2        ; r>>2
    v_and_b32 v15, 3, v12
    v_lshl_add_u32 v15, v14, 3, v15
    v_lshl_add_u32 v14, v12, 14, v13   ; x rows 8r
    v_lshl_add_u32 v15, v15, 11, v13   ; B rows 8(r>>2)+(r&3)
    s_lshl_b32 s7, s3, 6
    s_add_u32 s7, s7, s6
    s_lshl_b32 s7, s7, 12           ; (128mt+2lw)*2048
    v_add_u32 v4, s7, v14
    v_xor_b32 v5, 64, v4
    v_add_u32 v5, 0x1fc00, v5
    s_lshl_b32 s7, s4, 2
    s_add_u32 s7, s7, s6
    s_lshl_b32 s7, s7, 15           ; (64nt+16lw)*2048
    v_add_u32 v8, s7, v15
    v_xor_b32 v9, 64, v8
    v_add_u32 v9, 0x1c00, v9""")
    rot1(a, 30, 31)
    a("""s_lshl_b32 s100, s30, 7         ; koff
    s_lshl_b32 s101, s6, 12         ; lw*4096""")
    stamp0(a, 2)
    a("s_waitcnt lgkmcnt(0)")
    stamp0(a, 3)
    srd(a, X, "x", 4 << 20)
    srd(a, BR, "Bre", 2 << 20)
    srd(a, BI, "Bim", 2 << 20)
    def dma(s):
        sl = SLOT[s]
        L = []
        L.append(f"s_add_u32 m0, s101, {sl}\ns_nop 0\nbuffer_load_dwordx4 v4, {S(X)}, s100 offen lds")
        for j in range(1, 4):
            L.append(f"buffer_load_dwordx4 v{4+(j&1)}, {S(X)}, s100 offen offset:{1024*j} lds")
        L.append(f"s_add_u32 m0, s101, {sl+16384}\ns_nop 0\nbuffer_load_dwordx4 v8, {S(BR)}, s100 offen lds")
        L.append(f"buffer_load_dwordx4 v9, {S(BR)}, s100 offen offset:1024 lds")
        L.append(f"s_add_u32 m0, s101, {sl+16384+2048}\ns_nop 0\nbuffer_load_dwordx4 v8, {S(BI)}, s100 offen lds")
        L.append(f"buffer_load_dwordx4 v9, {S(BI)}, s100 offen offset:1024 lds\ns_add_u32 s100, s100, 128\ns_and_b32 s100, s100, 2047")
        return [(x, f"d{s}") for x in L]
    D = [dma(s) for s in range(16)]
    def first():
        if OPT["kfirst"] == 2: a("s_barrier")
        stamp0(a, 4, 2)
        interleave(a, D[0][:4], [], 0, vm)
        stamp0(a, 5, 2)
        interleave(a, D[0][4:], [], 0, vm)
        stamp0(a, 6, 2)
        stamp0(a, 4)
        if OPT["kfirst"] == 1: a("s_barrier")
        for k in range(1, OPT["npre"]): interleave(a, D[k], [], 0, vm)
        stamp0(a, 7, 2)
    if OPT["su"] != -2: first()
    a(f"""s_mov_b32 s{P['q2']}, s{P['q']}
    s_mov_b32 s{P['q2']+1}, s{P['q']+1}
    s_lshr_b32 s7, s2, 3
    s_and_b32 s32, s7, 15           ; a_mt
    s_lshr_b32 s7, s7, 4
    s_and_b32 s33, s2, 7
    s_lshl_b32 s33, s33, 1
    s_add_u32 s33, s33, s7          ; a_nt
    s_lshl_b32 s34, s33, 4
    s_add_u32 s34, s34, s32
    s_lshl_b32 s34, s34, 2
    s_add_u32 s34, s34, s6          ; A2 channel
    s_lshl_b32 s35, s34, 12         ; ch*4096
    s_lshr_b32 s7, s34, 1
    s_lshl_b32 s7, s7, 2
    s_load_dword s37, s[{P['ssmD']}:{P['ssmD']+1}], s7
    v_and_b32 v12, 15, v2           ; cq / n / m
    v_lshrrev_b32 v13, 4, v2        ; tg / g""")
    if OPT["tw"]:
        TW = [("q2", 4 << 20, 0, "s32", 18), ("out", 16 << 20, 0, "s3", 20), ("out", 16 << 20, 0, "s32", 20), ("ws", 8 << 20, WS_H, "s3", 19),
              ("ws", 4 << 20, WS_ZT, "s33", 18), ("ssmk", 4 << 20, 0, "s33", 18), ("Cre", 2 << 20, 0, "s4", 17), ("Cim", 2 << 20, 0, "s4", 17),
              ("ws", 4 << 20, WS_KVT, "s33", 18), ("ws", 1 << 18, WS_E, "s3", 14)]
        a("s_mov_b64 exec, 1")
        for i, (nm, sz, off, ix, sh) in enumerate(TW):
            if not OPT["tw"] >> i & 1: continue
            a(f"s_cmp_eq_u32 s6, {i & 3}\ns_cbranch_scc0 L_tw{i}")
            srd(a, 72, nm, sz, off)
            a(f"s_lshl_b32 s7, {ix}, {sh}\nbuffer_load_dword v240, off, s[72:75], s7 sc1")
            a.label(f"L_tw{i}")
        a("s_mov_b64 exec, -1")
    SETUP = max(-1, OPT['su'])
    AAD, BAD, DFR, ZAD, PLL, NON = 16, 20, 24, 21, 22, 28
    CAD, QAD, QL, FA, NA = 246, 31, 192, 6, 7
    K0 = 6 + OPT["ncc"]
    CREG = {K0: 208, K0 + 1: 224}
    for k in range(K0 + 2, 16): CREG[k] = 64 + 16 * (k - K0 - 2)
    QS = 40
    ZM, ZN = ("s32", "s33") if OPT["zx"] else ("s3", "s4")
    def a2_setup():
        TP = ""
        if OPT["tpar"]:
            TP = f"""s_lshr_b32 s46, s2, 4
            s_and_b32 s46, s46, {max(0, OPT['lts'] - 1)}
            s_add_u32 s7, s3, s4
            s_and_b32 s7, s7, 1
            s_cmp_eq_u32 s7, {OPT["tpar"] - 1}
            s_cselect_b32 s46, s46, 99"""
        L = f"""s_waitcnt lgkmcnt(0)
        s_lshl_b32 s45, s6, 14
        v_lshlrev_b32 v{AAD}, 4, v13
        v_lshl_add_u32 v{AAD}, v12, 1, v{AAD}
        v_and_b32 v1, 1, v12
        v_mov_b32 v3, {L_O + 4}
        v_mov_b32 v14, {L_E + 2}
        v_cmp_eq_u32 vcc, 1, v1
        s_and_b32 s7, s34, 1
        s_lshl_b32 s7, s7, 4
        v_cndmask_b32 v3, v3, v14, vcc
        v_add3_u32 v{AAD}, v{AAD}, v3, s45
        v_add_u32 v{AAD+1}, 1024, v{AAD}
        v_add_u32 v{AAD+2}, 2048, v{AAD}
        v_add_u32 v{AAD+3}, 3072, v{AAD}
        s_add_u32 s47, s45, {L_U + 480}
        v_lshlrev_b32 v1, 4, v13
        v_lshlrev_b32 v3, 5, v12
        v_sub_u32 v1, v1, v3
        v_add_u32 v{BAD}, s47, v1
        s_lshr_b32 s37, s37, s7
        s_and_b32 s37, s37, 0xffff
        v_lshlrev_b32 v1, 3, v13
        v_add_u32 v1, v1, v12
        v_sub_u32 v1, 15, v1
        v_and_b32 v3, 1, v1
        v_lshlrev_b32 v3, 4, v3
        v_lshlrev_b32 v3, v3, s37
        v_lshrrev_b32 v1, 1, v1""".split("\n")
        for j in range(4):
            L += [f"v_cmp_eq_u32 vcc, {j}, v1", "s_nop 1", f"v_cndmask_b32 v{DFR+j}, 0, v3, vcc"]
        L += f"""s_add_u32 s7, s45, {L_Z}
        v_lshlrev_b32 v1, 3, v2
        v_add_u32 v{ZAD}, s7, v1
        v_lshlrev_b32 v10, 4, v2
        v_mov_b32 v{NA}, {L_N}
        s_lshl_b32 s7, s6, 2
        v_add_u32 v{FA}, s7, v{NA}
        v_mov_b32 v1, 0
        ds_write_b32 v{FA}, v1 offset:{L_F + 32 - L_N}
        ds_write_b32 v{FA}, v1 offset:{L_F + 80 - L_N}
        v_mov_b32 v1, 2
        ds_write_b32 v{FA}, v1 offset:{L_F + 48 - L_N}
        v_lshrrev_b32 v1, 3, v2
        v_and_b32 v3, 7, v2
        v_xor_b32 v3, v3, v13
        v_lshlrev_b32 v3, 4, v3
        v_lshl_add_u32 v3, v1, 13, v3
        s_lshl_b32 s7, s4, 6
        s_add_u32 s7, s7, s6
        s_lshl_b32 s7, s7, 11
        v_add_u32 v{CAD}, s7, v3
        v_xor_b32 v{CAD+1}, 64, v{CAD}
        v_add_u32 v{CAD+1}, {65536-1024}, v{CAD+1}
        v_xor_b32 v{CAD+2}, 32, v{CAD}
        v_xor_b32 v{CAD+3}, 32, v{CAD+1}
        s_lshl_b32 s38, s4, 7
        v_lshlrev_b32 v3, 11, v13
        v_lshl_add_u32 v3, v12, 3, v3
        s_lshl_b32 s7, {ZM}, 2
        s_add_u32 s7, s7, s6
        s_lshl_b32 s7, s7, 9
        s_add_u32 s7, s7, {ZN}
        s_lshl_b32 s7, s7, 7
        v_add_u32 v{QAD}, s7, v3
        s_lshr_b32 s46, s2, 3
        s_and_b32 s46, s46, {max(0, OPT['lts'] - 1)}
        {TP}
        s_lshl_b32 s39, s6, 11
        s_and_b32 s7, s3, {12 * OPT['xrot']}
        s_lshl_b32 s7, s7, 7
        s_add_u32 s38, s38, s7
        s_and_b32 s20, s38, 1024
        s_xor_b32 s21, s20, 1024
        s_and_b32 s7, s3, 3
        s_lshl_b32 s7, s7, 1
        s_and_b32 s47, s6, 1
        s_add_u32 s7, s7, s47
        s_lshl_b32 s7, s7, 7
        s_or_b32 s7, s7, s21
        s_lshl_b32 s47, s4, 17
        s_add_u32 s7, s7, s47
        v_lshlrev_b32 v11, 11, v2
        v_add_u32 v11, s7, v11""".split("\n")
        if OPT["lt"]:
            L += f"""s_and_b32 s7, s3, 14
            s_and_b32 s47, s6, 1
            s_add_u32 s7, s7, s47
            s_add_u32 s7, s7, s4
            s_and_b32 s7, s7, 15
            s_lshl_b32 s7, s7, 7
            s_lshl_b32 s47, s4, 17
            s_add_u32 s7, s7, s47
            v_lshlrev_b32 v30, 11, v2
            v_add_u32 v30, s7, v30""".split("\n")
        return L
    def ldC(k):
        L = []
        for i in range(4):
            x = ""
            if i == 0 and OPT["hord"]: x += f"s_add_u32 s44, s38, {128*k}\ns_and_b32 s44, s44, 1023\ns_or_b32 s44, s44, s{20 + (k >> 3)}\n"
            elif i == 0: x += f"s_add_u32 s44, s38, {128*k}\ns_and_b32 s44, s44, 2047\n"
            tail = f"v{CAD+i}, {S(CI if i & 2 else CR)}, s44 offen offset:{1024*(i&1)}"
            if k < 6:
                if not i & 1: x += f"s_add_u32 m0, s39, {16384*k + 4096*i}\ns_nop 0\n"
                x += f"buffer_load_dwordx4 {tail} lds"
            else:
                x += f"buffer_load_dwordx4 {V(CREG[k]+4*i,4)}, {tail}"
            if i == 3: x += tp(16 + k)
            L.append((x, f"c{k}"))
        return L
    def words(off, lbl, t=44):
        a("s_mov_b32 s51, 0")
        a.label(lbl)
        a(f"""ds_read_b128 v[{t}:{t+3}], v{NA} offset:{L_F + off - L_N}
        s_add_u32 s51, s51, 1
        s_waitcnt lgkmcnt(0)
        v_xor_b32 v{t}, v{t}, v{NON}
        v_xor_b32 v{t+1}, v{t+1}, v{NON}
        v_xor_b32 v{t+2}, v{t+2}, v{NON}
        v_xor_b32 v{t+3}, v{t+3}, v{NON}
        v_or3_b32 v{t}, v{t}, v{t+1}, v{t+2}
        v_or_b32 v{t}, v{t}, v{t+3}
        s_cmp_gt_u32 s51, {SPIN * 4}
        s_cbranch_scc1 {lbl}_ok
        v_cmp_ne_u32 vcc, 0, v{t}
        s_cbranch_vccnz {lbl}""")
        a.label(lbl + "_ok")
    TS = 52
    TCH = f"buffer_load_dword v240, v30, {S(TS)}, 0 offen"
    assert OPT["tpar"]
    if OPT["t64"]: TCH += f"\nbuffer_load_dword v241, v30, {S(TS)}, 0 offen offset:64"
    after = {k: [] for k in range(16)}
    QLD = [f"s_mov_b32 s36, {8192*j}\nbuffer_load_dwordx2 {V(QL+2*j,2)}, v{QAD}, {S(QS)}, s36 offen{NT('q')}" for j in range(8)]
    if OPT["lt"]:
        for i in range(OPT["lts"]):
            after[OPT["ltk"] + i].append((f"s_cmp_eq_u32 s46, {i}\ns_cbranch_scc0 L_t{i}\n{TCH}\nL_t{i}:", "", 0, SETUP + 1, None))
    ER = 112
    for j in range(4):
        after[OPT["ek"]].append((f"buffer_load_dwordx4 {V(ER+4*j,4)}, v10, {S(SK)}, s35 offen offset:{1024*j}{NT('e')}", "E", 0, SETUP + 1, None))
    if OPT["qk"] <= 15:
        for x in QLD: after[OPT["qk"]].append((x, "q", 0, SETUP + 1, None))
    CR_ = sum((ldC(k) for k in range(K0, 16)), [])
    def cslot(t): return sum((ldC(k) for k in (SLOT[t] // 16384, SLOT[t] // 16384 + 1)), [])
    CDL = []
    assert OPT["c15"] <= 8 and OPT["ra"] < 13
    if OPT["d14"]:
        for x, t in cslot(13): after[15].append((x, t, 0, 14, None))
    else: CDL += cslot(13)
    TC2 = [(f"buffer_load_dword v{240+i}, v11, {S(TS)}, 0 offen offset:{64*i}", "t2") for i in range(OPT["tcn"])]
    if 1 <= OPT["tc"] <= 2:
        for x, t in TC2: after[15].append((x, t, 0, 13 + OPT["tc"], None))
    if OPT["tc"] > 4:
        for x, t in TC2: after[OPT["tc"]].append((x, t, 0, 0, None))
    if OPT["d15"]:
        for x, t in cslot(14): after[15].append((x, t, 0, 15, None))
    elif OPT['ccd'] != 2: CDL += cslot(14)
    if not OPT['ccd']: CDL += cslot(15)
    if OPT["tc"] == 3:
        for x, t in TC2: after[15].append((x, t, 0, 15, None))
    if OPT["tc"] == 4: CDL += TC2
    if OPT["qk"] == 16:
        for x in QLD: after[15].append((x, "q", 0, 15, None))
    for x, t in CR_[:OPT["c15"]]: after[15].append((x, t, 0, 15, None))
    CR_ = CR_[OPT["c15"]:]
    ST = []
    for k in range(16):
        if k >= OPT["npre"]: ST += [(x, t, 1, EARLY[k], None) for x, t in D[k]]
        ST += after[k]
    cum = [0]
    for it in ST: cum.append(cum[-1] + it[2])
    endof = {k: 0 for k in range(OPT["npre"])}
    for i, it in enumerate(ST):
        if it[1][:1] == "d": endof[int(it[1][1:])] = i + 1
    pos = [0]
    def emit(s):
        lim = cum[endof[min(15, s + 1)]] + OPT["win"]
        L = []
        while pos[0] < len(ST):
            x, t, c, e, hook = ST[pos[0]]
            must = pos[0] < endof[min(15, s + 1)]
            assert not (must and e > s), (s, t)
            if not must and s < 15 and (e > s or cum[pos[0] + 1] > lim + 1e-6): break
            L.append((x, t)); pos[0] += 1
        return L
    srd(a, SK, "ssmk", 4 << 20)
    srd(a, FL, "ws", FL_SZ, WS_FLG)
    srd(a, CR, "Cre", 2 << 20)
    srd(a, CI, "Cim", 2 << 20)
    srd(a, QS, "q2", 4 << 20)
    a(f"""s_cmp_lt_u32 s6, 2
    s_cselect_b32 s{TS}, s{P['Cre']}, s{P['Cim']}
    s_cselect_b32 s{TS+1}, s{P['Cre']+1}, s{P['Cim']+1}
    s_mov_b32 s{TS+2}, {2 << 20}
    s_mov_b32 s{TS+3}, 0x00020000""")
    if OPT["su"] < 0:
        for x in a2_setup(): a(x)
    if OPT["su"] == -2: first()
    stamp0(a, 5)
    a(f"s_waitcnt vmcnt({vm.cnt('d0')})")
    stamp0(a, 6)
    a("s_barrier")
    stamp(a, 1)
    ACC = 32
    FB = [64, 128]
    def reads(r):
        L = []
        f = FB[r & 1]
        for q in range(8):
            o = 128 * (q & 1) + 16 * r
            L.append(f"ds_read_b128 {V(f+32+4*q,4)}, v{BAD} offset:{512*(7-q) + 64*r}")
            L.append(f"ds_read2_b32 {V(f+4*q,2)}, v{AAD+(q>>1)} offset0:{o} offset1:{o+1}")
            L.append(f"ds_read2_b32 {V(f+4*q+2,2)}, v{AAD+(q>>1)} offset0:{o+2} offset1:{o+3}")
        return L
    def mfmas(r):
        f = FB[r & 1]
        L = []
        if r == 0:
            for u in range(8):
                L.append(f"v_mfma_f32_16x16x32_bf16 {V(ACC+4*u,4)}, {V(DFR,4)}, {V(f+32+4*u,4)}, 0")
        QU = [(q, u) for q in range(8) for u in range(8 - q)]
        if OPT["mord"]:
            rem = {c: [(q, c - q) for q in range(c + 1)] for c in range(8)}
            QU, last = [], []
            while len(QU) < 36:
                c = max((c for c in rem if rem[c] and c not in last[-3:]), key=lambda c: len(rem[c]))
                QU.append(rem[c].pop(0)); last.append(c)
            assert len(set(QU)) == 36
        for q, u in QU:
            c = ACC + 4 * (q + u)
            L.append(f"v_mfma_f32_16x16x32_bf16 {V(c,4)}, {V(f+4*q,4)}, {V(f+32+4*u,4)}, {V(c,4)}")
        return L
    def paced(items, w):
        for x, t in items:
            a(f"s_waitcnt vmcnt({w - 1})")
            a(x); vm.add(t)
    GRD = f"ds_read_b32 v1, v{FA} offset:{L_F + 48 - L_N}"
    ng = [0]
    def gate_chk(n, lev=2):
        lbl = f"L_g{ng[0]}"; ng[0] += 1
        b = Asm()
        b.label(lbl)
        b("s_mov_b32 s50, 0")
        b.label(lbl + "_s")
        b(f"""{GRD}
        s_add_u32 s50, s50, 1
        s_waitcnt lgkmcnt(0)
        v_readfirstlane_b32 s7, v1
        s_cmp_gt_u32 s50, {SPIN}
        s_cbranch_scc1 {lbl}_r
        s_cmp_lt_u32 s7, {lev}
        s_cbranch_scc1 {lbl}_s
        s_branch {lbl}_r""")
        OOL.extend(b.l)
        return f"s_waitcnt lgkmcnt({n})\nv_cmp_gt_u32 vcc, {lev}, v1", f"s_cbranch_vccnz {lbl}\n{lbl}_r:"
    def a2round(r, vmem, gated, rolled=False):
        M = mfmas(r)[-36:] if rolled else mfmas(r)
        R = reads(r + 1) if r < 7 else []
        if rolled and r: R += [f"v_add_u32 v{AAD+i}, 128, v{AAD+i}" for i in range(4)] + [f"v_add_u32 v{BAD}, 128, v{BAD}"]
        GP = 36 // OPT["gchk"] if gated and OPT["gate"] and OPT["gchk"] else 0
        vmem = list(vmem)
        a("s_waitcnt lgkmcnt(0)" + (tp(48 + r) if TRACE == 2 and not rolled else ""))
        since = 0
        for i, m in enumerate(M):
            a(m)
            if vmem and i % OPT["dpos"] == 0:
                x, t = vmem.pop(0); a(x)
                if t: vm.add(t)
            if GP and i % GP == GP - 8:
                a(GRD); since = 0
            elif GP and i % GP == GP - 2:
                g_ = gate_chk(min(15, since))
                a(g_[0])
            elif R:
                x = R.pop(0); a(x); since += x[:2] == "ds"
            if GP and i % GP == GP - 1: a(g_[1])
        assert not R and not vmem
    NS = OPT["fs"] // 2 + 1
    OW = OPT["ow"]
    assert RFREE <= OW < SA and NS < SA
    LATE = []
    for s in range(16):
        tr_begin(a)
        if s == SA:
            stamp(a, 4)
            if OPT["lprio"]: a(f"s_setprio {OPT['lprio']}")
            for x in reads(0): a(x)
        if s == OW:
            a("ds_write_b128 v1, v[32:35]")
            for j in range(4):
                a(f"ds_write_b128 v15, {V(ER+4*j,4)} offset:{1024*j + L_E - L_O}")
                a(f"ds_write_b128 v15, {V(64+4*j,4)} offset:{1024*j}")
        L = emit(s)
        if s == 15 and OPT["late"]:
            nl = {1: 8 * OPT["d15"], 2: 0}[OPT["late"]] + (OPT["tcn"] if OPT["tc"] == 2 else 0)
            LATE = L[nl:]; L = L[:nl]
        if s < SA or not OPT["dpos"]:
            for x, t in L:
                a(x)
                if t: vm.add(t)
            L = []
        if s == OPT["su"]:
            for x in a2_setup(): a(x)
        if s == NS:
            a(f"v_mov_b32 v1, {L_N}\nds_read_b64 v[{NON}:{NON+1}], v1")
        if s == OPT["op"]:
            assert NS < s < OW
            a(f"""v_mov_b32 v32, 0
            v_mov_b32 v33, 0
            v_mov_b32 v34, 0
            v_mov_b32 v35, 0
            s_add_u32 s47, s45, {L_U + 4096}
            v_add_u32 v1, s47, v10
            v_and_b32 v3, 16, v10
            v_and_b32 v15, 32, v10
            v_mul_u32_u24 v15, {(L_E - L_O) // 32}, v15
            v_add3_u32 v3, v3, v15, s45
            v_add_u32 v3, {L_O}, v3
            v_cmp_gt_u32 vcc, 32, v2
            s_add_u32 s47, s45, {L_O + 32}
            v_add_u32 v15, s47, v10
            v_cndmask_b32 v1, v3, v1, vcc
            v_mov_b32 v64, 0
            s_waitcnt vmcnt({vm.cnt('E')})""")
            for j in range(1, 4):
                a(f"v_mov_b32_dpp v{64+4*j}, v{ER+4*j-1} wave_ror:1 row_mask:0xf bank_mask:0xf")
            for j in range(4):
                a(f"v_mov_b32_dpp v{64+4*j}, v{ER+4*j+3} wave_shr:1 row_mask:0xf bank_mask:0xf")
            for j in range(4):
                b = 64 + 4 * j
                e = ER + 4 * j
                a(f"""v_alignbit_b32 v{b}, v{e}, v{b}, 16
                v_alignbit_b32 v{b+1}, v{e+1}, v{e}, 16
                v_alignbit_b32 v{b+2}, v{e+2}, v{e+1}, 16
                v_alignbit_b32 v{b+3}, v{e+3}, v{e+2}, 16""")
        if SA <= s < SA + 8: a2round(s - SA, L, s == 15)
        tr_end(a, s)
        w = ""
        if s in (0, SA - 1): w = " lgkmcnt(0)"
        if s < 15:
            a(f"s_waitcnt vmcnt({vm.cnt(f'd{s+1}')}){w}")
            a(tp(32 + s) + "\ns_barrier" + tp(s))
    assert pos[0] == len(ST)
    stamp(a, 3)
    OQ = L_F + 32 - L_N
    def qsig():
        a(f"v_mov_b32 v3, 6\ns_waitcnt vmcnt({vm.cnt(*[f'c{k}' for k in range(6)])})\nds_write_b32 v{FA}, v3 offset:{OQ}")
    def cdl():
        if SA < 16: words(0, "L_g1d", 242)
        stamp(a, 2)
        interleave(a, CDL, [], 0, vm)
    DR = max(OPT["dr"], 16 - SA)
    if SA == 16:
        words(0, "L_g1d", 242)
        for x in reads(0): a(x)
        interleave(a, LATE, [], 0, vm)
        if DR == 0: cdl()
        if OPT["gate"]:
            a(GRD); a('\n'.join(gate_chk(0)))
        if OPT["lprio"]: a(f"s_setprio {OPT['lprio']}")
        stamp(a, 4)
    if OPT["roll"]:
        assert SA == 16
        a("s_waitcnt lgkmcnt(0)")
        for m in mfmas(0)[:8]: a(m)
        a("s_mov_b32 s51, 0")
        code = {}
        main_ = a.l
        for r_, f_ in ((DR, cdl), (DR + 3, qsig)):
            if 0 < r_ < 8:
                a.l = []
                a.label(f"L_cs{r_}"); f_(); a(f"s_branch L_cr{r_ & 1}")
                OOL.extend(a.l); code[r_] = 1
        a.l = main_
        a.label("L_conv")
        for r in range(2):
            for r_ in code:
                if r_ & 1 == r: a(f"s_cmp_eq_u32 s51, {r_ >> 1}\ns_cbranch_scc1 L_cs{r_}")
            a.label(f"L_cr{r}")
            a2round(r, [], True, True)
        a("""s_add_u32 s51, s51, 1
        s_cmp_lt_u32 s51, 4
        s_cbranch_scc1 L_conv
        s_waitcnt lgkmcnt(0)""")
    for r in range(16 - SA, 8 if not OPT["roll"] else 0):
        if r == DR: cdl()
        if r == DR + 3: qsig()
        a2round(r, [], True)
    if DR >= 8: cdl()
    if OPT["lprio"] or OPT["lp2"]: a(f"s_setprio {OPT['lp2']}")
    stamp(a, 5)
    a("s_nop 6")
    for t in range(8):
        c = ACC + 4 * t
        a(f"""v_cvt_pk_bf16_f32 v{ACC+2*t}, v{c}, v{c+1}
        v_cvt_pk_bf16_f32 v{ACC+1+2*t}, v{c+2}, v{c+3}
        ds_write_b64 v{ZAD}, {V(ACC+2*t,2)} offset:{512*t}""")
    a(f"ds_write_b32 v{FA}, v{NON} offset:{L_F + 64 - L_N}")
    ZS, OS = 8, 12
    ZFP, ZLD, ZRD, OA, ZB, OB = 16, 17, 24, 21, 44, 36
    ZX, ZG, ZFS = 4, 5, 8
    def a3_setup():
        srd(a, ZS, "ws", 4 << 20, WS_ZT)
        srd(a, OS, "out", 16 << 20)
        a(f"""s_lshr_b32 s7, {ZM}, 2
        s_lshl_b32 s7, s7, 4
        s_add_u32 s7, s7, {ZN}
        s_lshl_b32 s7, s7, {4 + FSH}
        s_add_u32 s7, s7, {FL_Z}
        v_lshlrev_b32 v1, {FSH}, v12
        v_add_u32 v{ZFP}, s7, v1
        v_xor_b32 v1, v12, v13
        v_lshlrev_b32 v1, 4, v1
        v_lshl_add_u32 v3, v13, 14, v1
        s_lshl_b32 s47, {ZM}, 2
        s_add_u32 s47, s47, s6
        s_lshl_b32 s7, {ZN}, 10
        s_add_u32 s7, s7, s47
        s_lshl_b32 s7, s7, 8
        v_add_u32 v{ZLD}, s7, v3
        v_xor_b32 v{ZLD+1}, 64, v{ZLD}
        v_add_u32 v{ZLD+1}, {65536-1024}, v{ZLD+1}
        v_xor_b32 v{ZLD+2}, 128, v{ZLD}
        v_add_u32 v{ZLD+2}, {2*(65536-1024)}, v{ZLD+2}
        v_xor_b32 v{ZLD+3}, 192, v{ZLD}
        v_add_u32 v{ZLD+3}, {3*(65536-1024)}, v{ZLD+3}
        s_add_u32 s35, s45, {L_ZI}
        v_lshl_add_u32 v1, v12, 8, v1
        v_add_u32 v{ZRD}, s35, v1
        v_xor_b32 v{ZRD+1}, 64, v{ZRD}
        v_xor_b32 v{ZRD+2}, 128, v{ZRD}
        v_xor_b32 v{ZRD+3}, 192, v{ZRD}
        s_lshl_b32 s47, s47, 10
        s_add_u32 s47, s47, {ZN}
        s_lshl_b32 s47, s47, 8
        v_lshlrev_b32 v1, 13, v13
        v_lshl_add_u32 v1, v12, 4, v1
        v_add_u32 v{OA}, s47, v1
        v_bfe_u32 v1, v2, 2, 2
        v_lshlrev_b32 v1, 14, v1
        v_and_b32 v3, 3, v2
        v_lshl_add_u32 v1, v3, 7, v1
        v_lshl_add_u32 v1, v13, 4, v1
        s_lshl_b32 s7, s6, 10
        s_add_u32 s7, s7, {L_Z}
        v_add_u32 v{ZX}, s7, v1
        s_lshl_b32 s7, s34, 12
        v_add_u32 v{ZG}, s7, v10
        s_lshr_b32 s47, s34, 2
        s_lshl_b32 s7, s6, 8
        s_add_u32 s7, s7, s47
        s_lshl_b32 s7, s7, {FSH}
        s_add_u32 s7, s7, {FL_Z}
        v_lshl_add_u32 v{ZFS}, v12, 3, s7
        v_add_u32 v9, s39, v10
        v_add_u32 v11, 0xc000, v9""")
    def a3(k):
        if k == 0:
            a(f"s_waitcnt vmcnt({vm.cnt('z', 'q')}) lgkmcnt(0)")
            for i in range(4): a(f"ds_read_b128 {V(ZB+4*i,4)}, v{ZRD+i}")
        a(f"s_waitcnt lgkmcnt({0 if TRACE else 3-k})")
        for hf in range(2):
            idx = 4 * hf + k
            o = OB + 4 * hf
            for e in range(4):
                z, q = ZB + 4 * k + 2 * hf + (e >> 1), QL + 2 * idx + (e >> 1)
                if e & 1: a(f"v_and_b32 v1, 0xffff0000, v{z}\nv_and_b32 v{o+e}, 0xffff0000, v{q}")
                else: a(f"v_lshlrev_b32 v1, 16, v{z}\nv_lshlrev_b32 v{o+e}, 16, v{q}")
                a(f"v_mul_f32 v{o+e}, v{o+e}, v1")
            a(f"s_mov_b32 s7, {32768*idx}\nbuffer_store_dwordx4 {V(o,4)}, v{OA}, {S(OS)}, s7 offen{FLV[OPT['osa']]}")
            vm.add("st")
    A3 = not OPT["noa3"]
    a3_setup()
    if 5 <= DR < 8: qsig()
    if A3:
        words(64, "L_zd")
        for j in range(4):
            for ab in range(2):
                a(f"ds_read_b64_tr_b16 {V(ZB+4*j+2*ab,2)}, v{ZX} offset:{512*(j>>1) + 8*(8*(j&1)+ab)}")
        a("s_waitcnt lgkmcnt(0)")
        for j in range(4):
            a(f"buffer_store_dwordx4 {V(ZB+4*j,4)}, v{ZG}, {S(ZS)}, 0 offen offset:{1024*j} sc1")
        vm.add("zt", 4)
    if OPT["lp2"]: a("s_setprio 0")
    stamp(a, 6)
    paced(CR_[:OPT["pre"]], OPT["pw"])
    CR_ = CR_[OPT["pre"]:]
    if DR >= 8: qsig()
    if A3:
        a(f"""s_waitcnt vmcnt({vm.cnt('zt')})
        s_mov_b64 exec, {FEX}
        buffer_store_dwordx2 {V(NON,2)}, v{ZFS}, {S(FL)}, 0 offen sc1
        s_mov_b64 exec, -1""")
        vm.add("zf")
    if OPT["qk"] == 17:
        for x in QLD: a(x); vm.add("q")
    stamp(a, 7)
    stamp_dump(a, 0)
    assert OPT["zp"] <= OPT["zc"] <= OPT["za"] <= 15
    first = True
    for p_ in range(0, 16):
        b = p_ + 5
        w_ = K0 <= b < 16
        need = w_ or (CR_ and p_) or OPT["qk"] == 20 + p_ or (A3 and p_ in (OPT["zp"], OPT["zc"], OPT["za"]))
        if not need: continue
        if p_:
            a("s_mov_b32 s51, 0")
            a.label(f"L_p{p_}")
            a(f"""ds_read_b128 v[32:35], v{NA} offset:{L_F + 80 - L_N}
            s_add_u32 s51, s51, 1
            s_waitcnt lgkmcnt(0)
            v_min3_u32 v32, v32, v33, v34
            v_min_u32 v32, v32, v35
            s_cmp_gt_u32 s51, {SPIN * 16}
            s_cbranch_scc1 L_p{p_}_ok
            v_cmp_gt_u32 vcc, {p_}, v32
            s_cbranch_vccnz L_p{p_}""")
            a.label(f"L_p{p_}_ok")
        if first: stamp(a, 8)
        first = False
        if w_:
            a(f"v_mov_b32 v3, {b + 1}\ns_waitcnt vmcnt({vm.cnt(f'c{b}')})")
            sl = b % 6
            for i in range(4):
                o = 16384 * (sl % 3) + 8192 * (i >> 1) + 1024 * (i & 1)
                a(f"ds_write_b128 v{9 if sl < 3 else 11}, {V(CREG[b]+4*i,4)} offset:{o}")
            a(f"ds_write_b32 v{FA}, v3 offset:{L_F + 32 - L_N}")
            if b == 15: stamp(a, 9)
        if p_:
            paced(CR_[:OPT["per"]], OPT["pw"])
            CR_ = CR_[OPT["per"]:]
        if OPT["qk"] == 20 + p_:
            for x in QLD: a(x); vm.add("q")
        if A3 and p_ == OPT["zp"]:
            a(f"buffer_load_dwordx2 {V(PLL,2)}, v{ZFP}, {S(FL)}, 0 offen sc1")
            vm.add("zp")
        if A3 and p_ == OPT["zc"]:
            a(f"""s_waitcnt vmcnt({vm.cnt('zp')})
            v_cmp_eq_u32 vcc, v{PLL}, v{NON}
            v_cmp_eq_u32 s[48:49], v{PLL+1}, v{NON+1}
            s_mov_b32 m0, s35
            s_and_b64 s[48:49], s[48:49], vcc
            s_cmp_eq_u64 s[48:49], -1
            s_cbranch_scc1 L_zspin_go""")
            spin_flags(a, "L_zspin", PLL, NON, ZFP, FL)
            stamp(a, 10)
            for j in range(4):
                a(f"buffer_load_dwordx4 v{ZLD+j}, {S(ZS)}, 0 offen offset:{1024*j} sc1 lds")
            vm.add("z", 4)
        if A3 and p_ == OPT["za"]:
            for j in range(4): a3(j)
    assert not CR_
    stamp(a, 11)

def compute(a):
    HS, ES, DB, LD_, LR_, LI_, KV, FL, OS, DS = 8, 12, 16, 20, 24, 28, 68, 72, 76, 80
    AA, BA = 4, 8
    L, C2, P8, G128, L512 = 16, 24, 32, 40, 42
    LBK, PUB, HST, NA, FA = 56, 60, 61, 62, 63
    ACC, FR, XF, STG, XA, DSK, STA, KVG = 64, 128, 208, 224, 240, 242, 244, 248
    GR = 52
    KS, VS, SH = 8, 12, 68
    WRAW, WF, KR, VR, KT, AC, OUT = 128, 136, 140, 162, 178, 190, 224
    a(f"""v_and_b32 v12, 15, v2
    v_lshrrev_b32 v13, 4, v2
    s_lshr_b32 s7, s2, 3
    s_and_b32 s76, s7, 15           ; a_mt
    s_lshr_b32 s7, s7, 4
    s_and_b32 s77, s2, 7
    s_lshl_b32 s77, s77, 1
    s_add_u32 s77, s77, s7          ; a_nt
    s_lshl_b32 s7, s76, 2
    s_add_u32 s7, s7, s5
    s_lshl_b32 s7, s7, 16           ; t0*2048
    s_lshl_b32 s6, s77, 7
    s_add_u32 s7, s7, s6
    v_lshlrev_b32 v10, 14, v13
    v_lshl_add_u32 v10, v12, 3, v10
    v_add_u32 v10, s7, v10          ; k/v offset of row 0
    v_subrev_u32 v11, 0x1800, v10
    v_bfrev_b32 v9, 1
    v_cmp_gt_i32 vcc, 0, v11
    s_lshl_b32 s7, s77, 9
    v_lshlrev_b32 v15, 5, v12
    v_cndmask_b32 v11, v11, v9, vcc     ; halo offset
    v_add_u32 v9, s7, v15           ; shift offset
    s_mov_b32 s72, 4096
    s_mov_b32 s73, 8192
    s_mov_b32 s74, 12288
    s_lshl_b32 s6, s4, 2
    s_add_u32 s6, s6, s5
    s_lshl_b32 s6, s6, 4
    v_and_b32 v14, 3, v12
    v_and_b32 v1, 1, v13
    v_lshl_add_u32 v14, v1, 3, v14
    v_lshrrev_b32 v1, 1, v13
    v_lshl_add_u32 v14, v1, 2, v14
    v_add_u32 v14, s6, v14          ; channel
    v_lshlrev_b32 v44, 1, v14
    s_lshl_b32 s6, s4, 7
    v_lshlrev_b32 v1, 3, v12
    v_add_u32 v1, s6, v1""")
    stamp0(a, 2)
    a("s_waitcnt lgkmcnt(0)")
    stamp0(a, 3)
    SOFF = ["0", "s72", "s73", "s74"]
    srd(a, LD_, "logdt", 2048)
    srd(a, LR_, "Lre", 2048)
    srd(a, LI_, "Lim", 2048)
    a(f"""buffer_load_ushort v45, v44, {S(LD_)}, 0 offen
    buffer_load_ushort v46, v44, {S(LR_)}, 0 offen
    buffer_load_ushort v47, v44, {S(LI_)}, 0 offen""")
    stamp0(a, 4, 2)
    srd(a, KS, "k", 4 << 20)
    for i in range(8):
        a(f"buffer_load_dwordx2 {V(KR+6+2*i,2)}, v10, {S(KS)}, {SOFF[i>>1]} offen offset:{2048*(i&1)}{NT('k')}")
    for i in range(3):
        a(f"buffer_load_dwordx2 {V(KR+2*i,2)}, v11, {S(KS)}, {SOFF[i>>1]} offen offset:{2048*(i&1)}{NT('k')}")
    stamp0(a, 5, 2)
    srd(a, SH, "shift", 8192)
    a(f"buffer_load_dwordx4 {V(WRAW,4)}, v9, {S(SH)}, 0 offen")
    a(f"buffer_load_dwordx4 {V(WRAW+4,4)}, v9, {S(SH)}, 0 offen offset:16")
    srd(a, VS, "v", 4 << 20)
    for i in range(8):
        a(f"buffer_load_dwordx2 {V(VR+2*i,2)}, v10, {S(VS)}, {SOFF[i>>1]} offen offset:{2048*(i&1)}{NT('k')}")
    stamp0(a, 6, 2)
    if OPT["kfirst"]: a("s_barrier")
    srd(a, DS, "Dskip", 2048)
    a(f"""buffer_load_dwordx2 {V(DSK,2)}, v1, {S(DS)}, 0 offen
    s_lshl_b32 s7, s5, 2
    v_add_u32 v15, s7, v13
    v_sub_u32 v15, 15, v15
    v_xor_b32 v15, v15, v12
    v_lshlrev_b32 v15, 4, v15
    v_lshl_add_u32 v15, v12, 10, v15
    v_add_u32 v15, {L_ST}, v15
    v_lshrrev_b32 v3, 1, v12
    v_xor_b32 v3, v3, v13
    v_lshlrev_b32 v3, 4, v3
    v_lshl_add_u32 v4, v12, 7, v3
    v_xor_b32 v6, 64, v4
    v_add_u32 v5, 0x10000, v4
    v_add_u32 v7, 0x10000, v6
    s_lshl_b32 s6, s5, 12
    s_add_u32 s6, s6, 16384
    v_add_u32 v8, s6, v4
    v_add_u32 v9, s6, v5
    v_add_u32 v10, s6, v6
    v_add_u32 v11, s6, v7""")
    def unp(d, s, hi):
        return f"v_and_b32 v{d}, 0xffff0000, v{s}" if hi else f"v_lshlrev_b32 v{d}, 16, v{s}"
    def a1_k(c):
        for j in range(4):
            a(unp(WF + j, WRAW + 2 * c + (j >> 1), j & 1))
        for i in range(11):
            a(unp(KT + i, KR + 2 * i + (c >> 1), c & 1))
        for t in range(8):
            a(f"v_mul_f32 v{AC+8*c+t}, v{WF}, v{KT+t+3}")
        for j in range(1, 4):
            for t in range(8):
                a(f"v_fmac_f32 v{AC+8*c+t}, v{WF+j}, v{KT+t+3-j}")
    def a1_v(c):
        for t in range(8):
            a(unp(KT + t, VR + 2 * t + (c >> 1), c & 1))
        for t in range(8):
            a(f"v_mul_f32 v{AC+8*c+t}, v{AC+8*c+t}, v{KT+t}")
        o = OUT + 4 * c
        for i in range(4):
            a(f"v_cvt_pk_bf16_f32 v{o+i}, v{AC+8*c+7-2*i}, v{AC+8*c+6-2*i}")
        a(f"ds_write_b128 v15, {V(o,4)} offset:{256*c}")
    srd(a, DB, "dbg", 256)
    a(f"""s_or_b32 s6, s2, s5
    s_cmp_eq_u32 s6, 0
    s_cbranch_scc0 C_nonce_w
    s_memrealtime s[6:7]
    v_mov_b32 v1, 0
    s_waitcnt lgkmcnt(0)
    s_or_b32 s6, s6, 1
    v_mov_b32 v48, s6
    v_mov_b32 v49, s7
    s_mov_b64 exec, 1
    buffer_store_dwordx2 v[48:49], v1, {S(DB)}, 0 offen sc1
    s_mov_b64 exec, -1""")
    a.label("C_nonce_w")
    srd(a, HS, "ws", 8 << 20, WS_H)
    srd(a, ES, "ws", 1 << 18, WS_E)
    srd(a, KV, "ws", 4 << 20, WS_KVT)
    srd(a, FL, "ws", FL_SZ, WS_FLG)
    srd(a, OS, "out", 16 << 20)
    CR, CI = 24, 80
    srd(a, CR, "Cre", 2 << 20)
    srd(a, CI, "Cim", 2 << 20)
    rot1(a, 34, 35)
    a(f"""s_sub_u32 s34, s4, s34
    s_and_b32 s34, s34, 15          ; step of G1 that holds this tile's x columns
    s_lshl_b32 s6, s5, 12
    v_add_u32 v{XA}, s6, v4
    v_xor_b32 v{XA+1}, 64, v{XA}
    v_mov_b32 v{NA}, {L_N}
    s_lshr_b32 s7, s2, 3
    s_and_b32 s32, s7, 15           ; a_mt
    s_lshr_b32 s7, s7, 4
    s_and_b32 s33, s2, 7
    s_lshl_b32 s33, s33, 1
    s_add_u32 s33, s33, s7          ; a_nt
    s_mov_b32 s36, 16384
    s_mov_b32 s37, 32768
    s_mov_b32 s38, 49152
    ; staging read addresses / KVT offsets
    s_lshl_b32 s6, s5, 2
    v_xor_b32 v1, s6, v12
    v_lshlrev_b32 v1, 4, v1
    v_lshl_add_u32 v1, v13, 8, v1
    s_lshl_b32 s6, s5, 12
    s_add_u32 s6, s6, {L_ST}
    v_add_u32 v{STA}, s6, v1
    v_xor_b32 v{STA+1}, 16, v{STA}
    v_xor_b32 v{STA+2}, 32, v{STA}
    v_xor_b32 v{STA+3}, 48, v{STA}
    s_lshl_b32 s6, s33, 2
    s_add_u32 s6, s6, s5
    s_lshl_b32 s6, s6, 16           ; (64 a_nt + 16 w)*4096
    s_lshl_b32 s7, s32, 8
    s_sub_u32 s7, 3840, s7
    s_add_u32 s6, s6, s7
    v_lshlrev_b32 v1, 12, v13
    v_lshl_add_u32 v1, v12, 4, v1
    v_add_u32 v{KVG}, s6, v1
    s_lshl_b32 s6, s33, 2
    s_add_u32 s7, s6, s5
    s_lshl_b32 s7, s7, 4
    s_add_u32 s7, s7, s32
    s_lshl_b32 s20, s7, 3
    s_lshr_b32 s7, s32, 2
    s_add_u32 s7, s7, s6
    s_lshl_b32 s21, s7, 7
    s_lshl_b32 s7, s33, 4
    s_add_u32 s7, s7, s32
    s_lshl_b32 s7, s7, 2
    s_add_u32 s7, s7, s5
    s_lshl_b32 s22, s7, 12
    s_lshl_b32 s23, s5, 14
    s_add_u32 s23, s23, {L_U}
    ; look-back / publish / H offsets
    s_lshl_b32 s6, s3, 14
    v_lshlrev_b32 v1, 4, v14
    v_add_u32 v{PUB}, s6, v1
    v_lshrrev_b32 v1, 2, v12
    v_lshlrev_b32 v1, 14, v1
    v_sub_u32 v1, v{PUB}, v1
    v_subrev_u32 v{LBK}, 0x4000, v1
    v_subrev_u32 v{LBK+1}, 0x14000, v1
    v_subrev_u32 v{LBK+2}, 0x24000, v1
    v_subrev_u32 v{LBK+3}, 0x34000, v1
    v_cmp_gt_i32 s[40:41], 0, v{LBK}
    v_cmp_gt_i32 s[42:43], 0, v{LBK+1}
    v_cmp_gt_i32 s[44:45], 0, v{LBK+2}
    v_cmp_gt_i32 s[46:47], 0, v{LBK+3}
    s_lshl_b32 s6, s3, 4
    s_add_u32 s6, s6, s4
    s_lshl_b32 s6, s6, 15
    s_lshl_b32 s7, s5, 10
    s_add_u32 s6, s6, s7
    v_lshlrev_b32 v1, 4, v2
    v_add_u32 v{HST}, s6, v1
    s_lshl_b32 s7, s5, 2
    v_add_u32 v{FA}, s7, v{NA}
    s_mov_b32 s48, 0xaaaaaaaa
    s_mov_b32 s49, 0xaaaaaaaa
    s_mov_b32 s50, 0xcccccccc
    s_mov_b32 s51, 0xcccccccc
    s_mov_b32 s52, 0x000f000f
    s_mov_b32 s53, 0x000f000f""")
    for i in range(64):
        a(f"v_mov_b32 v{ACC+i}, 0")
    a("s_waitcnt vmcnt(22)")
    stamp0(a, 7, 2)
    a(f"""v_lshlrev_b32 v45, 16, v45
    v_lshlrev_b32 v46, 16, v46
    v_lshlrev_b32 v47, 16, v47
    v_mul_f32 v45, 0x3fb8aa3b, v45
    v_exp_f32 v45, v45
    s_nop 0
    v_cvt_pk_bf16_f32 v45, v45, v45
    v_lshlrev_b32 v45, 16, v45
    v_mul_f32 v52, v45, v46
    v_mul_f32 v53, v45, v47
    v_mul_f32 v52, 0x3fb8aa3b, v52
    v_exp_f32 v48, v52
    v_mul_f32 v53, 0.15915494, v53
    v_fract_f32 v53, v53
    v_cos_f32 v50, v53
    v_sin_f32 v51, v53
    s_nop 0
    v_mul_f32 v44, v48, v50
    v_mul_f32 v45, v48, v51
    v_add_f32 v48, -1.0, v44
    v_mul_f32 v49, v46, v46
    v_fmac_f32 v49, v47, v47
    v_rcp_f32 v49, v49
    v_mul_f32 v50, v48, v46
    v_fmac_f32 v50, v45, v47
    v_mul_f32 v51, v45, v46
    v_fma_f32 v51, -v48, v47, v51
    v_add_f32 v49, v49, v49
    v_mul_f32 v46, v50, v49
    v_mul_f32 v47, v51, v49
    v_lshlrev_b32 v54, 3, v12
    v_cvt_f32_u32 v54, v54              ; 8j
    v_lshrrev_b32 v55, 2, v12
    v_lshlrev_b32 v55, 7, v55
    v_cvt_f32_u32 v55, v55              ; 128 (j>>2)""")
    DM = "row_mask:0xf bank_mask:0xf"
    def qb(i): return f"quad_perm:[{i},{i},{i},{i}] {DM}"
    for i in range(4):
        a(f"""v_mov_b32_dpp v{L+i}, v44 {qb(i)}
        v_mov_b32_dpp v{L+4+i}, v45 {qb(i)}
        v_mov_b32_dpp v{C2+i}, v46 {qb(i)}
        v_mov_b32_dpp v{C2+4+i}, v47 {qb(i)}""")
    def powd(dr, di, m0_, m1_):
        a(f"""{m0_}
        {m1_}
        v_exp_f32 v48, v48
        v_fract_f32 v49, v49
        v_cos_f32 v50, v49
        v_sin_f32 v51, v49
        s_nop 0
        v_mul_f32 v{dr}, v48, v50
        v_mul_f32 v{di}, v48, v51""")
    for i in range(4):
        powd(P8 + i, P8 + 4 + i, f"v_mul_f32_dpp v48, v52, v54 {qb(i)}", f"v_mul_f32_dpp v49, v53, v54 {qb(i)}")
    powd(G128, G128 + 1, "v_mul_f32 v48, v52, v55", "v_mul_f32 v49, v53, v55")
    powd(L512, L512 + 1, "v_mul_f32 v48, 0x44000000, v52", "v_mul_f32 v49, 0x44000000, v53")
    def reads(s, h):
        sl = SLOT[s]
        grp, so = divmod(sl, 65536)
        f = FR + 40 * h
        R = [f"ds_read_b128 {V(f+32+4*p,4)}, v{BA+2*h+grp} offset:{so+2048*p}" for p in range(2)]
        R += [f"ds_read_b128 {V(f+4*i,4)}, v{AA+2*h+grp} offset:{so+2048*i}" for i in range(8)]
        return R
    def mfmas(h):
        f = FR + 40 * h
        M = []
        for r in range(8):
            for p in ((0, 1) if not (r & 1) else (1, 0)):
                c = ACC + 8 * r + 4 * p
                M.append(f"v_mfma_f32_16x16x32_bf16 {V(c,4)}, {V(f+32+4*p,4)}, {V(f+4*r,4)}, {V(c,4)}")
        return M
    stamp0(a, 4)
    a("s_waitcnt vmcnt(9)")
    stamp0(a, 5)
    for c in range(4): a1_k(c)
    a("s_waitcnt vmcnt(1)")
    stamp0(a, 6)
    for c in range(4): a1_v(c)
    stamp0(a, 7)
    a("s_waitcnt lgkmcnt(0)\ns_barrier")
    stamp(a, 1)
    for x in reads(0, 0): a(x)
    if OPT["prioc"]: a(f"s_setprio {OPT['prioc']}")
    for i in range(4):
        a(f"ds_read_b128 {V(STG+4*i,4)}, v{STA+i} offset:{1024*i}")
    KP, KA = 244, 246
    def ool_spin(lbl, load, test):
        o_ = Asm()
        o_.label(lbl)
        o_("s_mov_b32 s39, 0")
        o_.label(lbl + "_s")
        o_(f"""{load}
        s_add_u32 s39, s39, 1
        s_waitcnt vmcnt(0)
        s_cmp_gt_u32 s39, {SPIN}
        s_cbranch_scc1 {lbl}_r
        {test}
        s_cbranch_scc0 {lbl}_s
        s_branch {lbl}_r""")
        OOL.extend(o_.l)
        a(f"{test}\ns_cbranch_scc0 {lbl}")
        a.label(lbl + "_r")
    NLD = f"buffer_load_dwordx2 {V(GR+2,2)}, off, {S(DB)}, 0 sc1"
    KPL = f"buffer_load_dwordx2 {V(KP,2)}, v{KA}, {S(FL)}, s21 offen sc1"
    def hook(hs):
        if hs == 0:
            for i in range(4):
                a(f"buffer_store_dwordx4 {V(STG+4*i,4)}, v{KVG}, {S(KV)}, {['0','s36','s37','s38'][i]} offen sc1")
            a(NLD)
            a(f"v_lshlrev_b32 v{KA}, 3, v12\nv_lshlrev_b32 v{KA+1}, 4, v2")
        if hs == OPT["fs"]:
            a("s_waitcnt vmcnt(0)")
            ool_spin("C_non", NLD, f"v_readfirstlane_b32 s7, v{GR+2}\ns_cmp_lg_u32 s7, 0")
            a(f"""s_mov_b64 exec, 1
            buffer_store_dwordx2 {V(GR+2,2)}, off, {S(FL)}, s20 sc1
            ds_write_b64 v{NA}, {V(GR+2,2)}
            s_mov_b64 exec, -1""")
        if hs == OPT["ps"]: a(KPL)
        if hs == OPT["pc"]:
            assert hs >= 2 * RFREE
            a("s_waitcnt vmcnt(0)")
            ool_spin("C_kvp", KPL, f"""v_cmp_eq_u32 vcc, v{KP}, v{GR+2}
            v_cmp_eq_u32 s[54:55], v{KP+1}, v{GR+3}
            s_mov_b32 m0, s23
            s_and_b64 s[54:55], s[54:55], vcc
            s_cmp_eq_u64 s[54:55], -1""")
            for j in range(4):
                a(f"buffer_load_dwordx4 v{KA+1}, {S(KV)}, s22 offen offset:{1024*j} sc1 lds")
        if hs == OPT["kl"]: a("s_waitcnt vmcnt(0)")
    assert 0 < OPT["fs"] < OPT["ps"] < OPT["pc"] < OPT["kl"] and OPT["kl"] & 1
    for s in range(16):
        a(f"s_cmp_eq_u32 s34, {s}\ns_waitcnt lgkmcnt(0)\ns_cbranch_scc1 C_x{s}")
        a.label(f"C_x{s}_r")
        o_ = Asm()
        o_.label(f"C_x{s}")
        o_(f"v_add_u32 v{XA}, {SLOT[s]}, v{XA}\nv_add_u32 v{XA+1}, {SLOT[s]}, v{XA+1}")
        for t in range(2):
            for h in range(2):
                o_(f"ds_read_b128 {V(XF+8*t+4*h,4)}, v{XA+h} offset:{2048*t}")
        o_(f"s_branch C_x{s}_r")
        OOL.extend(o_.l)
        hook(2 * s)
        interleave(a, mfmas(0), reads(s, 1), 1)
        hook(2 * s + 1)
        a("s_waitcnt lgkmcnt(0)")
        if s < 15: a("s_barrier")
        M = mfmas(1)
        if s == 15:
            a("v_mov_b32 v3, 1\nv_mov_b32 v15, 2")
            cl = f"ds_write_b32 v{FA}, v3 offset:{L_F + 48 - L_N}"
            if OPT["gate"] and SA == 16: a(cl)
            elif OPT["gate"]: M[8] += "\n" + cl
            a(f"ds_write_b32 v{FA}, v{GR+2} offset:{L_F - L_N}")
        interleave(a, M, reads(s + 1, 0) if s < 15 else [], 1)
    stamp(a, 2)
    a("s_nop 3")
    SC = [False]
    def pk(op, d, x, y, c=None, neg=False):
        if SC[0]:
            for i in range(2):
                n = "-" if neg else ""
                if c is None: a(f"v_mul_f32 v{d+i}, {n}v{x+i}, v{y+i}")
                elif c == d and not neg: a(f"v_fmac_f32 v{d+i}, v{x+i}, v{y+i}")
                else: a(f"v_fma_f32 v{d+i}, {n}v{x+i}, v{y+i}, v{c+i}")
            return
        n = ""
        if neg: n = " neg_lo:[1,0,0] neg_hi:[1,0,0]" if c is not None else " neg_lo:[1,0] neg_hi:[1,0]"
        if c is None: a(f"v_pk_mul_f32 {V(d,2)}, {V(x,2)}, {V(y,2)}{n}")
        else: a(f"v_pk_fma_f32 {V(d,2)}, {V(x,2)}, {V(y,2)}, {V(c,2)}{n}")
    def cm4(dr, di, k, xr, xi, cr=None, ci=None, s=(0, 0, 1, 0)):
        for h in (0, 2):
            pk("f", dr + h, k + h, xr + h, None if cr is None else cr + h, s[0])
            pk("f", di + h, k + h, xi + h, None if ci is None else ci + h, s[1])
        for h in (0, 2):
            pk("f", dr + h, k + 4 + h, xi + h, dr + h, s[2])
            pk("f", di + h, k + 4 + h, xr + h, di + h, s[3])
    def Ur(r): return ACC + 8 * r
    def Ui(r): return ACC + 8 * r + 4
    EB = [128, 136]
    W, PL, SH_, MU, AC_, MM, U0, PK = 144, 152, 168, 176, 184, 192, 200, 128
    CPE = OPT["cpe"]
    if CPE:
        assert OPT["shsc"] and OPT["lbp"] == 2 and OPT["nh"] == 8 and OPT["ncb"] == 2 and CPE <= min(4, OPT["ncc"])
        PL, SH_, AC_, MM, U0 = 24, 144, 152, 136, 48
    e = Ur(0)
    for r in range(1, 8):
        d = EB[r & 1]
        cm4(d, d + 4, L, e, e + 4, Ur(r), Ui(r))
        e = d
    for i in range(4):
        a(f"""v_mul_f32_dpp v{W+i}, v{P8+i}, v{e+i} row_mirror {DM}
        v_mul_f32_dpp v{W+4+i}, v{P8+i}, v{e+4+i} row_mirror {DM}""")
    for i in range(4):
        a(f"""v_fmac_f32_dpp v{W+i}, -v{P8+4+i}, v{e+4+i} row_mirror {DM}
        v_fmac_f32_dpp v{W+4+i}, v{P8+4+i}, v{e+i} row_mirror {DM}""")
    for i in (0, 4, 1, 5, 2, 6, 3, 7):
        a(f"v_add_f32_dpp v{W+i}, v{W+i}, v{W+i} quad_perm:[1,0,3,2] {DM}")
    for i in range(4):
        a(f"v_cndmask_b32 v{44+i}, v{W+2*i}, v{W+2*i+1}, s[48:49]")
    for i in range(4):
        if i == 0: a("s_nop 0")
        a(f"v_add_f32_dpp v{44+i}, v{44+i}, v{44+i} quad_perm:[2,3,0,1] {DM}")
    a(f"""v_cndmask_b32 v{GR}, v44, v45, s[50:51]
    v_cndmask_b32 v{GR+1}, v46, v47, s[50:51]
    s_nop 0
    v_add_f32_dpp v{GR}, v{GR}, v{GR} row_ror:4 {DM}
    v_add_f32_dpp v{GR+1}, v{GR+1}, v{GR+1} row_ror:4 {DM}
    s_nop 0
    v_add_f32_dpp v{GR}, v{GR}, v{GR} row_ror:8 {DM}
    v_add_f32_dpp v{GR+1}, v{GR+1}, v{GR+1} row_ror:8 {DM}
    s_mov_b64 exec, s[52:53]
    buffer_store_dwordx4 {V(GR,4)}, v{PUB}, {S(ES)}, 0 offen sc1
    s_mov_b64 exec, -1""")
    CAD = 244
    def csetup():
        a(f"""s_and_b32 s7, s3, {12 * OPT['xrot']}
        s_add_u32 s7, s7, s4
        s_and_b32 s36, s7, 15
        v_lshrrev_b32 v1, 3, v2
        v_and_b32 v44, 7, v2
        v_xor_b32 v44, v44, v13
        v_lshlrev_b32 v44, 4, v44
        v_lshl_add_u32 v44, v1, 13, v44
        s_lshl_b32 s7, s4, 6
        s_add_u32 s7, s7, s5
        s_lshl_b32 s7, s7, 11
        v_add_u32 v{CAD}, s7, v44
        v_xor_b32 v{CAD+1}, 64, v{CAD}
        v_add_u32 v{CAD+1}, {65536-1024}, v{CAD+1}
        v_xor_b32 v{CAD+2}, 32, v{CAD}
        v_xor_b32 v{CAD+3}, 32, v{CAD+1}
        s_lshl_b32 s20, s36, 7
        s_and_b32 s22, s20, 1024
        s_xor_b32 s23, s22, 1024
        s_lshl_b32 s21, s5, 11""")
    def ldC(k, r=None):
        if OPT["hord"]: a(f"s_add_u32 s7, s20, {128*k}\ns_and_b32 s7, s7, 1023\ns_or_b32 s7, s7, s{22 + (k >> 3)}")
        else: a(f"s_add_u32 s7, s20, {128*k}\ns_and_b32 s7, s7, 2047")
        for j in range(4):
            tail = f"v{CAD+j}, {S(CI if j & 2 else CR)}, s7 offen offset:{1024*(j&1)}"
            if r is None:
                if not j & 1: a(f"s_add_u32 m0, s21, {16384*k + 4096*j}\ns_nop 0")
                a(f"buffer_load_dwordx4 {tail} lds")
            else: a(f"buffer_load_dwordx4 {V(r+4*j,4)}, {tail}")
    def wchk(off, t=56):
        a(f"""ds_read_b128 v[{t}:{t+3}], v{NA} offset:{L_F + off - L_N}
        s_waitcnt lgkmcnt(0)
        v_xor_b32 v{t}, v{t}, v{GR+2}
        v_xor_b32 v{t+1}, v{t+1}, v{GR+2}
        v_xor_b32 v{t+2}, v{t+2}, v{GR+2}
        v_xor_b32 v{t+3}, v{t+3}, v{GR+2}
        v_or3_b32 v{t}, v{t}, v{t+1}, v{t+2}
        v_or_b32 v{t}, v{t}, v{t+3}
        v_cmp_ne_u32 vcc, 0, v{t}""")
    def g1done():
        assert SLOT[15] == 65536
        a("s_mov_b32 s39, 0")
        a.label("C_g1d")
        wchk(0, 44)
        a(f"""s_add_u32 s39, s39, 1
        s_cmp_gt_u32 s39, {SPIN * 4}
        s_cbranch_scc1 C_g1d_ok
        s_cbranch_vccnz C_g1d""")
        a.label("C_g1d_ok")
    def lbpoll():
        for j in range(4):
            a(f"buffer_load_dwordx4 {V(PL+4*j,4)}, v{LBK+j}, {S(ES)}, 0 offen sc1")
    if OPT["lbp"] == 0: lbpoll()
    GO = f"ds_write_b32 v{FA}, v15 offset:{L_F + 48 - L_N}"
    if OPT["shsc"]:
        SC[0] = True
        if OPT["gate"]: a(GO)
    if OPT["ccd"] == 2:
        csetup(); g1done()
        for t in ([] if OPT["d15"] else [14]) + [15]:
            for k in (SLOT[t] // 16384, SLOT[t] // 16384 + 1): ldC(k)
    EREG = [160, 176, 192, 224]
    if CPE:
        if OPT["ccd"] != 2: csetup()
        for i in range(CPE - OPT["cpw"]): ldC(6 + i, EREG[i])
    if OPT["lbp"] == 1: lbpoll()
    stamp(a, 3)
    F = EB[0]
    assert e == EB[1]
    for i in range(8):
        a(f"v_mov_b32_dpp v{F+i}, v{e+i} row_shr:1 {DM} bound_ctrl:0")
    for sft in (1, 2, 4, 8):
        if SC[0]:
            if sft == 1: a("s_nop 0")
            for i in range(8):
                a(f"v_mov_b32_dpp v{SH_+i}, v{F+i} row_shr:{sft} {DM} bound_ctrl:0")
            nb = f"row_newbcast:{sft} {DM}"
            for i in range(4): a(f"v_fmac_f32_dpp v{F+i}, v{P8+i}, v{SH_+i} {nb}")
            for i in range(4): a(f"v_fmac_f32_dpp v{F+4+i}, v{P8+i}, v{SH_+4+i} {nb}")
            for i in range(4): a(f"v_fmac_f32_dpp v{F+i}, -v{P8+4+i}, v{SH_+4+i} {nb}")
            for i in range(4): a(f"v_fmac_f32_dpp v{F+4+i}, v{P8+4+i}, v{SH_+i} {nb}")
            continue
        for h in range(0, 8, 2):
            a(f"v_mov_b64_dpp {V(MU+h,2)}, {V(P8+h,2)} row_newbcast:{sft} {DM}")
        for i in (0, 1, 4, 5, 2, 3, 6, 7):
            a(f"v_mov_b32_dpp v{SH_+i}, v{F+i} row_shr:{sft} {DM} bound_ctrl:0")
        cm4(F, F + 4, MU, SH_, SH_ + 4, F, F + 4)
    for i in range(CPE - OPT["cpw"], CPE): ldC(6 + i, EREG[i])
    cm4(AC_, AC_ + 4, C2, F, F + 4, s=(0, 1, 1, 1))
    cm4(MM, MM + 4, C2, P8, P8 + 4)
    def U2(r): return U0 if r == 0 else Ur(r - 1)
    for r in range(8):
        for h in (0, 2):
            pk("m", U2(r) + h, C2 + h, Ur(r) + h)
        for h in (0, 2):
            pk("f", U2(r) + h, C2 + 4 + h, Ui(r) + h, U2(r) + h, True)
        for h in (0, 2):
            pk("m", Ui(r) + h, C2 + h, Ui(r) + h, None, True)
        for h in (0, 2):
            pk("f", Ui(r) + h, C2 + 4 + h, Ur(r) + h, Ui(r) + h, True)
    SC[0] = False
    if OPT["gate"] == 1 and not OPT["shsc"]: a(GO)
    if OPT["ccd"] != 2 and not CPE: csetup()
    if OPT["ccd"] == 1: g1done()
    if OPT["lbp"] == 2: lbpoll()
    stamp(a, 4)
    a("s_mov_b32 s39, 0")
    a.label("C_chk")
    a("s_waitcnt vmcnt(0)")
    for j in range(4):
        b = PL + 4 * j
        a(f"""v_cmp_eq_u32 vcc, v{b+2}, v{GR+2}
        v_cmp_eq_u32 s[54:55], v{b+3}, v{GR+3}
        s_and_b64 s[54:55], s[54:55], vcc
        s_or_b64 s[{56+2*j}:{57+2*j}], s[54:55], s[{40+2*j}:{41+2*j}]""")
    a(f"""s_and_b64 s[56:57], s[56:57], s[58:59]
    s_and_b64 s[60:61], s[60:61], s[62:63]
    s_and_b64 s[56:57], s[56:57], s[60:61]
    s_cmp_eq_u64 s[56:57], -1
    s_cbranch_scc1 C_ok
    s_add_u32 s39, s39, 1
    s_cmp_gt_u32 s39, {SPIN}
    s_cbranch_scc1 C_ok""")
    for j in range(4):
        a(f"buffer_load_dwordx4 {V(PL+4*j,4)}, v{LBK+j}, {S(ES)}, 0 offen sc1")
    a("s_branch C_chk")
    a.label("C_ok")
    if OPT["gate"] == 1: a(f"ds_write_b32 v{FA}, v3 offset:{L_F + 48 - L_N}")
    stamp(a, 5)
    cmul(a, PL + 8, PL + 12, L512, PL + 8)
    cmul(a, PL + 4, PL + 8, L512, PL + 4)
    cmul(a, PL, PL + 4, L512, PL)
    cmul(a, 44, PL, G128)
    a(f"""s_nop 0
    v_add_f32_dpp v44, v44, v44 row_ror:4 {DM}
    v_add_f32_dpp v45, v45, v45 row_ror:4 {DM}
    s_nop 0
    v_add_f32_dpp v44, v44, v44 row_ror:8 {DM}
    v_add_f32_dpp v45, v45, v45 row_ror:8 {DM}
    s_nop 0""")
    for i in range(4):
        a(f"v_mov_b32_dpp v{SH_+i}, v44 {qb(i)}\nv_mov_b32_dpp v{SH_+4+i}, v45 {qb(i)}")
    cm4(AC_, AC_ + 4, MM, SH_, SH_ + 4, AC_, AC_ + 4, s=(0, 1, 1, 1))
    pr, pi = AC_, AC_ + 4
    def hout(r):
        o = PK + 4 * r
        a(f"""v_permlane32_swap_b32 v{o}, v{o+2}
        v_permlane32_swap_b32 v{o+1}, v{o+3}
        s_mov_b32 s6, {4096*r}
        buffer_store_dwordx4 {V(o,4)}, v{HST}, {S(HS)}, s6 offen sc1""")
    for r in range(8):
        cm4(U2(r), Ui(r), L, pr, pi, U2(r), Ui(r), s=(0, 0, 0, 1))
        pr, pi = U2(r), Ui(r)
        if r: hout(r - 1)
        o = PK + 4 * r
        a(f"""v_cvt_pk_bf16_f32 v{o}, v{pr}, v{pr+1}
        v_cvt_pk_bf16_f32 v{o+2}, v{pi}, v{pi+1}
        v_cvt_pk_bf16_f32 v{o+1}, v{pr+2}, v{pr+3}
        v_cvt_pk_bf16_f32 v{o+3}, v{pi+2}, v{pi+3}""")
    a("s_nop 0")
    hout(7)
    if OPT["gate"]: a(GO)
    stamp(a, 6)
    CA, CB, HA, OA2, HFP, PLL = 4, 8, 48, 50, 51, 248
    NCB = OPT['ncb']
    NH = OPT['nh']
    CD = NCB // 2
    assert OPT['hd'] < NH
    ACC, HR, CF, DG = 16, 64, 64 + 8 * NH, 64
    NCC = OPT["ncc"]
    PREG = sorted([CF + 16 * NCB + 16 * i for i in range(NCC)], key=lambda r: r == XF)
    assert (not PREG or max(PREG) + 16 <= 240) and CF + 16 * NCB <= XF and (XF - CF) % 16 == 0
    vm = VM()
    vm.add("st")
    assert PREG[:CPE] == EREG[:CPE] and CPE + OPT["cpl"] <= NCC
    NPRE = NCC - OPT["cpl"]
    if OPT["ccd"] == 1:
        for k in (SLOT[15] // 16384, SLOT[15] // 16384 + 1):
            ldC(k); vm.add("cd", 4)
    for i in range(CPE, NPRE):
        if PREG[i] != XF:
            ldC(6 + i, PREG[i]); vm.add(f"C{i}", 4)
    CW = 52
    a(f"""v_lshlrev_b32 v1, 4, v2
    v_add_u32 v{CW}, s21, v1
    v_add_u32 v{CW+1}, 0xc000, v{CW}""")
    a(f"""v_lshrrev_b32 v1, 1, v13
    v_lshl_add_u32 v{CB}, v1, 13, v4
    v_xor_b32 v{CB+1}, 32, v{CB}
    v_xor_b32 v{CB+2}, 64, v{CB}
    v_xor_b32 v{CB+3}, 96, v{CB}
    s_lshl_b32 s6, s3, 6
    s_add_u32 s6, s6, s5
    s_lshl_b32 s6, s6, 13
    v_lshlrev_b32 v1, 4, v2
    v_add_u32 v{HA}, s6, v1
    v_add_u32 v{HA+1}, 4096, v{HA}
    s_lshl_b32 s6, s6, 1                ; (128 mt + 2 w) * 8192
    s_lshl_b32 s7, s4, 8
    s_add_u32 s6, s6, s7
    s_add_u32 s6, s6, 4096
    v_lshlrev_b32 v{OA2}, 18, v13
    v_lshl_add_u32 v{OA2}, v12, 4, v{OA2}
    v_add_u32 v{OA2}, s6, v{OA2}          ; out offset
    v_lshlrev_b32 v1, 1, v13
    v_sub_u32 v1, v12, v1           ; n - 2g = 8h + e
    v_cmp_eq_u32 s[40:41], 0, v1
    v_cmp_eq_u32 s[42:43], 1, v1
    v_cmp_eq_u32 s[44:45], 8, v1
    v_cmp_eq_u32 s[46:47], 9, v1
    v_and_b32 v56, 0xffff, v{DSK}
    v_and_b32 v57, 0xffff0000, v{DSK}
    v_and_b32 v58, 0xffff, v{DSK+1}
    v_and_b32 v59, 0xffff0000, v{DSK+1}
    s_lshl_b32 s7, s3, 13
    s_add_u32 s7, s7, {FL_H}
    v_lshrrev_b32 v1, 2, v2
    v_xor_b32 v3, s36, v1
    v_add_u32 v1, s36, v1
    v_and_b32 v1, {7 if OPT["hord"] else 15}, v1
    v_and_b32 v3, {8 if OPT["hord"] else 0}, v3
    v_or_b32 v1, v1, v3
    v_lshlrev_b32 v1, {OPT['hsh']}, v1
    v_add_u32 v{HFP}, s7, v1
    s_lshl_b32 s6, s4, {OPT['hsh']}
    s_add_u32 s6, s6, s7
    v_lshl_add_u32 v3, v12, 3, s6
    s_lshl_b32 s38, s36, 15
    s_and_b32 s30, s38, 0x40000
    s_xor_b32 s31, s30, 0x40000
    s_xor_b32 s35, s38, 0x40000
    s_lshl_b32 s6, s3, 19
    s_lshl_b32 s7, s5, 13
    s_add_u32 s6, s6, s7
    v_lshlrev_b32 v1, 7, v2
    v_add_u32 v60, s6, v1               ; touch offset
    s_mov_b32 s34, 1
    s_mov_b32 s37, 0""")
    for b in range(4):
        for h in range(2):
            for r in range(4):
                d = DG + 8 * b + 4 * h + r
                if (r & 1) == (b >> 1):
                    m = 40 + 4 * h + 2 * (r >> 1)
                    a(f"v_cndmask_b32 v{d}, 0, v{56+b}, s[{m}:{m+1}]")
                else:
                    a(f"v_mov_b32 v{d}, 0")
    for i in range(4): a(f"v_add_u32 v{CA+i}, 0xc000, v{CB+i}")
    for h in range(2):
        for t in range(2):
            for b in range(4):
                c = ACC + 16 * t + 4 * b
                a(f"v_mfma_f32_16x16x32_bf16 {V(c,4)}, {V(XF+8*t+4*h,4)}, {V(DG+8*b+4*h,4)}, {V(c,4) if h else 0}")
    PROG = OPT["prog"]
    assert not (PROG and OPT["xrot"])
    PR = 240
    if XF in PREG[:NPRE]:
        ldC(6 + NCC - 1, XF); vm.add(f"C{NCC-1}", 4)
    def poll(r): return f"buffer_load_dwordx2 {V(r,2)}, v{HFP}, {S(FL)}, 0 offen sc1"
    def peval(r):
        return f"""v_cmp_eq_u32 vcc, v{r}, v{GR+2}
        v_cmp_eq_u32 s[54:55], v{r+1}, v{GR+3}
        s_nop 0
        s_and_b64 s[54:55], s[54:55], vcc
        s_or_b32 s54, s54, 15
        s_ff0_i32_b64 s7, s[54:55]
        s_lshr_b32 s7, s7, 2
        s_max_u32 s37, s37, s7""".split("\n")
    nt_ = [0]
    def htouch():
        if not OPT["ht"]: return ""
        lbl = f"C2_t{nt_[0]}"; nt_[0] += 1
        o_ = Asm()
        o_.label(lbl)
        o_(f"""s_mov_b32 s34, 0
        buffer_load_dword v61, v60, {S(HS)}, s35 offen sc1
        {f"buffer_load_dword v61, v60, {S(HS)}, s35 offen offset:64 sc1" if OPT["ht"] == 1 else ""}
        s_branch {lbl}_r""")
        OOL.extend(o_.l)
        return f"\ns_and_b32 s7, s55, s34\ns_cbranch_scc1 {lbl}\n{lbl}_r:"
    def hchk(b):
        lbl = f"C2_h{b}"
        o_ = Asm()
        o_.label(lbl)
        o_("s_mov_b32 s39, 0")
        o_.label(lbl + "_s")
        o_(f"""{poll(PLL)}
        s_add_u32 s39, s39, 1
        s_waitcnt vmcnt(0)
        s_cmp_gt_u32 s39, {SPIN}
        s_cbranch_scc1 {lbl}_r""")
        o_("\n".join(peval(PLL)))
        o_(f"""s_cmp_gt_u32 s37, {b}
        s_cbranch_scc0 {lbl}_s
        s_branch {lbl}_r""")
        OOL.extend(o_.l)
        return f"s_cmp_gt_u32 s37, {b}\ns_cbranch_scc0 {lbl}\n{lbl}_r:"
    if OPT["spr"] != 3: a(f"s_setprio {OPT['spr']}")
    if PROG:
        a(poll(PR)); vm.add("p0")
    a(f"s_waitcnt vmcnt({vm.cnt('st')})\nds_write_b32 v{FA}, v{GR+2} offset:{L_F + 16 - L_N}")
    wchk(16)
    a(f"""s_mov_b32 s39, 0
    s_cbranch_vccnz C_nofl
    s_mov_b64 exec, {(1 << min(16, 1 << (OPT['hsh'] - 3))) - 1}
    buffer_store_dwordx2 {V(GR+2,2)}, v3, {S(FL)}, 0 offen sc1
    s_mov_b64 exec, -1""")
    if PROG:
        a("s_branch C_own")
        a.label("C_nofl")
        wchk(16)
        a(f"""s_add_u32 s39, s39, 1
        s_cmp_gt_u32 s39, {SPIN * 4}
        s_cbranch_scc1 C_own
        s_cbranch_vccnz C_nofl""")
        a.label("C_own")
    else:
        a.label("C_nofl")
    stamp(a, 7)
    stamp_dump(a, 0)
    if not PROG:
        for i in range(NPRE, NCC):
            ldC(6 + i, PREG[i]); vm.add(f"C{i}", 4)
        spin_flags(a, "C_hspin", PLL, GR + 2, HFP, FL)
    HD = OPT["hd"]
    SKB = OPT["skb"]
    KS, HALF, CF2 = 64 - 4 * SKB, 2 * SKB, 160
    assert not SKB or (CD == 1 and OPT["hord"] and OPT["za"] <= KS // 4 and SKB <= 4)
    def frag(n):
        if n < KS: return [(0, n), (1, n)]
        t, p_ = divmod(n - KS, HALF)
        return [(t, KS + 2 * p_), (t, KS + 2 * p_ + 1)]
    def ogrp(t, i, o):
        x = "\n".join(f"v_mov_b32 v{o+b}, v{ACC+16*t+4*b+i}" for b in range(4))
        y = f"s_mov_b32 s6, {(8*i+t)*8192}"
        if 4 * t + i >= OPT["nob"]: y += f"\nbuffer_store_dwordx4 {V(o,4)}, v{OA2}, {S(OS)}, s6 offen{FLV[OPT['osb']]}"
        return x, y
    def hld(k):
        if k >= KS:
            return [f"buffer_load_dwordx4 {V(HR + 8*(k%NH) + 4*i, 4)}, v{HA+t}, {S(HS)}, s{40 + ((kk - KS) >> 2)} offen offset:{1024*(kk&3)} sc1" for i, (t, kk) in enumerate(frag(k))]
        if k == KS - 1:
            L_ = [f"buffer_load_dwordx4 {V(HR + 8*(k%NH) + 4*t, 4)}, v{HA+t}, {S(HS)}, s38 offen offset:3072 sc1" for t in range(2)]
            for i in range(SKB): L_[1] += f"\ns_add_u32 s{40+i}, s38, {32768*(i+1)}\ns_and_b32 s{40+i}, s{40+i}, 0x3ffff\ns_or_b32 s{40+i}, s{40+i}, s31"
            return L_
        L_ = [f"buffer_load_dwordx4 {V(HR + 8*(k%NH) + 4*t, 4)}, v{HA+t}, {S(HS)}, s38 offen offset:{1024*(k&3)} sc1" for t in range(2)]
        if k & 3 == 3 and OPT["hord"]: L_[1] += f"\ns_add_u32 s38, s38, 32768\ns_and_b32 s38, s38, 0x3ffff\ns_or_b32 s38, s38, s{30 + ((k + 1) >> 5 & 1)}"
        elif k & 3 == 3: L_[1] += "\ns_add_u32 s38, s38, 32768\ns_and_b32 s38, s38, 0x7ffff"
        return L_
    def crd(k):
        if k >= KS:
            L_ = []
            for i, (t, kk) in enumerate(frag(k)):
                sl = (kk >> 2) % 6
                L_ += [f"ds_read_b128 {V(CF2 + 32*(k&1) + 16*i + 4*b, 4)}, v{(CB if sl < 3 else CA)+(kk&3)} offset:{16384*(sl%3) + 2048*b}" for b in range(4)]
            return L_
        sl = (k >> 2) % 6
        return [f"ds_read_b128 {V(CF + 16*(k%NCB) + 4*b, 4)}, v{(CB if sl < 3 else CA)+(k&3)} offset:{16384*(sl%3) + 2048*b}" for b in range(4)]
    OP, OQ = L_F + 80 - L_N, L_F + 32 - L_N
    def cnt_chk(lbl, r, off, need):
        test = f"""v_min3_u32 v{r}, v{r}, v{r+1}, v{r+2}
        v_min_u32 v{r}, v{r}, v{r+3}
        v_cmp_gt_u32 vcc, {need}, v{r}"""
        o_ = Asm()
        o_.label(lbl)
        o_("s_mov_b32 s39, 0")
        o_.label(lbl + "_s")
        o_(f"""ds_read_b128 {V(r,4)}, v{NA} offset:{off}
        s_add_u32 s39, s39, 1
        s_waitcnt lgkmcnt(0)
        {test}
        s_cmp_gt_u32 s39, {SPIN * 16}
        s_cbranch_scc1 {lbl}_r
        s_cbranch_vccnz {lbl}_s
        s_branch {lbl}_r""")
        OOL.extend(o_.l)
        return test.split("\n") + [f"s_cbranch_vccnz {lbl}\n{lbl}_r:"]
    a(f"ds_read_b128 v[12:15], v{NA} offset:{OQ}")
    for k in range(HD):
        if k == 4 and PROG:
            for i in range(NPRE, NCC):
                if i - NPRE == OPT["pp"]:
                    a(poll(PR + 2)); vm.add("p1")
                ldC(6 + i, PREG[i]); vm.add(f"C{i}", 4)
        if PROG and k == 4:
            a(f"s_waitcnt vmcnt({vm.cnt('p0')})")
            for x in peval(PR): a(x)
            if "p1" in vm.ops:
                a(f"s_cmp_gt_u32 s37, {OPT['ppn']}\ns_cbranch_scc1 C_p1\ns_waitcnt vmcnt({vm.cnt('p1')})")
                for x in peval(PR + 2): a(x)
                a.label("C_p1")
        if PROG and k and k % 4 == 0: a(hchk(k // 4))
        for x in hld(k):
            a(x); vm.add(f"h{k}")
    if PROG and OPT["hts"] == 0: a(htouch())
    stamp(a, 8)
    NPL = OPT["npl"] if PROG else 0
    a("s_waitcnt lgkmcnt(0)")
    for x in cnt_chk("C_crdy", 12, OQ, 6): a(x)
    a(f"s_setprio {OPT['prio2']}")
    for k in range(CD):
        for x in crd(k): a(x)
    K0 = 6 + NCC
    lk = VM()
    for k in range(CD): lk.add(f"c{k}", 4)
    pend = {}
    for k in range(64):
        j, ph = divmod(k, 4)
        chkQ = K0 <= j + 1 < 16 and k <= KS
        chkP = (NCC and 2 <= j <= NCC + 3) or (OPT["ccd"] and j == 2)
        tags = [f"c{k}"] + (["w"] if ph == 0 and (chkP or chkQ) else [])
        a(f"s_waitcnt vmcnt({vm.cnt(f'h{k}')}) lgkmcnt({min(15, lk.cnt(*tags))})")
        if TRACE and k % 2 == 1: a(f"s_waitcnt lgkmcnt(0)\nv_writelane_b32 v251, s60, {k >> 1}")
        if TRACE and k % 2 == 0: a("s_memrealtime s[60:61]")
        M = []
        for i, (t, kk) in enumerate(frag(k) if k >= KS else []):
            for b in range(4):
                c = ACC + 16 * t + 4 * b
                M.append(f"v_mfma_f32_16x16x32_bf16 {V(c,4)}, {V(HR + 8*(k%NH) + 4*i, 4)}, {V(CF2 + 32*(k&1) + 16*i + 4*b, 4)}, {V(c,4)}")
        for t in range(2 if k < KS else 0):
            for b in (range(4) if t == 0 else reversed(range(4))):
                c = ACC + 16 * t + 4 * b
                M.append(f"v_mfma_f32_16x16x32_bf16 {V(c,4)}, {V(HR + 8*(k%NH) + 4*t, 4)}, {V(CF + 16*(k%NCB) + 4*b, 4)}, {V(c,4)}")
        F_ = []
        if k + CD < 64: F_ += [(x, f"c{k+CD}") for x in crd(k + CD)]
        if ph == 3 and j < 15 and k < KS:
            F_.append((f"v_mov_b32 v1, {j+1}\nds_write_b32 v{FA}, v1 offset:{OP}", "p"))
            if (NCC and 2 <= j + 1 <= NCC + 3) or (OPT["ccd"] and j == 1): F_.append((f"ds_read_b128 v[56:59], v{NA} offset:{OP}", "w"))
            if K0 <= j + 2 < 16: F_.append((f"ds_read_b128 v[12:15], v{NA} offset:{OQ}", "w"))
        if ph == 0 and j < NPL:
            r = PR + 2 * ((j + 2) % 3)
            F_.append((poll(r), "@p"))
            pend[k + HD + 1] = r
        if k in pend: F_.append(("\n".join(peval(pend[k])) + (htouch() if k >= OPT["hts"] else ""), None))
        if k + HD < 64:
            H_ = hld(k + HD)
            t0_, k0_ = frag(k + HD)[0]
            if PROG and t0_ == 0 and k0_ % 4 == 0: H_[0] = hchk(k0_ // 4) + "\n" + H_[0]
            F_ += [(x, f"@h{k+HD}") for x in H_]
        if ph == 0 and chkP: F_ += [(x, None) for x in cnt_chk(f"C2_p{j}", 56, OP, j - 1)]
        if ph == 0 and chkQ: F_ += [(x, None) for x in cnt_chk(f"C2_q{j}", 12, OQ, 16 if k == KS else j + 2)]
        if SKB:
            for i in range(4):
                if k == min(63, KS + HALF + 1 + i // OPT["sks"]):
                    x, y = ogrp(0, i, 224 + 4 * i)
                    F_ += [(x, None), (y, "@st")]
        b = j + 4
        if 6 <= b < K0:
            sl = b % 6
            F_.append((f"ds_write_b128 v{CW + (sl >= 3)}, {V(PREG[b-6]+4*ph,4)} offset:{16384 * (sl % 3) + 8192 * (ph >> 1) + 1024 * (ph & 1)}", "x"))
            if ph == 3:
                i0 = [i for i, f in enumerate(F_) if f[1] == "p"][0]
                F_.insert(i0, F_.pop())
        for i, m in enumerate(M):
            a(m)
            per = 2 if i < (4 if k + 1 >= KS else 2) else max(1, -(-len(F_) // (8 - i)))
            for _ in range(per):
                if F_:
                    x, t = F_.pop(0)
                    a(x)
                    if t and t[0] == "@": vm.add(t[1:])
                    elif t: lk.add(t)
        assert not F_
        if k == 0: stamp(a, 9)
    a("s_nop 7\ns_nop 2" if SKB else "s_nop 5")
    stamp(a, 10)
    for t in range(1 if SKB else 0, 2):
        for i in range(4): a("\n".join(ogrp(t, i, 64 + 16 * t + 4 * i)))
    stamp(a, 11)

def main():
    a = Asm()
    name = NAME + "_kernel" if OPT["single"] else "f_kernel"
    kernel_head(a, name)
    entry(a, "K_done", "K_compute")
    loader(a)
    if STAMP: a("s_branch K_fin")
    else: a("s_endpgm")
    a.label("K_compute")
    compute(a)
    a.label("K_fin")
    stamp_out(a)
    a.label("K_done")
    a("s_endpgm")
    a.l += OOL
    vg = 252
    hdr = open("/code/" + NAME + ".s.ref").read().split("\n")
    out = []
    for ln in hdr:
        if ln.startswith("; @launch") or ln.startswith(".amdgcn"):
            break
        if ln.startswith("; Override") or ln.startswith("; grid="):
            continue
        out.append(ln)
    out.append(f"; @launch {'' if OPT['single'] else 'kernel=' + name + ' '}grid=(256,1,1) block=(512,1,1) lds=163840")
    out.append('.amdgcn_target "amdgcn-amd-amdhsa--gfx950"')
    out.append(".text")
    out += a.l
    out.append('.section .rodata,"a"')
    out.append(kernel_desc(name, vg))
    open(OPT["out"], "w").write("\n".join(out) + "\n")
main()
```

```python
import sys
NAME = "concat_heads__ssm_conv_h3__ssm_conv_s5__prompt"
OPT = dict(out="/code/" + NAME + ".s", stamp=0, trace=0, single=0,
           win=12, kfirst=2, npre=3,
           ntk=1, nte=1, ntq=1, prioc=3, prio2=3, lt=1, ltk=5, lts=8,
           osa=2, osb=2, noa3=0, fsh=7, ffull=1, st0=0, rotm=1, rots=1, rotx=1, tpar=1,
           gate=1, hd=7, ncb=2, nh=8, xrot=0, t64=1, gchk=3,
           ra=12,
           ek=3, ow=15,
           fs=9, ps=21, pc=26, kl=31, sa=16,
           qk=15, c15=0, d14=1, d15=1, dr=1, pw=24, pre=8, per=4, zp=6, zc=8, za=10, npl=3, prog=1, lprio=0, dpos=0, shsc=1, roll=1, mord=1, op=8, late=2, hord=1, ht=0, ncc=5, cpl=1, ccd=0, zx=1, su=-2, nob=0, tw=0, lbp=2, hsh=9, spr=3, lp2=0, tc=0, tcn=1, hts=0, pp=3, ppn=3, cpe=4, cpw=0, skb=3, sks=1, lbi=-1, c0=0, cd=16, pks=0, fpl=0, fgo=1, fn=1, crr=-1, pl7=0, p7s=3, dyn=0, xs=0, pq=0, xfp=7, ot=0, otf=1, hw=0, hsf=1, ds2=0, dsp=0, cw=0)
for arg in sys.argv[1:]:
    k, v = arg.split("=")
    assert k in OPT, k
    OPT[k] = v if k == "out" else int(v)
STAMP = OPT["stamp"]
TRACE = OPT["trace"]
FLV = ['', ' sc1', ' nt', ' sc0 sc1', ' sc0 sc1 nt', ' sc1 nt', ' sc0 nt']
def NT(k): return " nt" if OPT["nt" + k] else ""
P = dict(q=32, k=34, v=36, shift=38, ssmk=40, ssmD=42, x=44, Lre=46, Lim=48, Bre=50, Bim=52, Cre=54, Cim=56,
         logdt=58, Dskip=60, out=62, dbg=64, ws=66, q2=58)
WS_KVT = 0
WS_ZT = 4 << 20
WS_H = 8 << 20
WS_E = 16 << 20
WS_FLG = 17 << 20
FL_H = 1 << 17
FL_Z = 2 << 17
FL_SZ = 3 << 17
FSH = OPT['fsh']
FEX = '0xffff' if OPT['ffull'] else '1'
WS_STAMP = 64 << 20
SPIN = 4096

class Asm:
    def __init__(self):
        self.l = []
    def __call__(self, s):
        for ln in s.strip("\n").split("\n"):
            ln = ln.strip()
            if ln:
                self.l.append("    " + ln)
    def label(self, s):
        self.l.append(s + ":")

class VM:
    def __init__(self):
        self.ops = []
    def add(self, tag, n=1):
        self.ops += [tag] * n
    def cnt(self, *tags):
        last = max(i for i, t in enumerate(self.ops) if t in tags)
        return min(63, len(self.ops) - 1 - last)

def kernel_head(a, name):
    a.l += [".p2align 8", f".globl {name}", f".type {name},@function"]
    a.label(name)

def kernel_desc(name, vgpr, sgpr=102):
    acc = (vgpr + 3) // 4 * 4
    return f""".p2align 6
.amdhsa_kernel {name}
  .amdhsa_next_free_vgpr {vgpr}
  .amdhsa_next_free_sgpr {sgpr}
  .amdhsa_accum_offset {acc}
  .amdhsa_group_segment_fixed_size 0
  .amdhsa_kernarg_size 144
  .amdhsa_user_sgpr_count 2
  .amdhsa_user_sgpr_kernarg_segment_ptr 1
  .amdhsa_system_sgpr_workgroup_id_x 1
.end_amdhsa_kernel"""

def srd(a, d, name, nbytes, off=0):
    b = P[name]
    if off:
        a(f"s_add_u32 s{d}, s{b}, {off}\ns_addc_u32 s{d+1}, s{b+1}, 0")
    else:
        a(f"s_mov_b32 s{d}, s{b}\ns_mov_b32 s{d+1}, s{b+1}")
    a(f"s_mov_b32 s{d+2}, {nbytes}\ns_mov_b32 s{d+3}, 0x00020000")

def S(d):
    return f"s[{d}:{d+3}]"
def V(d, n):
    return f"v[{d}:{d+n-1}]"

def stamp0(a, i, lev=1):
    if STAMP and (OPT["st0"] == lev or (OPT["st0"] and i < 4 and lev == 1)): a(f"s_memrealtime s[{84+2*i}:{85+2*i}]")
def stamp(a, i):
    if STAMP and not (OPT["st0"] and 2 <= i <= 7):
        i &= 7
        a(f"s_memrealtime s[{84+2*i}:{85+2*i}]")
def stamp_dump(a, base):
    if STAMP:
        a("s_waitcnt lgkmcnt(0)")
        for i in range(8):
            a(f"v_writelane_b32 v250, s{84+2*i}, {base+i}")
def stamp_out(a):
    if not STAMP: return
    a("s_waitcnt vmcnt(0) lgkmcnt(0)")
    stamp(a, 15)
    stamp_dump(a, 8)
    srd(a, 8, "ws", 2 << 20, WS_STAMP)
    a("""s_lshl_b32 s6, s2, 3
    s_add_u32 s6, s6, s5
    s_lshl_b32 s7, s6, 8
    s_lshl_b32 s6, s6, 6
    s_add_u32 s7, s7, 0x100000
    v_lshlrev_b32 v1, 2, v2""")
    if TRACE: a("buffer_store_dword v251, v1, s[8:11], s7 offen")
    a("""s_mov_b64 exec, 0xffff
    buffer_store_dword v250, v1, s[8:11], s6 offen
    s_waitcnt vmcnt(0)""")

def tp(i):
    return f"\ns_memrealtime s[60:61]\ns_waitcnt lgkmcnt(0)\nv_writelane_b32 v251, s60, {i}" if TRACE == 2 else ""
def tr_begin(a):
    if TRACE == 1: a("s_memrealtime s[60:61]")
def tr_end(a, i):
    if TRACE == 1: a(f"s_waitcnt lgkmcnt(0)\nv_writelane_b32 v251, s60, {i}")

def cmul(a, d, x, y, c=None):
    if c is None:
        a(f"v_mul_f32 v{d}, v{x}, v{y}\nv_mul_f32 v{d+1}, v{x}, v{y+1}")
    else:
        a(f"v_fma_f32 v{d}, v{x}, v{y}, v{c}\nv_fma_f32 v{d+1}, v{x}, v{y+1}, v{c+1}")
    a(f"v_fma_f32 v{d}, -v{x+1}, v{y+1}, v{d}\nv_fmac_f32 v{d+1}, v{x+1}, v{y}")

def entry(a, done, other):
    stamp(a, 0)
    a(f"""s_cmp_ge_u32 s2, 256
    s_cbranch_scc1 {done}
    s_load_dwordx16 s[32:47], s[0:1], 0
    s_load_dwordx16 s[48:63], s[0:1], 64
    s_load_dwordx4 s[64:67], s[0:1], 128
    v_lshrrev_b32 v1, 6, v0
    v_and_b32 v2, 63, v0
    s_and_b32 s6, s2, 3
    v_readfirstlane_b32 s5, v1
    s_lshl_b32 s6, s6, 2
    s_lshr_b32 s7, s2, 3
    s_and_b32 s3, s7, 3
    s_add_u32 s3, s3, s6            ; mt
    s_and_b32 s6, s2, 4
    s_lshl_b32 s6, s6, 1
    s_lshr_b32 s4, s7, 2
    s_add_u32 s4, s4, s6            ; nt""")
    if OPT["cw"] == 1:
        a(f"""s_xor_b32 s6, s7, s5
        s_and_b32 s6, s6, 3
        s_cbranch_scc1 K_cw
        s_getpc_b64 s[8:9]
        K_pc:
        v_lshlrev_b32 v4, 7, v0
        v_min_u32 v4, K_end - K_pc - 4, v4
        v_mov_b32 v5, s9
        v_add_co_u32 v4, vcc, s8, v4
        v_addc_co_u32 v5, vcc, 0, v5, vcc
        global_load_dword v251, v[4:5], off
        K_cw:""")
    a(f"""s_cmp_lt_u32 s5, 4
    s_cbranch_scc1 {other}""")

def interleave(a, main, fill, per, vm=None):
    fill = list(fill)
    for m in main:
        if isinstance(m, tuple):
            vm.add(m[1]); m = m[0]
        a(m)
        for _ in range(per):
            if fill: a(fill.pop(0))
    for f in fill: a(f)

SLOT, EARLY = [], []
for t_ in range(16):
    if t_ <= OPT["ra"]: SLOT.append([98304, 0, 32768, 65536][t_ % 4])
    else: SLOT.append([0, 32768, 65536][(t_ - OPT["ra"] - 1) % 3])
    prev = [u for u in range(t_) if SLOT[u] == SLOT[t_]]
    EARLY.append(prev[-1] + 1 if prev else -1)
assert OPT["ra"] % 4 == 0
RFREE = OPT["ra"] + 1
SA = OPT["sa"]
assert OPT["kl"] // 2 + 1 <= SA <= 16
L_R = 98304
L_O = L_R
L_E = L_O + 4160
L_U = L_E + 4160
L_N = 147328
L_ST = 147456
L_Z = L_R + 8192
L_F = L_N + 16
L_ZI = L_R
OOL = []

def rot1(a, d, t):
    a(f"""s_and_b32 s{d}, s2, 3
    s_lshl_b32 s{d}, s{d}, 2
    s_and_b32 s{t}, s2, 4
    s_lshl_b32 s{t}, s{t}, 1
    s_add_u32 s{d}, s{d}, s{t}
    s_add_u32 s{t}, s3, s4
    s_and_b32 s{t}, s{t}, {OPT['rotm']}
    s_lshl_b32 s{t}, s{t}, {OPT['rots']}
    {"" if OPT['rotx'] else f"s_mov_b32 s{d}, 0"}
    s_add_u32 s{d}, s{d}, s{t}
    s_and_b32 s{d}, s{d}, 15""")

def spin_flags(a, lbl, PLL, NON, AD, FL, mask=None):
    a("s_mov_b32 s51, 0")
    a.label(lbl)
    a(f"""buffer_load_dwordx2 {V(PLL,2)}, v{AD}, {S(FL)}, 0 offen sc1
    s_add_u32 s51, s51, 1
    s_waitcnt vmcnt(0)
    v_cmp_eq_u32 vcc, v{PLL}, v{NON}
    v_cmp_eq_u32 s[48:49], v{PLL+1}, v{NON+1}
    s_cmp_gt_u32 s51, {SPIN}
    s_cbranch_scc1 {lbl}_go
    s_and_b64 s[48:49], s[48:49], vcc
    {f"s_or_b64 s[48:49], s[48:49], {mask}" if mask else ""}
    s_cmp_eq_u64 s[48:49], -1
    s_cbranch_scc0 {lbl}""")
    a.label(lbl + "_go")

def loader(a):
    vm = VM()
    X, BR, BI, SK, KV, FL = 8, 12, 16, 68, 72, 76
    CR, CI = 24, 28
    a("""s_sub_u32 s6, s5, 4             ; lw
    v_lshrrev_b32 v12, 3, v2        ; r
    v_and_b32 v13, 7, v2
    v_lshrrev_b32 v14, 4, v2        ; r>>1
    v_xor_b32 v13, v13, v14
    v_lshlrev_b32 v13, 4, v13
    v_lshrrev_b32 v14, 5, v2        ; r>>2
    v_and_b32 v15, 3, v12
    v_lshl_add_u32 v15, v14, 3, v15
    v_lshl_add_u32 v14, v12, 14, v13   ; x rows 8r
    v_lshl_add_u32 v15, v15, 11, v13   ; B rows 8(r>>2)+(r&3)
    s_lshl_b32 s7, s3, 6
    s_add_u32 s7, s7, s6
    s_lshl_b32 s7, s7, 12           ; (128mt+2lw)*2048
    v_add_u32 v4, s7, v14
    v_xor_b32 v5, 64, v4
    v_add_u32 v5, 0x1fc00, v5
    s_lshl_b32 s7, s4, 2
    s_add_u32 s7, s7, s6
    s_lshl_b32 s7, s7, 15           ; (64nt+16lw)*2048
    v_add_u32 v8, s7, v15
    v_xor_b32 v9, 64, v8
    v_add_u32 v9, 0x1c00, v9""")
    rot1(a, 30, 31)
    a("""s_lshl_b32 s100, s30, 7         ; koff
    s_lshl_b32 s101, s6, 12         ; lw*4096""")
    stamp0(a, 2)
    a("s_waitcnt lgkmcnt(0)")
    stamp0(a, 3)
    srd(a, X, "x", 4 << 20)
    srd(a, BR, "Bre", 2 << 20)
    srd(a, BI, "Bim", 2 << 20)
    def dma(s):
        sl = SLOT[s]
        L = []
        L.append(f"s_add_u32 m0, s101, {sl}\ns_nop 0\nbuffer_load_dwordx4 v4, {S(X)}, s100 offen lds")
        for j in range(1, 4):
            L.append(f"buffer_load_dwordx4 v{4+(j&1)}, {S(X)}, s100 offen offset:{1024*j} lds")
        L.append(f"s_add_u32 m0, s101, {sl+16384}\ns_nop 0\nbuffer_load_dwordx4 v8, {S(BR)}, s100 offen lds")
        L.append(f"buffer_load_dwordx4 v9, {S(BR)}, s100 offen offset:1024 lds")
        L.append(f"s_add_u32 m0, s101, {sl+16384+2048}\ns_nop 0\nbuffer_load_dwordx4 v8, {S(BI)}, s100 offen lds")
        L.append(f"buffer_load_dwordx4 v9, {S(BI)}, s100 offen offset:1024 lds\ns_add_u32 s100, s100, 128\ns_and_b32 s100, s100, 2047")
        return [(x, f"d{s}") for x in L]
    D = [dma(s) for s in range(16)]
    def first():
        if OPT["kfirst"] == 2: a("s_barrier")
        stamp0(a, 4, 2)
        interleave(a, D[0][:4], [], 0, vm)
        stamp0(a, 5, 2)
        interleave(a, D[0][4:], [], 0, vm)
        stamp0(a, 6, 2)
        stamp0(a, 4)
        if OPT["kfirst"] == 1: a("s_barrier")
        for k in range(1, OPT["npre"]): interleave(a, D[k], [], 0, vm)
        stamp0(a, 7, 2)
    if OPT["su"] != -2: first()
    a(f"""s_mov_b32 s{P['q2']}, s{P['q']}
    s_mov_b32 s{P['q2']+1}, s{P['q']+1}
    s_lshr_b32 s7, s2, 3
    s_and_b32 s32, s7, 15           ; a_mt
    s_lshr_b32 s7, s7, 4
    s_and_b32 s33, s2, 7
    s_lshl_b32 s33, s33, 1
    s_add_u32 s33, s33, s7          ; a_nt
    s_lshl_b32 s34, s33, 4
    s_add_u32 s34, s34, s32
    s_lshl_b32 s34, s34, 2
    s_add_u32 s34, s34, s6          ; A2 channel
    s_lshl_b32 s35, s34, 12         ; ch*4096
    s_lshr_b32 s7, s34, 1
    s_lshl_b32 s7, s7, 2
    s_load_dword s37, s[{P['ssmD']}:{P['ssmD']+1}], s7
    v_and_b32 v12, 15, v2           ; cq / n / m
    v_lshrrev_b32 v13, 4, v2        ; tg / g""")
    if OPT["tw"]:
        TW = [("q2", 4 << 20, 0, "s32", 18), ("out", 16 << 20, 0, "s3", 20), ("out", 16 << 20, 0, "s32", 20), ("ws", 8 << 20, WS_H, "s3", 19),
              ("ws", 4 << 20, WS_ZT, "s33", 18), ("ssmk", 4 << 20, 0, "s33", 18), ("Cre", 2 << 20, 0, "s4", 17), ("Cim", 2 << 20, 0, "s4", 17),
              ("ws", 4 << 20, WS_KVT, "s33", 18), ("ws", 1 << 18, WS_E, "s3", 14)]
        a("s_mov_b64 exec, 1")
        for i, (nm, sz, off, ix, sh) in enumerate(TW):
            if not OPT["tw"] >> i & 1: continue
            a(f"s_cmp_eq_u32 s6, {i & 3}\ns_cbranch_scc0 L_tw{i}")
            srd(a, 72, nm, sz, off)
            a(f"s_lshl_b32 s7, {ix}, {sh}\nbuffer_load_dword v240, off, s[72:75], s7 sc1")
            a.label(f"L_tw{i}")
        a("s_mov_b64 exec, -1")
    SETUP = max(-1, OPT['su'])
    AAD, BAD, DFR, ZAD, PLL, NON = 16, 20, 24, 21, 22, 28
    CAD, QAD, QL, FA, NA = 246, 31, 192, 6, 7
    K0 = 6 + OPT["ncc"]
    CREG = {K0: 208, K0 + 1: 224}
    for k in range(K0 + 2, 16): CREG[k] = 64 + 16 * (k - K0 - 2)
    QS = 40
    ZM, ZN = ("s32", "s33") if OPT["zx"] else ("s3", "s4")
    def a2_setup():
        TP = ""
        if OPT["tpar"]:
            TP = f"""s_lshr_b32 s46, s2, 4
            s_and_b32 s46, s46, {max(0, OPT['lts'] - 1)}
            s_add_u32 s7, s3, s4
            s_and_b32 s7, s7, 1
            s_cmp_eq_u32 s7, {OPT["tpar"] - 1}
            s_cselect_b32 s46, s46, 99"""
        L = f"""s_waitcnt lgkmcnt(0)
        s_lshl_b32 s45, s6, 14
        v_lshlrev_b32 v{AAD}, 4, v13
        v_lshl_add_u32 v{AAD}, v12, 1, v{AAD}
        v_and_b32 v1, 1, v12
        v_mov_b32 v3, {L_O + 4}
        v_mov_b32 v14, {L_E + 2}
        v_cmp_eq_u32 vcc, 1, v1
        s_and_b32 s7, s34, 1
        s_lshl_b32 s7, s7, 4
        v_cndmask_b32 v3, v3, v14, vcc
        v_add3_u32 v{AAD}, v{AAD}, v3, s45
        v_add_u32 v{AAD+1}, 1024, v{AAD}
        v_add_u32 v{AAD+2}, 2048, v{AAD}
        v_add_u32 v{AAD+3}, 3072, v{AAD}
        s_add_u32 s47, s45, {L_U + 480}
        v_lshlrev_b32 v1, 4, v13
        v_lshlrev_b32 v3, 5, v12
        v_sub_u32 v1, v1, v3
        v_add_u32 v{BAD}, s47, v1
        s_lshr_b32 s37, s37, s7
        s_and_b32 s37, s37, 0xffff
        v_lshlrev_b32 v1, 3, v13
        v_add_u32 v1, v1, v12
        v_sub_u32 v1, 15, v1
        v_and_b32 v3, 1, v1
        v_lshlrev_b32 v3, 4, v3
        v_lshlrev_b32 v3, v3, s37
        v_lshrrev_b32 v1, 1, v1""".split("\n")
        for j in range(4):
            L += [f"v_cmp_eq_u32 vcc, {j}, v1", "s_nop 1", f"v_cndmask_b32 v{DFR+j}, 0, v3, vcc"]
        L += f"""s_add_u32 s7, s45, {L_Z}
        v_lshlrev_b32 v1, 3, v2
        v_add_u32 v{ZAD}, s7, v1
        v_lshlrev_b32 v10, 4, v2
        v_mov_b32 v{NA}, {L_N}
        s_lshl_b32 s7, s6, 2
        v_add_u32 v{FA}, s7, v{NA}
        v_mov_b32 v1, 0
        ds_write_b32 v{FA}, v1 offset:{L_F + 32 - L_N}
        ds_write_b32 v{FA}, v1 offset:{L_F + 80 - L_N}
        v_mov_b32 v1, 2
        ds_write_b32 v{FA}, v1 offset:{L_F + 48 - L_N}
        v_lshrrev_b32 v1, 3, v2
        v_and_b32 v3, 7, v2
        v_xor_b32 v3, v3, v13
        v_lshlrev_b32 v3, 4, v3
        v_lshl_add_u32 v3, v1, 13, v3
        s_lshl_b32 s7, s4, 6
        s_add_u32 s7, s7, s6
        s_lshl_b32 s7, s7, 11
        v_add_u32 v{CAD}, s7, v3
        v_xor_b32 v{CAD+1}, 64, v{CAD}
        v_add_u32 v{CAD+1}, {65536-1024}, v{CAD+1}
        v_xor_b32 v{CAD+2}, 32, v{CAD}
        v_xor_b32 v{CAD+3}, 32, v{CAD+1}
        s_lshl_b32 s38, s4, 7
        v_lshlrev_b32 v3, 11, v13
        v_lshl_add_u32 v3, v12, 3, v3
        s_lshl_b32 s7, {ZM}, 2
        s_add_u32 s7, s7, s6
        s_lshl_b32 s7, s7, 9
        s_add_u32 s7, s7, {ZN}
        s_lshl_b32 s7, s7, 7
        v_add_u32 v{QAD}, s7, v3
        s_lshr_b32 s46, s2, 3
        s_and_b32 s46, s46, {max(0, OPT['lts'] - 1)}
        {TP}
        s_lshl_b32 s39, s6, 11
        s_and_b32 s7, s3, {12 * OPT['xrot']}
        s_lshl_b32 s7, s7, 7
        s_add_u32 s38, s38, s7
        s_and_b32 s20, s38, 1024
        s_xor_b32 s21, s20, 1024
        s_and_b32 s7, s3, 3
        s_lshl_b32 s7, s7, 1
        s_and_b32 s47, s6, 1
        s_add_u32 s7, s7, s47
        s_lshl_b32 s7, s7, 7
        s_or_b32 s7, s7, s21
        s_lshl_b32 s47, s4, 17
        s_add_u32 s7, s7, s47
        v_lshlrev_b32 v11, 11, v2
        v_add_u32 v11, s7, v11""".split("\n")
        if OPT["lt"]:
            L += f"""s_and_b32 s7, s3, 14
            s_and_b32 s47, s6, 1
            s_add_u32 s7, s7, s47
            s_add_u32 s7, s7, s4
            s_and_b32 s7, s7, 15
            s_lshl_b32 s7, s7, 7
            s_lshl_b32 s47, s4, 17
            s_add_u32 s7, s7, s47
            v_lshlrev_b32 v30, 11, v2
            v_add_u32 v30, s7, v30""".split("\n")
        return L
    def ldC(k):
        L = []
        for i in range(4):
            x = ""
            if i == 0 and OPT["hord"]: x += f"s_add_u32 s44, s38, {128*k}\ns_and_b32 s44, s44, 1023\ns_or_b32 s44, s44, s{20 + (k >> 3)}\n"
            elif i == 0: x += f"s_add_u32 s44, s38, {128*k}\ns_and_b32 s44, s44, 2047\n"
            tail = f"v{CAD+i}, {S(CI if i & 2 else CR)}, s44 offen offset:{1024*(i&1)}"
            if k < 6:
                if not i & 1: x += f"s_add_u32 m0, s39, {16384*k + 4096*i}\ns_nop 0\n"
                x += f"buffer_load_dwordx4 {tail} lds"
            else:
                x += f"buffer_load_dwordx4 {V(CREG[k]+4*i,4)}, {tail}"
            if i == 3: x += tp(16 + k)
            L.append((x, f"c{k}"))
        return L
    def words(off, lbl, t=44):
        a("s_mov_b32 s51, 0")
        a.label(lbl)
        a(f"""ds_read_b128 v[{t}:{t+3}], v{NA} offset:{L_F + off - L_N}
        s_add_u32 s51, s51, 1
        s_waitcnt lgkmcnt(0)
        v_xor_b32 v{t}, v{t}, v{NON}
        v_xor_b32 v{t+1}, v{t+1}, v{NON}
        v_xor_b32 v{t+2}, v{t+2}, v{NON}
        v_xor_b32 v{t+3}, v{t+3}, v{NON}
        v_or3_b32 v{t}, v{t}, v{t+1}, v{t+2}
        v_or_b32 v{t}, v{t}, v{t+3}
        s_cmp_gt_u32 s51, {SPIN * 4}
        s_cbranch_scc1 {lbl}_ok
        v_cmp_ne_u32 vcc, 0, v{t}
        s_cbranch_vccnz {lbl}""")
        a.label(lbl + "_ok")
    TS = 52
    TCH = f"buffer_load_dword v240, v30, {S(TS)}, 0 offen"
    assert OPT["tpar"]
    if OPT["t64"]: TCH += f"\nbuffer_load_dword v241, v30, {S(TS)}, 0 offen offset:64"
    after = {k: [] for k in range(16)}
    QLD = [f"s_mov_b32 s36, {8192*j}\nbuffer_load_dwordx2 {V(QL+2*j,2)}, v{QAD}, {S(QS)}, s36 offen{NT('q')}" for j in range(8)]
    if OPT["lt"]:
        for i in range(OPT["lts"]):
            after[OPT["ltk"] + i].append((f"s_cmp_eq_u32 s46, {i}\ns_cbranch_scc0 L_t{i}\n{TCH}\nL_t{i}:", "", 0, SETUP + 1, None))
    ER = 112
    for j in range(4):
        after[OPT["ek"]].append((f"buffer_load_dwordx4 {V(ER+4*j,4)}, v10, {S(SK)}, s35 offen offset:{1024*j}{NT('e')}", "E", 0, SETUP + 1, None))
    if OPT["qk"] <= 15:
        for x in QLD: after[OPT["qk"]].append((x, "q", 0, SETUP + 1, None))
    CR_ = sum((ldC(k) for k in range(K0, 16)), [])
    def cslot(t): return sum((ldC(k) for k in (SLOT[t] // 16384, SLOT[t] // 16384 + 1)), [])
    CDL = []
    assert OPT["c15"] <= 8 and OPT["ra"] < 13
    if OPT["d14"]:
        for x, t in cslot(13): after[15].append((x, t, 0, 14, None))
    else: CDL += cslot(13)
    TC2 = [(f"buffer_load_dword v{240+i}, v11, {S(TS)}, 0 offen offset:{64*i}", "t2") for i in range(OPT["tcn"])]
    if 1 <= OPT["tc"] <= 2:
        for x, t in TC2: after[15].append((x, t, 0, 13 + OPT["tc"], None))
    if OPT["tc"] > 4:
        for x, t in TC2: after[OPT["tc"]].append((x, t, 0, 0, None))
    if OPT["d15"]:
        for x, t in cslot(14): after[15].append((x, t, 0, 15, None))
    elif OPT['ccd'] != 2: CDL += cslot(14)
    if not OPT['ccd']: CDL += cslot(15)
    if OPT["tc"] == 3:
        for x, t in TC2: after[15].append((x, t, 0, 15, None))
    if OPT["tc"] == 4: CDL += TC2
    if OPT["qk"] == 16:
        for x in QLD: after[15].append((x, "q", 0, 15, None))
    for x, t in CR_[:OPT["c15"]]: after[15].append((x, t, 0, 15, None))
    CR_ = CR_[OPT["c15"]:]
    ST = []
    for k in range(16):
        if k >= OPT["npre"]: ST += [(x, t, 1, EARLY[k], None) for x, t in D[k]]
        ST += after[k]
    cum = [0]
    for it in ST: cum.append(cum[-1] + it[2])
    endof = {k: 0 for k in range(OPT["npre"])}
    for i, it in enumerate(ST):
        if it[1][:1] == "d": endof[int(it[1][1:])] = i + 1
    pos = [0]
    def emit(s):
        lim = cum[endof[min(15, s + 1)]] + OPT["win"]
        L = []
        while pos[0] < len(ST):
            x, t, c, e, hook = ST[pos[0]]
            must = pos[0] < endof[min(15, s + 1)]
            assert not (must and e > s), (s, t)
            if not must and s < 15 and (e > s or cum[pos[0] + 1] > lim + 1e-6): break
            L.append((x, t)); pos[0] += 1
        return L
    srd(a, SK, "ssmk", 4 << 20)
    srd(a, FL, "ws", FL_SZ, WS_FLG)
    srd(a, CR, "Cre", 2 << 20)
    srd(a, CI, "Cim", 2 << 20)
    srd(a, QS, "q2", 4 << 20)
    a(f"""s_cmp_lt_u32 s6, 2
    s_cselect_b32 s{TS}, s{P['Cre']}, s{P['Cim']}
    s_cselect_b32 s{TS+1}, s{P['Cre']+1}, s{P['Cim']+1}
    s_mov_b32 s{TS+2}, {2 << 20}
    s_mov_b32 s{TS+3}, 0x00020000""")
    if OPT["su"] < 0:
        for x in a2_setup(): a(x)
    if OPT["su"] == -2: first()
    stamp0(a, 5)
    a(f"s_waitcnt vmcnt({vm.cnt('d0')})")
    stamp0(a, 6)
    a("s_barrier")
    stamp(a, 1)
    ACC = 32
    FB = [64, 128]
    def reads(r):
        L = []
        f = FB[r & 1]
        for q in range(8):
            o = 128 * (q & 1) + 16 * r
            L.append(f"ds_read_b128 {V(f+32+4*q,4)}, v{BAD} offset:{512*(7-q) + 64*r}")
            L.append(f"ds_read2_b32 {V(f+4*q,2)}, v{AAD+(q>>1)} offset0:{o} offset1:{o+1}")
            L.append(f"ds_read2_b32 {V(f+4*q+2,2)}, v{AAD+(q>>1)} offset0:{o+2} offset1:{o+3}")
        return L
    def mfmas(r):
        f = FB[r & 1]
        L = []
        if r == 0:
            for u in range(8):
                L.append(f"v_mfma_f32_16x16x32_bf16 {V(ACC+4*u,4)}, {V(DFR,4)}, {V(f+32+4*u,4)}, 0")
        QU = [(q, u) for q in range(8) for u in range(8 - q)]
        if OPT["mord"]:
            rem = {c: [(q, c - q) for q in range(c + 1)] for c in range(8)}
            QU, last = [], []
            while len(QU) < 36:
                c = max((c for c in rem if rem[c] and c not in last[-3:]), key=lambda c: len(rem[c]))
                QU.append(rem[c].pop(0)); last.append(c)
            assert len(set(QU)) == 36
        for q, u in QU:
            c = ACC + 4 * (q + u)
            L.append(f"v_mfma_f32_16x16x32_bf16 {V(c,4)}, {V(f+4*q,4)}, {V(f+32+4*u,4)}, {V(c,4)}")
        return L
    def paced(items, w):
        for x, t in items:
            a(f"s_waitcnt vmcnt({w - 1})")
            a(x); vm.add(t)
    GRD = f"ds_read_b32 v1, v{FA} offset:{L_F + 48 - L_N}"
    ng = [0]
    def gate_chk(n, lev=2):
        lbl = f"L_g{ng[0]}"; ng[0] += 1
        b = Asm()
        b.label(lbl)
        b("s_mov_b32 s50, 0")
        b.label(lbl + "_s")
        b(f"""{GRD}
        s_add_u32 s50, s50, 1
        s_waitcnt lgkmcnt(0)
        v_readfirstlane_b32 s7, v1
        s_cmp_gt_u32 s50, {SPIN}
        s_cbranch_scc1 {lbl}_r
        s_cmp_lt_u32 s7, {lev}
        s_cbranch_scc1 {lbl}_s
        s_branch {lbl}_r""")
        OOL.extend(b.l)
        return f"s_waitcnt lgkmcnt({n})\nv_cmp_gt_u32 vcc, {lev}, v1", f"s_cbranch_vccnz {lbl}\n{lbl}_r:"
    def a2round(r, vmem, gated, rolled=False, last=False):
        M = mfmas(r)[-36:] if rolled else mfmas(r)
        R = reads(r + 1) if r < 7 and not last else []
        if rolled and r and not last: R += [f"v_add_u32 v{AAD+i}, 128, v{AAD+i}" for i in range(4)] + [f"v_add_u32 v{BAD}, 128, v{BAD}"]
        GP = 36 // OPT["gchk"] if gated and OPT["gate"] and OPT["gchk"] else 0
        vmem = list(vmem)
        a("s_waitcnt lgkmcnt(0)" + (tp(48 + r) if TRACE == 2 and not rolled else ""))
        since = 0
        for i, m in enumerate(M):
            a(m)
            if vmem and i % (OPT["p7s"] if last else OPT["dpos"]) == 0:
                x, t = vmem.pop(0); a(x)
                if t: vm.add(t)
            if GP and i % GP == GP - 8:
                a(GRD); since = 0
            elif GP and i % GP == GP - 2:
                g_ = gate_chk(min(15, since))
                a(g_[0])
            elif R:
                x = R.pop(0); a(x); since += x[:2] == "ds"
            if GP and i % GP == GP - 1: a(g_[1])
        assert not R and not vmem
    NS = OPT["fs"] // 2 + 1
    OW = OPT["ow"]
    assert RFREE <= OW < SA and NS < SA
    LATE = []
    for s in range(16):
        tr_begin(a)
        if s == SA:
            stamp(a, 4)
            if OPT["lprio"]: a(f"s_setprio {OPT['lprio']}")
            for x in reads(0): a(x)
        if s == OW:
            a("ds_write_b128 v1, v[32:35]")
            for j in range(4):
                a(f"ds_write_b128 v15, {V(ER+4*j,4)} offset:{1024*j + L_E - L_O}")
                a(f"ds_write_b128 v15, {V(64+4*j,4)} offset:{1024*j}")
        L = emit(s)
        if s == 15 and OPT["late"]:
            nl = {1: 8 * OPT["d15"], 2: 0}[OPT["late"]] + (OPT["tcn"] if OPT["tc"] == 2 else 0)
            LATE = L[nl:]; L = L[:nl]
        if s < SA or not OPT["dpos"]:
            for x, t in L:
                a(x)
                if t: vm.add(t)
            L = []
        if s == OPT["su"]:
            for x in a2_setup(): a(x)
        if s == NS:
            a(f"v_mov_b32 v1, {L_N}\nds_read_b64 v[{NON}:{NON+1}], v1")
        if s == OPT["op"]:
            assert NS < s < OW
            a(f"""v_mov_b32 v32, 0
            v_mov_b32 v33, 0
            v_mov_b32 v34, 0
            v_mov_b32 v35, 0
            s_add_u32 s47, s45, {L_U + 4096}
            v_add_u32 v1, s47, v10
            v_and_b32 v3, 16, v10
            v_and_b32 v15, 32, v10
            v_mul_u32_u24 v15, {(L_E - L_O) // 32}, v15
            v_add3_u32 v3, v3, v15, s45
            v_add_u32 v3, {L_O}, v3
            v_cmp_gt_u32 vcc, 32, v2
            s_add_u32 s47, s45, {L_O + 32}
            v_add_u32 v15, s47, v10
            v_cndmask_b32 v1, v3, v1, vcc
            v_mov_b32 v64, 0
            s_waitcnt vmcnt({vm.cnt('E')})""")
            for j in range(1, 4):
                a(f"v_mov_b32_dpp v{64+4*j}, v{ER+4*j-1} wave_ror:1 row_mask:0xf bank_mask:0xf")
            for j in range(4):
                a(f"v_mov_b32_dpp v{64+4*j}, v{ER+4*j+3} wave_shr:1 row_mask:0xf bank_mask:0xf")
            for j in range(4):
                b = 64 + 4 * j
                e = ER + 4 * j
                a(f"""v_alignbit_b32 v{b}, v{e}, v{b}, 16
                v_alignbit_b32 v{b+1}, v{e+1}, v{e}, 16
                v_alignbit_b32 v{b+2}, v{e+2}, v{e+1}, 16
                v_alignbit_b32 v{b+3}, v{e+3}, v{e+2}, 16""")
        if SA <= s < SA + 8: a2round(s - SA, L, s == 15)
        tr_end(a, s)
        w = ""
        if s in (0, SA - 1): w = " lgkmcnt(0)"
        if s < 15:
            a(f"s_waitcnt vmcnt({vm.cnt(f'd{s+1}')}){w}")
            a(tp(32 + s) + "\ns_barrier" + tp(s))
    assert pos[0] == len(ST)
    stamp(a, 3)
    OQ = L_F + 32 - L_N
    def qsig():
        a(f"v_mov_b32 v3, 6\ns_waitcnt vmcnt({vm.cnt(*[f'c{k}' for k in range(6)])})\nds_write_b32 v{FA}, v3 offset:{OQ}")
    def cdl():
        if SA < 16: words(0, "L_g1d", 242)
        stamp(a, 2)
        interleave(a, CDL, [], 0, vm)
    DR = max(OPT["dr"], 16 - SA)
    if SA == 16:
        words(0, "L_g1d", 242)
        for x in reads(0): a(x)
        interleave(a, LATE, [], 0, vm)
        if DR == 0: cdl()
        if OPT["gate"]:
            a(GRD); a('\n'.join(gate_chk(0)))
        if OPT["lprio"]: a(f"s_setprio {OPT['lprio']}")
        stamp(a, 4)
    if OPT["roll"]:
        assert SA == 16
        a("s_waitcnt lgkmcnt(0)")
        for m in mfmas(0)[:8]: a(m)
        a("s_mov_b32 s51, 0")
        code = {}
        main_ = a.l
        NR = 6 if OPT["pl7"] else 8
        def crf():
            interleave(a, CR_[:8], [], 0, vm)
            del CR_[:8]
        HK = {}
        for r_, f_ in ((DR, cdl), (DR + 3, qsig), (OPT["crr"], crf)): HK.setdefault(r_, []).append(f_)
        assert OPT["crr"] < 8 and OPT["crr"] != 0 and (OPT["crr"] < 0 or not OPT["c15"]) and (DR + 3 < NR or not OPT["pl7"])
        for r_ in sorted(HK):
            if 0 < r_ < NR:
                a.l = []
                a.label(f"L_cs{r_}")
                for f_ in HK[r_]: f_()
                a(f"s_branch L_cr{r_ & 1}")
                OOL.extend(a.l); code[r_] = 1
        a.l = main_
        a.label("L_conv")
        for r in range(2):
            for r_ in code:
                if r_ & 1 == r: a(f"s_cmp_eq_u32 s51, {r_ >> 1}\ns_cbranch_scc1 L_cs{r_}")
            a.label(f"L_cr{r}")
            a2round(r, [], True, True)
        a(f"""s_add_u32 s51, s51, 1
        s_cmp_lt_u32 s51, {NR // 2}
        s_cbranch_scc1 L_conv""")
        if OPT["pl7"]:
            if OPT["crr"] == 6: crf()
            a2round(0, [], True, True)
            if OPT["crr"] == 7: crf()
            n7 = min(OPT["pl7"], len(CR_))
            a2round(1, CR_[:n7], True, True, True)
            del CR_[:n7]
        a("s_waitcnt lgkmcnt(0)")
    for r in range(16 - SA, 8 if not OPT["roll"] else 0):
        if r == DR: cdl()
        if r == DR + 3: qsig()
        a2round(r, [], True)
    if DR >= 8: cdl()
    if OPT["lprio"] or OPT["lp2"]: a(f"s_setprio {OPT['lp2']}")
    stamp(a, 5)
    a("s_nop 6")
    for t in range(8):
        c = ACC + 4 * t
        a(f"""v_cvt_pk_bf16_f32 v{ACC+2*t}, v{c}, v{c+1}
        v_cvt_pk_bf16_f32 v{ACC+1+2*t}, v{c+2}, v{c+3}
        ds_write_b64 v{ZAD}, {V(ACC+2*t,2)} offset:{512*t}""")
    a(f"ds_write_b32 v{FA}, v{NON} offset:{L_F + 64 - L_N}")
    ZS, OS = 8, 12
    ZFP, ZLD, ZRD, OA, ZB, OB = 16, 17, 24, 21, 44, 36
    ZX, ZG, ZFS = 4, 5, 8
    def a3_setup():
        srd(a, ZS, "ws", 4 << 20, WS_ZT)
        srd(a, OS, "out", 16 << 20)
        a(f"""s_lshr_b32 s7, {ZM}, 2
        s_lshl_b32 s7, s7, 4
        s_add_u32 s7, s7, {ZN}
        s_lshl_b32 s7, s7, {4 + FSH}
        s_add_u32 s7, s7, {FL_Z}
        v_lshlrev_b32 v1, {FSH}, v12
        v_add_u32 v{ZFP}, s7, v1
        v_xor_b32 v1, v12, v13
        v_lshlrev_b32 v1, 4, v1
        v_lshl_add_u32 v3, v13, 14, v1
        s_lshl_b32 s47, {ZM}, 2
        s_add_u32 s47, s47, s6
        s_lshl_b32 s7, {ZN}, 10
        s_add_u32 s7, s7, s47
        s_lshl_b32 s7, s7, 8
        v_add_u32 v{ZLD}, s7, v3
        v_xor_b32 v{ZLD+1}, 64, v{ZLD}
        v_add_u32 v{ZLD+1}, {65536-1024}, v{ZLD+1}
        v_xor_b32 v{ZLD+2}, 128, v{ZLD}
        v_add_u32 v{ZLD+2}, {2*(65536-1024)}, v{ZLD+2}
        v_xor_b32 v{ZLD+3}, 192, v{ZLD}
        v_add_u32 v{ZLD+3}, {3*(65536-1024)}, v{ZLD+3}
        s_add_u32 s35, s45, {L_ZI}
        v_lshl_add_u32 v1, v12, 8, v1
        v_add_u32 v{ZRD}, s35, v1
        v_xor_b32 v{ZRD+1}, 64, v{ZRD}
        v_xor_b32 v{ZRD+2}, 128, v{ZRD}
        v_xor_b32 v{ZRD+3}, 192, v{ZRD}
        s_lshl_b32 s47, s47, 10
        s_add_u32 s47, s47, {ZN}
        s_lshl_b32 s47, s47, 8
        v_lshlrev_b32 v1, 13, v13
        v_lshl_add_u32 v1, v12, 4, v1
        v_add_u32 v{OA}, s47, v1
        v_bfe_u32 v1, v2, 2, 2
        v_lshlrev_b32 v1, 14, v1
        v_and_b32 v3, 3, v2
        v_lshl_add_u32 v1, v3, 7, v1
        v_lshl_add_u32 v1, v13, 4, v1
        s_lshl_b32 s7, s6, 10
        s_add_u32 s7, s7, {L_Z}
        v_add_u32 v{ZX}, s7, v1
        s_lshl_b32 s7, s34, 12
        v_add_u32 v{ZG}, s7, v10
        s_lshr_b32 s47, s34, 2
        s_lshl_b32 s7, s6, 8
        s_add_u32 s7, s7, s47
        s_lshl_b32 s7, s7, {FSH}
        s_add_u32 s7, s7, {FL_Z}
        v_lshl_add_u32 v{ZFS}, v12, 3, s7
        v_add_u32 v9, s39, v10
        v_add_u32 v11, 0xc000, v9""")
    def a3(k):
        if k == 0:
            a(f"s_waitcnt vmcnt({vm.cnt('z', 'q')}) lgkmcnt(0)")
            for i in range(4): a(f"ds_read_b128 {V(ZB+4*i,4)}, v{ZRD+i}")
        a(f"s_waitcnt lgkmcnt({0 if TRACE else 3-k})")
        for hf in range(2):
            idx = 4 * hf + k
            o = OB + 4 * hf
            for e in range(4):
                z, q = ZB + 4 * k + 2 * hf + (e >> 1), QL + 2 * idx + (e >> 1)
                if e & 1: a(f"v_and_b32 v1, 0xffff0000, v{z}\nv_and_b32 v{o+e}, 0xffff0000, v{q}")
                else: a(f"v_lshlrev_b32 v1, 16, v{z}\nv_lshlrev_b32 v{o+e}, 16, v{q}")
                a(f"v_mul_f32 v{o+e}, v{o+e}, v1")
            a(f"s_mov_b32 s7, {32768*idx}\nbuffer_store_dwordx4 {V(o,4)}, v{OA}, {S(OS)}, s7 offen{FLV[OPT['osa']]}")
            vm.add("st")
    A3 = not OPT["noa3"]
    a3_setup()
    if 5 <= DR < 8: qsig()
    if A3:
        words(64, "L_zd")
        for j in range(4):
            for ab in range(2):
                a(f"ds_read_b64_tr_b16 {V(ZB+4*j+2*ab,2)}, v{ZX} offset:{512*(j>>1) + 8*(8*(j&1)+ab)}")
        a("s_waitcnt lgkmcnt(0)")
        for j in range(4):
            a(f"buffer_store_dwordx4 {V(ZB+4*j,4)}, v{ZG}, {S(ZS)}, 0 offen offset:{1024*j} sc1")
        vm.add("zt", 4)
    if OPT["lp2"]: a("s_setprio 0")
    stamp(a, 6)
    paced(CR_[:OPT["pre"]], OPT["pw"])
    CR_ = CR_[OPT["pre"]:]
    if DR >= 8: qsig()
    if A3:
        a(f"""s_waitcnt vmcnt({vm.cnt('zt')})
        s_mov_b64 exec, {FEX}
        buffer_store_dwordx2 {V(NON,2)}, v{ZFS}, {S(FL)}, 0 offen sc1
        s_mov_b64 exec, -1""")
        vm.add("zf")
    if OPT["qk"] == 17:
        for x in QLD: a(x); vm.add("q")
    stamp(a, 7)
    stamp_dump(a, 0)
    assert OPT["zp"] <= OPT["zc"] <= OPT["za"] <= 15
    first = True
    for p_ in range(0, 16):
        b = p_ + 5
        w_ = K0 <= b < 16
        need = w_ or (CR_ and p_) or OPT["qk"] == 20 + p_ or (A3 and p_ in (OPT["zp"], OPT["zc"], OPT["za"]))
        if not need: continue
        if p_:
            a("s_mov_b32 s51, 0")
            a.label(f"L_p{p_}")
            a(f"""ds_read_b128 v[32:35], v{NA} offset:{L_F + 80 - L_N}
            s_add_u32 s51, s51, 1
            s_waitcnt lgkmcnt(0)
            v_min3_u32 v32, v32, v33, v34
            v_min_u32 v32, v32, v35
            s_cmp_gt_u32 s51, {SPIN * 16}
            s_cbranch_scc1 L_p{p_}_ok
            v_cmp_gt_u32 vcc, {p_}, v32
            s_cbranch_vccnz L_p{p_}""")
            a.label(f"L_p{p_}_ok")
        if first: stamp(a, 8)
        first = False
        if w_:
            a(f"v_mov_b32 v3, {b + 1}\ns_waitcnt vmcnt({vm.cnt(f'c{b}')})")
            sl = b % 6
            for i in range(4):
                o = 16384 * (sl % 3) + 8192 * (i >> 1) + 1024 * (i & 1)
                a(f"ds_write_b128 v{9 if sl < 3 else 11}, {V(CREG[b]+4*i,4)} offset:{o}")
            a(f"ds_write_b32 v{FA}, v3 offset:{L_F + 32 - L_N}")
            if b == 15: stamp(a, 9)
        if p_:
            paced(CR_[:OPT["per"]], OPT["pw"])
            CR_ = CR_[OPT["per"]:]
        if OPT["qk"] == 20 + p_:
            for x in QLD: a(x); vm.add("q")
        if A3 and p_ == OPT["zp"]:
            a(f"buffer_load_dwordx2 {V(PLL,2)}, v{ZFP}, {S(FL)}, 0 offen sc1")
            vm.add("zp")
        if A3 and p_ == OPT["zc"]:
            a(f"""s_waitcnt vmcnt({vm.cnt('zp')})
            v_cmp_eq_u32 vcc, v{PLL}, v{NON}
            v_cmp_eq_u32 s[48:49], v{PLL+1}, v{NON+1}
            s_mov_b32 m0, s35
            s_and_b64 s[48:49], s[48:49], vcc
            s_cmp_eq_u64 s[48:49], -1
            s_cbranch_scc1 L_zspin_go""")
            spin_flags(a, "L_zspin", PLL, NON, ZFP, FL)
            stamp(a, 10)
            for j in range(4):
                a(f"buffer_load_dwordx4 v{ZLD+j}, {S(ZS)}, 0 offen offset:{1024*j} sc1 lds")
            vm.add("z", 4)
        if A3 and p_ == OPT["za"]:
            for j in range(4): a3(j)
    assert not CR_
    stamp(a, 11)

def compute(a):
    HS, ES, DB, LD_, LR_, LI_, KV, FL, OS, DS = 8, 12, 16, 20, 24, 28, 68, 72, 76, 80
    AA, BA = 4, 8
    L, C2, P8, G128, L512 = 16, 24, 32, 40, 42
    LBK, PUB, HST, NA, FA = 56, 60, 61, 62, 63
    ACC, FR, XF, STG, XA, DSK, STA, KVG = 64, 128, 208, 224, 240, 242, 244, 248
    GR = 52
    KS, VS, SH = 8, 12, 68
    WRAW, WF, KR, VR, KT, AC, OUT = 128, 136, 140, 162, 178, 190, 224
    a(f"""v_and_b32 v12, 15, v2
    v_lshrrev_b32 v13, 4, v2
    s_lshr_b32 s7, s2, 3
    s_and_b32 s76, s7, 15           ; a_mt
    s_lshr_b32 s7, s7, 4
    s_and_b32 s77, s2, 7
    s_lshl_b32 s77, s77, 1
    s_add_u32 s77, s77, s7          ; a_nt
    s_lshl_b32 s7, s76, 2
    s_add_u32 s7, s7, s5
    s_lshl_b32 s7, s7, 16           ; t0*2048
    s_lshl_b32 s6, s77, 7
    s_add_u32 s7, s7, s6
    v_lshlrev_b32 v10, 14, v13
    v_lshl_add_u32 v10, v12, 3, v10
    v_add_u32 v10, s7, v10          ; k/v offset of row 0
    v_subrev_u32 v11, 0x1800, v10
    v_bfrev_b32 v9, 1
    v_cmp_gt_i32 vcc, 0, v11
    s_lshl_b32 s7, s77, 9
    v_lshlrev_b32 v15, 5, v12
    v_cndmask_b32 v11, v11, v9, vcc     ; halo offset
    v_add_u32 v9, s7, v15           ; shift offset
    s_mov_b32 s72, 4096
    s_mov_b32 s73, 8192
    s_mov_b32 s74, 12288
    s_lshl_b32 s6, s4, 2
    s_add_u32 s6, s6, s5
    s_lshl_b32 s6, s6, 4
    v_and_b32 v14, 3, v12
    v_and_b32 v1, 1, v13
    v_lshl_add_u32 v14, v1, 3, v14
    v_lshrrev_b32 v1, 1, v13
    v_lshl_add_u32 v14, v1, 2, v14
    v_add_u32 v14, s6, v14          ; channel
    v_lshlrev_b32 v44, 1, v14
    s_lshl_b32 s6, s4, 7
    v_lshlrev_b32 v1, 3, v12
    v_add_u32 v1, s6, v1""")
    stamp0(a, 2)
    a("s_waitcnt lgkmcnt(0)")
    stamp0(a, 3)
    SOFF = ["0", "s72", "s73", "s74"]
    srd(a, LD_, "logdt", 2048)
    srd(a, LR_, "Lre", 2048)
    srd(a, LI_, "Lim", 2048)
    a(f"""buffer_load_ushort v45, v44, {S(LD_)}, 0 offen
    buffer_load_ushort v46, v44, {S(LR_)}, 0 offen
    buffer_load_ushort v47, v44, {S(LI_)}, 0 offen""")
    stamp0(a, 4, 2)
    srd(a, KS, "k", 4 << 20)
    for i in range(8):
        a(f"buffer_load_dwordx2 {V(KR+6+2*i,2)}, v10, {S(KS)}, {SOFF[i>>1]} offen offset:{2048*(i&1)}{NT('k')}")
    for i in range(3):
        a(f"buffer_load_dwordx2 {V(KR+2*i,2)}, v11, {S(KS)}, {SOFF[i>>1]} offen offset:{2048*(i&1)}{NT('k')}")
    stamp0(a, 5, 2)
    srd(a, SH, "shift", 8192)
    a(f"buffer_load_dwordx4 {V(WRAW,4)}, v9, {S(SH)}, 0 offen")
    a(f"buffer_load_dwordx4 {V(WRAW+4,4)}, v9, {S(SH)}, 0 offen offset:16")
    srd(a, VS, "v", 4 << 20)
    for i in range(8):
        a(f"buffer_load_dwordx2 {V(VR+2*i,2)}, v10, {S(VS)}, {SOFF[i>>1]} offen offset:{2048*(i&1)}{NT('k')}")
    stamp0(a, 6, 2)
    if OPT["kfirst"]: a("s_barrier")
    srd(a, DS, "Dskip", 2048)
    a(f"""buffer_load_dwordx2 {V(DSK,2)}, v1, {S(DS)}, 0 offen
    s_lshl_b32 s7, s5, 2
    v_add_u32 v15, s7, v13
    v_sub_u32 v15, 15, v15
    v_xor_b32 v15, v15, v12
    v_lshlrev_b32 v15, 4, v15
    v_lshl_add_u32 v15, v12, 10, v15
    v_add_u32 v15, {L_ST}, v15
    v_lshrrev_b32 v3, 1, v12
    v_xor_b32 v3, v3, v13
    v_lshlrev_b32 v3, 4, v3
    v_lshl_add_u32 v4, v12, 7, v3
    v_xor_b32 v6, 64, v4
    v_add_u32 v5, 0x10000, v4
    v_add_u32 v7, 0x10000, v6
    s_lshl_b32 s6, s5, 12
    s_add_u32 s6, s6, 16384
    v_add_u32 v8, s6, v4
    v_add_u32 v9, s6, v5
    v_add_u32 v10, s6, v6
    v_add_u32 v11, s6, v7""")
    def unp(d, s, hi):
        return f"v_and_b32 v{d}, 0xffff0000, v{s}" if hi else f"v_lshlrev_b32 v{d}, 16, v{s}"
    def a1_k(c):
        for j in range(4):
            a(unp(WF + j, WRAW + 2 * c + (j >> 1), j & 1))
        for i in range(11):
            a(unp(KT + i, KR + 2 * i + (c >> 1), c & 1))
        for t in range(8):
            a(f"v_mul_f32 v{AC+8*c+t}, v{WF}, v{KT+t+3}")
        for j in range(1, 4):
            for t in range(8):
                a(f"v_fmac_f32 v{AC+8*c+t}, v{WF+j}, v{KT+t+3-j}")
    def a1_v(c):
        for t in range(8):
            a(unp(KT + t, VR + 2 * t + (c >> 1), c & 1))
        for t in range(8):
            a(f"v_mul_f32 v{AC+8*c+t}, v{AC+8*c+t}, v{KT+t}")
        o = OUT + 4 * c
        for i in range(4):
            a(f"v_cvt_pk_bf16_f32 v{o+i}, v{AC+8*c+7-2*i}, v{AC+8*c+6-2*i}")
        a(f"ds_write_b128 v15, {V(o,4)} offset:{256*c}")
    srd(a, DB, "dbg", 256)
    a(f"""s_or_b32 s6, s2, s5
    s_cmp_eq_u32 s6, 0
    s_cbranch_scc0 C_nonce_w
    s_memrealtime s[6:7]
    v_mov_b32 v1, 0
    s_waitcnt lgkmcnt(0)
    s_or_b32 s6, s6, 1
    v_mov_b32 v48, s6
    v_mov_b32 v49, s7
    s_mov_b64 exec, 1
    buffer_store_dwordx2 v[48:49], v1, {S(DB)}, 0 offen sc1
    s_mov_b64 exec, -1""")
    a.label("C_nonce_w")
    srd(a, HS, "ws", 8 << 20, WS_H)
    srd(a, ES, "ws", 1 << 18, WS_E)
    srd(a, KV, "ws", 4 << 20, WS_KVT)
    srd(a, FL, "ws", FL_SZ, WS_FLG)
    srd(a, OS, "out", 16 << 20)
    CR, CI = 24, 80
    srd(a, CR, "Cre", 2 << 20)
    srd(a, CI, "Cim", 2 << 20)
    rot1(a, 34, 35)
    a(f"""s_sub_u32 s34, s4, s34
    s_and_b32 s34, s34, 15          ; step of G1 that holds this tile's x columns
    s_lshl_b32 s6, s5, 12
    v_add_u32 v{XA}, s6, v4
    v_xor_b32 v{XA+1}, 64, v{XA}
    v_mov_b32 v{NA}, {L_N}
    s_lshr_b32 s7, s2, 3
    s_and_b32 s32, s7, 15           ; a_mt
    s_lshr_b32 s7, s7, 4
    s_and_b32 s33, s2, 7
    s_lshl_b32 s33, s33, 1
    s_add_u32 s33, s33, s7          ; a_nt
    s_mov_b32 s36, 16384
    s_mov_b32 s37, 32768
    s_mov_b32 s38, 49152
    ; staging read addresses / KVT offsets
    s_lshl_b32 s6, s5, 2
    v_xor_b32 v1, s6, v12
    v_lshlrev_b32 v1, 4, v1
    v_lshl_add_u32 v1, v13, 8, v1
    s_lshl_b32 s6, s5, 12
    s_add_u32 s6, s6, {L_ST}
    v_add_u32 v{STA}, s6, v1
    v_xor_b32 v{STA+1}, 16, v{STA}
    v_xor_b32 v{STA+2}, 32, v{STA}
    v_xor_b32 v{STA+3}, 48, v{STA}
    s_lshl_b32 s6, s33, 2
    s_add_u32 s6, s6, s5
    s_lshl_b32 s6, s6, 16           ; (64 a_nt + 16 w)*4096
    s_lshl_b32 s7, s32, 8
    s_sub_u32 s7, 3840, s7
    s_add_u32 s6, s6, s7
    v_lshlrev_b32 v1, 12, v13
    v_lshl_add_u32 v1, v12, 4, v1
    v_add_u32 v{KVG}, s6, v1
    s_lshl_b32 s6, s33, 2
    s_add_u32 s7, s6, s5
    s_lshl_b32 s7, s7, 4
    s_add_u32 s7, s7, s32
    s_lshl_b32 s20, s7, 3
    s_lshr_b32 s7, s32, 2
    s_add_u32 s7, s7, s6
    s_lshl_b32 s21, s7, 7
    s_lshl_b32 s7, s33, 4
    s_add_u32 s7, s7, s32
    s_lshl_b32 s7, s7, 2
    s_add_u32 s7, s7, s5
    s_lshl_b32 s22, s7, 12
    s_lshl_b32 s23, s5, 14
    s_add_u32 s23, s23, {L_U}
    ; look-back / publish / H offsets
    s_lshl_b32 s6, s3, 14
    v_lshlrev_b32 v1, 4, v14
    v_add_u32 v{PUB}, s6, v1
    v_lshrrev_b32 v1, 2, v12
    v_lshlrev_b32 v1, 14, v1
    v_sub_u32 v1, v{PUB}, v1
    v_subrev_u32 v{LBK}, 0x4000, v1
    v_subrev_u32 v{LBK+1}, 0x14000, v1
    v_subrev_u32 v{LBK+2}, 0x24000, v1
    v_subrev_u32 v{LBK+3}, 0x34000, v1
    v_cmp_gt_i32 s[40:41], 0, v{LBK}
    v_cmp_gt_i32 s[42:43], 0, v{LBK+1}
    v_cmp_gt_i32 s[44:45], 0, v{LBK+2}
    v_cmp_gt_i32 s[46:47], 0, v{LBK+3}
    s_lshl_b32 s6, s3, 4
    s_add_u32 s6, s6, s4
    s_lshl_b32 s6, s6, 15
    s_lshl_b32 s7, s5, 10
    s_add_u32 s6, s6, s7
    v_lshlrev_b32 v1, 4, v2
    v_add_u32 v{HST}, s6, v1
    s_lshl_b32 s7, s5, 2
    v_add_u32 v{FA}, s7, v{NA}
    s_mov_b32 s48, 0xaaaaaaaa
    s_mov_b32 s49, 0xaaaaaaaa
    s_mov_b32 s50, 0xcccccccc
    s_mov_b32 s51, 0xcccccccc
    s_mov_b32 s52, 0x000f000f
    s_mov_b32 s53, 0x000f000f""")
    for i in range(64):
        a(f"v_mov_b32 v{ACC+i}, 0")
    a("s_waitcnt vmcnt(22)")
    stamp0(a, 7, 2)
    a(f"""v_lshlrev_b32 v45, 16, v45
    v_lshlrev_b32 v46, 16, v46
    v_lshlrev_b32 v47, 16, v47
    v_mul_f32 v45, 0x3fb8aa3b, v45
    v_exp_f32 v45, v45
    s_nop 0
    v_cvt_pk_bf16_f32 v45, v45, v45
    v_lshlrev_b32 v45, 16, v45
    v_mul_f32 v52, v45, v46
    v_mul_f32 v53, v45, v47
    v_mul_f32 v52, 0x3fb8aa3b, v52
    v_exp_f32 v48, v52
    v_mul_f32 v53, 0.15915494, v53
    v_fract_f32 v53, v53
    v_cos_f32 v50, v53
    v_sin_f32 v51, v53
    s_nop 0
    v_mul_f32 v44, v48, v50
    v_mul_f32 v45, v48, v51
    v_add_f32 v48, -1.0, v44
    v_mul_f32 v49, v46, v46
    v_fmac_f32 v49, v47, v47
    v_rcp_f32 v49, v49
    v_mul_f32 v50, v48, v46
    v_fmac_f32 v50, v45, v47
    v_mul_f32 v51, v45, v46
    v_fma_f32 v51, -v48, v47, v51
    v_add_f32 v49, v49, v49
    v_mul_f32 v46, v50, v49
    v_mul_f32 v47, v51, v49
    v_lshlrev_b32 v54, 3, v12
    v_cvt_f32_u32 v54, v54              ; 8j
    v_lshrrev_b32 v55, 2, v12
    v_lshlrev_b32 v55, 7, v55
    v_cvt_f32_u32 v55, v55              ; 128 (j>>2)""")
    DM = "row_mask:0xf bank_mask:0xf"
    def qb(i): return f"quad_perm:[{i},{i},{i},{i}] {DM}"
    for i in range(4):
        a(f"""v_mov_b32_dpp v{L+i}, v44 {qb(i)}
        v_mov_b32_dpp v{L+4+i}, v45 {qb(i)}
        v_mov_b32_dpp v{C2+i}, v46 {qb(i)}
        v_mov_b32_dpp v{C2+4+i}, v47 {qb(i)}""")
    def powd(dr, di, m0_, m1_):
        a(f"""{m0_}
        {m1_}
        v_exp_f32 v48, v48
        v_fract_f32 v49, v49
        v_cos_f32 v50, v49
        v_sin_f32 v51, v49
        s_nop 0
        v_mul_f32 v{dr}, v48, v50
        v_mul_f32 v{di}, v48, v51""")
    for i in range(4):
        powd(P8 + i, P8 + 4 + i, f"v_mul_f32_dpp v48, v52, v54 {qb(i)}", f"v_mul_f32_dpp v49, v53, v54 {qb(i)}")
    powd(G128, G128 + 1, "v_mul_f32 v48, v52, v55", "v_mul_f32 v49, v53, v55")
    powd(L512, L512 + 1, "v_mul_f32 v48, 0x44000000, v52", "v_mul_f32 v49, 0x44000000, v53")
    def reads(s, h):
        sl = SLOT[s]
        grp, so = divmod(sl, 65536)
        f = FR + 40 * h
        R = [f"ds_read_b128 {V(f+32+4*p,4)}, v{BA+2*h+grp} offset:{so+2048*p}" for p in range(2)]
        R += [f"ds_read_b128 {V(f+4*i,4)}, v{AA+2*h+grp} offset:{so+2048*i}" for i in range(8)]
        return R
    def mfmas(h):
        f = FR + 40 * h
        M = []
        for r in range(8):
            for p in ((0, 1) if not (r & 1) else (1, 0)):
                c = ACC + 8 * r + 4 * p
                M.append(f"v_mfma_f32_16x16x32_bf16 {V(c,4)}, {V(f+32+4*p,4)}, {V(f+4*r,4)}, {V(c,4)}")
        return M
    stamp0(a, 4)
    a("s_waitcnt vmcnt(9)")
    stamp0(a, 5)
    for c in range(4): a1_k(c)
    a("s_waitcnt vmcnt(1)")
    stamp0(a, 6)
    for c in range(4): a1_v(c)
    stamp0(a, 7)
    a("s_waitcnt lgkmcnt(0)\ns_barrier")
    stamp(a, 1)
    for x in reads(0, 0): a(x)
    if OPT["prioc"]: a(f"s_setprio {OPT['prioc']}")
    for i in range(4):
        a(f"ds_read_b128 {V(STG+4*i,4)}, v{STA+i} offset:{1024*i}")
    KP, KA = 244, 246
    def ool_spin(lbl, load, test):
        o_ = Asm()
        o_.label(lbl)
        o_("s_mov_b32 s39, 0")
        o_.label(lbl + "_s")
        o_(f"""{load}
        s_add_u32 s39, s39, 1
        s_waitcnt vmcnt(0)
        s_cmp_gt_u32 s39, {SPIN}
        s_cbranch_scc1 {lbl}_r
        {test}
        s_cbranch_scc0 {lbl}_s
        s_branch {lbl}_r""")
        OOL.extend(o_.l)
        a(f"{test}\ns_cbranch_scc0 {lbl}")
        a.label(lbl + "_r")
    NLD = f"buffer_load_dwordx2 {V(GR+2,2)}, off, {S(DB)}, 0 sc1"
    KPL = f"buffer_load_dwordx2 {V(KP,2)}, v{KA}, {S(FL)}, s21 offen sc1"
    def hook(hs):
        if hs == 0:
            for i in range(4):
                a(f"buffer_store_dwordx4 {V(STG+4*i,4)}, v{KVG}, {S(KV)}, {['0','s36','s37','s38'][i]} offen sc1")
            a(NLD)
            a(f"v_lshlrev_b32 v{KA}, 3, v12\nv_lshlrev_b32 v{KA+1}, 4, v2")
        if hs == OPT["fs"]:
            a("s_waitcnt vmcnt(0)")
            ool_spin("C_non", NLD, f"v_readfirstlane_b32 s7, v{GR+2}\ns_cmp_lg_u32 s7, 0")
            a(f"""s_mov_b64 exec, 1
            buffer_store_dwordx2 {V(GR+2,2)}, off, {S(FL)}, s20 sc1
            ds_write_b64 v{NA}, {V(GR+2,2)}
            s_mov_b64 exec, -1""")
        if hs == OPT["ps"]: a(KPL)
        if hs == OPT["pc"]:
            assert hs >= 2 * RFREE
            a("s_waitcnt vmcnt(0)")
            ool_spin("C_kvp", KPL, f"""v_cmp_eq_u32 vcc, v{KP}, v{GR+2}
            v_cmp_eq_u32 s[54:55], v{KP+1}, v{GR+3}
            s_mov_b32 m0, s23
            s_and_b64 s[54:55], s[54:55], vcc
            s_cmp_eq_u64 s[54:55], -1""")
            for j in range(4):
                a(f"buffer_load_dwordx4 v{KA+1}, {S(KV)}, s22 offen offset:{1024*j} sc1 lds")
        if hs == OPT["kl"]: a("s_waitcnt vmcnt(0)")
    assert 0 < OPT["fs"] < OPT["ps"] < OPT["pc"] < OPT["kl"] and OPT["kl"] & 1
    for s in range(16):
        a(f"s_cmp_eq_u32 s34, {s}\ns_waitcnt lgkmcnt(0)\ns_cbranch_scc1 C_x{s}")
        a.label(f"C_x{s}_r")
        o_ = Asm()
        o_.label(f"C_x{s}")
        o_(f"v_add_u32 v{XA}, {SLOT[s]}, v{XA}\nv_add_u32 v{XA+1}, {SLOT[s]}, v{XA+1}")
        for t in range(2):
            for h in range(2):
                o_(f"ds_read_b128 {V(XF+8*t+4*h,4)}, v{XA+h} offset:{2048*t}")
        o_(f"s_branch C_x{s}_r")
        OOL.extend(o_.l)
        hook(2 * s)
        interleave(a, mfmas(0), reads(s, 1), 1)
        hook(2 * s + 1)
        a("s_waitcnt lgkmcnt(0)")
        if s < 15: a("s_barrier")
        M = mfmas(1)
        if s == 15:
            a("v_mov_b32 v3, 1\nv_mov_b32 v15, 2")
            cl = f"ds_write_b32 v{FA}, v3 offset:{L_F + 48 - L_N}"
            if OPT["gate"] and SA == 16: a(cl)
            elif OPT["gate"]: M[8] += "\n" + cl
            a(f"ds_write_b32 v{FA}, v{GR+2} offset:{L_F - L_N}")
        interleave(a, M, reads(s + 1, 0) if s < 15 else [], 1)
    stamp(a, 2)
    a("s_nop 3")
    SC = [False]
    def pk(op, d, x, y, c=None, neg=False):
        if SC[0]:
            for i in range(2):
                n = "-" if neg else ""
                if c is None: a(f"v_mul_f32 v{d+i}, {n}v{x+i}, v{y+i}")
                elif c == d and not neg: a(f"v_fmac_f32 v{d+i}, v{x+i}, v{y+i}")
                else: a(f"v_fma_f32 v{d+i}, {n}v{x+i}, v{y+i}, v{c+i}")
            return
        n = ""
        if neg: n = " neg_lo:[1,0,0] neg_hi:[1,0,0]" if c is not None else " neg_lo:[1,0] neg_hi:[1,0]"
        if c is None: a(f"v_pk_mul_f32 {V(d,2)}, {V(x,2)}, {V(y,2)}{n}")
        else: a(f"v_pk_fma_f32 {V(d,2)}, {V(x,2)}, {V(y,2)}, {V(c,2)}{n}")
    def cm4(dr, di, k, xr, xi, cr=None, ci=None, s=(0, 0, 1, 0)):
        for h in (0, 2):
            pk("f", dr + h, k + h, xr + h, None if cr is None else cr + h, s[0])
            pk("f", di + h, k + h, xi + h, None if ci is None else ci + h, s[1])
        for h in (0, 2):
            pk("f", dr + h, k + 4 + h, xi + h, dr + h, s[2])
            pk("f", di + h, k + 4 + h, xr + h, di + h, s[3])
    def Ur(r): return ACC + 8 * r
    def Ui(r): return ACC + 8 * r + 4
    EB = [128, 136]
    W, PL, SH_, MU, AC_, MM, U0, PK = 144, 152, 168, 176, 184, 192, 200, 128
    CPE = OPT["cpe"]
    if CPE:
        assert OPT["shsc"] and OPT["lbp"] == 2 and OPT["nh"] == 8 and OPT["ncb"] == 2 and CPE <= min(4, OPT["ncc"])
        PL, SH_, AC_, MM, U0 = 24, 144, 152, 136, 48
    e = Ur(0)
    for r in range(1, 8):
        d = EB[r & 1]
        cm4(d, d + 4, L, e, e + 4, Ur(r), Ui(r))
        e = d
    for i in range(4):
        a(f"""v_mul_f32_dpp v{W+i}, v{P8+i}, v{e+i} row_mirror {DM}
        v_mul_f32_dpp v{W+4+i}, v{P8+i}, v{e+4+i} row_mirror {DM}""")
    for i in range(4):
        a(f"""v_fmac_f32_dpp v{W+i}, -v{P8+4+i}, v{e+4+i} row_mirror {DM}
        v_fmac_f32_dpp v{W+4+i}, v{P8+4+i}, v{e+i} row_mirror {DM}""")
    for i in (0, 4, 1, 5, 2, 6, 3, 7):
        a(f"v_add_f32_dpp v{W+i}, v{W+i}, v{W+i} quad_perm:[1,0,3,2] {DM}")
    for i in range(4):
        a(f"v_cndmask_b32 v{44+i}, v{W+2*i}, v{W+2*i+1}, s[48:49]")
    for i in range(4):
        if i == 0: a("s_nop 0")
        a(f"v_add_f32_dpp v{44+i}, v{44+i}, v{44+i} quad_perm:[2,3,0,1] {DM}")
    a(f"""v_cndmask_b32 v{GR}, v44, v45, s[50:51]
    v_cndmask_b32 v{GR+1}, v46, v47, s[50:51]
    s_nop 0
    v_add_f32_dpp v{GR}, v{GR}, v{GR} row_ror:4 {DM}
    v_add_f32_dpp v{GR+1}, v{GR+1}, v{GR+1} row_ror:4 {DM}
    s_nop 0
    v_add_f32_dpp v{GR}, v{GR}, v{GR} row_ror:8 {DM}
    v_add_f32_dpp v{GR+1}, v{GR+1}, v{GR+1} row_ror:8 {DM}
    s_mov_b64 exec, s[52:53]
    buffer_store_dwordx4 {V(GR,4)}, v{PUB}, {S(ES)}, 0 offen sc1
    s_mov_b64 exec, -1""")
    CAD = 244
    def csetup():
        a(f"""s_and_b32 s7, s3, {12 * OPT['xrot']}
        s_add_u32 s7, s7, s4
        s_and_b32 s36, s7, 15
        v_lshrrev_b32 v1, 3, v2
        v_and_b32 v44, 7, v2
        v_xor_b32 v44, v44, v13
        v_lshlrev_b32 v44, 4, v44
        v_lshl_add_u32 v44, v1, 13, v44
        s_lshl_b32 s7, s4, 6
        s_add_u32 s7, s7, s5
        s_lshl_b32 s7, s7, 11
        v_add_u32 v{CAD}, s7, v44
        v_xor_b32 v{CAD+1}, 64, v{CAD}
        v_add_u32 v{CAD+1}, {65536-1024}, v{CAD+1}
        v_xor_b32 v{CAD+2}, 32, v{CAD}
        v_xor_b32 v{CAD+3}, 32, v{CAD+1}
        s_lshl_b32 s20, s36, 7
        s_and_b32 s22, s20, 1024
        s_xor_b32 s23, s22, 1024
        s_lshl_b32 s21, s5, 11""")
        if OPT["ot"]:
            a(f"""v_lshlrev_b32 v1, 12, v1
            v_and_b32 v44, 7, v2
            v_lshl_add_u32 v1, v44, 7, v1
            v_lshlrev_b32 v44, 4, v2
            v_sub_u32 v1, v1, v44
            v_add_u32 v{PUB}, v{HST}, v1""")
    def ldC(k, r=None):
        if OPT["hord"]: a(f"s_add_u32 s7, s20, {128*k}\ns_and_b32 s7, s7, 1023\ns_or_b32 s7, s7, s{22 + (k >> 3)}")
        else: a(f"s_add_u32 s7, s20, {128*k}\ns_and_b32 s7, s7, 2047")
        for j in range(4):
            tail = f"v{CAD+j}, {S(CI if j & 2 else CR)}, s7 offen offset:{1024*(j&1)}"
            if r is None:
                if not j & 1: a(f"s_add_u32 m0, s21, {16384*k + 4096*j}\ns_nop 0")
                a(f"buffer_load_dwordx4 {tail} lds")
            else: a(f"buffer_load_dwordx4 {V(r+4*j,4)}, {tail}")
    def wchk(off, t=56):
        a(f"""ds_read_b128 v[{t}:{t+3}], v{NA} offset:{L_F + off - L_N}
        s_waitcnt lgkmcnt(0)
        v_xor_b32 v{t}, v{t}, v{GR+2}
        v_xor_b32 v{t+1}, v{t+1}, v{GR+2}
        v_xor_b32 v{t+2}, v{t+2}, v{GR+2}
        v_xor_b32 v{t+3}, v{t+3}, v{GR+2}
        v_or3_b32 v{t}, v{t}, v{t+1}, v{t+2}
        v_or_b32 v{t}, v{t}, v{t+3}
        v_cmp_ne_u32 vcc, 0, v{t}""")
    def g1done():
        assert SLOT[15] == 65536
        a("s_mov_b32 s39, 0")
        a.label("C_g1d")
        wchk(0, 44)
        a(f"""s_add_u32 s39, s39, 1
        s_cmp_gt_u32 s39, {SPIN * 4}
        s_cbranch_scc1 C_g1d_ok
        s_cbranch_vccnz C_g1d""")
        a.label("C_g1d_ok")
    LBI = OPT["lbi"]
    FSH_ = OPT["pks"]
    assert not FSH_ or (CPE and LBI < 0 and OPT["gate"] == 1 and not OPT["ccd"])
    PLS = [PL + 4 * j for j in range(4)] if LBI < 0 and not FSH_ else [128, 132, 144, 148]
    def lbpoll():
        for j in range(4):
            a(f"buffer_load_dwordx4 {V(PLS[j],4)}, v{LBK+j}, {S(ES)}, 0 offen sc1")
    if OPT["lbp"] == 0: lbpoll()
    GO = f"ds_write_b32 v{FA}, v15 offset:{L_F + 48 - L_N}"
    if FSH_:
        if OPT["fpl"] == 0: lbpoll()
    elif OPT["shsc"]:
        SC[0] = True
        if OPT["gate"]: a(GO)
    if OPT["ccd"] == 2:
        csetup(); g1done()
        for t in ([] if OPT["d15"] else [14]) + [15]:
            for k in (SLOT[t] // 16384, SLOT[t] // 16384 + 1): ldC(k)
    EREG = [160, 176, 192, 224]
    if CPE and not FSH_:
        if OPT["ccd"] != 2: csetup()
        for i in range(CPE - OPT["cpw"] if LBI < 0 else 0): ldC(6 + i, EREG[i])
    if OPT["lbp"] == 1: lbpoll()
    stamp(a, 3)
    sh0 = len(a.l)
    F = EB[0]
    SHB = SH_
    if FSH_: F, SH_, MU = 160, 168, 176
    assert e == EB[1]
    for i in range(8):
        a(f"v_mov_b32_dpp v{F+i}, v{e+i} row_shr:1 {DM} bound_ctrl:0")
    for sft in (1, 2, 4, 8):
        if SC[0]:
            if sft == 1: a("s_nop 0")
            for i in range(8):
                a(f"v_mov_b32_dpp v{SH_+i}, v{F+i} row_shr:{sft} {DM} bound_ctrl:0")
            nb = f"row_newbcast:{sft} {DM}"
            for i in range(4): a(f"v_fmac_f32_dpp v{F+i}, v{P8+i}, v{SH_+i} {nb}")
            for i in range(4): a(f"v_fmac_f32_dpp v{F+4+i}, v{P8+i}, v{SH_+4+i} {nb}")
            for i in range(4): a(f"v_fmac_f32_dpp v{F+i}, -v{P8+4+i}, v{SH_+4+i} {nb}")
            for i in range(4): a(f"v_fmac_f32_dpp v{F+4+i}, v{P8+4+i}, v{SH_+i} {nb}")
            continue
        for h in range(0, 8, 2):
            a(f"v_mov_b64_dpp {V(MU+h,2)}, {V(P8+h,2)} row_newbcast:{sft} {DM}")
        for i in (0, 1, 4, 5, 2, 3, 6, 7):
            a(f"v_mov_b32_dpp v{SH_+i}, v{F+i} row_shr:{sft} {DM} bound_ctrl:0")
        cm4(F, F + 4, MU, SH_, SH_ + 4, F, F + 4)
    for i in range(CPE - OPT["cpw"], CPE if LBI < 0 and not FSH_ else 0): ldC(6 + i, EREG[i])
    cm4(AC_, AC_ + 4, C2, F, F + 4, s=(0, 1, 1, 1))
    sh1 = len(a.l) - sh0
    cm4(MM, MM + 4, C2, P8, P8 + 4)
    SH_ = SHB
    if FSH_ and OPT["fpl"] == 1: lbpoll()
    if FSH_ == 2:
        a(GO); csetup(); SC[0] = True
        sh0 = len(a.l)
    def U2(r): return U0 if r == 0 else Ur(r - 1)
    for r in range(8):
        for h in (0, 2):
            pk("m", U2(r) + h, C2 + h, Ur(r) + h)
        for h in (0, 2):
            pk("f", U2(r) + h, C2 + 4 + h, Ui(r) + h, U2(r) + h, True)
        for h in (0, 2):
            pk("m", Ui(r) + h, C2 + h, Ui(r) + h, None, True)
        for h in (0, 2):
            pk("f", Ui(r) + h, C2 + 4 + h, Ur(r) + h, Ui(r) + h, True)
    SC[0] = False
    if OPT["gate"] == 1 and not OPT["shsc"]: a(GO)
    if OPT["ccd"] != 2 and not CPE: csetup()
    if OPT["ccd"] == 1: g1done()
    if FSH_ == 3:
        csetup()
        if not OPT["fgo"]: a(GO)
        after = 0
    elif FSH_ == 1:
        if OPT["fpl"] == 2: lbpoll()
        a(GO); csetup()
        for i in range(CPE): ldC(6 + i, EREG[i])
        after = 4 * CPE
    elif LBI >= 0 or FSH_:
        assert CPE and not OPT["ccd"]
        SHD = a.l[sh0:]; del a.l[sh0:]
        ins = {}
        main_ = a.l
        for i in range(CPE):
            a.l = []; ldC(6 + i, EREG[i]); x = a.l
            n0 = len(x) - 4
            for j in range(4):
                ins.setdefault(min(len(SHD), OPT["c0"] + OPT["cd"] * (4 * i + j)), []).append((x[:n0] if j == 0 else []) + [x[n0 + j]])
        a.l = []; lbpoll(); pl_ = a.l
        a.l = main_
        after = 0 if FSH_ else -1
        for n_ in range(len(SHD) + 1):
            if n_ == min(len(SHD), sh1 + LBI) and not FSH_:
                a.l.extend(pl_); after = 0
            for x in ins.get(n_, []):
                a.l.extend(x)
                if after >= 0: after += 1
            if n_ < len(SHD): a.l.append(SHD[n_])
    elif OPT["lbp"] == 2: lbpoll()
    stamp(a, 4)
    a("s_mov_b32 s39, 0")
    if (LBI >= 0 or FSH_) and after: a(f"s_waitcnt vmcnt({after})\ns_branch C_chk1")
    if FSH_ == 3: a("s_mov_b32 s33, 0\ns_branch C_f0")
    a.label("C_chk")
    a("s_waitcnt vmcnt(0)")
    if (LBI >= 0 or FSH_) and after: a.label("C_chk1")
    def lbeval(ok):
        for j in range(4):
            b = PLS[j]
            a(f"""v_cmp_eq_u32 vcc, v{b+2}, v{GR+2}
            v_cmp_eq_u32 s[54:55], v{b+3}, v{GR+3}
            s_and_b64 s[54:55], s[54:55], vcc
            s_or_b64 s[{56+2*j}:{57+2*j}], s[54:55], s[{40+2*j}:{41+2*j}]""")
        a(f"""s_and_b64 s[56:57], s[56:57], s[58:59]
        s_and_b64 s[60:61], s[60:61], s[62:63]
        s_and_b64 s[56:57], s[56:57], s[60:61]
        s_cmp_eq_u64 s[56:57], -1
        s_cbranch_scc1 {ok}""")
    lbeval("C_ok")
    a(f"""s_add_u32 s39, s39, 1
    s_cmp_gt_u32 s39, {SPIN}
    s_cbranch_scc1 C_ok""")
    lbpoll()
    a("s_branch C_chk")
    if FSH_ == 3:
        a.label("C_f0")
        a("s_waitcnt vmcnt(0)")
        lbeval("C_ok0" if OPT["fgo"] else "C_ok")
        if OPT["fgo"]: a(GO)
        FN = OPT["fn"]
        for i in range(0, CPE, FN):
            lbpoll()
            for i_ in range(i, i + FN): ldC(6 + i_, EREG[i_])
            a(f"s_mov_b32 s33, {i + FN}\ns_waitcnt vmcnt({4 * FN})")
            lbeval("C_ok")
        lbpoll()
        a("s_branch C_chk")
    a.label("C_ok")
    if OPT["gate"] == 1: a(f"ds_write_b32 v{FA}, v3 offset:{L_F + 48 - L_N}")
    if FSH_ == 3 and OPT["fgo"]: a.label("C_ok0")
    stamp(a, 5)
    cmul(a, PLS[2], PLS[3], L512, PLS[2])
    cmul(a, PLS[1], PLS[2], L512, PLS[1])
    cmul(a, PLS[0], PLS[1], L512, PLS[0])
    cmul(a, 44, PLS[0], G128)
    a(f"""s_nop 0
    v_add_f32_dpp v44, v44, v44 row_ror:4 {DM}
    v_add_f32_dpp v45, v45, v45 row_ror:4 {DM}
    s_nop 0
    v_add_f32_dpp v44, v44, v44 row_ror:8 {DM}
    v_add_f32_dpp v45, v45, v45 row_ror:8 {DM}
    s_nop 0""")
    for i in range(4):
        a(f"v_mov_b32_dpp v{SH_+i}, v44 {qb(i)}\nv_mov_b32_dpp v{SH_+4+i}, v45 {qb(i)}")
    cm4(AC_, AC_ + 4, MM, SH_, SH_ + 4, AC_, AC_ + 4, s=(0, 1, 1, 1))
    pr, pi = AC_, AC_ + 4
    def hout(r):
        o = PK + 4 * r
        a(f"""v_permlane32_swap_b32 v{o}, v{o+2}
        v_permlane32_swap_b32 v{o+1}, v{o+3}
        s_mov_b32 s6, {4096*r}
        buffer_store_dwordx4 {V(o,4)}, v{HST}, {S(HS)}, s6 offen{FLV[0 if OPT['hw'] else OPT['hsf']]}""")
    for r in range(8):
        cm4(U2(r), Ui(r), L, pr, pi, U2(r), Ui(r), s=(0, 0, 0, 1))
        pr, pi = U2(r), Ui(r)
        if r: hout(r - 1)
        o = PK + 4 * r
        a(f"""v_cvt_pk_bf16_f32 v{o}, v{pr}, v{pr+1}
        v_cvt_pk_bf16_f32 v{o+2}, v{pi}, v{pi+1}
        v_cvt_pk_bf16_f32 v{o+1}, v{pr+2}, v{pr+3}
        v_cvt_pk_bf16_f32 v{o+3}, v{pi+2}, v{pi+3}""")
    a("s_nop 0")
    hout(7)
    if OPT["gate"]: a(GO)
    stamp(a, 6)
    CA, CB, HA, OA2, HFP, PLL = 4, 8, 48, 50, 51, 248
    NCB = OPT['ncb']
    NH = OPT['nh']
    CD = NCB // 2
    assert OPT['hd'] < NH
    ACC, HR, CF, DG = 16, 64, 64 + 8 * NH, 64
    NCC = OPT["ncc"]
    PREG = sorted([CF + 16 * NCB + 16 * i for i in range(NCC)], key=lambda r: r == XF)
    assert (not PREG or max(PREG) + 16 <= 240) and CF + 16 * NCB <= XF and (XF - CF) % 16 == 0
    vm = VM()
    vm.add("st")
    def st2():
        for r in range(8):
            a(f"s_mov_b32 s6, {4096*r}\nbuffer_store_dwordx4 {V(PK+4*r,4)}, v{HST}, {S(HS)}, s6 offen{FLV[OPT['ds2'] - 1]}"); vm.add("s2")
    if OPT["ds2"] and OPT["dsp"] == 0: st2()
    for i in range(OPT["ot"]):
        a(f"buffer_load_dword v{252+i}, v{PUB}, {S(HS)}, 0 offen offset:{64*i}{FLV[OPT['otf']]}"); vm.add("ot")
    assert PREG[:CPE] == EREG[:CPE] and CPE + OPT["cpl"] <= NCC
    NPRE = NCC - OPT["cpl"]
    if OPT["ccd"] == 1:
        for k in (SLOT[15] // 16384, SLOT[15] // 16384 + 1):
            ldC(k); vm.add("cd", 4)
    if FSH_ == 3:
        for i in range(CPE):
            a(f"s_cmp_gt_u32 s33, {i}\ns_cbranch_scc1 C_dn{i}")
            ldC(6 + i, EREG[i])
            a.label(f"C_dn{i}")
    for i in range(CPE, NPRE):
        if PREG[i] != XF:
            ldC(6 + i, PREG[i]); vm.add(f"C{i}", 4)
    CW = 52
    a(f"""v_lshlrev_b32 v1, 4, v2
    v_add_u32 v{CW}, s21, v1
    v_add_u32 v{CW+1}, 0xc000, v{CW}""")
    a(f"""v_lshrrev_b32 v1, 1, v13
    v_lshl_add_u32 v{CB}, v1, 13, v4
    v_xor_b32 v{CB+1}, 32, v{CB}
    v_xor_b32 v{CB+2}, 64, v{CB}
    v_xor_b32 v{CB+3}, 96, v{CB}
    s_lshl_b32 s6, s3, 6
    s_add_u32 s6, s6, s5
    s_lshl_b32 s6, s6, 13
    v_lshlrev_b32 v1, 4, v2
    v_add_u32 v{HA}, s6, v1
    v_add_u32 v{HA+1}, 4096, v{HA}
    s_lshl_b32 s6, s6, 1                ; (128 mt + 2 w) * 8192
    s_lshl_b32 s7, s4, 8
    s_add_u32 s6, s6, s7
    s_add_u32 s6, s6, 4096
    v_lshlrev_b32 v{OA2}, 18, v13
    v_lshl_add_u32 v{OA2}, v12, 4, v{OA2}
    v_add_u32 v{OA2}, s6, v{OA2}          ; out offset
    v_lshlrev_b32 v1, 1, v13
    v_sub_u32 v1, v12, v1           ; n - 2g = 8h + e
    v_cmp_eq_u32 s[40:41], 0, v1
    v_cmp_eq_u32 s[42:43], 1, v1
    v_cmp_eq_u32 s[44:45], 8, v1
    v_cmp_eq_u32 s[46:47], 9, v1
    v_and_b32 v56, 0xffff, v{DSK}
    v_and_b32 v57, 0xffff0000, v{DSK}
    v_and_b32 v58, 0xffff, v{DSK+1}
    v_and_b32 v59, 0xffff0000, v{DSK+1}
    s_lshl_b32 s7, s3, 13
    s_add_u32 s7, s7, {FL_H}
    v_lshrrev_b32 v1, 2, v2
    v_xor_b32 v3, s36, v1
    v_add_u32 v1, s36, v1
    v_and_b32 v1, {7 if OPT["hord"] else 15}, v1
    v_and_b32 v3, {8 if OPT["hord"] else 0}, v3
    v_or_b32 v1, v1, v3
    v_lshlrev_b32 v1, {OPT['hsh']}, v1
    v_add_u32 v{HFP}, s7, v1
    s_lshl_b32 s6, s4, {OPT['hsh']}
    s_add_u32 s6, s6, s7
    v_lshl_add_u32 v3, v12, 3, s6
    s_lshl_b32 s38, s36, 15
    s_and_b32 s30, s38, 0x40000
    s_xor_b32 s31, s30, 0x40000
    s_xor_b32 s35, s38, 0x40000
    s_lshl_b32 s6, s3, 19
    s_lshl_b32 s7, s5, 13
    s_add_u32 s6, s6, s7
    v_lshlrev_b32 v1, 7, v2
    v_add_u32 v60, s6, v1               ; touch offset
    s_mov_b32 s34, 1
    s_mov_b32 s37, 0""")
    for b in range(4):
        for h in range(2):
            for r in range(4):
                d = DG + 8 * b + 4 * h + r
                if (r & 1) == (b >> 1):
                    m = 40 + 4 * h + 2 * (r >> 1)
                    a(f"v_cndmask_b32 v{d}, 0, v{56+b}, s[{m}:{m+1}]")
                else:
                    a(f"v_mov_b32 v{d}, 0")
    for i in range(4): a(f"v_add_u32 v{CA+i}, 0xc000, v{CB+i}")
    for h in range(2):
        for t in range(2):
            for b in range(4):
                c = ACC + 16 * t + 4 * b
                a(f"v_mfma_f32_16x16x32_bf16 {V(c,4)}, {V(XF+8*t+4*h,4)}, {V(DG+8*b+4*h,4)}, {V(c,4) if h else 0}")
    PROG = OPT["prog"]
    assert not (PROG and OPT["xrot"])
    PR = 240
    if XF in PREG[:NPRE]:
        ldC(6 + NCC - 1, XF); vm.add(f"C{NCC-1}", 4)
    def poll(r): return f"buffer_load_dwordx2 {V(r,2)}, v{HFP}, {S(FL)}, 0 offen sc1"
    def peval(r):
        return f"""v_cmp_eq_u32 vcc, v{r}, v{GR+2}
        v_cmp_eq_u32 s[54:55], v{r+1}, v{GR+3}
        s_nop 0
        s_and_b64 s[54:55], s[54:55], vcc
        s_or_b32 s54, s54, 15
        {"s_or_b32 s48, s48, s54" if OPT["dyn"] else ""}
        s_ff0_i32_b64 s7, s[54:55]
        s_lshr_b32 s7, s7, 2
        s_max_u32 s37, s37, s7""".split("\n")
    nt_ = [0]
    def htouch():
        if not OPT["ht"]: return ""
        lbl = f"C2_t{nt_[0]}"; nt_[0] += 1
        o_ = Asm()
        o_.label(lbl)
        o_(f"""s_mov_b32 s34, 0
        buffer_load_dword v61, v60, {S(HS)}, s35 offen sc1
        {f"buffer_load_dword v61, v60, {S(HS)}, s35 offen offset:64 sc1" if OPT["ht"] == 1 else ""}
        s_branch {lbl}_r""")
        OOL.extend(o_.l)
        return f"\ns_and_b32 s7, s55, s34\ns_cbranch_scc1 {lbl}\n{lbl}_r:"
    DYN, DY = OPT["dyn"], 61
    assert DYN in (0, 2, 3) and (not DYN or (OPT["hord"] and PROG and not OPT["ht"] and FSH_ != 3 and NCC == 5))
    if DYN: a(f"s_mov_b32 s48, 0\ns_mov_b32 s49, {((1 << 4 * DYN) - 1) << 4}\ns_mov_b32 s33, s38")
    def dpick(j):
        lbl = f"C2_d{j}"
        o_ = Asm()
        o_.label(lbl)
        o_("s_mov_b32 s39, 0")
        o_.label(lbl + "_s")
        o_(f"""{poll(PLL)}
        s_add_u32 s39, s39, 1
        s_mov_b32 s7, s49
        s_waitcnt vmcnt(0)
        s_cmp_gt_u32 s39, {SPIN}
        s_cbranch_scc1 {lbl}_r""")
        o_("\n".join(peval(PLL)))
        o_(f"""s_and_b32 s7, s48, s49
        s_cbranch_scc0 {lbl}_s
        s_branch {lbl}_r""")
        OOL.extend(o_.l)
        return f"""s_and_b32 s7, s48, s49
        s_cbranch_scc0 {lbl}
        {lbl}_r:
        s_ff1_i32_b32 s7, s7
        s_lshl_b32 s6, 15, s7
        s_lshl_b32 s{50+j}, s7, 12
        s_lshl_b32 s7, s7, 13
        s_andn2_b32 s49, s49, s6
        s_add_u32 s38, s33, s7
        s_and_b32 s38, s38, 0x3ffff
        s_or_b32 s38, s38, s30"""
    def hchk(b):
        if b <= DYN: return dpick(b)
        lbl = f"C2_h{b}"
        o_ = Asm()
        o_.label(lbl)
        o_("s_mov_b32 s39, 0")
        o_.label(lbl + "_s")
        o_(f"""{poll(PLL)}
        s_add_u32 s39, s39, 1
        s_waitcnt vmcnt(0)
        s_cmp_gt_u32 s39, {SPIN}
        s_cbranch_scc1 {lbl}_r""")
        o_("\n".join(peval(PLL)))
        o_(f"""s_cmp_gt_u32 s37, {b}
        s_cbranch_scc0 {lbl}_s
        s_branch {lbl}_r""")
        OOL.extend(o_.l)
        return f"s_cmp_gt_u32 s37, {b}\ns_cbranch_scc0 {lbl}\n{lbl}_r:"
    if OPT["spr"] != 3: a(f"s_setprio {OPT['spr']}")
    PQ = OPT["pq"]
    if OPT["ds2"] and OPT["dsp"] == 1: st2()
    if PROG and not PQ:
        a(poll(PR)); vm.add("p0")
    if FSH_ == 3:
        for i in range(CPE): a(f"s_waitcnt vmcnt({vm.cnt('st') + 4 * (CPE - i)})\ns_cmp_eq_u32 s33, {i}\ns_cbranch_scc1 C_stw")
        a(f"s_waitcnt vmcnt({vm.cnt('st')})")
        a.label("C_stw")
        a(f"ds_write_b32 v{FA}, v{GR+2} offset:{L_F + 16 - L_N}")
    else: a(f"s_waitcnt vmcnt({vm.cnt('st')})\nds_write_b32 v{FA}, v{GR+2} offset:{L_F + 16 - L_N}")
    if OPT["ds2"] and OPT["dsp"] == 2: st2()
    wchk(16)
    a(f"""s_mov_b32 s39, 0
    s_cbranch_vccnz C_nofl
    {"buffer_wbl2 sc1" if OPT["hw"] else ""}
    {"s_waitcnt vmcnt(0)" if OPT["hw"] else ""}
    s_mov_b64 exec, {(1 << min(16, 1 << (OPT['hsh'] - 3))) - 1}
    buffer_store_dwordx2 {V(GR+2,2)}, v3, {S(FL)}, 0 offen sc1
    s_mov_b64 exec, -1""")
    if PROG:
        a("s_branch C_own")
        a.label("C_nofl")
        wchk(16)
        a(f"""s_add_u32 s39, s39, 1
        s_cmp_gt_u32 s39, {SPIN * 4}
        s_cbranch_scc1 C_own
        s_cbranch_vccnz C_nofl""")
        a.label("C_own")
    else:
        a.label("C_nofl")
    stamp(a, 7)
    stamp_dump(a, 0)
    if not PROG:
        for i in range(NPRE, NCC):
            ldC(6 + i, PREG[i]); vm.add(f"C{i}", 4)
        spin_flags(a, "C_hspin", PLL, GR + 2, HFP, FL)
    HD = OPT["hd"]
    SKB = OPT["skb"]
    KS, HALF, CF2 = 64 - 4 * SKB, 2 * SKB, 160
    assert not SKB or (CD == 1 and OPT["hord"] and OPT["za"] <= KS // 4 and SKB <= 4)
    def frag(n):
        if n < KS: return [(0, n), (1, n)]
        t, p_ = divmod(n - KS, HALF)
        return [(t, KS + 2 * p_), (t, KS + 2 * p_ + 1)]
    def ogrp(t, i, o):
        x = "\n".join(f"v_mov_b32 v{o+b}, v{ACC+16*t+4*b+i}" for b in range(4))
        y = f"s_mov_b32 s6, {(8*i+t)*8192}"
        if 4 * t + i >= OPT["nob"]: y += f"\nbuffer_store_dwordx4 {V(o,4)}, v{OA2}, {S(OS)}, s6 offen{FLV[OPT['osb']]}"
        return x, y
    def hld(k):
        if k >= KS:
            return [f"buffer_load_dwordx4 {V(HR + 8*(k%NH) + 4*i, 4)}, v{HA+t}, {S(HS)}, s{40 + ((kk - KS) >> 2)} offen offset:{1024*(kk&3)} sc1" for i, (t, kk) in enumerate(frag(k))]
        if k == KS - 1:
            L_ = [f"buffer_load_dwordx4 {V(HR + 8*(k%NH) + 4*t, 4)}, v{HA+t}, {S(HS)}, s38 offen offset:3072 sc1" for t in range(2)]
            for i in range(SKB): L_[1] += f"\ns_add_u32 s{40+i}, s38, {32768*(i+1)}\ns_and_b32 s{40+i}, s{40+i}, 0x3ffff\ns_or_b32 s{40+i}, s{40+i}, s31"
            return L_
        L_ = [f"buffer_load_dwordx4 {V(HR + 8*(k%NH) + 4*t, 4)}, v{HA+t}, {S(HS)}, s38 offen offset:{1024*(k&3)} sc1" for t in range(2)]
        if k & 3 == 3 and k < 4 * DYN: pass
        elif k & 3 == 3 and DYN and k >> 2 == DYN: L_[1] += f"\ns_add_u32 s38, s33, {32768 * (DYN + 1)}\ns_and_b32 s38, s38, 0x3ffff\ns_or_b32 s38, s38, s30"
        elif k & 3 == 3 and OPT["hord"]: L_[1] += f"\ns_add_u32 s38, s38, 32768\ns_and_b32 s38, s38, 0x3ffff\ns_or_b32 s38, s38, s{30 + ((k + 1) >> 5 & 1)}"
        elif k & 3 == 3: L_[1] += "\ns_add_u32 s38, s38, 32768\ns_and_b32 s38, s38, 0x7ffff"
        return L_
    def crd(k):
        if k >= KS:
            L_ = []
            for i, (t, kk) in enumerate(frag(k)):
                sl = (kk >> 2) % 6
                L_ += [f"ds_read_b128 {V(CF2 + 32*(k&1) + 16*i + 4*b, 4)}, v{(CB if sl < 3 else CA)+(kk&3)} offset:{16384*(sl%3) + 2048*b}" for b in range(4)]
            return L_
        if 1 <= k >> 2 <= DYN:
            L_ = [f"ds_read_b128 {V(CF + 16*(k%NCB) + 4*b, 4)}, v{DY} offset:{2048*b}" for b in range(4)]
            L_[0] = f"v_add_u32 v{DY}, s{50 + (k >> 2)}, v{CB+(k&3)}\n" + L_[0]
            return L_
        sl = (k >> 2) % 6
        return [f"ds_read_b128 {V(CF + 16*(k%NCB) + 4*b, 4)}, v{(CB if sl < 3 else CA)+(k&3)} offset:{16384*(sl%3) + 2048*b}" for b in range(4)]
    OP, OQ = L_F + 80 - L_N, L_F + 32 - L_N
    def cnt_chk(lbl, r, off, need):
        test = f"""v_min3_u32 v{r}, v{r}, v{r+1}, v{r+2}
        v_min_u32 v{r}, v{r}, v{r+3}
        v_cmp_gt_u32 vcc, {need}, v{r}"""
        o_ = Asm()
        o_.label(lbl)
        o_("s_mov_b32 s39, 0")
        o_.label(lbl + "_s")
        o_(f"""ds_read_b128 {V(r,4)}, v{NA} offset:{off}
        s_add_u32 s39, s39, 1
        s_waitcnt lgkmcnt(0)
        {test}
        s_cmp_gt_u32 s39, {SPIN * 16}
        s_cbranch_scc1 {lbl}_r
        s_cbranch_vccnz {lbl}_s
        s_branch {lbl}_r""")
        OOL.extend(o_.l)
        return test.split("\n") + [f"s_cbranch_vccnz {lbl}\n{lbl}_r:"]
    a(f"ds_read_b128 v[12:15], v{NA} offset:{OQ}")
    def avail(b): return "s_and_b32 s7, s48, s49" if b <= DYN else f"s_cmp_gt_u32 s37, {b}"
    def pcond(b, tag, r):
        return f"{avail(b)}\ns_cbranch_scc1 C_pq{b}\ns_waitcnt vmcnt({vm.cnt(tag)})\n" + "\n".join(peval(r)) + f"\nC_pq{b}:"
    for k in range(HD if PQ else 0):
        assert HD == 7 and PROG
        if k == 0:
            a(poll(PR)); vm.add("pA")
        if k == 4:
            a(poll(PR + 2)); vm.add("pB")
        if k == OPT["xfp"]:
            for i in range(NPRE, NCC):
                ldC(6 + i, PREG[i]); vm.add(f"C{i}", 4)
        if k == 4:
            if OPT["xs"] == 2: stamp(a, 8)
            a(f"s_waitcnt vmcnt({vm.cnt('pA')})")
            for x in peval(PR): a(x)
            if OPT["xs"] == 3: stamp(a, 8)
            a(pcond(1, "pB", PR + 2))
            a(hchk(1))
            if OPT["xs"] == 4: stamp(a, 8)
        if k == 5:
            a(poll(PLL)); vm.add("pC")
        for x in hld(k):
            a(x); vm.add(f"h{k}")
    if PQ and OPT["xfp"] == 7:
        for i in range(NPRE, NCC):
            ldC(6 + i, PREG[i]); vm.add(f"C{i}", 4)
    for k in range(0 if PQ else HD):
        if k == 4 and OPT["xs"] == 1:
            a("s_waitcnt vmcnt(0)"); stamp(a, 8)
        if k == 4 and OPT["xs"] == 2: stamp(a, 8)
        if k == 4 and PROG:
            for i in range(NPRE, NCC):
                if i - NPRE == OPT["pp"]:
                    a(poll(PR + 2)); vm.add("p1")
                ldC(6 + i, PREG[i]); vm.add(f"C{i}", 4)
        if PROG and k == 4:
            a(f"s_waitcnt vmcnt({vm.cnt('p0')})")
            for x in peval(PR): a(x)
            if "p1" in vm.ops:
                a(f"s_cmp_gt_u32 s37, {OPT['ppn']}\ns_cbranch_scc1 C_p1\ns_waitcnt vmcnt({vm.cnt('p1')})")
                for x in peval(PR + 2): a(x)
                a.label("C_p1")
        if k == 4 and OPT["xs"] == 3: stamp(a, 8)
        if PROG and k and k % 4 == 0: a(hchk(k // 4))
        if k == 4 and OPT["xs"] == 4: stamp(a, 8)
        for x in hld(k):
            a(x); vm.add(f"h{k}")
    if PROG and OPT["hts"] == 0: a(htouch())
    stamp(a, 9 if OPT["xs"] else 8)
    NPL = OPT["npl"] if PROG else 0
    a("s_waitcnt lgkmcnt(0)")
    for x in cnt_chk("C_crdy", 12, OQ, 6): a(x)
    a(f"s_setprio {OPT['prio2']}")
    for k in range(CD):
        for x in crd(k): a(x)
    K0 = 6 + NCC
    lk = VM()
    for k in range(CD): lk.add(f"c{k}", 4)
    pend = {}
    for k in range(64):
        j, ph = divmod(k, 4)
        chkQ = K0 <= j + 1 < 16 and k <= KS
        chkP = (NCC and 2 <= j <= NCC + 3) or (OPT["ccd"] and j == 2)
        tags = [f"c{k}"] + (["w"] if (ph == 0 and (chkP or chkQ)) or (DYN == 3 and k == 27) else [])
        a(f"s_waitcnt vmcnt({vm.cnt(f'h{k}')}) lgkmcnt({min(15, lk.cnt(*tags))})")
        if TRACE and k % 2 == 1: a(f"s_waitcnt lgkmcnt(0)\nv_writelane_b32 v251, s60, {k >> 1}")
        if TRACE and k % 2 == 0: a("s_memrealtime s[60:61]")
        M = []
        for i, (t, kk) in enumerate(frag(k) if k >= KS else []):
            for b in range(4):
                c = ACC + 16 * t + 4 * b
                M.append(f"v_mfma_f32_16x16x32_bf16 {V(c,4)}, {V(HR + 8*(k%NH) + 4*i, 4)}, {V(CF2 + 32*(k&1) + 16*i + 4*b, 4)}, {V(c,4)}")
        for t in range(2 if k < KS else 0):
            for b in (range(4) if t == 0 else reversed(range(4))):
                c = ACC + 16 * t + 4 * b
                M.append(f"v_mfma_f32_16x16x32_bf16 {V(c,4)}, {V(HR + 8*(k%NH) + 4*t, 4)}, {V(CF + 16*(k%NCB) + 4*b, 4)}, {V(c,4)}")
        F_ = []
        if DYN == 3 and k == 27: a("\n".join(cnt_chk("C2_pv", 56, OP, 6)))
        if k + CD < 64: F_ += [(x, f"c{k+CD}") for x in crd(k + CD)]
        if DYN == 3 and k == 26: F_.append((f"ds_read_b128 v[56:59], v{NA} offset:{OP}", "w"))
        if ph == 3 and j < 15 and k < KS:
            F_.append((f"v_mov_b32 v1, {j+1}\nds_write_b32 v{FA}, v1 offset:{OP}", "p"))
            if (NCC and 2 <= j + 1 <= NCC + 3) or (OPT["ccd"] and j == 1): F_.append((f"ds_read_b128 v[56:59], v{NA} offset:{OP}", "w"))
            if K0 <= j + 2 < 16: F_.append((f"ds_read_b128 v[12:15], v{NA} offset:{OQ}", "w"))
        if ph == 0 and j < NPL:
            r = PR + 2 * ((j + 2) % 3)
            F_.append((poll(r), "@p"))
            pend[k + HD + 1] = r
        if k in pend: F_.append(("\n".join(peval(pend[k])) + (htouch() if k >= OPT["hts"] else ""), None))
        if k + HD < 64:
            H_ = hld(k + HD)
            t0_, k0_ = frag(k + HD)[0]
            if PROG and t0_ == 0 and k0_ % 4 == 0: H_[0] = hchk(k0_ // 4) + "\n" + H_[0]
            if PQ and k == 1: H_[0] = pcond(2, "pB", PR + 2) + "\n" + H_[0]
            if PQ and k == 5: H_[0] = "\n".join(peval(PLL)) + "\n" + H_[0]
            F_ += [(x, f"@h{k+HD}") for x in H_]
        if ph == 0 and chkP: F_ += [(x, None) for x in cnt_chk(f"C2_p{j}", 56, OP, j - 1)]
        if ph == 0 and chkQ: F_ += [(x, None) for x in cnt_chk(f"C2_q{j}", 12, OQ, 16 if k == KS else j + 2)]
        if SKB:
            for i in range(4):
                if k == min(63, KS + HALF + 1 + i // OPT["sks"]):
                    x, y = ogrp(0, i, 224 + 4 * i)
                    F_ += [(x, None), (y, "@st")]
        for b in range(6, K0):
            if j != (max(b - 4, DYN + 2) if 7 <= b <= 6 + DYN else b - 4): continue
            sl = b % 6
            F_.append((f"ds_write_b128 v{CW + (sl >= 3)}, {V(PREG[b-6]+4*ph,4)} offset:{16384 * (sl % 3) + 8192 * (ph >> 1) + 1024 * (ph & 1)}", "x"))
            if ph == 3:
                i0 = [i for i, f in enumerate(F_) if f[1] == "p"][0]
                F_.insert(i0, F_.pop())
        for i, m in enumerate(M):
            a(m)
            per = 2 if i < (4 if k + 1 >= KS else 2) else max(1, -(-len(F_) // (8 - i)))
            for _ in range(per):
                if F_:
                    x, t = F_.pop(0)
                    a(x)
                    if t and t[0] == "@": vm.add(t[1:])
                    elif t: lk.add(t)
        assert not F_
        if k == 0 and not OPT["xs"]: stamp(a, 9)
    a("s_nop 7\ns_nop 2" if SKB else "s_nop 5")
    stamp(a, 10)
    for t in range(1 if SKB else 0, 2):
        for i in range(4): a("\n".join(ogrp(t, i, 64 + 16 * t + 4 * i)))
    stamp(a, 11)

def main():
    a = Asm()
    name = NAME + "_kernel" if OPT["single"] else "f_kernel"
    kernel_head(a, name)
    entry(a, "K_done", "K_compute")
    loader(a)
    if STAMP: a("s_branch K_fin")
    else: a("s_endpgm")
    a.label("K_compute")
    compute(a)
    a.label("K_fin")
    stamp_out(a)
    a.label("K_done")
    a("s_endpgm")
    a.l += OOL
    a.label("K_end")
    vg = 252
    hdr = open("/code/" + NAME + ".s.ref").read().split("\n")
    out = []
    for ln in hdr:
        if ln.startswith("; @launch") or ln.startswith(".amdgcn"):
            break
        if ln.startswith("; Override") or ln.startswith("; grid="):
            continue
        out.append(ln)
    out.append(f"; @launch {'' if OPT['single'] else 'kernel=' + name + ' '}grid=(256,1,1) block=(512,1,1) lds=163840")
    out.append('.amdgcn_target "amdgcn-amd-amdhsa--gfx950"')
    out.append(".text")
    out += a.l
    out.append('.section .rodata,"a"')
    out.append(kernel_desc(name, vg))
    open(OPT["out"], "w").write("\n".join(out) + "\n")
main()
```

```python
import sys
NAME = "concat_heads__ssm_conv_h3__ssm_conv_s5__prompt"
OPT = dict(out="/code/" + NAME + ".s", stamp=0, trace=0, single=0,
           win=12, kfirst=2, npre=3,
           ntk=1, nte=1, ntq=1, prioc=3, prio2=3, lt=1, ltk=5, lts=8,
           osa=2, osb=2, noa3=0, fsh=7, ffull=1, st0=0, rotm=1, rots=1, rotx=1, tpar=1,
           gate=1, hd=7, ncb=2, nh=8, xrot=0, t64=1, gchk=3,
           ra=12,
           ek=3, ow=15,
           fs=9, ps=21, pc=26, kl=31, sa=16,
           qk=15, c15=0, d14=1, d15=1, dr=1, pw=24, pre=8, per=4, zp=6, zc=8, za=10, npl=3, prog=1, lprio=0, dpos=0, shsc=1, roll=1, mord=1, op=8, late=2, hord=1, ht=0, ncc=5, cpl=1, ccd=0, zx=1, su=-2, nob=0, tw=0, lbp=2, hsh=9, spr=3, lp2=0, tc=0, tcn=1, hts=0, pp=3, ppn=3, cpe=4, cpw=0, skb=3, sks=1, lbi=-1, c0=0, cd=16, pks=0, fpl=0, fgo=1, fn=1, crr=-1, pl7=0, p7s=3, dyn=0, xs=0, pq=0, xfp=7, ot=0, otf=1, hw=0, hsf=1, ds2=0, dsp=0, cw=2, cwn=64, cw64=1, lay=1, sre=1)
for arg in sys.argv[1:]:
    k, v = arg.split("=")
    assert k in OPT, k
    OPT[k] = v if k == "out" else int(v)
STAMP = OPT["stamp"]
TRACE = OPT["trace"]
FLV = ['', ' sc1', ' nt', ' sc0 sc1', ' sc0 sc1 nt', ' sc1 nt', ' sc0 nt']
def NT(k): return " nt" if OPT["nt" + k] else ""
P = dict(q=32, k=34, v=36, shift=38, ssmk=40, ssmD=42, x=44, Lre=46, Lim=48, Bre=50, Bim=52, Cre=54, Cim=56,
         logdt=58, Dskip=60, out=62, dbg=64, ws=66, q2=58)
WS_KVT = 0
WS_ZT = 4 << 20
WS_H = 8 << 20
WS_E = 16 << 20
WS_FLG = 17 << 20
FL_H = 1 << 17
FL_Z = 2 << 17
FL_SZ = 3 << 17
FSH = OPT['fsh']
FEX = '0xffff' if OPT['ffull'] else '1'
WS_STAMP = 64 << 20
SPIN = 4096

class Asm:
    def __init__(self):
        self.l = []
    def __call__(self, s):
        for ln in s.strip("\n").split("\n"):
            ln = ln.strip()
            if ln:
                self.l.append("    " + ln)
    def label(self, s):
        self.l.append(s + ":")

class VM:
    def __init__(self):
        self.ops = []
    def add(self, tag, n=1):
        self.ops += [tag] * n
    def cnt(self, *tags):
        last = max(i for i, t in enumerate(self.ops) if t in tags)
        return min(63, len(self.ops) - 1 - last)

def kernel_head(a, name):
    a.l += [".p2align 8", f".globl {name}", f".type {name},@function"]
    a.label(name)

def kernel_desc(name, vgpr, sgpr=102):
    acc = (vgpr + 3) // 4 * 4
    return f""".p2align 6
.amdhsa_kernel {name}
  .amdhsa_next_free_vgpr {vgpr}
  .amdhsa_next_free_sgpr {sgpr}
  .amdhsa_accum_offset {acc}
  .amdhsa_group_segment_fixed_size 0
  .amdhsa_kernarg_size 144
  .amdhsa_user_sgpr_count 2
  .amdhsa_user_sgpr_kernarg_segment_ptr 1
  .amdhsa_system_sgpr_workgroup_id_x 1
.end_amdhsa_kernel"""

def srd(a, d, name, nbytes, off=0):
    b = P[name]
    if off:
        a(f"s_add_u32 s{d}, s{b}, {off}\ns_addc_u32 s{d+1}, s{b+1}, 0")
    else:
        a(f"s_mov_b32 s{d}, s{b}\ns_mov_b32 s{d+1}, s{b+1}")
    a(f"s_mov_b32 s{d+2}, {nbytes}\ns_mov_b32 s{d+3}, 0x00020000")

def S(d):
    return f"s[{d}:{d+3}]"
def V(d, n):
    return f"v[{d}:{d+n-1}]"

def stamp0(a, i, lev=1):
    if STAMP and (OPT["st0"] == lev or (OPT["st0"] and i < 4 and lev == 1)): a(f"s_memrealtime s[{84+2*i}:{85+2*i}]")
def stamp(a, i):
    if STAMP and not (OPT["st0"] and 2 <= i <= 7):
        i &= 7
        a(f"s_memrealtime s[{84+2*i}:{85+2*i}]")
def stamp_dump(a, base):
    if STAMP:
        a("s_waitcnt lgkmcnt(0)")
        for i in range(8):
            a(f"v_writelane_b32 v250, s{84+2*i}, {base+i}")
def stamp_out(a):
    if not STAMP: return
    a("s_waitcnt vmcnt(0) lgkmcnt(0)")
    stamp(a, 15)
    stamp_dump(a, 8)
    srd(a, 8, "ws", 2 << 20, WS_STAMP)
    a("""s_lshl_b32 s6, s2, 3
    s_add_u32 s6, s6, s5
    s_lshl_b32 s7, s6, 8
    s_lshl_b32 s6, s6, 6
    s_add_u32 s7, s7, 0x100000
    v_lshlrev_b32 v1, 2, v2""")
    if TRACE: a("buffer_store_dword v251, v1, s[8:11], s7 offen")
    a("""s_mov_b64 exec, 0xffff
    buffer_store_dword v250, v1, s[8:11], s6 offen
    s_waitcnt vmcnt(0)""")

def tp(i):
    return f"\ns_memrealtime s[60:61]\ns_waitcnt lgkmcnt(0)\nv_writelane_b32 v251, s60, {i}" if TRACE == 2 else ""
def tr_begin(a):
    if TRACE == 1: a("s_memrealtime s[60:61]")
def tr_end(a, i):
    if TRACE == 1: a(f"s_waitcnt lgkmcnt(0)\nv_writelane_b32 v251, s60, {i}")

def cmul(a, d, x, y, c=None):
    if c is None:
        a(f"v_mul_f32 v{d}, v{x}, v{y}\nv_mul_f32 v{d+1}, v{x}, v{y+1}")
    else:
        a(f"v_fma_f32 v{d}, v{x}, v{y}, v{c}\nv_fma_f32 v{d+1}, v{x}, v{y+1}, v{c+1}")
    a(f"v_fma_f32 v{d}, -v{x+1}, v{y+1}, v{d}\nv_fmac_f32 v{d+1}, v{x+1}, v{y}")

def cwarm(a):
    if OPT["cw"] == 1: a("s_xor_b32 s6, s7, s5\ns_and_b32 s6, s6, 3\ns_cbranch_scc1 K_cw")
    if OPT["cwn"] < 256: a(f"s_cmp_ge_u32 s2, {OPT['cwn']}\ns_cbranch_scc1 K_cw")
    a(f"""s_getpc_b64 s[8:9]
    K_pc:
    v_lshlrev_b32 v4, 7, v0
    v_min_u32 v4, K_end - K_pc - 68, v4
    v_mov_b32 v5, s9
    v_add_co_u32 v4, vcc, s8, v4
    v_addc_co_u32 v5, vcc, 0, v5, vcc
    global_load_dword v251, v[4:5], off
    {"global_load_dword v251, v[4:5], off offset:64" if OPT["cw64"] else ""}
    K_cw:""")

def entry(a, done, other):
    stamp(a, 0)
    a(f"""s_cmp_ge_u32 s2, 256
    s_cbranch_scc1 {done}
    s_load_dwordx16 s[32:47], s[0:1], 0
    s_load_dwordx16 s[48:63], s[0:1], 64
    s_load_dwordx4 s[64:67], s[0:1], 128""")
    if OPT["cw"] == 2: cwarm(a)
    a(f"""v_lshrrev_b32 v1, 6, v0
    v_and_b32 v2, 63, v0
    s_and_b32 s6, s2, 3
    v_readfirstlane_b32 s5, v1
    s_lshl_b32 s6, s6, 2
    s_lshr_b32 s7, s2, 3
    s_and_b32 s3, s7, 3
    s_add_u32 s3, s3, s6            ; mt
    s_and_b32 s6, s2, 4
    s_lshl_b32 s6, s6, 1
    s_lshr_b32 s4, s7, 2
    s_add_u32 s4, s4, s6            ; nt""")
    if OPT["cw"] == 1: cwarm(a)
    a(f"""s_cmp_{"ge" if OPT["lay"] else "lt"}_u32 s5, 4
    s_cbranch_scc1 {other}""")

def interleave(a, main, fill, per, vm=None):
    fill = list(fill)
    for m in main:
        if isinstance(m, tuple):
            vm.add(m[1]); m = m[0]
        a(m)
        for _ in range(per):
            if fill: a(fill.pop(0))
    for f in fill: a(f)

SLOT, EARLY = [], []
for t_ in range(16):
    if t_ <= OPT["ra"]: SLOT.append([98304, 0, 32768, 65536][t_ % 4])
    else: SLOT.append([0, 32768, 65536][(t_ - OPT["ra"] - 1) % 3])
    prev = [u for u in range(t_) if SLOT[u] == SLOT[t_]]
    EARLY.append(prev[-1] + 1 if prev else -1)
assert OPT["ra"] % 4 == 0
RFREE = OPT["ra"] + 1
SA = OPT["sa"]
assert OPT["kl"] // 2 + 1 <= SA <= 16
L_R = 98304
L_O = L_R
L_E = L_O + 4160
L_U = L_E + 4160
L_N = 147328
L_ST = 147456
L_Z = L_R + 8192
L_F = L_N + 16
L_ZI = L_R
OOL = []

def rot1(a, d, t):
    a(f"""s_and_b32 s{d}, s2, 3
    s_lshl_b32 s{d}, s{d}, 2
    s_and_b32 s{t}, s2, 4
    s_lshl_b32 s{t}, s{t}, 1
    s_add_u32 s{d}, s{d}, s{t}
    s_add_u32 s{t}, s3, s4
    s_and_b32 s{t}, s{t}, {OPT['rotm']}
    s_lshl_b32 s{t}, s{t}, {OPT['rots']}
    {"" if OPT['rotx'] else f"s_mov_b32 s{d}, 0"}
    s_add_u32 s{d}, s{d}, s{t}
    s_and_b32 s{d}, s{d}, 15""")

def spin_flags(a, lbl, PLL, NON, AD, FL, mask=None):
    a("s_mov_b32 s51, 0")
    a.label(lbl)
    a(f"""buffer_load_dwordx2 {V(PLL,2)}, v{AD}, {S(FL)}, 0 offen sc1
    s_add_u32 s51, s51, 1
    s_waitcnt vmcnt(0)
    v_cmp_eq_u32 vcc, v{PLL}, v{NON}
    v_cmp_eq_u32 s[48:49], v{PLL+1}, v{NON+1}
    s_cmp_gt_u32 s51, {SPIN}
    s_cbranch_scc1 {lbl}_go
    s_and_b64 s[48:49], s[48:49], vcc
    {f"s_or_b64 s[48:49], s[48:49], {mask}" if mask else ""}
    s_cmp_eq_u64 s[48:49], -1
    s_cbranch_scc0 {lbl}""")
    a.label(lbl + "_go")

def loader(a):
    vm = VM()
    X, BR, BI, SK, KV, FL = 8, 12, 16, 68, 72, 76
    CR, CI = 24, 28
    a("""s_sub_u32 s6, s5, 4             ; lw
    v_lshrrev_b32 v12, 3, v2        ; r
    v_and_b32 v13, 7, v2
    v_lshrrev_b32 v14, 4, v2        ; r>>1
    v_xor_b32 v13, v13, v14
    v_lshlrev_b32 v13, 4, v13
    v_lshrrev_b32 v14, 5, v2        ; r>>2
    v_and_b32 v15, 3, v12
    v_lshl_add_u32 v15, v14, 3, v15
    v_lshl_add_u32 v14, v12, 14, v13   ; x rows 8r
    v_lshl_add_u32 v15, v15, 11, v13   ; B rows 8(r>>2)+(r&3)
    s_lshl_b32 s7, s3, 6
    s_add_u32 s7, s7, s6
    s_lshl_b32 s7, s7, 12           ; (128mt+2lw)*2048
    v_add_u32 v4, s7, v14
    v_xor_b32 v5, 64, v4
    v_add_u32 v5, 0x1fc00, v5
    s_lshl_b32 s7, s4, 2
    s_add_u32 s7, s7, s6
    s_lshl_b32 s7, s7, 15           ; (64nt+16lw)*2048
    v_add_u32 v8, s7, v15
    v_xor_b32 v9, 64, v8
    v_add_u32 v9, 0x1c00, v9""")
    rot1(a, 30, 31)
    a("""s_lshl_b32 s100, s30, 7         ; koff
    s_lshl_b32 s101, s6, 12         ; lw*4096""")
    stamp0(a, 2)
    a("s_waitcnt lgkmcnt(0)")
    stamp0(a, 3)
    srd(a, X, "x", 4 << 20)
    srd(a, BR, "Bre", 2 << 20)
    srd(a, BI, "Bim", 2 << 20)
    def dma(s):
        sl = SLOT[s]
        L = []
        L.append(f"s_add_u32 m0, s101, {sl}\ns_nop 0\nbuffer_load_dwordx4 v4, {S(X)}, s100 offen lds")
        for j in range(1, 4):
            L.append(f"buffer_load_dwordx4 v{4+(j&1)}, {S(X)}, s100 offen offset:{1024*j} lds")
        L.append(f"s_add_u32 m0, s101, {sl+16384}\ns_nop 0\nbuffer_load_dwordx4 v8, {S(BR)}, s100 offen lds")
        L.append(f"buffer_load_dwordx4 v9, {S(BR)}, s100 offen offset:1024 lds")
        L.append(f"s_add_u32 m0, s101, {sl+16384+2048}\ns_nop 0\nbuffer_load_dwordx4 v8, {S(BI)}, s100 offen lds")
        L.append(f"buffer_load_dwordx4 v9, {S(BI)}, s100 offen offset:1024 lds\ns_add_u32 s100, s100, 128\ns_and_b32 s100, s100, 2047")
        return [(x, f"d{s}") for x in L]
    D = [dma(s) for s in range(16)]
    def first():
        if OPT["kfirst"] == 2: a("s_barrier")
        stamp0(a, 4, 2)
        interleave(a, D[0][:4], [], 0, vm)
        stamp0(a, 5, 2)
        interleave(a, D[0][4:], [], 0, vm)
        stamp0(a, 6, 2)
        stamp0(a, 4)
        if OPT["kfirst"] == 1: a("s_barrier")
        for k in range(1, OPT["npre"]): interleave(a, D[k], [], 0, vm)
        stamp0(a, 7, 2)
    if OPT["su"] != -2: first()
    a(f"""s_mov_b32 s{P['q2']}, s{P['q']}
    s_mov_b32 s{P['q2']+1}, s{P['q']+1}
    s_lshr_b32 s7, s2, 3
    s_and_b32 s32, s7, 15           ; a_mt
    s_lshr_b32 s7, s7, 4
    s_and_b32 s33, s2, 7
    s_lshl_b32 s33, s33, 1
    s_add_u32 s33, s33, s7          ; a_nt
    s_lshl_b32 s34, s33, 4
    s_add_u32 s34, s34, s32
    s_lshl_b32 s34, s34, 2
    s_add_u32 s34, s34, s6          ; A2 channel
    s_lshl_b32 s35, s34, 12         ; ch*4096
    s_lshr_b32 s7, s34, 1
    s_lshl_b32 s7, s7, 2
    s_load_dword s37, s[{P['ssmD']}:{P['ssmD']+1}], s7
    v_and_b32 v12, 15, v2           ; cq / n / m
    v_lshrrev_b32 v13, 4, v2        ; tg / g""")
    if OPT["tw"]:
        TW = [("q2", 4 << 20, 0, "s32", 18), ("out", 16 << 20, 0, "s3", 20), ("out", 16 << 20, 0, "s32", 20), ("ws", 8 << 20, WS_H, "s3", 19),
              ("ws", 4 << 20, WS_ZT, "s33", 18), ("ssmk", 4 << 20, 0, "s33", 18), ("Cre", 2 << 20, 0, "s4", 17), ("Cim", 2 << 20, 0, "s4", 17),
              ("ws", 4 << 20, WS_KVT, "s33", 18), ("ws", 1 << 18, WS_E, "s3", 14)]
        a("s_mov_b64 exec, 1")
        for i, (nm, sz, off, ix, sh) in enumerate(TW):
            if not OPT["tw"] >> i & 1: continue
            a(f"s_cmp_eq_u32 s6, {i & 3}\ns_cbranch_scc0 L_tw{i}")
            srd(a, 72, nm, sz, off)
            a(f"s_lshl_b32 s7, {ix}, {sh}\nbuffer_load_dword v240, off, s[72:75], s7 sc1")
            a.label(f"L_tw{i}")
        a("s_mov_b64 exec, -1")
    SETUP = max(-1, OPT['su'])
    AAD, BAD, DFR, ZAD, PLL, NON = 16, 20, 24, 21, 22, 28
    CAD, QAD, QL, FA, NA = 246, 31, 192, 6, 7
    K0 = 6 + OPT["ncc"]
    CREG = {K0: 208, K0 + 1: 224}
    for k in range(K0 + 2, 16): CREG[k] = 64 + 16 * (k - K0 - 2)
    QS = 40
    ZM, ZN = ("s32", "s33") if OPT["zx"] else ("s3", "s4")
    def a2_setup():
        TP = ""
        if OPT["tpar"]:
            TP = f"""s_lshr_b32 s46, s2, 4
            s_and_b32 s46, s46, {max(0, OPT['lts'] - 1)}
            s_add_u32 s7, s3, s4
            s_and_b32 s7, s7, 1
            s_cmp_eq_u32 s7, {OPT["tpar"] - 1}
            s_cselect_b32 s46, s46, 99"""
        L = f"""s_waitcnt lgkmcnt(0)
        s_lshl_b32 s45, s6, 14
        v_lshlrev_b32 v{AAD}, 4, v13
        v_lshl_add_u32 v{AAD}, v12, 1, v{AAD}
        v_and_b32 v1, 1, v12
        v_mov_b32 v3, {L_O + 4}
        v_mov_b32 v14, {L_E + 2}
        v_cmp_eq_u32 vcc, 1, v1
        s_and_b32 s7, s34, 1
        s_lshl_b32 s7, s7, 4
        v_cndmask_b32 v3, v3, v14, vcc
        v_add3_u32 v{AAD}, v{AAD}, v3, s45
        v_add_u32 v{AAD+1}, 1024, v{AAD}
        v_add_u32 v{AAD+2}, 2048, v{AAD}
        v_add_u32 v{AAD+3}, 3072, v{AAD}
        s_add_u32 s47, s45, {L_U + 480}
        v_lshlrev_b32 v1, 4, v13
        v_lshlrev_b32 v3, 5, v12
        v_sub_u32 v1, v1, v3
        v_add_u32 v{BAD}, s47, v1
        s_lshr_b32 s37, s37, s7
        s_and_b32 s37, s37, 0xffff
        v_lshlrev_b32 v1, 3, v13
        v_add_u32 v1, v1, v12
        v_sub_u32 v1, 15, v1
        v_and_b32 v3, 1, v1
        v_lshlrev_b32 v3, 4, v3
        v_lshlrev_b32 v3, v3, s37
        v_lshrrev_b32 v1, 1, v1""".split("\n")
        for j in range(4):
            L += [f"v_cmp_eq_u32 vcc, {j}, v1", "s_nop 1", f"v_cndmask_b32 v{DFR+j}, 0, v3, vcc"]
        L += f"""s_add_u32 s7, s45, {L_Z}
        v_lshlrev_b32 v1, 3, v2
        v_add_u32 v{ZAD}, s7, v1
        v_lshlrev_b32 v10, 4, v2
        v_mov_b32 v{NA}, {L_N}
        s_lshl_b32 s7, s6, 2
        v_add_u32 v{FA}, s7, v{NA}
        v_mov_b32 v1, 0
        ds_write_b32 v{FA}, v1 offset:{L_F + 32 - L_N}
        ds_write_b32 v{FA}, v1 offset:{L_F + 80 - L_N}
        v_mov_b32 v1, 2
        ds_write_b32 v{FA}, v1 offset:{L_F + 48 - L_N}
        v_lshrrev_b32 v1, 3, v2
        v_and_b32 v3, 7, v2
        v_xor_b32 v3, v3, v13
        v_lshlrev_b32 v3, 4, v3
        v_lshl_add_u32 v3, v1, 13, v3
        s_lshl_b32 s7, s4, 6
        s_add_u32 s7, s7, s6
        s_lshl_b32 s7, s7, 11
        v_add_u32 v{CAD}, s7, v3
        v_xor_b32 v{CAD+1}, 64, v{CAD}
        v_add_u32 v{CAD+1}, {65536-1024}, v{CAD+1}
        v_xor_b32 v{CAD+2}, 32, v{CAD}
        v_xor_b32 v{CAD+3}, 32, v{CAD+1}
        s_lshl_b32 s38, s4, 7
        v_lshlrev_b32 v3, 11, v13
        v_lshl_add_u32 v3, v12, 3, v3
        s_lshl_b32 s7, {ZM}, 2
        s_add_u32 s7, s7, s6
        s_lshl_b32 s7, s7, 9
        s_add_u32 s7, s7, {ZN}
        s_lshl_b32 s7, s7, 7
        v_add_u32 v{QAD}, s7, v3
        s_lshr_b32 s46, s2, 3
        s_and_b32 s46, s46, {max(0, OPT['lts'] - 1)}
        {TP}
        s_lshl_b32 s39, s6, 11
        s_and_b32 s7, s3, {12 * OPT['xrot']}
        s_lshl_b32 s7, s7, 7
        s_add_u32 s38, s38, s7
        s_and_b32 s20, s38, 1024
        s_xor_b32 s21, s20, 1024
        s_and_b32 s7, s3, 3
        s_lshl_b32 s7, s7, 1
        s_and_b32 s47, s6, 1
        s_add_u32 s7, s7, s47
        s_lshl_b32 s7, s7, 7
        s_or_b32 s7, s7, s21
        s_lshl_b32 s47, s4, 17
        s_add_u32 s7, s7, s47
        v_lshlrev_b32 v11, 11, v2
        v_add_u32 v11, s7, v11""".split("\n")
        if OPT["lt"]:
            L += f"""s_and_b32 s7, s3, 14
            s_and_b32 s47, s6, 1
            s_add_u32 s7, s7, s47
            s_add_u32 s7, s7, s4
            s_and_b32 s7, s7, 15
            s_lshl_b32 s7, s7, 7
            s_lshl_b32 s47, s4, 17
            s_add_u32 s7, s7, s47
            v_lshlrev_b32 v30, 11, v2
            v_add_u32 v30, s7, v30""".split("\n")
        return L
    def ldC(k):
        L = []
        for i in range(4):
            x = ""
            if i == 0 and OPT["hord"]: x += f"s_add_u32 s44, s38, {128*k}\ns_and_b32 s44, s44, 1023\ns_or_b32 s44, s44, s{20 + (k >> 3)}\n"
            elif i == 0: x += f"s_add_u32 s44, s38, {128*k}\ns_and_b32 s44, s44, 2047\n"
            tail = f"v{CAD+i}, {S(CI if i & 2 else CR)}, s44 offen offset:{1024*(i&1)}"
            if k < 6:
                if not i & 1: x += f"s_add_u32 m0, s39, {16384*k + 4096*i}\ns_nop 0\n"
                x += f"buffer_load_dwordx4 {tail} lds"
            else:
                x += f"buffer_load_dwordx4 {V(CREG[k]+4*i,4)}, {tail}"
            if i == 3: x += tp(16 + k)
            L.append((x, f"c{k}"))
        return L
    def words(off, lbl, t=44):
        a("s_mov_b32 s51, 0")
        a.label(lbl)
        a(f"""ds_read_b128 v[{t}:{t+3}], v{NA} offset:{L_F + off - L_N}
        s_add_u32 s51, s51, 1
        s_waitcnt lgkmcnt(0)
        v_xor_b32 v{t}, v{t}, v{NON}
        v_xor_b32 v{t+1}, v{t+1}, v{NON}
        v_xor_b32 v{t+2}, v{t+2}, v{NON}
        v_xor_b32 v{t+3}, v{t+3}, v{NON}
        v_or3_b32 v{t}, v{t}, v{t+1}, v{t+2}
        v_or_b32 v{t}, v{t}, v{t+3}
        s_cmp_gt_u32 s51, {SPIN * 4}
        s_cbranch_scc1 {lbl}_ok
        v_cmp_ne_u32 vcc, 0, v{t}
        s_cbranch_vccnz {lbl}""")
        a.label(lbl + "_ok")
    TS = 52
    TCH = f"buffer_load_dword v240, v30, {S(TS)}, 0 offen"
    assert OPT["tpar"]
    if OPT["t64"]: TCH += f"\nbuffer_load_dword v241, v30, {S(TS)}, 0 offen offset:64"
    after = {k: [] for k in range(16)}
    QLD = [f"s_mov_b32 s36, {8192*j}\nbuffer_load_dwordx2 {V(QL+2*j,2)}, v{QAD}, {S(QS)}, s36 offen{NT('q')}" for j in range(8)]
    if OPT["lt"]:
        for i in range(OPT["lts"]):
            after[OPT["ltk"] + i].append((f"s_cmp_eq_u32 s46, {i}\ns_cbranch_scc0 L_t{i}\n{TCH}\nL_t{i}:", "", 0, SETUP + 1, None))
    ER = 112
    for j in range(4):
        after[OPT["ek"]].append((f"buffer_load_dwordx4 {V(ER+4*j,4)}, v10, {S(SK)}, s35 offen offset:{1024*j}{NT('e')}", "E", 0, SETUP + 1, None))
    if OPT["qk"] <= 15:
        for x in QLD: after[OPT["qk"]].append((x, "q", 0, SETUP + 1, None))
    CR_ = sum((ldC(k) for k in range(K0, 16)), [])
    def cslot(t): return sum((ldC(k) for k in (SLOT[t] // 16384, SLOT[t] // 16384 + 1)), [])
    CDL = []
    assert OPT["c15"] <= 8 and OPT["ra"] < 13
    if OPT["d14"]:
        for x, t in cslot(13): after[15].append((x, t, 0, 14, None))
    else: CDL += cslot(13)
    TC2 = [(f"buffer_load_dword v{240+i}, v11, {S(TS)}, 0 offen offset:{64*i}", "t2") for i in range(OPT["tcn"])]
    if 1 <= OPT["tc"] <= 2:
        for x, t in TC2: after[15].append((x, t, 0, 13 + OPT["tc"], None))
    if OPT["tc"] > 4:
        for x, t in TC2: after[OPT["tc"]].append((x, t, 0, 0, None))
    if OPT["d15"]:
        for x, t in cslot(14): after[15].append((x, t, 0, 15, None))
    elif OPT['ccd'] != 2: CDL += cslot(14)
    if not OPT['ccd']: CDL += cslot(15)
    if OPT["tc"] == 3:
        for x, t in TC2: after[15].append((x, t, 0, 15, None))
    if OPT["tc"] == 4: CDL += TC2
    if OPT["qk"] == 16:
        for x in QLD: after[15].append((x, "q", 0, 15, None))
    for x, t in CR_[:OPT["c15"]]: after[15].append((x, t, 0, 15, None))
    CR_ = CR_[OPT["c15"]:]
    ST = []
    for k in range(16):
        if k >= OPT["npre"]: ST += [(x, t, 1, EARLY[k], None) for x, t in D[k]]
        ST += after[k]
    cum = [0]
    for it in ST: cum.append(cum[-1] + it[2])
    endof = {k: 0 for k in range(OPT["npre"])}
    for i, it in enumerate(ST):
        if it[1][:1] == "d": endof[int(it[1][1:])] = i + 1
    pos = [0]
    def emit(s):
        lim = cum[endof[min(15, s + 1)]] + OPT["win"]
        L = []
        while pos[0] < len(ST):
            x, t, c, e, hook = ST[pos[0]]
            must = pos[0] < endof[min(15, s + 1)]
            assert not (must and e > s), (s, t)
            if not must and s < 15 and (e > s or cum[pos[0] + 1] > lim + 1e-6): break
            L.append((x, t)); pos[0] += 1
        return L
    srd(a, SK, "ssmk", 4 << 20)
    srd(a, FL, "ws", FL_SZ, WS_FLG)
    srd(a, CR, "Cre", 2 << 20)
    srd(a, CI, "Cim", 2 << 20)
    srd(a, QS, "q2", 4 << 20)
    a(f"""s_cmp_lt_u32 s6, 2
    s_cselect_b32 s{TS}, s{P['Cre']}, s{P['Cim']}
    s_cselect_b32 s{TS+1}, s{P['Cre']+1}, s{P['Cim']+1}
    s_mov_b32 s{TS+2}, {2 << 20}
    s_mov_b32 s{TS+3}, 0x00020000""")
    if OPT["su"] < 0:
        for x in a2_setup(): a(x)
    if OPT["su"] == -2: first()
    stamp0(a, 5)
    a(f"s_waitcnt vmcnt({vm.cnt('d0')})")
    stamp0(a, 6)
    a("s_barrier")
    stamp(a, 1)
    ACC = 32
    FB = [64, 128]
    def reads(r):
        L = []
        f = FB[r & 1]
        for q in range(8):
            o = 128 * (q & 1) + 16 * r
            L.append(f"ds_read_b128 {V(f+32+4*q,4)}, v{BAD} offset:{512*(7-q) + 64*r}")
            L.append(f"ds_read2_b32 {V(f+4*q,2)}, v{AAD+(q>>1)} offset0:{o} offset1:{o+1}")
            L.append(f"ds_read2_b32 {V(f+4*q+2,2)}, v{AAD+(q>>1)} offset0:{o+2} offset1:{o+3}")
        return L
    def mfmas(r):
        f = FB[r & 1]
        L = []
        if r == 0:
            for u in range(8):
                L.append(f"v_mfma_f32_16x16x32_bf16 {V(ACC+4*u,4)}, {V(DFR,4)}, {V(f+32+4*u,4)}, 0")
        QU = [(q, u) for q in range(8) for u in range(8 - q)]
        if OPT["mord"]:
            rem = {c: [(q, c - q) for q in range(c + 1)] for c in range(8)}
            QU, last = [], []
            while len(QU) < 36:
                c = max((c for c in rem if rem[c] and c not in last[-3:]), key=lambda c: len(rem[c]))
                QU.append(rem[c].pop(0)); last.append(c)
            assert len(set(QU)) == 36
        for q, u in QU:
            c = ACC + 4 * (q + u)
            L.append(f"v_mfma_f32_16x16x32_bf16 {V(c,4)}, {V(f+4*q,4)}, {V(f+32+4*u,4)}, {V(c,4)}")
        return L
    def paced(items, w):
        for x, t in items:
            a(f"s_waitcnt vmcnt({w - 1})")
            a(x); vm.add(t)
    GRD = f"ds_read_b32 v1, v{FA} offset:{L_F + 48 - L_N}"
    ng = [0]
    def gate_chk(n, lev=2):
        lbl = f"L_g{ng[0]}"; ng[0] += 1
        b = Asm()
        b.label(lbl)
        b("s_mov_b32 s50, 0")
        b.label(lbl + "_s")
        b(f"""{GRD}
        s_add_u32 s50, s50, 1
        s_waitcnt lgkmcnt(0)
        v_readfirstlane_b32 s7, v1
        s_cmp_gt_u32 s50, {SPIN}
        s_cbranch_scc1 {lbl}_r
        s_cmp_lt_u32 s7, {lev}
        s_cbranch_scc1 {lbl}_s
        s_branch {lbl}_r""")
        OOL.extend(b.l)
        return f"s_waitcnt lgkmcnt({n})\nv_cmp_gt_u32 vcc, {lev}, v1", f"s_cbranch_vccnz {lbl}\n{lbl}_r:"
    def a2round(r, vmem, gated, rolled=False, last=False):
        M = mfmas(r)[-36:] if rolled else mfmas(r)
        R = reads(r + 1) if r < 7 and not last else []
        if rolled and r and not last: R += [f"v_add_u32 v{AAD+i}, 128, v{AAD+i}" for i in range(4)] + [f"v_add_u32 v{BAD}, 128, v{BAD}"]
        GP = 36 // OPT["gchk"] if gated and OPT["gate"] and OPT["gchk"] else 0
        vmem = list(vmem)
        a("s_waitcnt lgkmcnt(0)" + (tp(48 + r) if TRACE == 2 and not rolled else ""))
        since = 0
        for i, m in enumerate(M):
            a(m)
            if vmem and i % (OPT["p7s"] if last else OPT["dpos"]) == 0:
                x, t = vmem.pop(0); a(x)
                if t: vm.add(t)
            if GP and i % GP == GP - 8:
                a(GRD); since = 0
            elif GP and i % GP == GP - 2:
                g_ = gate_chk(min(15, since))
                a(g_[0])
            elif R:
                x = R.pop(0); a(x); since += x[:2] == "ds"
            if GP and i % GP == GP - 1: a(g_[1])
        assert not R and not vmem
    NS = OPT["fs"] // 2 + 1
    OW = OPT["ow"]
    assert RFREE <= OW < SA and NS < SA
    LATE = []
    for s in range(16):
        tr_begin(a)
        if s == SA:
            stamp(a, 4)
            if OPT["lprio"]: a(f"s_setprio {OPT['lprio']}")
            for x in reads(0): a(x)
        if s == OW:
            a("ds_write_b128 v1, v[32:35]")
            for j in range(4):
                a(f"ds_write_b128 v15, {V(ER+4*j,4)} offset:{1024*j + L_E - L_O}")
                a(f"ds_write_b128 v15, {V(64+4*j,4)} offset:{1024*j}")
        L = emit(s)
        if s == 15 and OPT["late"]:
            nl = {1: 8 * OPT["d15"], 2: 0}[OPT["late"]] + (OPT["tcn"] if OPT["tc"] == 2 else 0)
            LATE = L[nl:]; L = L[:nl]
        if s < SA or not OPT["dpos"]:
            for x, t in L:
                a(x)
                if t: vm.add(t)
            L = []
        if s == OPT["su"]:
            for x in a2_setup(): a(x)
        if s == NS:
            a(f"v_mov_b32 v1, {L_N}\nds_read_b64 v[{NON}:{NON+1}], v1")
        if s == OPT["op"]:
            assert NS < s < OW
            a(f"""v_mov_b32 v32, 0
            v_mov_b32 v33, 0
            v_mov_b32 v34, 0
            v_mov_b32 v35, 0
            s_add_u32 s47, s45, {L_U + 4096}
            v_add_u32 v1, s47, v10
            v_and_b32 v3, 16, v10
            v_and_b32 v15, 32, v10
            v_mul_u32_u24 v15, {(L_E - L_O) // 32}, v15
            v_add3_u32 v3, v3, v15, s45
            v_add_u32 v3, {L_O}, v3
            v_cmp_gt_u32 vcc, 32, v2
            s_add_u32 s47, s45, {L_O + 32}
            v_add_u32 v15, s47, v10
            v_cndmask_b32 v1, v3, v1, vcc
            v_mov_b32 v64, 0
            s_waitcnt vmcnt({vm.cnt('E')})""")
            for j in range(1, 4):
                a(f"v_mov_b32_dpp v{64+4*j}, v{ER+4*j-1} wave_ror:1 row_mask:0xf bank_mask:0xf")
            for j in range(4):
                a(f"v_mov_b32_dpp v{64+4*j}, v{ER+4*j+3} wave_shr:1 row_mask:0xf bank_mask:0xf")
            for j in range(4):
                b = 64 + 4 * j
                e = ER + 4 * j
                a(f"""v_alignbit_b32 v{b}, v{e}, v{b}, 16
                v_alignbit_b32 v{b+1}, v{e+1}, v{e}, 16
                v_alignbit_b32 v{b+2}, v{e+2}, v{e+1}, 16
                v_alignbit_b32 v{b+3}, v{e+3}, v{e+2}, 16""")
        if SA <= s < SA + 8: a2round(s - SA, L, s == 15)
        tr_end(a, s)
        w = ""
        if s in (0, SA - 1): w = " lgkmcnt(0)"
        if s < 15:
            a(f"s_waitcnt vmcnt({vm.cnt(f'd{s+1}')}){w}")
            a(tp(32 + s) + "\ns_barrier" + tp(s))
    assert pos[0] == len(ST)
    stamp(a, 3)
    OQ = L_F + 32 - L_N
    def qsig():
        a(f"v_mov_b32 v3, 6\ns_waitcnt vmcnt({vm.cnt(*[f'c{k}' for k in range(6)])})\nds_write_b32 v{FA}, v3 offset:{OQ}")
    def cdl():
        if SA < 16: words(0, "L_g1d", 242)
        stamp(a, 2)
        interleave(a, CDL, [], 0, vm)
    DR = max(OPT["dr"], 16 - SA)
    if SA == 16:
        words(0, "L_g1d", 242)
        for x in reads(0): a(x)
        interleave(a, LATE, [], 0, vm)
        if DR == 0: cdl()
        if OPT["gate"]:
            a(GRD); a('\n'.join(gate_chk(0)))
        if OPT["lprio"]: a(f"s_setprio {OPT['lprio']}")
        stamp(a, 4)
    if OPT["roll"]:
        assert SA == 16
        a("s_waitcnt lgkmcnt(0)")
        for m in mfmas(0)[:8]: a(m)
        a("s_mov_b32 s51, 0")
        code = {}
        main_ = a.l
        NR = 6 if OPT["pl7"] else 8
        def crf():
            interleave(a, CR_[:8], [], 0, vm)
            del CR_[:8]
        HK = {}
        for r_, f_ in ((DR, cdl), (DR + 3, qsig), (OPT["crr"], crf)): HK.setdefault(r_, []).append(f_)
        assert OPT["crr"] < 8 and OPT["crr"] != 0 and (OPT["crr"] < 0 or not OPT["c15"]) and (DR + 3 < NR or not OPT["pl7"])
        for r_ in sorted(HK):
            if 0 < r_ < NR:
                a.l = []
                a.label(f"L_cs{r_}")
                for f_ in HK[r_]: f_()
                a(f"s_branch L_cr{r_ & 1}")
                OOL.extend(a.l); code[r_] = 1
        a.l = main_
        a.label("L_conv")
        for r in range(2):
            for r_ in code:
                if r_ & 1 == r: a(f"s_cmp_eq_u32 s51, {r_ >> 1}\ns_cbranch_scc1 L_cs{r_}")
            a.label(f"L_cr{r}")
            a2round(r, [], True, True)
        a(f"""s_add_u32 s51, s51, 1
        s_cmp_lt_u32 s51, {NR // 2}
        s_cbranch_scc1 L_conv""")
        if OPT["pl7"]:
            if OPT["crr"] == 6: crf()
            a2round(0, [], True, True)
            if OPT["crr"] == 7: crf()
            n7 = min(OPT["pl7"], len(CR_))
            a2round(1, CR_[:n7], True, True, True)
            del CR_[:n7]
        a("s_waitcnt lgkmcnt(0)")
    for r in range(16 - SA, 8 if not OPT["roll"] else 0):
        if r == DR: cdl()
        if r == DR + 3: qsig()
        a2round(r, [], True)
    if DR >= 8: cdl()
    if OPT["lprio"] or OPT["lp2"]: a(f"s_setprio {OPT['lp2']}")
    stamp(a, 5)
    a("s_nop 6")
    for t in range(8):
        c = ACC + 4 * t
        a(f"""v_cvt_pk_bf16_f32 v{ACC+2*t}, v{c}, v{c+1}
        v_cvt_pk_bf16_f32 v{ACC+1+2*t}, v{c+2}, v{c+3}
        ds_write_b64 v{ZAD}, {V(ACC+2*t,2)} offset:{512*t}""")
    a(f"ds_write_b32 v{FA}, v{NON} offset:{L_F + 64 - L_N}")
    ZS, OS = 8, 12
    ZFP, ZLD, ZRD, OA, ZB, OB = 16, 17, 24, 21, 44, 36
    ZX, ZG, ZFS = 4, 5, 8
    def a3_setup():
        srd(a, ZS, "ws", 4 << 20, WS_ZT)
        srd(a, OS, "out", 16 << 20)
        a(f"""s_lshr_b32 s7, {ZM}, 2
        s_lshl_b32 s7, s7, 4
        s_add_u32 s7, s7, {ZN}
        s_lshl_b32 s7, s7, {4 + FSH}
        s_add_u32 s7, s7, {FL_Z}
        v_lshlrev_b32 v1, {FSH}, v12
        v_add_u32 v{ZFP}, s7, v1
        v_xor_b32 v1, v12, v13
        v_lshlrev_b32 v1, 4, v1
        v_lshl_add_u32 v3, v13, 14, v1
        s_lshl_b32 s47, {ZM}, 2
        s_add_u32 s47, s47, s6
        s_lshl_b32 s7, {ZN}, 10
        s_add_u32 s7, s7, s47
        s_lshl_b32 s7, s7, 8
        v_add_u32 v{ZLD}, s7, v3
        v_xor_b32 v{ZLD+1}, 64, v{ZLD}
        v_add_u32 v{ZLD+1}, {65536-1024}, v{ZLD+1}
        v_xor_b32 v{ZLD+2}, 128, v{ZLD}
        v_add_u32 v{ZLD+2}, {2*(65536-1024)}, v{ZLD+2}
        v_xor_b32 v{ZLD+3}, 192, v{ZLD}
        v_add_u32 v{ZLD+3}, {3*(65536-1024)}, v{ZLD+3}
        s_add_u32 s35, s45, {L_ZI}
        v_lshl_add_u32 v1, v12, 8, v1
        v_add_u32 v{ZRD}, s35, v1
        v_xor_b32 v{ZRD+1}, 64, v{ZRD}
        v_xor_b32 v{ZRD+2}, 128, v{ZRD}
        v_xor_b32 v{ZRD+3}, 192, v{ZRD}
        s_lshl_b32 s47, s47, 10
        s_add_u32 s47, s47, {ZN}
        s_lshl_b32 s47, s47, 8
        v_lshlrev_b32 v1, 13, v13
        v_lshl_add_u32 v1, v12, 4, v1
        v_add_u32 v{OA}, s47, v1
        v_bfe_u32 v1, v2, 2, 2
        v_lshlrev_b32 v1, 14, v1
        v_and_b32 v3, 3, v2
        v_lshl_add_u32 v1, v3, 7, v1
        v_lshl_add_u32 v1, v13, 4, v1
        s_lshl_b32 s7, s6, 10
        s_add_u32 s7, s7, {L_Z}
        v_add_u32 v{ZX}, s7, v1
        s_lshl_b32 s7, s34, 12
        v_add_u32 v{ZG}, s7, v10
        s_lshr_b32 s47, s34, 2
        s_lshl_b32 s7, s6, 8
        s_add_u32 s7, s7, s47
        s_lshl_b32 s7, s7, {FSH}
        s_add_u32 s7, s7, {FL_Z}
        v_lshl_add_u32 v{ZFS}, v12, 3, s7
        v_add_u32 v9, s39, v10
        v_add_u32 v11, 0xc000, v9""")
    def a3(k):
        if k == 0:
            a(f"s_waitcnt vmcnt({vm.cnt('z', 'q')}) lgkmcnt(0)")
            for i in range(4): a(f"ds_read_b128 {V(ZB+4*i,4)}, v{ZRD+i}")
        a(f"s_waitcnt lgkmcnt({0 if TRACE else 3-k})")
        for hf in range(2):
            idx = 4 * hf + k
            o = OB + 4 * hf
            for e in range(4):
                z, q = ZB + 4 * k + 2 * hf + (e >> 1), QL + 2 * idx + (e >> 1)
                if e & 1: a(f"v_and_b32 v1, 0xffff0000, v{z}\nv_and_b32 v{o+e}, 0xffff0000, v{q}")
                else: a(f"v_lshlrev_b32 v1, 16, v{z}\nv_lshlrev_b32 v{o+e}, 16, v{q}")
                a(f"v_mul_f32 v{o+e}, v{o+e}, v1")
            a(f"s_mov_b32 s7, {32768*idx}\nbuffer_store_dwordx4 {V(o,4)}, v{OA}, {S(OS)}, s7 offen{FLV[OPT['osa']]}")
            vm.add("st")
    A3 = not OPT["noa3"]
    a3_setup()
    if 5 <= DR < 8: qsig()
    if A3:
        words(64, "L_zd")
        for j in range(4):
            for ab in range(2):
                a(f"ds_read_b64_tr_b16 {V(ZB+4*j+2*ab,2)}, v{ZX} offset:{512*(j>>1) + 8*(8*(j&1)+ab)}")
        a("s_waitcnt lgkmcnt(0)")
        for j in range(4):
            a(f"buffer_store_dwordx4 {V(ZB+4*j,4)}, v{ZG}, {S(ZS)}, 0 offen offset:{1024*j} sc1")
        vm.add("zt", 4)
    if OPT["lp2"]: a("s_setprio 0")
    stamp(a, 6)
    paced(CR_[:OPT["pre"]], OPT["pw"])
    CR_ = CR_[OPT["pre"]:]
    if DR >= 8: qsig()
    if A3:
        a(f"""s_waitcnt vmcnt({vm.cnt('zt')})
        s_mov_b64 exec, {FEX}
        buffer_store_dwordx2 {V(NON,2)}, v{ZFS}, {S(FL)}, 0 offen sc1
        s_mov_b64 exec, -1""")
        vm.add("zf")
    if OPT["qk"] == 17:
        for x in QLD: a(x); vm.add("q")
    stamp(a, 7)
    stamp_dump(a, 0)
    assert OPT["zp"] <= OPT["zc"] <= OPT["za"] <= 15
    first = True
    for p_ in range(0, 16):
        b = p_ + 5
        w_ = K0 <= b < 16
        need = w_ or (CR_ and p_) or OPT["qk"] == 20 + p_ or (A3 and p_ in (OPT["zp"], OPT["zc"], OPT["za"]))
        if not need: continue
        if p_:
            a("s_mov_b32 s51, 0")
            a.label(f"L_p{p_}")
            a(f"""ds_read_b128 v[32:35], v{NA} offset:{L_F + 80 - L_N}
            s_add_u32 s51, s51, 1
            s_waitcnt lgkmcnt(0)
            v_min3_u32 v32, v32, v33, v34
            v_min_u32 v32, v32, v35
            s_cmp_gt_u32 s51, {SPIN * 16}
            s_cbranch_scc1 L_p{p_}_ok
            v_cmp_gt_u32 vcc, {p_}, v32
            s_cbranch_vccnz L_p{p_}""")
            a.label(f"L_p{p_}_ok")
        if first: stamp(a, 8)
        first = False
        if w_:
            a(f"v_mov_b32 v3, {b + 1}\ns_waitcnt vmcnt({vm.cnt(f'c{b}')})")
            sl = b % 6
            for i in range(4):
                o = 16384 * (sl % 3) + 8192 * (i >> 1) + 1024 * (i & 1)
                a(f"ds_write_b128 v{9 if sl < 3 else 11}, {V(CREG[b]+4*i,4)} offset:{o}")
            a(f"ds_write_b32 v{FA}, v3 offset:{L_F + 32 - L_N}")
            if b == 15: stamp(a, 9)
        if p_:
            paced(CR_[:OPT["per"]], OPT["pw"])
            CR_ = CR_[OPT["per"]:]
        if OPT["qk"] == 20 + p_:
            for x in QLD: a(x); vm.add("q")
        if A3 and p_ == OPT["zp"]:
            a(f"buffer_load_dwordx2 {V(PLL,2)}, v{ZFP}, {S(FL)}, 0 offen sc1")
            vm.add("zp")
        if A3 and p_ == OPT["zc"]:
            a(f"""s_waitcnt vmcnt({vm.cnt('zp')})
            v_cmp_eq_u32 vcc, v{PLL}, v{NON}
            v_cmp_eq_u32 s[48:49], v{PLL+1}, v{NON+1}
            s_mov_b32 m0, s35
            s_and_b64 s[48:49], s[48:49], vcc
            s_cmp_eq_u64 s[48:49], -1
            s_cbranch_scc1 L_zspin_go""")
            spin_flags(a, "L_zspin", PLL, NON, ZFP, FL)
            stamp(a, 10)
            for j in range(4):
                a(f"buffer_load_dwordx4 v{ZLD+j}, {S(ZS)}, 0 offen offset:{1024*j} sc1 lds")
            vm.add("z", 4)
        if A3 and p_ == OPT["za"]:
            for j in range(4): a3(j)
    assert not CR_
    stamp(a, 11)

def compute(a):
    HS, ES, DB, LD_, LR_, LI_, KV, FL, OS, DS = 8, 12, 16, 20, 24, 28, 68, 72, 76, 80
    AA, BA = 4, 8
    L, C2, P8, G128, L512 = 16, 24, 32, 40, 42
    LBK, PUB, HST, NA, FA = 56, 60, 61, 62, 63
    ACC, FR, XF, STG, XA, DSK, STA, KVG = 64, 128, 208, 224, 240, 242, 244, 248
    GR = 52
    KS, VS, SH = 8, 12, 68
    WRAW, WF, KR, VR, KT, AC, OUT = 128, 136, 140, 162, 178, 190, 224
    a(f"""v_and_b32 v12, 15, v2
    v_lshrrev_b32 v13, 4, v2
    s_lshr_b32 s7, s2, 3
    s_and_b32 s76, s7, 15           ; a_mt
    s_lshr_b32 s7, s7, 4
    s_and_b32 s77, s2, 7
    s_lshl_b32 s77, s77, 1
    s_add_u32 s77, s77, s7          ; a_nt
    s_lshl_b32 s7, s76, 2
    s_add_u32 s7, s7, s5
    s_lshl_b32 s7, s7, 16           ; t0*2048
    s_lshl_b32 s6, s77, 7
    s_add_u32 s7, s7, s6
    v_lshlrev_b32 v10, 14, v13
    v_lshl_add_u32 v10, v12, 3, v10
    v_add_u32 v10, s7, v10          ; k/v offset of row 0
    v_subrev_u32 v11, 0x1800, v10
    v_bfrev_b32 v9, 1
    v_cmp_gt_i32 vcc, 0, v11
    s_lshl_b32 s7, s77, 9
    v_lshlrev_b32 v15, 5, v12
    v_cndmask_b32 v11, v11, v9, vcc     ; halo offset
    v_add_u32 v9, s7, v15           ; shift offset
    s_mov_b32 s72, 4096
    s_mov_b32 s73, 8192
    s_mov_b32 s74, 12288
    s_lshl_b32 s6, s4, 2
    s_add_u32 s6, s6, s5
    s_lshl_b32 s6, s6, 4
    v_and_b32 v14, 3, v12
    v_and_b32 v1, 1, v13
    v_lshl_add_u32 v14, v1, 3, v14
    v_lshrrev_b32 v1, 1, v13
    v_lshl_add_u32 v14, v1, 2, v14
    v_add_u32 v14, s6, v14          ; channel
    v_lshlrev_b32 v44, 1, v14
    s_lshl_b32 s6, s4, 7
    v_lshlrev_b32 v1, 3, v12
    v_add_u32 v1, s6, v1""")
    stamp0(a, 2)
    srd_ = srd
    if OPT["sre"]:
        a(f"s_movk_i32 s{LD_+2}, 2048\ns_mov_b32 s{LD_+3}, 0x00020000\ns_mov_b64 s[{LR_+2}:{LR_+3}], s[{LD_+2}:{LD_+3}]\ns_mov_b64 s[{LI_+2}:{LI_+3}], s[{LD_+2}:{LD_+3}]")
        a(f"s_mov_b32 s{KS+2}, {4 << 20}\ns_mov_b32 s{KS+3}, s{LD_+3}\ns_mov_b64 s[{VS+2}:{VS+3}], s[{KS+2}:{KS+3}]\ns_movk_i32 s{SH+2}, 8192\ns_mov_b32 s{SH+3}, s{LD_+3}")
        def srd_(a, d, name, nbytes): a(f"s_mov_b64 s[{d}:{d+1}], s[{P[name]}:{P[name]+1}]")
    a("s_waitcnt lgkmcnt(0)")
    stamp0(a, 3)
    SOFF = ["0", "s72", "s73", "s74"]
    srd_(a, LD_, "logdt", 2048)
    srd_(a, LR_, "Lre", 2048)
    srd_(a, LI_, "Lim", 2048)
    a(f"""buffer_load_ushort v45, v44, {S(LD_)}, 0 offen
    buffer_load_ushort v46, v44, {S(LR_)}, 0 offen
    buffer_load_ushort v47, v44, {S(LI_)}, 0 offen""")
    stamp0(a, 4, 2)
    srd_(a, KS, "k", 4 << 20)
    for i in range(8):
        a(f"buffer_load_dwordx2 {V(KR+6+2*i,2)}, v10, {S(KS)}, {SOFF[i>>1]} offen offset:{2048*(i&1)}{NT('k')}")
    for i in range(3):
        a(f"buffer_load_dwordx2 {V(KR+2*i,2)}, v11, {S(KS)}, {SOFF[i>>1]} offen offset:{2048*(i&1)}{NT('k')}")
    stamp0(a, 5, 2)
    srd_(a, SH, "shift", 8192)
    a(f"buffer_load_dwordx4 {V(WRAW,4)}, v9, {S(SH)}, 0 offen")
    a(f"buffer_load_dwordx4 {V(WRAW+4,4)}, v9, {S(SH)}, 0 offen offset:16")
    srd_(a, VS, "v", 4 << 20)
    for i in range(8):
        a(f"buffer_load_dwordx2 {V(VR+2*i,2)}, v10, {S(VS)}, {SOFF[i>>1]} offen offset:{2048*(i&1)}{NT('k')}")
    stamp0(a, 6, 2)
    if OPT["kfirst"]: a("s_barrier")
    srd(a, DS, "Dskip", 2048)
    a(f"""buffer_load_dwordx2 {V(DSK,2)}, v1, {S(DS)}, 0 offen
    s_lshl_b32 s7, s5, 2
    v_add_u32 v15, s7, v13
    v_sub_u32 v15, 15, v15
    v_xor_b32 v15, v15, v12
    v_lshlrev_b32 v15, 4, v15
    v_lshl_add_u32 v15, v12, 10, v15
    v_add_u32 v15, {L_ST}, v15
    v_lshrrev_b32 v3, 1, v12
    v_xor_b32 v3, v3, v13
    v_lshlrev_b32 v3, 4, v3
    v_lshl_add_u32 v4, v12, 7, v3
    v_xor_b32 v6, 64, v4
    v_add_u32 v5, 0x10000, v4
    v_add_u32 v7, 0x10000, v6
    s_lshl_b32 s6, s5, 12
    s_add_u32 s6, s6, 16384
    v_add_u32 v8, s6, v4
    v_add_u32 v9, s6, v5
    v_add_u32 v10, s6, v6
    v_add_u32 v11, s6, v7""")
    def unp(d, s, hi):
        return f"v_and_b32 v{d}, 0xffff0000, v{s}" if hi else f"v_lshlrev_b32 v{d}, 16, v{s}"
    def a1_k(c):
        for j in range(4):
            a(unp(WF + j, WRAW + 2 * c + (j >> 1), j & 1))
        for i in range(11):
            a(unp(KT + i, KR + 2 * i + (c >> 1), c & 1))
        for t in range(8):
            a(f"v_mul_f32 v{AC+8*c+t}, v{WF}, v{KT+t+3}")
        for j in range(1, 4):
            for t in range(8):
                a(f"v_fmac_f32 v{AC+8*c+t}, v{WF+j}, v{KT+t+3-j}")
    def a1_v(c):
        for t in range(8):
            a(unp(KT + t, VR + 2 * t + (c >> 1), c & 1))
        for t in range(8):
            a(f"v_mul_f32 v{AC+8*c+t}, v{AC+8*c+t}, v{KT+t}")
        o = OUT + 4 * c
        for i in range(4):
            a(f"v_cvt_pk_bf16_f32 v{o+i}, v{AC+8*c+7-2*i}, v{AC+8*c+6-2*i}")
        a(f"ds_write_b128 v15, {V(o,4)} offset:{256*c}")
    srd(a, DB, "dbg", 256)
    a(f"""s_or_b32 s6, s2, s5
    s_cmp_eq_u32 s6, 0
    s_cbranch_scc0 C_nonce_w
    s_memrealtime s[6:7]
    v_mov_b32 v1, 0
    s_waitcnt lgkmcnt(0)
    s_or_b32 s6, s6, 1
    v_mov_b32 v48, s6
    v_mov_b32 v49, s7
    s_mov_b64 exec, 1
    buffer_store_dwordx2 v[48:49], v1, {S(DB)}, 0 offen sc1
    s_mov_b64 exec, -1""")
    a.label("C_nonce_w")
    srd(a, HS, "ws", 8 << 20, WS_H)
    srd(a, ES, "ws", 1 << 18, WS_E)
    srd(a, KV, "ws", 4 << 20, WS_KVT)
    srd(a, FL, "ws", FL_SZ, WS_FLG)
    srd(a, OS, "out", 16 << 20)
    CR, CI = 24, 80
    srd(a, CR, "Cre", 2 << 20)
    srd(a, CI, "Cim", 2 << 20)
    rot1(a, 34, 35)
    a(f"""s_sub_u32 s34, s4, s34
    s_and_b32 s34, s34, 15          ; step of G1 that holds this tile's x columns
    s_lshl_b32 s6, s5, 12
    v_add_u32 v{XA}, s6, v4
    v_xor_b32 v{XA+1}, 64, v{XA}
    v_mov_b32 v{NA}, {L_N}
    s_lshr_b32 s7, s2, 3
    s_and_b32 s32, s7, 15           ; a_mt
    s_lshr_b32 s7, s7, 4
    s_and_b32 s33, s2, 7
    s_lshl_b32 s33, s33, 1
    s_add_u32 s33, s33, s7          ; a_nt
    s_mov_b32 s36, 16384
    s_mov_b32 s37, 32768
    s_mov_b32 s38, 49152
    ; staging read addresses / KVT offsets
    s_lshl_b32 s6, s5, 2
    v_xor_b32 v1, s6, v12
    v_lshlrev_b32 v1, 4, v1
    v_lshl_add_u32 v1, v13, 8, v1
    s_lshl_b32 s6, s5, 12
    s_add_u32 s6, s6, {L_ST}
    v_add_u32 v{STA}, s6, v1
    v_xor_b32 v{STA+1}, 16, v{STA}
    v_xor_b32 v{STA+2}, 32, v{STA}
    v_xor_b32 v{STA+3}, 48, v{STA}
    s_lshl_b32 s6, s33, 2
    s_add_u32 s6, s6, s5
    s_lshl_b32 s6, s6, 16           ; (64 a_nt + 16 w)*4096
    s_lshl_b32 s7, s32, 8
    s_sub_u32 s7, 3840, s7
    s_add_u32 s6, s6, s7
    v_lshlrev_b32 v1, 12, v13
    v_lshl_add_u32 v1, v12, 4, v1
    v_add_u32 v{KVG}, s6, v1
    s_lshl_b32 s6, s33, 2
    s_add_u32 s7, s6, s5
    s_lshl_b32 s7, s7, 4
    s_add_u32 s7, s7, s32
    s_lshl_b32 s20, s7, 3
    s_lshr_b32 s7, s32, 2
    s_add_u32 s7, s7, s6
    s_lshl_b32 s21, s7, 7
    s_lshl_b32 s7, s33, 4
    s_add_u32 s7, s7, s32
    s_lshl_b32 s7, s7, 2
    s_add_u32 s7, s7, s5
    s_lshl_b32 s22, s7, 12
    s_lshl_b32 s23, s5, 14
    s_add_u32 s23, s23, {L_U}
    ; look-back / publish / H offsets
    s_lshl_b32 s6, s3, 14
    v_lshlrev_b32 v1, 4, v14
    v_add_u32 v{PUB}, s6, v1
    v_lshrrev_b32 v1, 2, v12
    v_lshlrev_b32 v1, 14, v1
    v_sub_u32 v1, v{PUB}, v1
    v_subrev_u32 v{LBK}, 0x4000, v1
    v_subrev_u32 v{LBK+1}, 0x14000, v1
    v_subrev_u32 v{LBK+2}, 0x24000, v1
    v_subrev_u32 v{LBK+3}, 0x34000, v1
    v_cmp_gt_i32 s[40:41], 0, v{LBK}
    v_cmp_gt_i32 s[42:43], 0, v{LBK+1}
    v_cmp_gt_i32 s[44:45], 0, v{LBK+2}
    v_cmp_gt_i32 s[46:47], 0, v{LBK+3}
    s_lshl_b32 s6, s3, 4
    s_add_u32 s6, s6, s4
    s_lshl_b32 s6, s6, 15
    s_lshl_b32 s7, s5, 10
    s_add_u32 s6, s6, s7
    v_lshlrev_b32 v1, 4, v2
    v_add_u32 v{HST}, s6, v1
    s_lshl_b32 s7, s5, 2
    v_add_u32 v{FA}, s7, v{NA}
    s_mov_b32 s48, 0xaaaaaaaa
    s_mov_b32 s49, 0xaaaaaaaa
    s_mov_b32 s50, 0xcccccccc
    s_mov_b32 s51, 0xcccccccc
    s_mov_b32 s52, 0x000f000f
    s_mov_b32 s53, 0x000f000f""")
    for i in range(64):
        a(f"v_mov_b32 v{ACC+i}, 0")
    a("s_waitcnt vmcnt(22)")
    stamp0(a, 7, 2)
    a(f"""v_lshlrev_b32 v45, 16, v45
    v_lshlrev_b32 v46, 16, v46
    v_lshlrev_b32 v47, 16, v47
    v_mul_f32 v45, 0x3fb8aa3b, v45
    v_exp_f32 v45, v45
    s_nop 0
    v_cvt_pk_bf16_f32 v45, v45, v45
    v_lshlrev_b32 v45, 16, v45
    v_mul_f32 v52, v45, v46
    v_mul_f32 v53, v45, v47
    v_mul_f32 v52, 0x3fb8aa3b, v52
    v_exp_f32 v48, v52
    v_mul_f32 v53, 0.15915494, v53
    v_fract_f32 v53, v53
    v_cos_f32 v50, v53
    v_sin_f32 v51, v53
    s_nop 0
    v_mul_f32 v44, v48, v50
    v_mul_f32 v45, v48, v51
    v_add_f32 v48, -1.0, v44
    v_mul_f32 v49, v46, v46
    v_fmac_f32 v49, v47, v47
    v_rcp_f32 v49, v49
    v_mul_f32 v50, v48, v46
    v_fmac_f32 v50, v45, v47
    v_mul_f32 v51, v45, v46
    v_fma_f32 v51, -v48, v47, v51
    v_add_f32 v49, v49, v49
    v_mul_f32 v46, v50, v49
    v_mul_f32 v47, v51, v49
    v_lshlrev_b32 v54, 3, v12
    v_cvt_f32_u32 v54, v54              ; 8j
    v_lshrrev_b32 v55, 2, v12
    v_lshlrev_b32 v55, 7, v55
    v_cvt_f32_u32 v55, v55              ; 128 (j>>2)""")
    DM = "row_mask:0xf bank_mask:0xf"
    def qb(i): return f"quad_perm:[{i},{i},{i},{i}] {DM}"
    for i in range(4):
        a(f"""v_mov_b32_dpp v{L+i}, v44 {qb(i)}
        v_mov_b32_dpp v{L+4+i}, v45 {qb(i)}
        v_mov_b32_dpp v{C2+i}, v46 {qb(i)}
        v_mov_b32_dpp v{C2+4+i}, v47 {qb(i)}""")
    def powd(dr, di, m0_, m1_):
        a(f"""{m0_}
        {m1_}
        v_exp_f32 v48, v48
        v_fract_f32 v49, v49
        v_cos_f32 v50, v49
        v_sin_f32 v51, v49
        s_nop 0
        v_mul_f32 v{dr}, v48, v50
        v_mul_f32 v{di}, v48, v51""")
    for i in range(4):
        powd(P8 + i, P8 + 4 + i, f"v_mul_f32_dpp v48, v52, v54 {qb(i)}", f"v_mul_f32_dpp v49, v53, v54 {qb(i)}")
    powd(G128, G128 + 1, "v_mul_f32 v48, v52, v55", "v_mul_f32 v49, v53, v55")
    powd(L512, L512 + 1, "v_mul_f32 v48, 0x44000000, v52", "v_mul_f32 v49, 0x44000000, v53")
    def reads(s, h):
        sl = SLOT[s]
        grp, so = divmod(sl, 65536)
        f = FR + 40 * h
        R = [f"ds_read_b128 {V(f+32+4*p,4)}, v{BA+2*h+grp} offset:{so+2048*p}" for p in range(2)]
        R += [f"ds_read_b128 {V(f+4*i,4)}, v{AA+2*h+grp} offset:{so+2048*i}" for i in range(8)]
        return R
    def mfmas(h):
        f = FR + 40 * h
        M = []
        for r in range(8):
            for p in ((0, 1) if not (r & 1) else (1, 0)):
                c = ACC + 8 * r + 4 * p
                M.append(f"v_mfma_f32_16x16x32_bf16 {V(c,4)}, {V(f+32+4*p,4)}, {V(f+4*r,4)}, {V(c,4)}")
        return M
    stamp0(a, 4)
    a("s_waitcnt vmcnt(9)")
    stamp0(a, 5)
    for c in range(4): a1_k(c)
    a("s_waitcnt vmcnt(1)")
    stamp0(a, 6)
    for c in range(4): a1_v(c)
    stamp0(a, 7)
    a("s_waitcnt lgkmcnt(0)\ns_barrier")
    stamp(a, 1)
    for x in reads(0, 0): a(x)
    if OPT["prioc"]: a(f"s_setprio {OPT['prioc']}")
    for i in range(4):
        a(f"ds_read_b128 {V(STG+4*i,4)}, v{STA+i} offset:{1024*i}")
    KP, KA = 244, 246
    def ool_spin(lbl, load, test):
        o_ = Asm()
        o_.label(lbl)
        o_("s_mov_b32 s39, 0")
        o_.label(lbl + "_s")
        o_(f"""{load}
        s_add_u32 s39, s39, 1
        s_waitcnt vmcnt(0)
        s_cmp_gt_u32 s39, {SPIN}
        s_cbranch_scc1 {lbl}_r
        {test}
        s_cbranch_scc0 {lbl}_s
        s_branch {lbl}_r""")
        OOL.extend(o_.l)
        a(f"{test}\ns_cbranch_scc0 {lbl}")
        a.label(lbl + "_r")
    NLD = f"buffer_load_dwordx2 {V(GR+2,2)}, off, {S(DB)}, 0 sc1"
    KPL = f"buffer_load_dwordx2 {V(KP,2)}, v{KA}, {S(FL)}, s21 offen sc1"
    def hook(hs):
        if hs == 0:
            for i in range(4):
                a(f"buffer_store_dwordx4 {V(STG+4*i,4)}, v{KVG}, {S(KV)}, {['0','s36','s37','s38'][i]} offen sc1")
            a(NLD)
            a(f"v_lshlrev_b32 v{KA}, 3, v12\nv_lshlrev_b32 v{KA+1}, 4, v2")
        if hs == OPT["fs"]:
            a("s_waitcnt vmcnt(0)")
            ool_spin("C_non", NLD, f"v_readfirstlane_b32 s7, v{GR+2}\ns_cmp_lg_u32 s7, 0")
            a(f"""s_mov_b64 exec, 1
            buffer_store_dwordx2 {V(GR+2,2)}, off, {S(FL)}, s20 sc1
            ds_write_b64 v{NA}, {V(GR+2,2)}
            s_mov_b64 exec, -1""")
        if hs == OPT["ps"]: a(KPL)
        if hs == OPT["pc"]:
            assert hs >= 2 * RFREE
            a("s_waitcnt vmcnt(0)")
            ool_spin("C_kvp", KPL, f"""v_cmp_eq_u32 vcc, v{KP}, v{GR+2}
            v_cmp_eq_u32 s[54:55], v{KP+1}, v{GR+3}
            s_mov_b32 m0, s23
            s_and_b64 s[54:55], s[54:55], vcc
            s_cmp_eq_u64 s[54:55], -1""")
            for j in range(4):
                a(f"buffer_load_dwordx4 v{KA+1}, {S(KV)}, s22 offen offset:{1024*j} sc1 lds")
        if hs == OPT["kl"]: a("s_waitcnt vmcnt(0)")
    assert 0 < OPT["fs"] < OPT["ps"] < OPT["pc"] < OPT["kl"] and OPT["kl"] & 1
    for s in range(16):
        a(f"s_cmp_eq_u32 s34, {s}\ns_waitcnt lgkmcnt(0)\ns_cbranch_scc1 C_x{s}")
        a.label(f"C_x{s}_r")
        o_ = Asm()
        o_.label(f"C_x{s}")
        o_(f"v_add_u32 v{XA}, {SLOT[s]}, v{XA}\nv_add_u32 v{XA+1}, {SLOT[s]}, v{XA+1}")
        for t in range(2):
            for h in range(2):
                o_(f"ds_read_b128 {V(XF+8*t+4*h,4)}, v{XA+h} offset:{2048*t}")
        o_(f"s_branch C_x{s}_r")
        OOL.extend(o_.l)
        hook(2 * s)
        interleave(a, mfmas(0), reads(s, 1), 1)
        hook(2 * s + 1)
        a("s_waitcnt lgkmcnt(0)")
        if s < 15: a("s_barrier")
        M = mfmas(1)
        if s == 15:
            a("v_mov_b32 v3, 1\nv_mov_b32 v15, 2")
            cl = f"ds_write_b32 v{FA}, v3 offset:{L_F + 48 - L_N}"
            if OPT["gate"] and SA == 16: a(cl)
            elif OPT["gate"]: M[8] += "\n" + cl
            a(f"ds_write_b32 v{FA}, v{GR+2} offset:{L_F - L_N}")
        interleave(a, M, reads(s + 1, 0) if s < 15 else [], 1)
    stamp(a, 2)
    a("s_nop 3")
    SC = [False]
    def pk(op, d, x, y, c=None, neg=False):
        if SC[0]:
            for i in range(2):
                n = "-" if neg else ""
                if c is None: a(f"v_mul_f32 v{d+i}, {n}v{x+i}, v{y+i}")
                elif c == d and not neg: a(f"v_fmac_f32 v{d+i}, v{x+i}, v{y+i}")
                else: a(f"v_fma_f32 v{d+i}, {n}v{x+i}, v{y+i}, v{c+i}")
            return
        n = ""
        if neg: n = " neg_lo:[1,0,0] neg_hi:[1,0,0]" if c is not None else " neg_lo:[1,0] neg_hi:[1,0]"
        if c is None: a(f"v_pk_mul_f32 {V(d,2)}, {V(x,2)}, {V(y,2)}{n}")
        else: a(f"v_pk_fma_f32 {V(d,2)}, {V(x,2)}, {V(y,2)}, {V(c,2)}{n}")
    def cm4(dr, di, k, xr, xi, cr=None, ci=None, s=(0, 0, 1, 0)):
        for h in (0, 2):
            pk("f", dr + h, k + h, xr + h, None if cr is None else cr + h, s[0])
            pk("f", di + h, k + h, xi + h, None if ci is None else ci + h, s[1])
        for h in (0, 2):
            pk("f", dr + h, k + 4 + h, xi + h, dr + h, s[2])
            pk("f", di + h, k + 4 + h, xr + h, di + h, s[3])
    def Ur(r): return ACC + 8 * r
    def Ui(r): return ACC + 8 * r + 4
    EB = [128, 136]
    W, PL, SH_, MU, AC_, MM, U0, PK = 144, 152, 168, 176, 184, 192, 200, 128
    CPE = OPT["cpe"]
    if CPE:
        assert OPT["shsc"] and OPT["lbp"] == 2 and OPT["nh"] == 8 and OPT["ncb"] == 2 and CPE <= min(4, OPT["ncc"])
        PL, SH_, AC_, MM, U0 = 24, 144, 152, 136, 48
    e = Ur(0)
    for r in range(1, 8):
        d = EB[r & 1]
        cm4(d, d + 4, L, e, e + 4, Ur(r), Ui(r))
        e = d
    for i in range(4):
        a(f"""v_mul_f32_dpp v{W+i}, v{P8+i}, v{e+i} row_mirror {DM}
        v_mul_f32_dpp v{W+4+i}, v{P8+i}, v{e+4+i} row_mirror {DM}""")
    for i in range(4):
        a(f"""v_fmac_f32_dpp v{W+i}, -v{P8+4+i}, v{e+4+i} row_mirror {DM}
        v_fmac_f32_dpp v{W+4+i}, v{P8+4+i}, v{e+i} row_mirror {DM}""")
    for i in (0, 4, 1, 5, 2, 6, 3, 7):
        a(f"v_add_f32_dpp v{W+i}, v{W+i}, v{W+i} quad_perm:[1,0,3,2] {DM}")
    for i in range(4):
        a(f"v_cndmask_b32 v{44+i}, v{W+2*i}, v{W+2*i+1}, s[48:49]")
    for i in range(4):
        if i == 0: a("s_nop 0")
        a(f"v_add_f32_dpp v{44+i}, v{44+i}, v{44+i} quad_perm:[2,3,0,1] {DM}")
    a(f"""v_cndmask_b32 v{GR}, v44, v45, s[50:51]
    v_cndmask_b32 v{GR+1}, v46, v47, s[50:51]
    s_nop 0
    v_add_f32_dpp v{GR}, v{GR}, v{GR} row_ror:4 {DM}
    v_add_f32_dpp v{GR+1}, v{GR+1}, v{GR+1} row_ror:4 {DM}
    s_nop 0
    v_add_f32_dpp v{GR}, v{GR}, v{GR} row_ror:8 {DM}
    v_add_f32_dpp v{GR+1}, v{GR+1}, v{GR+1} row_ror:8 {DM}
    s_mov_b64 exec, s[52:53]
    buffer_store_dwordx4 {V(GR,4)}, v{PUB}, {S(ES)}, 0 offen sc1
    s_mov_b64 exec, -1""")
    CAD = 244
    def csetup():
        a(f"""s_and_b32 s7, s3, {12 * OPT['xrot']}
        s_add_u32 s7, s7, s4
        s_and_b32 s36, s7, 15
        v_lshrrev_b32 v1, 3, v2
        v_and_b32 v44, 7, v2
        v_xor_b32 v44, v44, v13
        v_lshlrev_b32 v44, 4, v44
        v_lshl_add_u32 v44, v1, 13, v44
        s_lshl_b32 s7, s4, 6
        s_add_u32 s7, s7, s5
        s_lshl_b32 s7, s7, 11
        v_add_u32 v{CAD}, s7, v44
        v_xor_b32 v{CAD+1}, 64, v{CAD}
        v_add_u32 v{CAD+1}, {65536-1024}, v{CAD+1}
        v_xor_b32 v{CAD+2}, 32, v{CAD}
        v_xor_b32 v{CAD+3}, 32, v{CAD+1}
        s_lshl_b32 s20, s36, 7
        s_and_b32 s22, s20, 1024
        s_xor_b32 s23, s22, 1024
        s_lshl_b32 s21, s5, 11""")
        if OPT["ot"]:
            a(f"""v_lshlrev_b32 v1, 12, v1
            v_and_b32 v44, 7, v2
            v_lshl_add_u32 v1, v44, 7, v1
            v_lshlrev_b32 v44, 4, v2
            v_sub_u32 v1, v1, v44
            v_add_u32 v{PUB}, v{HST}, v1""")
    def ldC(k, r=None):
        if OPT["hord"]: a(f"s_add_u32 s7, s20, {128*k}\ns_and_b32 s7, s7, 1023\ns_or_b32 s7, s7, s{22 + (k >> 3)}")
        else: a(f"s_add_u32 s7, s20, {128*k}\ns_and_b32 s7, s7, 2047")
        for j in range(4):
            tail = f"v{CAD+j}, {S(CI if j & 2 else CR)}, s7 offen offset:{1024*(j&1)}"
            if r is None:
                if not j & 1: a(f"s_add_u32 m0, s21, {16384*k + 4096*j}\ns_nop 0")
                a(f"buffer_load_dwordx4 {tail} lds")
            else: a(f"buffer_load_dwordx4 {V(r+4*j,4)}, {tail}")
    def wchk(off, t=56):
        a(f"""ds_read_b128 v[{t}:{t+3}], v{NA} offset:{L_F + off - L_N}
        s_waitcnt lgkmcnt(0)
        v_xor_b32 v{t}, v{t}, v{GR+2}
        v_xor_b32 v{t+1}, v{t+1}, v{GR+2}
        v_xor_b32 v{t+2}, v{t+2}, v{GR+2}
        v_xor_b32 v{t+3}, v{t+3}, v{GR+2}
        v_or3_b32 v{t}, v{t}, v{t+1}, v{t+2}
        v_or_b32 v{t}, v{t}, v{t+3}
        v_cmp_ne_u32 vcc, 0, v{t}""")
    def g1done():
        assert SLOT[15] == 65536
        a("s_mov_b32 s39, 0")
        a.label("C_g1d")
        wchk(0, 44)
        a(f"""s_add_u32 s39, s39, 1
        s_cmp_gt_u32 s39, {SPIN * 4}
        s_cbranch_scc1 C_g1d_ok
        s_cbranch_vccnz C_g1d""")
        a.label("C_g1d_ok")
    LBI = OPT["lbi"]
    FSH_ = OPT["pks"]
    assert not FSH_ or (CPE and LBI < 0 and OPT["gate"] == 1 and not OPT["ccd"])
    PLS = [PL + 4 * j for j in range(4)] if LBI < 0 and not FSH_ else [128, 132, 144, 148]
    def lbpoll():
        for j in range(4):
            a(f"buffer_load_dwordx4 {V(PLS[j],4)}, v{LBK+j}, {S(ES)}, 0 offen sc1")
    if OPT["lbp"] == 0: lbpoll()
    GO = f"ds_write_b32 v{FA}, v15 offset:{L_F + 48 - L_N}"
    if FSH_:
        if OPT["fpl"] == 0: lbpoll()
    elif OPT["shsc"]:
        SC[0] = True
        if OPT["gate"]: a(GO)
    if OPT["ccd"] == 2:
        csetup(); g1done()
        for t in ([] if OPT["d15"] else [14]) + [15]:
            for k in (SLOT[t] // 16384, SLOT[t] // 16384 + 1): ldC(k)
    EREG = [160, 176, 192, 224]
    if CPE and not FSH_:
        if OPT["ccd"] != 2: csetup()
        for i in range(CPE - OPT["cpw"] if LBI < 0 else 0): ldC(6 + i, EREG[i])
    if OPT["lbp"] == 1: lbpoll()
    stamp(a, 3)
    sh0 = len(a.l)
    F = EB[0]
    SHB = SH_
    if FSH_: F, SH_, MU = 160, 168, 176
    assert e == EB[1]
    for i in range(8):
        a(f"v_mov_b32_dpp v{F+i}, v{e+i} row_shr:1 {DM} bound_ctrl:0")
    for sft in (1, 2, 4, 8):
        if SC[0]:
            if sft == 1: a("s_nop 0")
            for i in range(8):
                a(f"v_mov_b32_dpp v{SH_+i}, v{F+i} row_shr:{sft} {DM} bound_ctrl:0")
            nb = f"row_newbcast:{sft} {DM}"
            for i in range(4): a(f"v_fmac_f32_dpp v{F+i}, v{P8+i}, v{SH_+i} {nb}")
            for i in range(4): a(f"v_fmac_f32_dpp v{F+4+i}, v{P8+i}, v{SH_+4+i} {nb}")
            for i in range(4): a(f"v_fmac_f32_dpp v{F+i}, -v{P8+4+i}, v{SH_+4+i} {nb}")
            for i in range(4): a(f"v_fmac_f32_dpp v{F+4+i}, v{P8+4+i}, v{SH_+i} {nb}")
            continue
        for h in range(0, 8, 2):
            a(f"v_mov_b64_dpp {V(MU+h,2)}, {V(P8+h,2)} row_newbcast:{sft} {DM}")
        for i in (0, 1, 4, 5, 2, 3, 6, 7):
            a(f"v_mov_b32_dpp v{SH_+i}, v{F+i} row_shr:{sft} {DM} bound_ctrl:0")
        cm4(F, F + 4, MU, SH_, SH_ + 4, F, F + 4)
    for i in range(CPE - OPT["cpw"], CPE if LBI < 0 and not FSH_ else 0): ldC(6 + i, EREG[i])
    cm4(AC_, AC_ + 4, C2, F, F + 4, s=(0, 1, 1, 1))
    sh1 = len(a.l) - sh0
    cm4(MM, MM + 4, C2, P8, P8 + 4)
    SH_ = SHB
    if FSH_ and OPT["fpl"] == 1: lbpoll()
    if FSH_ == 2:
        a(GO); csetup(); SC[0] = True
        sh0 = len(a.l)
    def U2(r): return U0 if r == 0 else Ur(r - 1)
    for r in range(8):
        for h in (0, 2):
            pk("m", U2(r) + h, C2 + h, Ur(r) + h)
        for h in (0, 2):
            pk("f", U2(r) + h, C2 + 4 + h, Ui(r) + h, U2(r) + h, True)
        for h in (0, 2):
            pk("m", Ui(r) + h, C2 + h, Ui(r) + h, None, True)
        for h in (0, 2):
            pk("f", Ui(r) + h, C2 + 4 + h, Ur(r) + h, Ui(r) + h, True)
    SC[0] = False
    if OPT["gate"] == 1 and not OPT["shsc"]: a(GO)
    if OPT["ccd"] != 2 and not CPE: csetup()
    if OPT["ccd"] == 1: g1done()
    if FSH_ == 3:
        csetup()
        if not OPT["fgo"]: a(GO)
        after = 0
    elif FSH_ == 1:
        if OPT["fpl"] == 2: lbpoll()
        a(GO); csetup()
        for i in range(CPE): ldC(6 + i, EREG[i])
        after = 4 * CPE
    elif LBI >= 0 or FSH_:
        assert CPE and not OPT["ccd"]
        SHD = a.l[sh0:]; del a.l[sh0:]
        ins = {}
        main_ = a.l
        for i in range(CPE):
            a.l = []; ldC(6 + i, EREG[i]); x = a.l
            n0 = len(x) - 4
            for j in range(4):
                ins.setdefault(min(len(SHD), OPT["c0"] + OPT["cd"] * (4 * i + j)), []).append((x[:n0] if j == 0 else []) + [x[n0 + j]])
        a.l = []; lbpoll(); pl_ = a.l
        a.l = main_
        after = 0 if FSH_ else -1
        for n_ in range(len(SHD) + 1):
            if n_ == min(len(SHD), sh1 + LBI) and not FSH_:
                a.l.extend(pl_); after = 0
            for x in ins.get(n_, []):
                a.l.extend(x)
                if after >= 0: after += 1
            if n_ < len(SHD): a.l.append(SHD[n_])
    elif OPT["lbp"] == 2: lbpoll()
    stamp(a, 4)
    a("s_mov_b32 s39, 0")
    if (LBI >= 0 or FSH_) and after: a(f"s_waitcnt vmcnt({after})\ns_branch C_chk1")
    if FSH_ == 3: a("s_mov_b32 s33, 0\ns_branch C_f0")
    a.label("C_chk")
    a("s_waitcnt vmcnt(0)")
    if (LBI >= 0 or FSH_) and after: a.label("C_chk1")
    def lbeval(ok):
        for j in range(4):
            b = PLS[j]
            a(f"""v_cmp_eq_u32 vcc, v{b+2}, v{GR+2}
            v_cmp_eq_u32 s[54:55], v{b+3}, v{GR+3}
            s_and_b64 s[54:55], s[54:55], vcc
            s_or_b64 s[{56+2*j}:{57+2*j}], s[54:55], s[{40+2*j}:{41+2*j}]""")
        a(f"""s_and_b64 s[56:57], s[56:57], s[58:59]
        s_and_b64 s[60:61], s[60:61], s[62:63]
        s_and_b64 s[56:57], s[56:57], s[60:61]
        s_cmp_eq_u64 s[56:57], -1
        s_cbranch_scc1 {ok}""")
    lbeval("C_ok")
    a(f"""s_add_u32 s39, s39, 1
    s_cmp_gt_u32 s39, {SPIN}
    s_cbranch_scc1 C_ok""")
    lbpoll()
    a("s_branch C_chk")
    if FSH_ == 3:
        a.label("C_f0")
        a("s_waitcnt vmcnt(0)")
        lbeval("C_ok0" if OPT["fgo"] else "C_ok")
        if OPT["fgo"]: a(GO)
        FN = OPT["fn"]
        for i in range(0, CPE, FN):
            lbpoll()
            for i_ in range(i, i + FN): ldC(6 + i_, EREG[i_])
            a(f"s_mov_b32 s33, {i + FN}\ns_waitcnt vmcnt({4 * FN})")
            lbeval("C_ok")
        lbpoll()
        a("s_branch C_chk")
    a.label("C_ok")
    if OPT["gate"] == 1: a(f"ds_write_b32 v{FA}, v3 offset:{L_F + 48 - L_N}")
    if FSH_ == 3 and OPT["fgo"]: a.label("C_ok0")
    stamp(a, 5)
    cmul(a, PLS[2], PLS[3], L512, PLS[2])
    cmul(a, PLS[1], PLS[2], L512, PLS[1])
    cmul(a, PLS[0], PLS[1], L512, PLS[0])
    cmul(a, 44, PLS[0], G128)
    a(f"""s_nop 0
    v_add_f32_dpp v44, v44, v44 row_ror:4 {DM}
    v_add_f32_dpp v45, v45, v45 row_ror:4 {DM}
    s_nop 0
    v_add_f32_dpp v44, v44, v44 row_ror:8 {DM}
    v_add_f32_dpp v45, v45, v45 row_ror:8 {DM}
    s_nop 0""")
    for i in range(4):
        a(f"v_mov_b32_dpp v{SH_+i}, v44 {qb(i)}\nv_mov_b32_dpp v{SH_+4+i}, v45 {qb(i)}")
    cm4(AC_, AC_ + 4, MM, SH_, SH_ + 4, AC_, AC_ + 4, s=(0, 1, 1, 1))
    pr, pi = AC_, AC_ + 4
    def hout(r):
        o = PK + 4 * r
        a(f"""v_permlane32_swap_b32 v{o}, v{o+2}
        v_permlane32_swap_b32 v{o+1}, v{o+3}
        s_mov_b32 s6, {4096*r}
        buffer_store_dwordx4 {V(o,4)}, v{HST}, {S(HS)}, s6 offen{FLV[0 if OPT['hw'] else OPT['hsf']]}""")
    for r in range(8):
        cm4(U2(r), Ui(r), L, pr, pi, U2(r), Ui(r), s=(0, 0, 0, 1))
        pr, pi = U2(r), Ui(r)
        if r: hout(r - 1)
        o = PK + 4 * r
        a(f"""v_cvt_pk_bf16_f32 v{o}, v{pr}, v{pr+1}
        v_cvt_pk_bf16_f32 v{o+2}, v{pi}, v{pi+1}
        v_cvt_pk_bf16_f32 v{o+1}, v{pr+2}, v{pr+3}
        v_cvt_pk_bf16_f32 v{o+3}, v{pi+2}, v{pi+3}""")
    a("s_nop 0")
    hout(7)
    if OPT["gate"]: a(GO)
    stamp(a, 6)
    CA, CB, HA, OA2, HFP, PLL = 4, 8, 48, 50, 51, 248
    NCB = OPT['ncb']
    NH = OPT['nh']
    CD = NCB // 2
    assert OPT['hd'] < NH
    ACC, HR, CF, DG = 16, 64, 64 + 8 * NH, 64
    NCC = OPT["ncc"]
    PREG = sorted([CF + 16 * NCB + 16 * i for i in range(NCC)], key=lambda r: r == XF)
    assert (not PREG or max(PREG) + 16 <= 240) and CF + 16 * NCB <= XF and (XF - CF) % 16 == 0
    vm = VM()
    vm.add("st")
    def st2():
        for r in range(8):
            a(f"s_mov_b32 s6, {4096*r}\nbuffer_store_dwordx4 {V(PK+4*r,4)}, v{HST}, {S(HS)}, s6 offen{FLV[OPT['ds2'] - 1]}"); vm.add("s2")
    if OPT["ds2"] and OPT["dsp"] == 0: st2()
    for i in range(OPT["ot"]):
        a(f"buffer_load_dword v{252+i}, v{PUB}, {S(HS)}, 0 offen offset:{64*i}{FLV[OPT['otf']]}"); vm.add("ot")
    assert PREG[:CPE] == EREG[:CPE] and CPE + OPT["cpl"] <= NCC
    NPRE = NCC - OPT["cpl"]
    if OPT["ccd"] == 1:
        for k in (SLOT[15] // 16384, SLOT[15] // 16384 + 1):
            ldC(k); vm.add("cd", 4)
    if FSH_ == 3:
        for i in range(CPE):
            a(f"s_cmp_gt_u32 s33, {i}\ns_cbranch_scc1 C_dn{i}")
            ldC(6 + i, EREG[i])
            a.label(f"C_dn{i}")
    for i in range(CPE, NPRE):
        if PREG[i] != XF:
            ldC(6 + i, PREG[i]); vm.add(f"C{i}", 4)
    CW = 52
    a(f"""v_lshlrev_b32 v1, 4, v2
    v_add_u32 v{CW}, s21, v1
    v_add_u32 v{CW+1}, 0xc000, v{CW}""")
    a(f"""v_lshrrev_b32 v1, 1, v13
    v_lshl_add_u32 v{CB}, v1, 13, v4
    v_xor_b32 v{CB+1}, 32, v{CB}
    v_xor_b32 v{CB+2}, 64, v{CB}
    v_xor_b32 v{CB+3}, 96, v{CB}
    s_lshl_b32 s6, s3, 6
    s_add_u32 s6, s6, s5
    s_lshl_b32 s6, s6, 13
    v_lshlrev_b32 v1, 4, v2
    v_add_u32 v{HA}, s6, v1
    v_add_u32 v{HA+1}, 4096, v{HA}
    s_lshl_b32 s6, s6, 1                ; (128 mt + 2 w) * 8192
    s_lshl_b32 s7, s4, 8
    s_add_u32 s6, s6, s7
    s_add_u32 s6, s6, 4096
    v_lshlrev_b32 v{OA2}, 18, v13
    v_lshl_add_u32 v{OA2}, v12, 4, v{OA2}
    v_add_u32 v{OA2}, s6, v{OA2}          ; out offset
    v_lshlrev_b32 v1, 1, v13
    v_sub_u32 v1, v12, v1           ; n - 2g = 8h + e
    v_cmp_eq_u32 s[40:41], 0, v1
    v_cmp_eq_u32 s[42:43], 1, v1
    v_cmp_eq_u32 s[44:45], 8, v1
    v_cmp_eq_u32 s[46:47], 9, v1
    v_and_b32 v56, 0xffff, v{DSK}
    v_and_b32 v57, 0xffff0000, v{DSK}
    v_and_b32 v58, 0xffff, v{DSK+1}
    v_and_b32 v59, 0xffff0000, v{DSK+1}
    s_lshl_b32 s7, s3, 13
    s_add_u32 s7, s7, {FL_H}
    v_lshrrev_b32 v1, 2, v2
    v_xor_b32 v3, s36, v1
    v_add_u32 v1, s36, v1
    v_and_b32 v1, {7 if OPT["hord"] else 15}, v1
    v_and_b32 v3, {8 if OPT["hord"] else 0}, v3
    v_or_b32 v1, v1, v3
    v_lshlrev_b32 v1, {OPT['hsh']}, v1
    v_add_u32 v{HFP}, s7, v1
    s_lshl_b32 s6, s4, {OPT['hsh']}
    s_add_u32 s6, s6, s7
    v_lshl_add_u32 v3, v12, 3, s6
    s_lshl_b32 s38, s36, 15
    s_and_b32 s30, s38, 0x40000
    s_xor_b32 s31, s30, 0x40000
    s_xor_b32 s35, s38, 0x40000
    s_lshl_b32 s6, s3, 19
    s_lshl_b32 s7, s5, 13
    s_add_u32 s6, s6, s7
    v_lshlrev_b32 v1, 7, v2
    v_add_u32 v60, s6, v1               ; touch offset
    s_mov_b32 s34, 1
    s_mov_b32 s37, 0""")
    for b in range(4):
        for h in range(2):
            for r in range(4):
                d = DG + 8 * b + 4 * h + r
                if (r & 1) == (b >> 1):
                    m = 40 + 4 * h + 2 * (r >> 1)
                    a(f"v_cndmask_b32 v{d}, 0, v{56+b}, s[{m}:{m+1}]")
                else:
                    a(f"v_mov_b32 v{d}, 0")
    for i in range(4): a(f"v_add_u32 v{CA+i}, 0xc000, v{CB+i}")
    for h in range(2):
        for t in range(2):
            for b in range(4):
                c = ACC + 16 * t + 4 * b
                a(f"v_mfma_f32_16x16x32_bf16 {V(c,4)}, {V(XF+8*t+4*h,4)}, {V(DG+8*b+4*h,4)}, {V(c,4) if h else 0}")
    PROG = OPT["prog"]
    assert not (PROG and OPT["xrot"])
    PR = 240
    if XF in PREG[:NPRE]:
        ldC(6 + NCC - 1, XF); vm.add(f"C{NCC-1}", 4)
    def poll(r): return f"buffer_load_dwordx2 {V(r,2)}, v{HFP}, {S(FL)}, 0 offen sc1"
    def peval(r):
        return f"""v_cmp_eq_u32 vcc, v{r}, v{GR+2}
        v_cmp_eq_u32 s[54:55], v{r+1}, v{GR+3}
        s_nop 0
        s_and_b64 s[54:55], s[54:55], vcc
        s_or_b32 s54, s54, 15
        {"s_or_b32 s48, s48, s54" if OPT["dyn"] else ""}
        s_ff0_i32_b64 s7, s[54:55]
        s_lshr_b32 s7, s7, 2
        s_max_u32 s37, s37, s7""".split("\n")
    nt_ = [0]
    def htouch():
        if not OPT["ht"]: return ""
        lbl = f"C2_t{nt_[0]}"; nt_[0] += 1
        o_ = Asm()
        o_.label(lbl)
        o_(f"""s_mov_b32 s34, 0
        buffer_load_dword v61, v60, {S(HS)}, s35 offen sc1
        {f"buffer_load_dword v61, v60, {S(HS)}, s35 offen offset:64 sc1" if OPT["ht"] == 1 else ""}
        s_branch {lbl}_r""")
        OOL.extend(o_.l)
        return f"\ns_and_b32 s7, s55, s34\ns_cbranch_scc1 {lbl}\n{lbl}_r:"
    DYN, DY = OPT["dyn"], 61
    assert DYN in (0, 2, 3) and (not DYN or (OPT["hord"] and PROG and not OPT["ht"] and FSH_ != 3 and NCC == 5))
    if DYN: a(f"s_mov_b32 s48, 0\ns_mov_b32 s49, {((1 << 4 * DYN) - 1) << 4}\ns_mov_b32 s33, s38")
    def dpick(j):
        lbl = f"C2_d{j}"
        o_ = Asm()
        o_.label(lbl)
        o_("s_mov_b32 s39, 0")
        o_.label(lbl + "_s")
        o_(f"""{poll(PLL)}
        s_add_u32 s39, s39, 1
        s_mov_b32 s7, s49
        s_waitcnt vmcnt(0)
        s_cmp_gt_u32 s39, {SPIN}
        s_cbranch_scc1 {lbl}_r""")
        o_("\n".join(peval(PLL)))
        o_(f"""s_and_b32 s7, s48, s49
        s_cbranch_scc0 {lbl}_s
        s_branch {lbl}_r""")
        OOL.extend(o_.l)
        return f"""s_and_b32 s7, s48, s49
        s_cbranch_scc0 {lbl}
        {lbl}_r:
        s_ff1_i32_b32 s7, s7
        s_lshl_b32 s6, 15, s7
        s_lshl_b32 s{50+j}, s7, 12
        s_lshl_b32 s7, s7, 13
        s_andn2_b32 s49, s49, s6
        s_add_u32 s38, s33, s7
        s_and_b32 s38, s38, 0x3ffff
        s_or_b32 s38, s38, s30"""
    def hchk(b):
        if b <= DYN: return dpick(b)
        lbl = f"C2_h{b}"
        o_ = Asm()
        o_.label(lbl)
        o_("s_mov_b32 s39, 0")
        o_.label(lbl + "_s")
        o_(f"""{poll(PLL)}
        s_add_u32 s39, s39, 1
        s_waitcnt vmcnt(0)
        s_cmp_gt_u32 s39, {SPIN}
        s_cbranch_scc1 {lbl}_r""")
        o_("\n".join(peval(PLL)))
        o_(f"""s_cmp_gt_u32 s37, {b}
        s_cbranch_scc0 {lbl}_s
        s_branch {lbl}_r""")
        OOL.extend(o_.l)
        return f"s_cmp_gt_u32 s37, {b}\ns_cbranch_scc0 {lbl}\n{lbl}_r:"
    if OPT["spr"] != 3: a(f"s_setprio {OPT['spr']}")
    PQ = OPT["pq"]
    if OPT["ds2"] and OPT["dsp"] == 1: st2()
    if PROG and not PQ:
        a(poll(PR)); vm.add("p0")
    if FSH_ == 3:
        for i in range(CPE): a(f"s_waitcnt vmcnt({vm.cnt('st') + 4 * (CPE - i)})\ns_cmp_eq_u32 s33, {i}\ns_cbranch_scc1 C_stw")
        a(f"s_waitcnt vmcnt({vm.cnt('st')})")
        a.label("C_stw")
        a(f"ds_write_b32 v{FA}, v{GR+2} offset:{L_F + 16 - L_N}")
    else: a(f"s_waitcnt vmcnt({vm.cnt('st')})\nds_write_b32 v{FA}, v{GR+2} offset:{L_F + 16 - L_N}")
    if OPT["ds2"] and OPT["dsp"] == 2: st2()
    wchk(16)
    a(f"""s_mov_b32 s39, 0
    s_cbranch_vccnz C_nofl
    {"buffer_wbl2 sc1" if OPT["hw"] else ""}
    {"s_waitcnt vmcnt(0)" if OPT["hw"] else ""}
    s_mov_b64 exec, {(1 << min(16, 1 << (OPT['hsh'] - 3))) - 1}
    buffer_store_dwordx2 {V(GR+2,2)}, v3, {S(FL)}, 0 offen sc1
    s_mov_b64 exec, -1""")
    if PROG:
        a("s_branch C_own")
        a.label("C_nofl")
        wchk(16)
        a(f"""s_add_u32 s39, s39, 1
        s_cmp_gt_u32 s39, {SPIN * 4}
        s_cbranch_scc1 C_own
        s_cbranch_vccnz C_nofl""")
        a.label("C_own")
    else:
        a.label("C_nofl")
    stamp(a, 7)
    stamp_dump(a, 0)
    if not PROG:
        for i in range(NPRE, NCC):
            ldC(6 + i, PREG[i]); vm.add(f"C{i}", 4)
        spin_flags(a, "C_hspin", PLL, GR + 2, HFP, FL)
    HD = OPT["hd"]
    SKB = OPT["skb"]
    KS, HALF, CF2 = 64 - 4 * SKB, 2 * SKB, 160
    assert not SKB or (CD == 1 and OPT["hord"] and OPT["za"] <= KS // 4 and SKB <= 4)
    def frag(n):
        if n < KS: return [(0, n), (1, n)]
        t, p_ = divmod(n - KS, HALF)
        return [(t, KS + 2 * p_), (t, KS + 2 * p_ + 1)]
    def ogrp(t, i, o):
        x = "\n".join(f"v_mov_b32 v{o+b}, v{ACC+16*t+4*b+i}" for b in range(4))
        y = f"s_mov_b32 s6, {(8*i+t)*8192}"
        if 4 * t + i >= OPT["nob"]: y += f"\nbuffer_store_dwordx4 {V(o,4)}, v{OA2}, {S(OS)}, s6 offen{FLV[OPT['osb']]}"
        return x, y
    def hld(k):
        if k >= KS:
            return [f"buffer_load_dwordx4 {V(HR + 8*(k%NH) + 4*i, 4)}, v{HA+t}, {S(HS)}, s{40 + ((kk - KS) >> 2)} offen offset:{1024*(kk&3)} sc1" for i, (t, kk) in enumerate(frag(k))]
        if k == KS - 1:
            L_ = [f"buffer_load_dwordx4 {V(HR + 8*(k%NH) + 4*t, 4)}, v{HA+t}, {S(HS)}, s38 offen offset:3072 sc1" for t in range(2)]
            for i in range(SKB): L_[1] += f"\ns_add_u32 s{40+i}, s38, {32768*(i+1)}\ns_and_b32 s{40+i}, s{40+i}, 0x3ffff\ns_or_b32 s{40+i}, s{40+i}, s31"
            return L_
        L_ = [f"buffer_load_dwordx4 {V(HR + 8*(k%NH) + 4*t, 4)}, v{HA+t}, {S(HS)}, s38 offen offset:{1024*(k&3)} sc1" for t in range(2)]
        if k & 3 == 3 and k < 4 * DYN: pass
        elif k & 3 == 3 and DYN and k >> 2 == DYN: L_[1] += f"\ns_add_u32 s38, s33, {32768 * (DYN + 1)}\ns_and_b32 s38, s38, 0x3ffff\ns_or_b32 s38, s38, s30"
        elif k & 3 == 3 and OPT["hord"]: L_[1] += f"\ns_add_u32 s38, s38, 32768\ns_and_b32 s38, s38, 0x3ffff\ns_or_b32 s38, s38, s{30 + ((k + 1) >> 5 & 1)}"
        elif k & 3 == 3: L_[1] += "\ns_add_u32 s38, s38, 32768\ns_and_b32 s38, s38, 0x7ffff"
        return L_
    def crd(k):
        if k >= KS:
            L_ = []
            for i, (t, kk) in enumerate(frag(k)):
                sl = (kk >> 2) % 6
                L_ += [f"ds_read_b128 {V(CF2 + 32*(k&1) + 16*i + 4*b, 4)}, v{(CB if sl < 3 else CA)+(kk&3)} offset:{16384*(sl%3) + 2048*b}" for b in range(4)]
            return L_
        if 1 <= k >> 2 <= DYN:
            L_ = [f"ds_read_b128 {V(CF + 16*(k%NCB) + 4*b, 4)}, v{DY} offset:{2048*b}" for b in range(4)]
            L_[0] = f"v_add_u32 v{DY}, s{50 + (k >> 2)}, v{CB+(k&3)}\n" + L_[0]
            return L_
        sl = (k >> 2) % 6
        return [f"ds_read_b128 {V(CF + 16*(k%NCB) + 4*b, 4)}, v{(CB if sl < 3 else CA)+(k&3)} offset:{16384*(sl%3) + 2048*b}" for b in range(4)]
    OP, OQ = L_F + 80 - L_N, L_F + 32 - L_N
    def cnt_chk(lbl, r, off, need):
        test = f"""v_min3_u32 v{r}, v{r}, v{r+1}, v{r+2}
        v_min_u32 v{r}, v{r}, v{r+3}
        v_cmp_gt_u32 vcc, {need}, v{r}"""
        o_ = Asm()
        o_.label(lbl)
        o_("s_mov_b32 s39, 0")
        o_.label(lbl + "_s")
        o_(f"""ds_read_b128 {V(r,4)}, v{NA} offset:{off}
        s_add_u32 s39, s39, 1
        s_waitcnt lgkmcnt(0)
        {test}
        s_cmp_gt_u32 s39, {SPIN * 16}
        s_cbranch_scc1 {lbl}_r
        s_cbranch_vccnz {lbl}_s
        s_branch {lbl}_r""")
        OOL.extend(o_.l)
        return test.split("\n") + [f"s_cbranch_vccnz {lbl}\n{lbl}_r:"]
    a(f"ds_read_b128 v[12:15], v{NA} offset:{OQ}")
    def avail(b): return "s_and_b32 s7, s48, s49" if b <= DYN else f"s_cmp_gt_u32 s37, {b}"
    def pcond(b, tag, r):
        return f"{avail(b)}\ns_cbranch_scc1 C_pq{b}\ns_waitcnt vmcnt({vm.cnt(tag)})\n" + "\n".join(peval(r)) + f"\nC_pq{b}:"
    for k in range(HD if PQ else 0):
        assert HD == 7 and PROG
        if k == 0:
            a(poll(PR)); vm.add("pA")
        if k == 4:
            a(poll(PR + 2)); vm.add("pB")
        if k == OPT["xfp"]:
            for i in range(NPRE, NCC):
                ldC(6 + i, PREG[i]); vm.add(f"C{i}", 4)
        if k == 4:
            if OPT["xs"] == 2: stamp(a, 8)
            a(f"s_waitcnt vmcnt({vm.cnt('pA')})")
            for x in peval(PR): a(x)
            if OPT["xs"] == 3: stamp(a, 8)
            a(pcond(1, "pB", PR + 2))
            a(hchk(1))
            if OPT["xs"] == 4: stamp(a, 8)
        if k == 5:
            a(poll(PLL)); vm.add("pC")
        for x in hld(k):
            a(x); vm.add(f"h{k}")
    if PQ and OPT["xfp"] == 7:
        for i in range(NPRE, NCC):
            ldC(6 + i, PREG[i]); vm.add(f"C{i}", 4)
    for k in range(0 if PQ else HD):
        if k == 4 and OPT["xs"] == 1:
            a("s_waitcnt vmcnt(0)"); stamp(a, 8)
        if k == 4 and OPT["xs"] == 2: stamp(a, 8)
        if k == 4 and PROG:
            for i in range(NPRE, NCC):
                if i - NPRE == OPT["pp"]:
                    a(poll(PR + 2)); vm.add("p1")
                ldC(6 + i, PREG[i]); vm.add(f"C{i}", 4)
        if PROG and k == 4:
            a(f"s_waitcnt vmcnt({vm.cnt('p0')})")
            for x in peval(PR): a(x)
            if "p1" in vm.ops:
                a(f"s_cmp_gt_u32 s37, {OPT['ppn']}\ns_cbranch_scc1 C_p1\ns_waitcnt vmcnt({vm.cnt('p1')})")
                for x in peval(PR + 2): a(x)
                a.label("C_p1")
        if k == 4 and OPT["xs"] == 3: stamp(a, 8)
        if PROG and k and k % 4 == 0: a(hchk(k // 4))
        if k == 4 and OPT["xs"] == 4: stamp(a, 8)
        for x in hld(k):
            a(x); vm.add(f"h{k}")
    if PROG and OPT["hts"] == 0: a(htouch())
    stamp(a, 9 if OPT["xs"] else 8)
    NPL = OPT["npl"] if PROG else 0
    a("s_waitcnt lgkmcnt(0)")
    for x in cnt_chk("C_crdy", 12, OQ, 6): a(x)
    a(f"s_setprio {OPT['prio2']}")
    for k in range(CD):
        for x in crd(k): a(x)
    K0 = 6 + NCC
    lk = VM()
    for k in range(CD): lk.add(f"c{k}", 4)
    pend = {}
    for k in range(64):
        j, ph = divmod(k, 4)
        chkQ = K0 <= j + 1 < 16 and k <= KS
        chkP = (NCC and 2 <= j <= NCC + 3) or (OPT["ccd"] and j == 2)
        tags = [f"c{k}"] + (["w"] if (ph == 0 and (chkP or chkQ)) or (DYN == 3 and k == 27) else [])
        a(f"s_waitcnt vmcnt({vm.cnt(f'h{k}')}) lgkmcnt({min(15, lk.cnt(*tags))})")
        if TRACE and k % 2 == 1: a(f"s_waitcnt lgkmcnt(0)\nv_writelane_b32 v251, s60, {k >> 1}")
        if TRACE and k % 2 == 0: a("s_memrealtime s[60:61]")
        M = []
        for i, (t, kk) in enumerate(frag(k) if k >= KS else []):
            for b in range(4):
                c = ACC + 16 * t + 4 * b
                M.append(f"v_mfma_f32_16x16x32_bf16 {V(c,4)}, {V(HR + 8*(k%NH) + 4*i, 4)}, {V(CF2 + 32*(k&1) + 16*i + 4*b, 4)}, {V(c,4)}")
        for t in range(2 if k < KS else 0):
            for b in (range(4) if t == 0 else reversed(range(4))):
                c = ACC + 16 * t + 4 * b
                M.append(f"v_mfma_f32_16x16x32_bf16 {V(c,4)}, {V(HR + 8*(k%NH) + 4*t, 4)}, {V(CF + 16*(k%NCB) + 4*b, 4)}, {V(c,4)}")
        F_ = []
        if DYN == 3 and k == 27: a("\n".join(cnt_chk("C2_pv", 56, OP, 6)))
        if k + CD < 64: F_ += [(x, f"c{k+CD}") for x in crd(k + CD)]
        if DYN == 3 and k == 26: F_.append((f"ds_read_b128 v[56:59], v{NA} offset:{OP}", "w"))
        if ph == 3 and j < 15 and k < KS:
            F_.append((f"v_mov_b32 v1, {j+1}\nds_write_b32 v{FA}, v1 offset:{OP}", "p"))
            if (NCC and 2 <= j + 1 <= NCC + 3) or (OPT["ccd"] and j == 1): F_.append((f"ds_read_b128 v[56:59], v{NA} offset:{OP}", "w"))
            if K0 <= j + 2 < 16: F_.append((f"ds_read_b128 v[12:15], v{NA} offset:{OQ}", "w"))
        if ph == 0 and j < NPL:
            r = PR + 2 * ((j + 2) % 3)
            F_.append((poll(r), "@p"))
            pend[k + HD + 1] = r
        if k in pend: F_.append(("\n".join(peval(pend[k])) + (htouch() if k >= OPT["hts"] else ""), None))
        if k + HD < 64:
            H_ = hld(k + HD)
            t0_, k0_ = frag(k + HD)[0]
            if PROG and t0_ == 0 and k0_ % 4 == 0: H_[0] = hchk(k0_ // 4) + "\n" + H_[0]
            if PQ and k == 1: H_[0] = pcond(2, "pB", PR + 2) + "\n" + H_[0]
            if PQ and k == 5: H_[0] = "\n".join(peval(PLL)) + "\n" + H_[0]
            F_ += [(x, f"@h{k+HD}") for x in H_]
        if ph == 0 and chkP: F_ += [(x, None) for x in cnt_chk(f"C2_p{j}", 56, OP, j - 1)]
        if ph == 0 and chkQ: F_ += [(x, None) for x in cnt_chk(f"C2_q{j}", 12, OQ, 16 if k == KS else j + 2)]
        if SKB:
            for i in range(4):
                if k == min(63, KS + HALF + 1 + i // OPT["sks"]):
                    x, y = ogrp(0, i, 224 + 4 * i)
                    F_ += [(x, None), (y, "@st")]
        for b in range(6, K0):
            if j != (max(b - 4, DYN + 2) if 7 <= b <= 6 + DYN else b - 4): continue
            sl = b % 6
            F_.append((f"ds_write_b128 v{CW + (sl >= 3)}, {V(PREG[b-6]+4*ph,4)} offset:{16384 * (sl % 3) + 8192 * (ph >> 1) + 1024 * (ph & 1)}", "x"))
            if ph == 3:
                i0 = [i for i, f in enumerate(F_) if f[1] == "p"][0]
                F_.insert(i0, F_.pop())
        for i, m in enumerate(M):
            a(m)
            per = 2 if i < (4 if k + 1 >= KS else 2) else max(1, -(-len(F_) // (8 - i)))
            for _ in range(per):
                if F_:
                    x, t = F_.pop(0)
                    a(x)
                    if t and t[0] == "@": vm.add(t[1:])
                    elif t: lk.add(t)
        assert not F_
        if k == 0 and not OPT["xs"]: stamp(a, 9)
    a("s_nop 7\ns_nop 2" if SKB else "s_nop 5")
    stamp(a, 10)
    for t in range(1 if SKB else 0, 2):
        for i in range(4): a("\n".join(ogrp(t, i, 64 + 16 * t + 4 * i)))
    stamp(a, 11)

def main():
    a = Asm()
    name = NAME + "_kernel" if OPT["single"] else "f_kernel"
    kernel_head(a, name)
    entry(a, "K_done", "K_other")
    b, c = Asm(), Asm()
    loader(b); compute(c)
    if OPT["lay"]: b, c = c, b
    a.l += b.l
    if STAMP: a("s_branch K_fin")
    else: a("s_endpgm")
    a.label("K_other")
    a.l += c.l
    a.label("K_fin")
    stamp_out(a)
    a.label("K_done")
    a("s_endpgm")
    a.l += OOL
    a.label("K_end")
    vg = 252
    hdr = open("/code/" + NAME + ".s.ref").read().split("\n")
    out = []
    for ln in hdr:
        if ln.startswith("; @launch") or ln.startswith(".amdgcn"):
            break
        if ln.startswith("; Override") or ln.startswith("; grid="):
            continue
        out.append(ln)
    out.append(f"; @launch {'' if OPT['single'] else 'kernel=' + name + ' '}grid=(256,1,1) block=(512,1,1) lds=163840")
    out.append('.amdgcn_target "amdgcn-amd-amdhsa--gfx950"')
    out.append(".text")
    out += a.l
    out.append('.section .rodata,"a"')
    out.append(kernel_desc(name, vg))
    open(OPT["out"], "w").write("\n".join(out) + "\n")
main()
```

```python
import sys
NAME = "concat_heads__ssm_conv_h3__ssm_conv_s5__prompt"
OPT = dict(out="/code/" + NAME + ".s", stamp=0, trace=0, single=0,
           win=12, kfirst=2, npre=3,
           ntk=1, nte=1, ntq=1, prioc=3, prio2=3, lt=1, ltk=5, lts=8,
           osa=2, osb=2, noa3=0, fsh=7, ffull=1, st0=0, rotm=1, rots=1, rotx=1, tpar=1,
           gate=1, hd=7, ncb=2, nh=8, xrot=0, t64=1, gchk=3,
           ra=12,
           ek=3, ow=15,
           fs=9, ps=21, pc=26, kl=31, sa=16,
           qk=15, c15=0, d14=1, d15=1, dr=1, pw=24, pre=8, per=4, zp=6, zc=8, za=10, npl=3, prog=1, lprio=0, dpos=0, shsc=1, roll=1, mord=1, op=8, late=2, hord=1, ht=0, ncc=5, cpl=1, ccd=0, zx=1, su=-2, nob=0, tw=0, lbp=2, hsh=9, spr=3, lp2=0, tc=0, tcn=1, hts=0, pp=3, ppn=3, cpe=4, cpw=0, skb=3, sks=1, lbi=-1, c0=0, cd=16, pks=0, fpl=0, fgo=1, fn=1, crr=-1, pl7=0, p7s=3, dyn=0, xs=0, pq=0, xfp=7, ot=0, otf=1, hw=0, hsf=1, ds2=0, dsp=0, cw=2, cwn=64, cw64=1, lay=1, sre=1, cw2=-1, cw2n=64, tord=0, txe=0, sct=0, scs=1, scw=128)
for arg in sys.argv[1:]:
    k, v = arg.split("=")
    assert k in OPT, k
    OPT[k] = v if k == "out" else int(v)
STAMP = OPT["stamp"]
TRACE = OPT["trace"]
FLV = ['', ' sc1', ' nt', ' sc0 sc1', ' sc0 sc1 nt', ' sc1 nt', ' sc0 nt']
def NT(k): return " nt" if OPT["nt" + k] else ""
P = dict(q=32, k=34, v=36, shift=38, ssmk=40, ssmD=42, x=44, Lre=46, Lim=48, Bre=50, Bim=52, Cre=54, Cim=56,
         logdt=58, Dskip=60, out=62, dbg=64, ws=66, q2=58)
WS_KVT = 0
WS_ZT = 4 << 20
WS_H = 8 << 20
WS_E = 16 << 20
WS_FLG = 17 << 20
FL_H = 1 << 17
FL_Z = 2 << 17
FL_SZ = 3 << 17
FSH = OPT['fsh']
FEX = '0xffff' if OPT['ffull'] else '1'
WS_STAMP = 64 << 20
SPIN = 4096

class Asm:
    def __init__(self):
        self.l = []
    def __call__(self, s):
        for ln in s.strip("\n").split("\n"):
            ln = ln.strip()
            if ln:
                self.l.append("    " + ln)
    def label(self, s):
        self.l.append(s + ":")

class VM:
    def __init__(self):
        self.ops = []
    def add(self, tag, n=1):
        self.ops += [tag] * n
    def cnt(self, *tags):
        last = max(i for i, t in enumerate(self.ops) if t in tags)
        return min(63, len(self.ops) - 1 - last)

def kernel_head(a, name):
    a.l += [".p2align 8", f".globl {name}", f".type {name},@function"]
    a.label(name)

def kernel_desc(name, vgpr, sgpr=102):
    acc = (vgpr + 3) // 4 * 4
    return f""".p2align 6
.amdhsa_kernel {name}
  .amdhsa_next_free_vgpr {vgpr}
  .amdhsa_next_free_sgpr {sgpr}
  .amdhsa_accum_offset {acc}
  .amdhsa_group_segment_fixed_size 0
  .amdhsa_kernarg_size 144
  .amdhsa_user_sgpr_count 2
  .amdhsa_user_sgpr_kernarg_segment_ptr 1
  .amdhsa_system_sgpr_workgroup_id_x 1
.end_amdhsa_kernel"""

def srd(a, d, name, nbytes, off=0):
    b = P[name]
    if off:
        a(f"s_add_u32 s{d}, s{b}, {off}\ns_addc_u32 s{d+1}, s{b+1}, 0")
    else:
        a(f"s_mov_b32 s{d}, s{b}\ns_mov_b32 s{d+1}, s{b+1}")
    a(f"s_mov_b32 s{d+2}, {nbytes}\ns_mov_b32 s{d+3}, 0x00020000")

def S(d):
    return f"s[{d}:{d+3}]"
def V(d, n):
    return f"v[{d}:{d+n-1}]"

def stamp0(a, i, lev=1):
    if STAMP and (OPT["st0"] == lev or (OPT["st0"] and i < 4 and lev == 1)): a(f"s_memrealtime s[{84+2*i}:{85+2*i}]")
def stamp(a, i):
    if STAMP and not (OPT["st0"] and 2 <= i <= 7):
        i &= 7
        a(f"s_memrealtime s[{84+2*i}:{85+2*i}]")
def stamp_dump(a, base):
    if STAMP:
        a("s_waitcnt lgkmcnt(0)")
        for i in range(8):
            a(f"v_writelane_b32 v250, s{84+2*i}, {base+i}")
def stamp_out(a):
    if not STAMP: return
    a("s_waitcnt vmcnt(0) lgkmcnt(0)")
    stamp(a, 15)
    stamp_dump(a, 8)
    srd(a, 8, "ws", 2 << 20, WS_STAMP)
    a("""s_lshl_b32 s6, s2, 3
    s_add_u32 s6, s6, s5
    s_lshl_b32 s7, s6, 8
    s_lshl_b32 s6, s6, 6
    s_add_u32 s7, s7, 0x100000
    v_lshlrev_b32 v1, 2, v2""")
    if TRACE: a("buffer_store_dword v251, v1, s[8:11], s7 offen")
    a("""s_mov_b64 exec, 0xffff
    buffer_store_dword v250, v1, s[8:11], s6 offen
    s_waitcnt vmcnt(0)""")

def tp(i):
    return f"\ns_memrealtime s[60:61]\ns_waitcnt lgkmcnt(0)\nv_writelane_b32 v251, s60, {i}" if TRACE == 2 else ""
def tr_begin(a):
    if TRACE == 1: a("s_memrealtime s[60:61]")
def tr_end(a, i):
    if TRACE == 1: a(f"s_waitcnt lgkmcnt(0)\nv_writelane_b32 v251, s60, {i}")

def cmul(a, d, x, y, c=None):
    if c is None:
        a(f"v_mul_f32 v{d}, v{x}, v{y}\nv_mul_f32 v{d+1}, v{x}, v{y+1}")
    else:
        a(f"v_fma_f32 v{d}, v{x}, v{y}, v{c}\nv_fma_f32 v{d+1}, v{x}, v{y+1}, v{c+1}")
    a(f"v_fma_f32 v{d}, -v{x+1}, v{y+1}, v{d}\nv_fmac_f32 v{d+1}, v{x+1}, v{y}")

def cwarm(a):
    if OPT["cw"] == 1: a("s_xor_b32 s6, s7, s5\ns_and_b32 s6, s6, 3\ns_cbranch_scc1 K_cw")
    if OPT["cwn"] < 256: a(f"s_cmp_ge_u32 s2, {OPT['cwn']}\ns_cbranch_scc1 K_cw")
    a(f"""s_getpc_b64 s[8:9]
    K_pc:
    v_lshlrev_b32 v4, 7, v0
    v_min_u32 v4, K_end - K_pc - 68, v4
    v_mov_b32 v5, s9
    v_add_co_u32 v4, vcc, s8, v4
    v_addc_co_u32 v5, vcc, 0, v5, vcc
    global_load_dword v251, v[4:5], off
    {"global_load_dword v251, v[4:5], off offset:64" if OPT["cw64"] else ""}
    K_cw:""")

def entry(a, done, other):
    stamp(a, 0)
    a(f"""s_cmp_ge_u32 s2, 256
    s_cbranch_scc1 {done}
    s_load_dwordx16 s[32:47], s[0:1], 0
    s_load_dwordx16 s[48:63], s[0:1], 64
    s_load_dwordx4 s[64:67], s[0:1], 128""")
    if OPT["cw"] == 2: cwarm(a)
    a(f"""v_lshrrev_b32 v1, 6, v0
    v_and_b32 v2, 63, v0
    s_and_b32 s6, s2, 3
    v_readfirstlane_b32 s5, v1
    s_lshl_b32 s6, s6, 2
    s_lshr_b32 s7, s2, 3
    s_and_b32 s3, s7, 3
    s_add_u32 s3, s3, s6            ; mt
    s_and_b32 s6, s2, 4
    s_lshl_b32 s6, s6, 1
    s_lshr_b32 s4, s7, 2
    s_add_u32 s4, s4, s6            ; nt""")
    if OPT["cw"] == 1: cwarm(a)
    a(f"""s_cmp_{"ge" if OPT["lay"] else "lt"}_u32 s5, 4
    s_cbranch_scc1 {other}""")

def interleave(a, main, fill, per, vm=None):
    fill = list(fill)
    for m in main:
        if isinstance(m, tuple):
            vm.add(m[1]); m = m[0]
        a(m)
        for _ in range(per):
            if fill: a(fill.pop(0))
    for f in fill: a(f)

SLOT, EARLY = [], []
for t_ in range(16):
    if t_ <= OPT["ra"]: SLOT.append([98304, 0, 32768, 65536][t_ % 4])
    else: SLOT.append([0, 32768, 65536][(t_ - OPT["ra"] - 1) % 3])
    prev = [u for u in range(t_) if SLOT[u] == SLOT[t_]]
    EARLY.append(prev[-1] + 1 if prev else -1)
assert OPT["ra"] % 4 == 0
RFREE = OPT["ra"] + 1
SA = OPT["sa"]
assert OPT["kl"] // 2 + 1 <= SA <= 16
L_R = 98304
L_O = L_R
L_E = L_O + 4160
L_U = L_E + 4160
L_N = 147328
L_ST = 147456
L_Z = L_R + 8192
L_F = L_N + 16
L_ZI = L_R
OOL = []

def rot1(a, d, t):
    a(f"""s_and_b32 s{d}, s2, 3
    s_lshl_b32 s{d}, s{d}, 2
    s_and_b32 s{t}, s2, 4
    s_lshl_b32 s{t}, s{t}, 1
    s_add_u32 s{d}, s{d}, s{t}
    s_add_u32 s{t}, s3, s4
    s_and_b32 s{t}, s{t}, {OPT['rotm']}
    s_lshl_b32 s{t}, s{t}, {OPT['rots']}
    {"" if OPT['rotx'] else f"s_mov_b32 s{d}, 0"}
    s_add_u32 s{d}, s{d}, s{t}
    s_and_b32 s{d}, s{d}, 15""")

def spin_flags(a, lbl, PLL, NON, AD, FL, mask=None):
    a("s_mov_b32 s51, 0")
    a.label(lbl)
    a(f"""buffer_load_dwordx2 {V(PLL,2)}, v{AD}, {S(FL)}, 0 offen sc1
    s_add_u32 s51, s51, 1
    s_waitcnt vmcnt(0)
    v_cmp_eq_u32 vcc, v{PLL}, v{NON}
    v_cmp_eq_u32 s[48:49], v{PLL+1}, v{NON+1}
    s_cmp_gt_u32 s51, {SPIN}
    s_cbranch_scc1 {lbl}_go
    s_and_b64 s[48:49], s[48:49], vcc
    {f"s_or_b64 s[48:49], s[48:49], {mask}" if mask else ""}
    s_cmp_eq_u64 s[48:49], -1
    s_cbranch_scc0 {lbl}""")
    a.label(lbl + "_go")

def loader(a):
    vm = VM()
    X, BR, BI, SK, KV, FL = 8, 12, 16, 68, 72, 76
    CR, CI = 24, 28
    a("""s_sub_u32 s6, s5, 4             ; lw
    v_lshrrev_b32 v12, 3, v2        ; r
    v_and_b32 v13, 7, v2
    v_lshrrev_b32 v14, 4, v2        ; r>>1
    v_xor_b32 v13, v13, v14
    v_lshlrev_b32 v13, 4, v13
    v_lshrrev_b32 v14, 5, v2        ; r>>2
    v_and_b32 v15, 3, v12
    v_lshl_add_u32 v15, v14, 3, v15
    v_lshl_add_u32 v14, v12, 14, v13   ; x rows 8r
    v_lshl_add_u32 v15, v15, 11, v13   ; B rows 8(r>>2)+(r&3)
    s_lshl_b32 s7, s3, 6
    s_add_u32 s7, s7, s6
    s_lshl_b32 s7, s7, 12           ; (128mt+2lw)*2048
    v_add_u32 v4, s7, v14
    v_xor_b32 v5, 64, v4
    v_add_u32 v5, 0x1fc00, v5
    s_lshl_b32 s7, s4, 2
    s_add_u32 s7, s7, s6
    s_lshl_b32 s7, s7, 15           ; (64nt+16lw)*2048
    v_add_u32 v8, s7, v15
    v_xor_b32 v9, 64, v8
    v_add_u32 v9, 0x1c00, v9""")
    rot1(a, 30, 31)
    a("""s_lshl_b32 s100, s30, 7         ; koff
    s_lshl_b32 s101, s6, 12         ; lw*4096""")
    stamp0(a, 2)
    a("s_waitcnt lgkmcnt(0)")
    stamp0(a, 3)
    srd(a, X, "x", 4 << 20)
    srd(a, BR, "Bre", 2 << 20)
    srd(a, BI, "Bim", 2 << 20)
    def dma(s):
        sl = SLOT[s]
        L = []
        L.append(f"s_add_u32 m0, s101, {sl}\ns_nop 0\nbuffer_load_dwordx4 v4, {S(X)}, s100 offen lds")
        for j in range(1, 4):
            L.append(f"buffer_load_dwordx4 v{4+(j&1)}, {S(X)}, s100 offen offset:{1024*j} lds")
        L.append(f"s_add_u32 m0, s101, {sl+16384}\ns_nop 0\nbuffer_load_dwordx4 v8, {S(BR)}, s100 offen lds")
        L.append(f"buffer_load_dwordx4 v9, {S(BR)}, s100 offen offset:1024 lds")
        L.append(f"s_add_u32 m0, s101, {sl+16384+2048}\ns_nop 0\nbuffer_load_dwordx4 v8, {S(BI)}, s100 offen lds")
        L.append(f"buffer_load_dwordx4 v9, {S(BI)}, s100 offen offset:1024 lds\ns_add_u32 s100, s100, 128\ns_and_b32 s100, s100, 2047")
        return [(x, f"d{s}") for x in L]
    D = [dma(s) for s in range(16)]
    def first():
        if OPT["kfirst"] == 2: a("s_barrier")
        stamp0(a, 4, 2)
        interleave(a, D[0][:4], [], 0, vm)
        stamp0(a, 5, 2)
        interleave(a, D[0][4:], [], 0, vm)
        stamp0(a, 6, 2)
        stamp0(a, 4)
        if OPT["kfirst"] == 1: a("s_barrier")
        for k in range(1, OPT["npre"]): interleave(a, D[k], [], 0, vm)
        stamp0(a, 7, 2)
    if OPT["su"] != -2: first()
    a(f"""s_mov_b32 s{P['q2']}, s{P['q']}
    s_mov_b32 s{P['q2']+1}, s{P['q']+1}
    s_lshr_b32 s7, s2, 3
    s_and_b32 s32, s7, 15           ; a_mt
    s_lshr_b32 s7, s7, 4
    s_and_b32 s33, s2, 7
    s_lshl_b32 s33, s33, 1
    s_add_u32 s33, s33, s7          ; a_nt
    s_lshl_b32 s34, s33, 4
    s_add_u32 s34, s34, s32
    s_lshl_b32 s34, s34, 2
    s_add_u32 s34, s34, s6          ; A2 channel
    s_lshl_b32 s35, s34, 12         ; ch*4096
    s_lshr_b32 s7, s34, 1
    s_lshl_b32 s7, s7, 2
    s_load_dword s37, s[{P['ssmD']}:{P['ssmD']+1}], s7
    v_and_b32 v12, 15, v2           ; cq / n / m
    v_lshrrev_b32 v13, 4, v2        ; tg / g""")
    if OPT["tw"]:
        TW = [("q2", 4 << 20, 0, "s32", 18), ("out", 16 << 20, 0, "s3", 20), ("out", 16 << 20, 0, "s32", 20), ("ws", 8 << 20, WS_H, "s3", 19),
              ("ws", 4 << 20, WS_ZT, "s33", 18), ("ssmk", 4 << 20, 0, "s33", 18), ("Cre", 2 << 20, 0, "s4", 17), ("Cim", 2 << 20, 0, "s4", 17),
              ("ws", 4 << 20, WS_KVT, "s33", 18), ("ws", 1 << 18, WS_E, "s3", 14)]
        a("s_mov_b64 exec, 1")
        for i, (nm, sz, off, ix, sh) in enumerate(TW):
            if not OPT["tw"] >> i & 1: continue
            a(f"s_cmp_eq_u32 s6, {i & 3}\ns_cbranch_scc0 L_tw{i}")
            srd(a, 72, nm, sz, off)
            a(f"s_lshl_b32 s7, {ix}, {sh}\nbuffer_load_dword v240, off, s[72:75], s7 sc1")
            a.label(f"L_tw{i}")
        a("s_mov_b64 exec, -1")
    SETUP = max(-1, OPT['su'])
    AAD, BAD, DFR, ZAD, PLL, NON = 16, 20, 24, 21, 22, 28
    CAD, QAD, QL, FA, NA = 246, 31, 192, 6, 7
    K0 = 6 + OPT["ncc"]
    CREG = {K0: 208, K0 + 1: 224}
    for k in range(K0 + 2, 16): CREG[k] = 64 + 16 * (k - K0 - 2)
    QS = 40
    ZM, ZN = ("s32", "s33") if OPT["zx"] else ("s3", "s4")
    def a2_setup():
        TP = ""
        if OPT["tpar"]:
            TP = f"""{["s_lshr_b32 s46, s2, 4", "s_lshr_b32 s46, s3, 1", "s_lshr_b32 s46, s3, 2", "s_lshr_b32 s46, s2, 5"][OPT["tord"]]}
            s_and_b32 s46, s46, {max(0, OPT['lts'] - 1)}
            s_add_u32 s7, s3, s4
            s_and_b32 s7, s7, 1
            {f"s_cmp_{['', 'lt', 'ge'][OPT['txe']]}_u32 s4, 8" if OPT["txe"] else f"s_cmp_eq_u32 s7, {OPT['tpar'] - 1}"}
            s_cselect_b32 s46, s46, 99"""
        L = f"""s_waitcnt lgkmcnt(0)
        s_lshl_b32 s45, s6, 14
        v_lshlrev_b32 v{AAD}, 4, v13
        v_lshl_add_u32 v{AAD}, v12, 1, v{AAD}
        v_and_b32 v1, 1, v12
        v_mov_b32 v3, {L_O + 4}
        v_mov_b32 v14, {L_E + 2}
        v_cmp_eq_u32 vcc, 1, v1
        s_and_b32 s7, s34, 1
        s_lshl_b32 s7, s7, 4
        v_cndmask_b32 v3, v3, v14, vcc
        v_add3_u32 v{AAD}, v{AAD}, v3, s45
        v_add_u32 v{AAD+1}, 1024, v{AAD}
        v_add_u32 v{AAD+2}, 2048, v{AAD}
        v_add_u32 v{AAD+3}, 3072, v{AAD}
        s_add_u32 s47, s45, {L_U + 480}
        v_lshlrev_b32 v1, 4, v13
        v_lshlrev_b32 v3, 5, v12
        v_sub_u32 v1, v1, v3
        v_add_u32 v{BAD}, s47, v1
        s_lshr_b32 s37, s37, s7
        s_and_b32 s37, s37, 0xffff
        v_lshlrev_b32 v1, 3, v13
        v_add_u32 v1, v1, v12
        v_sub_u32 v1, 15, v1
        v_and_b32 v3, 1, v1
        v_lshlrev_b32 v3, 4, v3
        v_lshlrev_b32 v3, v3, s37
        v_lshrrev_b32 v1, 1, v1""".split("\n")
        for j in range(4):
            L += [f"v_cmp_eq_u32 vcc, {j}, v1", "s_nop 1", f"v_cndmask_b32 v{DFR+j}, 0, v3, vcc"]
        L += f"""s_add_u32 s7, s45, {L_Z}
        v_lshlrev_b32 v1, 3, v2
        v_add_u32 v{ZAD}, s7, v1
        v_lshlrev_b32 v10, 4, v2
        v_mov_b32 v{NA}, {L_N}
        s_lshl_b32 s7, s6, 2
        v_add_u32 v{FA}, s7, v{NA}
        v_mov_b32 v1, 0
        ds_write_b32 v{FA}, v1 offset:{L_F + 32 - L_N}
        ds_write_b32 v{FA}, v1 offset:{L_F + 80 - L_N}
        v_mov_b32 v1, 2
        ds_write_b32 v{FA}, v1 offset:{L_F + 48 - L_N}
        v_lshrrev_b32 v1, 3, v2
        v_and_b32 v3, 7, v2
        v_xor_b32 v3, v3, v13
        v_lshlrev_b32 v3, 4, v3
        v_lshl_add_u32 v3, v1, 13, v3
        s_lshl_b32 s7, s4, 6
        s_add_u32 s7, s7, s6
        s_lshl_b32 s7, s7, 11
        v_add_u32 v{CAD}, s7, v3
        v_xor_b32 v{CAD+1}, 64, v{CAD}
        v_add_u32 v{CAD+1}, {65536-1024}, v{CAD+1}
        v_xor_b32 v{CAD+2}, 32, v{CAD}
        v_xor_b32 v{CAD+3}, 32, v{CAD+1}
        s_lshl_b32 s38, s4, 7
        v_lshlrev_b32 v3, 11, v13
        v_lshl_add_u32 v3, v12, 3, v3
        s_lshl_b32 s7, {ZM}, 2
        s_add_u32 s7, s7, s6
        s_lshl_b32 s7, s7, 9
        s_add_u32 s7, s7, {ZN}
        s_lshl_b32 s7, s7, 7
        v_add_u32 v{QAD}, s7, v3
        s_lshr_b32 s46, s2, 3
        s_and_b32 s46, s46, {max(0, OPT['lts'] - 1)}
        {TP}
        s_lshl_b32 s39, s6, 11
        s_and_b32 s7, s3, {12 * OPT['xrot']}
        s_lshl_b32 s7, s7, 7
        s_add_u32 s38, s38, s7
        s_and_b32 s20, s38, 1024
        s_xor_b32 s21, s20, 1024
        s_and_b32 s7, s3, 3
        s_lshl_b32 s7, s7, 1
        s_and_b32 s47, s6, 1
        s_add_u32 s7, s7, s47
        s_lshl_b32 s7, s7, 7
        s_or_b32 s7, s7, s21
        s_lshl_b32 s47, s4, 17
        s_add_u32 s7, s7, s47
        v_lshlrev_b32 v11, 11, v2
        v_add_u32 v11, s7, v11""".split("\n")
        if OPT["lt"]:
            L += f"""s_and_b32 s7, s3, 14
            s_and_b32 s47, s6, 1
            s_add_u32 s7, s7, s47
            s_add_u32 s7, s7, s4
            s_and_b32 s7, s7, 15
            s_lshl_b32 s7, s7, 7
            s_add_u32 s47, s3, s4
            s_and_b32 s47, s47, {1 if OPT["txe"] else 0}
            s_lshl_b32 s47, s47, 3
            s_xor_b32 s47, s47, s4
            s_lshl_b32 s47, s47, 17
            s_add_u32 s7, s7, s47
            v_lshlrev_b32 v30, 11, v2
            v_add_u32 v30, s7, v30""".split("\n")
        return L
    def ldC(k):
        L = []
        for i in range(4):
            x = ""
            if i == 0 and OPT["hord"]: x += f"s_add_u32 s44, s38, {128*k}\ns_and_b32 s44, s44, 1023\ns_or_b32 s44, s44, s{20 + (k >> 3)}\n"
            elif i == 0: x += f"s_add_u32 s44, s38, {128*k}\ns_and_b32 s44, s44, 2047\n"
            tail = f"v{CAD+i}, {S(CI if i & 2 else CR)}, s44 offen offset:{1024*(i&1)}"
            if k < 6:
                if not i & 1: x += f"s_add_u32 m0, s39, {16384*k + 4096*i}\ns_nop 0\n"
                x += f"buffer_load_dwordx4 {tail} lds"
            else:
                x += f"buffer_load_dwordx4 {V(CREG[k]+4*i,4)}, {tail}"
            if i == 3: x += tp(16 + k)
            L.append((x, f"c{k}"))
        return L
    def words(off, lbl, t=44):
        a("s_mov_b32 s51, 0")
        a.label(lbl)
        a(f"""ds_read_b128 v[{t}:{t+3}], v{NA} offset:{L_F + off - L_N}
        s_add_u32 s51, s51, 1
        s_waitcnt lgkmcnt(0)
        v_xor_b32 v{t}, v{t}, v{NON}
        v_xor_b32 v{t+1}, v{t+1}, v{NON}
        v_xor_b32 v{t+2}, v{t+2}, v{NON}
        v_xor_b32 v{t+3}, v{t+3}, v{NON}
        v_or3_b32 v{t}, v{t}, v{t+1}, v{t+2}
        v_or_b32 v{t}, v{t}, v{t+3}
        s_cmp_gt_u32 s51, {SPIN * 4}
        s_cbranch_scc1 {lbl}_ok
        v_cmp_ne_u32 vcc, 0, v{t}
        s_cbranch_vccnz {lbl}""")
        a.label(lbl + "_ok")
    TS = 52
    TCH = f"buffer_load_dword v240, v30, {S(TS)}, 0 offen"
    assert OPT["tpar"]
    if OPT["t64"]: TCH += f"\nbuffer_load_dword v241, v30, {S(TS)}, 0 offen offset:64"
    after = {k: [] for k in range(16)}
    QLD = [f"s_mov_b32 s36, {8192*j}\nbuffer_load_dwordx2 {V(QL+2*j,2)}, v{QAD}, {S(QS)}, s36 offen{NT('q')}" for j in range(8)]
    if OPT["lt"]:
        for i in range(OPT["lts"]):
            after[OPT["ltk"] + i].append((f"s_cmp_eq_u32 s46, {i}\ns_cbranch_scc0 L_t{i}\n{TCH}\nL_t{i}:", "", 0, SETUP + 1, None))
    if OPT["cw2"] >= 0:
        after[OPT["cw2"]].append((f"""s_cmp_ge_u32 s2, {OPT['cw2n']}
        s_cbranch_scc1 L_cw
        s_getpc_b64 s[48:49]
        L_pc:
        s_add_u32 s48, s48, K_end - L_pc - 68 - 511 * 128
        s_addc_u32 s49, s49, -1
        v_lshlrev_b32 v242, 7, v0
        v_mov_b32 v243, s49
        v_add_co_u32 v242, vcc, s48, v242
        v_addc_co_u32 v243, vcc, 0, v243, vcc
        global_load_dword v240, v[242:243], off
        global_load_dword v241, v[242:243], off offset:64
        L_cw:""", "", 0, SETUP + 1, None))
    ER = 112
    for j in range(4):
        after[OPT["ek"]].append((f"buffer_load_dwordx4 {V(ER+4*j,4)}, v10, {S(SK)}, s35 offen offset:{1024*j}{NT('e')}", "E", 0, SETUP + 1, None))
    if OPT["qk"] <= 15:
        for x in QLD: after[OPT["qk"]].append((x, "q", 0, SETUP + 1, None))
    CR_ = sum((ldC(k) for k in range(K0, 16)), [])
    def cslot(t): return sum((ldC(k) for k in (SLOT[t] // 16384, SLOT[t] // 16384 + 1)), [])
    CDL = []
    assert OPT["c15"] <= 8 and OPT["ra"] < 13
    if OPT["d14"]:
        for x, t in cslot(13): after[15].append((x, t, 0, 14, None))
    else: CDL += cslot(13)
    TC2 = [(f"buffer_load_dword v{240+i}, v11, {S(TS)}, 0 offen offset:{64*i}", "t2") for i in range(OPT["tcn"])]
    if 1 <= OPT["tc"] <= 2:
        for x, t in TC2: after[15].append((x, t, 0, 13 + OPT["tc"], None))
    if OPT["tc"] > 4:
        for x, t in TC2: after[OPT["tc"]].append((x, t, 0, 0, None))
    if OPT["d15"]:
        for x, t in cslot(14): after[15].append((x, t, 0, 15, None))
    elif OPT['ccd'] != 2: CDL += cslot(14)
    if not OPT['ccd']: CDL += cslot(15)
    if OPT["tc"] == 3:
        for x, t in TC2: after[15].append((x, t, 0, 15, None))
    if OPT["tc"] == 4: CDL += TC2
    if OPT["qk"] == 16:
        for x in QLD: after[15].append((x, "q", 0, 15, None))
    for x, t in CR_[:OPT["c15"]]: after[15].append((x, t, 0, 15, None))
    CR_ = CR_[OPT["c15"]:]
    ST = []
    for k in range(16):
        if k >= OPT["npre"]: ST += [(x, t, 1, EARLY[k], None) for x, t in D[k]]
        ST += after[k]
    cum = [0]
    for it in ST: cum.append(cum[-1] + it[2])
    endof = {k: 0 for k in range(OPT["npre"])}
    for i, it in enumerate(ST):
        if it[1][:1] == "d": endof[int(it[1][1:])] = i + 1
    pos = [0]
    def emit(s):
        lim = cum[endof[min(15, s + 1)]] + OPT["win"]
        L = []
        while pos[0] < len(ST):
            x, t, c, e, hook = ST[pos[0]]
            must = pos[0] < endof[min(15, s + 1)]
            assert not (must and e > s), (s, t)
            if not must and s < 15 and (e > s or cum[pos[0] + 1] > lim + 1e-6): break
            L.append((x, t)); pos[0] += 1
        return L
    srd(a, SK, "ssmk", 4 << 20)
    srd(a, FL, "ws", FL_SZ, WS_FLG)
    srd(a, CR, "Cre", 2 << 20)
    srd(a, CI, "Cim", 2 << 20)
    srd(a, QS, "q2", 4 << 20)
    a(f"""s_cmp_lt_u32 s6, 2
    s_cselect_b32 s{TS}, s{P['Cre']}, s{P['Cim']}
    s_cselect_b32 s{TS+1}, s{P['Cre']+1}, s{P['Cim']+1}
    s_mov_b32 s{TS+2}, {2 << 20}
    s_mov_b32 s{TS+3}, 0x00020000""")
    SCT = []
    if OPT["sct"]:
        assert not OPT["lt"] and not OPT["tc"]
        a(f"""s_and_b32 s7, s6, 1
        s_lshl_b32 s47, s2, 1
        s_add_u32 s7, s7, s47
        s_lshl_b32 s7, s7, 12
        s_add_u32 s{TS}, s{TS}, s7
        s_addc_u32 s{TS+1}, s{TS+1}, 0""")
        SCT = [f"s_load_dword s{TS+2}, s[{TS}:{TS+1}], {o}" for o in range(0, 4096, OPT["scw"])]
    if OPT["su"] < 0:
        for x in a2_setup(): a(x)
    if OPT["su"] == -2: first()
    stamp0(a, 5)
    a(f"s_waitcnt vmcnt({vm.cnt('d0')})")
    stamp0(a, 6)
    a("s_barrier")
    stamp(a, 1)
    ACC = 32
    FB = [64, 128]
    def reads(r):
        L = []
        f = FB[r & 1]
        for q in range(8):
            o = 128 * (q & 1) + 16 * r
            L.append(f"ds_read_b128 {V(f+32+4*q,4)}, v{BAD} offset:{512*(7-q) + 64*r}")
            L.append(f"ds_read2_b32 {V(f+4*q,2)}, v{AAD+(q>>1)} offset0:{o} offset1:{o+1}")
            L.append(f"ds_read2_b32 {V(f+4*q+2,2)}, v{AAD+(q>>1)} offset0:{o+2} offset1:{o+3}")
        return L
    def mfmas(r):
        f = FB[r & 1]
        L = []
        if r == 0:
            for u in range(8):
                L.append(f"v_mfma_f32_16x16x32_bf16 {V(ACC+4*u,4)}, {V(DFR,4)}, {V(f+32+4*u,4)}, 0")
        QU = [(q, u) for q in range(8) for u in range(8 - q)]
        if OPT["mord"]:
            rem = {c: [(q, c - q) for q in range(c + 1)] for c in range(8)}
            QU, last = [], []
            while len(QU) < 36:
                c = max((c for c in rem if rem[c] and c not in last[-3:]), key=lambda c: len(rem[c]))
                QU.append(rem[c].pop(0)); last.append(c)
            assert len(set(QU)) == 36
        for q, u in QU:
            c = ACC + 4 * (q + u)
            L.append(f"v_mfma_f32_16x16x32_bf16 {V(c,4)}, {V(f+4*q,4)}, {V(f+32+4*u,4)}, {V(c,4)}")
        return L
    def paced(items, w):
        for x, t in items:
            a(f"s_waitcnt vmcnt({w - 1})")
            a(x); vm.add(t)
    GRD = f"ds_read_b32 v1, v{FA} offset:{L_F + 48 - L_N}"
    ng = [0]
    def gate_chk(n, lev=2):
        lbl = f"L_g{ng[0]}"; ng[0] += 1
        b = Asm()
        b.label(lbl)
        b("s_mov_b32 s50, 0")
        b.label(lbl + "_s")
        b(f"""{GRD}
        s_add_u32 s50, s50, 1
        s_waitcnt lgkmcnt(0)
        v_readfirstlane_b32 s7, v1
        s_cmp_gt_u32 s50, {SPIN}
        s_cbranch_scc1 {lbl}_r
        s_cmp_lt_u32 s7, {lev}
        s_cbranch_scc1 {lbl}_s
        s_branch {lbl}_r""")
        OOL.extend(b.l)
        return f"s_waitcnt lgkmcnt({n})\nv_cmp_gt_u32 vcc, {lev}, v1", f"s_cbranch_vccnz {lbl}\n{lbl}_r:"
    def a2round(r, vmem, gated, rolled=False, last=False):
        M = mfmas(r)[-36:] if rolled else mfmas(r)
        R = reads(r + 1) if r < 7 and not last else []
        if rolled and r and not last: R += [f"v_add_u32 v{AAD+i}, 128, v{AAD+i}" for i in range(4)] + [f"v_add_u32 v{BAD}, 128, v{BAD}"]
        GP = 36 // OPT["gchk"] if gated and OPT["gate"] and OPT["gchk"] else 0
        vmem = list(vmem)
        a("s_waitcnt lgkmcnt(0)" + (tp(48 + r) if TRACE == 2 and not rolled else ""))
        since = 0
        for i, m in enumerate(M):
            a(m)
            if vmem and i % (OPT["p7s"] if last else OPT["dpos"]) == 0:
                x, t = vmem.pop(0); a(x)
                if t: vm.add(t)
            if GP and i % GP == GP - 8:
                a(GRD); since = 0
            elif GP and i % GP == GP - 2:
                g_ = gate_chk(min(15, since))
                a(g_[0])
            elif R:
                x = R.pop(0); a(x); since += x[:2] == "ds"
            if GP and i % GP == GP - 1: a(g_[1])
        assert not R and not vmem
    NS = OPT["fs"] // 2 + 1
    OW = OPT["ow"]
    assert RFREE <= OW < SA and NS < SA
    LATE = []
    for s in range(16):
        tr_begin(a)
        if s == SA:
            stamp(a, 4)
            if OPT["lprio"]: a(f"s_setprio {OPT['lprio']}")
            for x in reads(0): a(x)
        if s == OW:
            a("ds_write_b128 v1, v[32:35]")
            for j in range(4):
                a(f"ds_write_b128 v15, {V(ER+4*j,4)} offset:{1024*j + L_E - L_O}")
                a(f"ds_write_b128 v15, {V(64+4*j,4)} offset:{1024*j}")
        L = emit(s)
        if s == 15 and OPT["late"]:
            nl = {1: 8 * OPT["d15"], 2: 0}[OPT["late"]] + (OPT["tcn"] if OPT["tc"] == 2 else 0)
            LATE = L[nl:]; L = L[:nl]
        if s < SA or not OPT["dpos"]:
            for x, t in L:
                a(x)
                if t: vm.add(t)
            L = []
        if s >= OPT["scs"]:
            for x in SCT[:OPT["sct"]]: a(x)
            del SCT[:OPT["sct"]]
            assert s < 13 or not SCT
        if s == OPT["su"]:
            for x in a2_setup(): a(x)
        if s == NS:
            a(f"v_mov_b32 v1, {L_N}\nds_read_b64 v[{NON}:{NON+1}], v1")
        if s == OPT["op"]:
            assert NS < s < OW
            a(f"""v_mov_b32 v32, 0
            v_mov_b32 v33, 0
            v_mov_b32 v34, 0
            v_mov_b32 v35, 0
            s_add_u32 s47, s45, {L_U + 4096}
            v_add_u32 v1, s47, v10
            v_and_b32 v3, 16, v10
            v_and_b32 v15, 32, v10
            v_mul_u32_u24 v15, {(L_E - L_O) // 32}, v15
            v_add3_u32 v3, v3, v15, s45
            v_add_u32 v3, {L_O}, v3
            v_cmp_gt_u32 vcc, 32, v2
            s_add_u32 s47, s45, {L_O + 32}
            v_add_u32 v15, s47, v10
            v_cndmask_b32 v1, v3, v1, vcc
            v_mov_b32 v64, 0
            s_waitcnt vmcnt({vm.cnt('E')})""")
            for j in range(1, 4):
                a(f"v_mov_b32_dpp v{64+4*j}, v{ER+4*j-1} wave_ror:1 row_mask:0xf bank_mask:0xf")
            for j in range(4):
                a(f"v_mov_b32_dpp v{64+4*j}, v{ER+4*j+3} wave_shr:1 row_mask:0xf bank_mask:0xf")
            for j in range(4):
                b = 64 + 4 * j
                e = ER + 4 * j
                a(f"""v_alignbit_b32 v{b}, v{e}, v{b}, 16
                v_alignbit_b32 v{b+1}, v{e+1}, v{e}, 16
                v_alignbit_b32 v{b+2}, v{e+2}, v{e+1}, 16
                v_alignbit_b32 v{b+3}, v{e+3}, v{e+2}, 16""")
        if SA <= s < SA + 8: a2round(s - SA, L, s == 15)
        tr_end(a, s)
        w = ""
        if s in (0, SA - 1): w = " lgkmcnt(0)"
        if s < 15:
            a(f"s_waitcnt vmcnt({vm.cnt(f'd{s+1}')}){w}")
            a(tp(32 + s) + "\ns_barrier" + tp(s))
    assert pos[0] == len(ST)
    stamp(a, 3)
    OQ = L_F + 32 - L_N
    def qsig():
        a(f"v_mov_b32 v3, 6\ns_waitcnt vmcnt({vm.cnt(*[f'c{k}' for k in range(6)])})\nds_write_b32 v{FA}, v3 offset:{OQ}")
    def cdl():
        if SA < 16: words(0, "L_g1d", 242)
        stamp(a, 2)
        interleave(a, CDL, [], 0, vm)
    DR = max(OPT["dr"], 16 - SA)
    if SA == 16:
        words(0, "L_g1d", 242)
        for x in reads(0): a(x)
        interleave(a, LATE, [], 0, vm)
        if DR == 0: cdl()
        if OPT["gate"]:
            a(GRD); a('\n'.join(gate_chk(0)))
        if OPT["lprio"]: a(f"s_setprio {OPT['lprio']}")
        stamp(a, 4)
    if OPT["roll"]:
        assert SA == 16
        a("s_waitcnt lgkmcnt(0)")
        for m in mfmas(0)[:8]: a(m)
        a("s_mov_b32 s51, 0")
        code = {}
        main_ = a.l
        NR = 6 if OPT["pl7"] else 8
        def crf():
            interleave(a, CR_[:8], [], 0, vm)
            del CR_[:8]
        HK = {}
        for r_, f_ in ((DR, cdl), (DR + 3, qsig), (OPT["crr"], crf)): HK.setdefault(r_, []).append(f_)
        assert OPT["crr"] < 8 and OPT["crr"] != 0 and (OPT["crr"] < 0 or not OPT["c15"]) and (DR + 3 < NR or not OPT["pl7"])
        for r_ in sorted(HK):
            if 0 < r_ < NR:
                a.l = []
                a.label(f"L_cs{r_}")
                for f_ in HK[r_]: f_()
                a(f"s_branch L_cr{r_ & 1}")
                OOL.extend(a.l); code[r_] = 1
        a.l = main_
        a.label("L_conv")
        for r in range(2):
            for r_ in code:
                if r_ & 1 == r: a(f"s_cmp_eq_u32 s51, {r_ >> 1}\ns_cbranch_scc1 L_cs{r_}")
            a.label(f"L_cr{r}")
            a2round(r, [], True, True)
        a(f"""s_add_u32 s51, s51, 1
        s_cmp_lt_u32 s51, {NR // 2}
        s_cbranch_scc1 L_conv""")
        if OPT["pl7"]:
            if OPT["crr"] == 6: crf()
            a2round(0, [], True, True)
            if OPT["crr"] == 7: crf()
            n7 = min(OPT["pl7"], len(CR_))
            a2round(1, CR_[:n7], True, True, True)
            del CR_[:n7]
        a("s_waitcnt lgkmcnt(0)")
    for r in range(16 - SA, 8 if not OPT["roll"] else 0):
        if r == DR: cdl()
        if r == DR + 3: qsig()
        a2round(r, [], True)
    if DR >= 8: cdl()
    if OPT["lprio"] or OPT["lp2"]: a(f"s_setprio {OPT['lp2']}")
    stamp(a, 5)
    a("s_nop 6")
    for t in range(8):
        c = ACC + 4 * t
        a(f"""v_cvt_pk_bf16_f32 v{ACC+2*t}, v{c}, v{c+1}
        v_cvt_pk_bf16_f32 v{ACC+1+2*t}, v{c+2}, v{c+3}
        ds_write_b64 v{ZAD}, {V(ACC+2*t,2)} offset:{512*t}""")
    a(f"ds_write_b32 v{FA}, v{NON} offset:{L_F + 64 - L_N}")
    ZS, OS = 8, 12
    ZFP, ZLD, ZRD, OA, ZB, OB = 16, 17, 24, 21, 44, 36
    ZX, ZG, ZFS = 4, 5, 8
    def a3_setup():
        srd(a, ZS, "ws", 4 << 20, WS_ZT)
        srd(a, OS, "out", 16 << 20)
        a(f"""s_lshr_b32 s7, {ZM}, 2
        s_lshl_b32 s7, s7, 4
        s_add_u32 s7, s7, {ZN}
        s_lshl_b32 s7, s7, {4 + FSH}
        s_add_u32 s7, s7, {FL_Z}
        v_lshlrev_b32 v1, {FSH}, v12
        v_add_u32 v{ZFP}, s7, v1
        v_xor_b32 v1, v12, v13
        v_lshlrev_b32 v1, 4, v1
        v_lshl_add_u32 v3, v13, 14, v1
        s_lshl_b32 s47, {ZM}, 2
        s_add_u32 s47, s47, s6
        s_lshl_b32 s7, {ZN}, 10
        s_add_u32 s7, s7, s47
        s_lshl_b32 s7, s7, 8
        v_add_u32 v{ZLD}, s7, v3
        v_xor_b32 v{ZLD+1}, 64, v{ZLD}
        v_add_u32 v{ZLD+1}, {65536-1024}, v{ZLD+1}
        v_xor_b32 v{ZLD+2}, 128, v{ZLD}
        v_add_u32 v{ZLD+2}, {2*(65536-1024)}, v{ZLD+2}
        v_xor_b32 v{ZLD+3}, 192, v{ZLD}
        v_add_u32 v{ZLD+3}, {3*(65536-1024)}, v{ZLD+3}
        s_add_u32 s35, s45, {L_ZI}
        v_lshl_add_u32 v1, v12, 8, v1
        v_add_u32 v{ZRD}, s35, v1
        v_xor_b32 v{ZRD+1}, 64, v{ZRD}
        v_xor_b32 v{ZRD+2}, 128, v{ZRD}
        v_xor_b32 v{ZRD+3}, 192, v{ZRD}
        s_lshl_b32 s47, s47, 10
        s_add_u32 s47, s47, {ZN}
        s_lshl_b32 s47, s47, 8
        v_lshlrev_b32 v1, 13, v13
        v_lshl_add_u32 v1, v12, 4, v1
        v_add_u32 v{OA}, s47, v1
        v_bfe_u32 v1, v2, 2, 2
        v_lshlrev_b32 v1, 14, v1
        v_and_b32 v3, 3, v2
        v_lshl_add_u32 v1, v3, 7, v1
        v_lshl_add_u32 v1, v13, 4, v1
        s_lshl_b32 s7, s6, 10
        s_add_u32 s7, s7, {L_Z}
        v_add_u32 v{ZX}, s7, v1
        s_lshl_b32 s7, s34, 12
        v_add_u32 v{ZG}, s7, v10
        s_lshr_b32 s47, s34, 2
        s_lshl_b32 s7, s6, 8
        s_add_u32 s7, s7, s47
        s_lshl_b32 s7, s7, {FSH}
        s_add_u32 s7, s7, {FL_Z}
        v_lshl_add_u32 v{ZFS}, v12, 3, s7
        v_add_u32 v9, s39, v10
        v_add_u32 v11, 0xc000, v9""")
    def a3(k):
        if k == 0:
            a(f"s_waitcnt vmcnt({vm.cnt('z', 'q')}) lgkmcnt(0)")
            for i in range(4): a(f"ds_read_b128 {V(ZB+4*i,4)}, v{ZRD+i}")
        a(f"s_waitcnt lgkmcnt({0 if TRACE else 3-k})")
        for hf in range(2):
            idx = 4 * hf + k
            o = OB + 4 * hf
            for e in range(4):
                z, q = ZB + 4 * k + 2 * hf + (e >> 1), QL + 2 * idx + (e >> 1)
                if e & 1: a(f"v_and_b32 v1, 0xffff0000, v{z}\nv_and_b32 v{o+e}, 0xffff0000, v{q}")
                else: a(f"v_lshlrev_b32 v1, 16, v{z}\nv_lshlrev_b32 v{o+e}, 16, v{q}")
                a(f"v_mul_f32 v{o+e}, v{o+e}, v1")
            a(f"s_mov_b32 s7, {32768*idx}\nbuffer_store_dwordx4 {V(o,4)}, v{OA}, {S(OS)}, s7 offen{FLV[OPT['osa']]}")
            vm.add("st")
    A3 = not OPT["noa3"]
    a3_setup()
    if 5 <= DR < 8: qsig()
    if A3:
        words(64, "L_zd")
        for j in range(4):
            for ab in range(2):
                a(f"ds_read_b64_tr_b16 {V(ZB+4*j+2*ab,2)}, v{ZX} offset:{512*(j>>1) + 8*(8*(j&1)+ab)}")
        a("s_waitcnt lgkmcnt(0)")
        for j in range(4):
            a(f"buffer_store_dwordx4 {V(ZB+4*j,4)}, v{ZG}, {S(ZS)}, 0 offen offset:{1024*j} sc1")
        vm.add("zt", 4)
    if OPT["lp2"]: a("s_setprio 0")
    stamp(a, 6)
    paced(CR_[:OPT["pre"]], OPT["pw"])
    CR_ = CR_[OPT["pre"]:]
    if DR >= 8: qsig()
    if A3:
        a(f"""s_waitcnt vmcnt({vm.cnt('zt')})
        s_mov_b64 exec, {FEX}
        buffer_store_dwordx2 {V(NON,2)}, v{ZFS}, {S(FL)}, 0 offen sc1
        s_mov_b64 exec, -1""")
        vm.add("zf")
    if OPT["qk"] == 17:
        for x in QLD: a(x); vm.add("q")
    stamp(a, 7)
    stamp_dump(a, 0)
    assert OPT["zp"] <= OPT["zc"] <= OPT["za"] <= 15
    first = True
    for p_ in range(0, 16):
        b = p_ + 5
        w_ = K0 <= b < 16
        need = w_ or (CR_ and p_) or OPT["qk"] == 20 + p_ or (A3 and p_ in (OPT["zp"], OPT["zc"], OPT["za"]))
        if not need: continue
        if p_:
            a("s_mov_b32 s51, 0")
            a.label(f"L_p{p_}")
            a(f"""ds_read_b128 v[32:35], v{NA} offset:{L_F + 80 - L_N}
            s_add_u32 s51, s51, 1
            s_waitcnt lgkmcnt(0)
            v_min3_u32 v32, v32, v33, v34
            v_min_u32 v32, v32, v35
            s_cmp_gt_u32 s51, {SPIN * 16}
            s_cbranch_scc1 L_p{p_}_ok
            v_cmp_gt_u32 vcc, {p_}, v32
            s_cbranch_vccnz L_p{p_}""")
            a.label(f"L_p{p_}_ok")
        if first: stamp(a, 8)
        first = False
        if w_:
            a(f"v_mov_b32 v3, {b + 1}\ns_waitcnt vmcnt({vm.cnt(f'c{b}')})")
            sl = b % 6
            for i in range(4):
                o = 16384 * (sl % 3) + 8192 * (i >> 1) + 1024 * (i & 1)
                a(f"ds_write_b128 v{9 if sl < 3 else 11}, {V(CREG[b]+4*i,4)} offset:{o}")
            a(f"ds_write_b32 v{FA}, v3 offset:{L_F + 32 - L_N}")
            if b == 15: stamp(a, 9)
        if p_:
            paced(CR_[:OPT["per"]], OPT["pw"])
            CR_ = CR_[OPT["per"]:]
        if OPT["qk"] == 20 + p_:
            for x in QLD: a(x); vm.add("q")
        if A3 and p_ == OPT["zp"]:
            a(f"buffer_load_dwordx2 {V(PLL,2)}, v{ZFP}, {S(FL)}, 0 offen sc1")
            vm.add("zp")
        if A3 and p_ == OPT["zc"]:
            a(f"""s_waitcnt vmcnt({vm.cnt('zp')})
            v_cmp_eq_u32 vcc, v{PLL}, v{NON}
            v_cmp_eq_u32 s[48:49], v{PLL+1}, v{NON+1}
            s_mov_b32 m0, s35
            s_and_b64 s[48:49], s[48:49], vcc
            s_cmp_eq_u64 s[48:49], -1
            s_cbranch_scc1 L_zspin_go""")
            spin_flags(a, "L_zspin", PLL, NON, ZFP, FL)
            stamp(a, 10)
            for j in range(4):
                a(f"buffer_load_dwordx4 v{ZLD+j}, {S(ZS)}, 0 offen offset:{1024*j} sc1 lds")
            vm.add("z", 4)
        if A3 and p_ == OPT["za"]:
            for j in range(4): a3(j)
    assert not CR_
    stamp(a, 11)

def compute(a):
    HS, ES, DB, LD_, LR_, LI_, KV, FL, OS, DS = 8, 12, 16, 20, 24, 28, 68, 72, 76, 80
    AA, BA = 4, 8
    L, C2, P8, G128, L512 = 16, 24, 32, 40, 42
    LBK, PUB, HST, NA, FA = 56, 60, 61, 62, 63
    ACC, FR, XF, STG, XA, DSK, STA, KVG = 64, 128, 208, 224, 240, 242, 244, 248
    GR = 52
    KS, VS, SH = 8, 12, 68
    WRAW, WF, KR, VR, KT, AC, OUT = 128, 136, 140, 162, 178, 190, 224
    a(f"""v_and_b32 v12, 15, v2
    v_lshrrev_b32 v13, 4, v2
    s_lshr_b32 s7, s2, 3
    s_and_b32 s76, s7, 15           ; a_mt
    s_lshr_b32 s7, s7, 4
    s_and_b32 s77, s2, 7
    s_lshl_b32 s77, s77, 1
    s_add_u32 s77, s77, s7          ; a_nt
    s_lshl_b32 s7, s76, 2
    s_add_u32 s7, s7, s5
    s_lshl_b32 s7, s7, 16           ; t0*2048
    s_lshl_b32 s6, s77, 7
    s_add_u32 s7, s7, s6
    v_lshlrev_b32 v10, 14, v13
    v_lshl_add_u32 v10, v12, 3, v10
    v_add_u32 v10, s7, v10          ; k/v offset of row 0
    v_subrev_u32 v11, 0x1800, v10
    v_bfrev_b32 v9, 1
    v_cmp_gt_i32 vcc, 0, v11
    s_lshl_b32 s7, s77, 9
    v_lshlrev_b32 v15, 5, v12
    v_cndmask_b32 v11, v11, v9, vcc     ; halo offset
    v_add_u32 v9, s7, v15           ; shift offset
    s_mov_b32 s72, 4096
    s_mov_b32 s73, 8192
    s_mov_b32 s74, 12288
    s_lshl_b32 s6, s4, 2
    s_add_u32 s6, s6, s5
    s_lshl_b32 s6, s6, 4
    v_and_b32 v14, 3, v12
    v_and_b32 v1, 1, v13
    v_lshl_add_u32 v14, v1, 3, v14
    v_lshrrev_b32 v1, 1, v13
    v_lshl_add_u32 v14, v1, 2, v14
    v_add_u32 v14, s6, v14          ; channel
    v_lshlrev_b32 v44, 1, v14
    s_lshl_b32 s6, s4, 7
    v_lshlrev_b32 v1, 3, v12
    v_add_u32 v1, s6, v1""")
    stamp0(a, 2)
    srd_ = srd
    if OPT["sre"]:
        a(f"s_movk_i32 s{LD_+2}, 2048\ns_mov_b32 s{LD_+3}, 0x00020000\ns_mov_b64 s[{LR_+2}:{LR_+3}], s[{LD_+2}:{LD_+3}]\ns_mov_b64 s[{LI_+2}:{LI_+3}], s[{LD_+2}:{LD_+3}]")
        a(f"s_mov_b32 s{KS+2}, {4 << 20}\ns_mov_b32 s{KS+3}, s{LD_+3}\ns_mov_b64 s[{VS+2}:{VS+3}], s[{KS+2}:{KS+3}]\ns_movk_i32 s{SH+2}, 8192\ns_mov_b32 s{SH+3}, s{LD_+3}")
        def srd_(a, d, name, nbytes): a(f"s_mov_b64 s[{d}:{d+1}], s[{P[name]}:{P[name]+1}]")
    a("s_waitcnt lgkmcnt(0)")
    stamp0(a, 3)
    SOFF = ["0", "s72", "s73", "s74"]
    srd_(a, LD_, "logdt", 2048)
    srd_(a, LR_, "Lre", 2048)
    srd_(a, LI_, "Lim", 2048)
    a(f"""buffer_load_ushort v45, v44, {S(LD_)}, 0 offen
    buffer_load_ushort v46, v44, {S(LR_)}, 0 offen
    buffer_load_ushort v47, v44, {S(LI_)}, 0 offen""")
    stamp0(a, 4, 2)
    srd_(a, KS, "k", 4 << 20)
    for i in range(8):
        a(f"buffer_load_dwordx2 {V(KR+6+2*i,2)}, v10, {S(KS)}, {SOFF[i>>1]} offen offset:{2048*(i&1)}{NT('k')}")
    for i in range(3):
        a(f"buffer_load_dwordx2 {V(KR+2*i,2)}, v11, {S(KS)}, {SOFF[i>>1]} offen offset:{2048*(i&1)}{NT('k')}")
    stamp0(a, 5, 2)
    srd_(a, SH, "shift", 8192)
    a(f"buffer_load_dwordx4 {V(WRAW,4)}, v9, {S(SH)}, 0 offen")
    a(f"buffer_load_dwordx4 {V(WRAW+4,4)}, v9, {S(SH)}, 0 offen offset:16")
    srd_(a, VS, "v", 4 << 20)
    for i in range(8):
        a(f"buffer_load_dwordx2 {V(VR+2*i,2)}, v10, {S(VS)}, {SOFF[i>>1]} offen offset:{2048*(i&1)}{NT('k')}")
    stamp0(a, 6, 2)
    if OPT["kfirst"]: a("s_barrier")
    srd(a, DS, "Dskip", 2048)
    a(f"""buffer_load_dwordx2 {V(DSK,2)}, v1, {S(DS)}, 0 offen
    s_lshl_b32 s7, s5, 2
    v_add_u32 v15, s7, v13
    v_sub_u32 v15, 15, v15
    v_xor_b32 v15, v15, v12
    v_lshlrev_b32 v15, 4, v15
    v_lshl_add_u32 v15, v12, 10, v15
    v_add_u32 v15, {L_ST}, v15
    v_lshrrev_b32 v3, 1, v12
    v_xor_b32 v3, v3, v13
    v_lshlrev_b32 v3, 4, v3
    v_lshl_add_u32 v4, v12, 7, v3
    v_xor_b32 v6, 64, v4
    v_add_u32 v5, 0x10000, v4
    v_add_u32 v7, 0x10000, v6
    s_lshl_b32 s6, s5, 12
    s_add_u32 s6, s6, 16384
    v_add_u32 v8, s6, v4
    v_add_u32 v9, s6, v5
    v_add_u32 v10, s6, v6
    v_add_u32 v11, s6, v7""")
    def unp(d, s, hi):
        return f"v_and_b32 v{d}, 0xffff0000, v{s}" if hi else f"v_lshlrev_b32 v{d}, 16, v{s}"
    def a1_k(c):
        for j in range(4):
            a(unp(WF + j, WRAW + 2 * c + (j >> 1), j & 1))
        for i in range(11):
            a(unp(KT + i, KR + 2 * i + (c >> 1), c & 1))
        for t in range(8):
            a(f"v_mul_f32 v{AC+8*c+t}, v{WF}, v{KT+t+3}")
        for j in range(1, 4):
            for t in range(8):
                a(f"v_fmac_f32 v{AC+8*c+t}, v{WF+j}, v{KT+t+3-j}")
    def a1_v(c):
        for t in range(8):
            a(unp(KT + t, VR + 2 * t + (c >> 1), c & 1))
        for t in range(8):
            a(f"v_mul_f32 v{AC+8*c+t}, v{AC+8*c+t}, v{KT+t}")
        o = OUT + 4 * c
        for i in range(4):
            a(f"v_cvt_pk_bf16_f32 v{o+i}, v{AC+8*c+7-2*i}, v{AC+8*c+6-2*i}")
        a(f"ds_write_b128 v15, {V(o,4)} offset:{256*c}")
    srd(a, DB, "dbg", 256)
    a(f"""s_or_b32 s6, s2, s5
    s_cmp_eq_u32 s6, 0
    s_cbranch_scc0 C_nonce_w
    s_memrealtime s[6:7]
    v_mov_b32 v1, 0
    s_waitcnt lgkmcnt(0)
    s_or_b32 s6, s6, 1
    v_mov_b32 v48, s6
    v_mov_b32 v49, s7
    s_mov_b64 exec, 1
    buffer_store_dwordx2 v[48:49], v1, {S(DB)}, 0 offen sc1
    s_mov_b64 exec, -1""")
    a.label("C_nonce_w")
    srd(a, HS, "ws", 8 << 20, WS_H)
    srd(a, ES, "ws", 1 << 18, WS_E)
    srd(a, KV, "ws", 4 << 20, WS_KVT)
    srd(a, FL, "ws", FL_SZ, WS_FLG)
    srd(a, OS, "out", 16 << 20)
    CR, CI = 24, 80
    srd(a, CR, "Cre", 2 << 20)
    srd(a, CI, "Cim", 2 << 20)
    rot1(a, 34, 35)
    a(f"""s_sub_u32 s34, s4, s34
    s_and_b32 s34, s34, 15          ; step of G1 that holds this tile's x columns
    s_lshl_b32 s6, s5, 12
    v_add_u32 v{XA}, s6, v4
    v_xor_b32 v{XA+1}, 64, v{XA}
    v_mov_b32 v{NA}, {L_N}
    s_lshr_b32 s7, s2, 3
    s_and_b32 s32, s7, 15           ; a_mt
    s_lshr_b32 s7, s7, 4
    s_and_b32 s33, s2, 7
    s_lshl_b32 s33, s33, 1
    s_add_u32 s33, s33, s7          ; a_nt
    s_mov_b32 s36, 16384
    s_mov_b32 s37, 32768
    s_mov_b32 s38, 49152
    ; staging read addresses / KVT offsets
    s_lshl_b32 s6, s5, 2
    v_xor_b32 v1, s6, v12
    v_lshlrev_b32 v1, 4, v1
    v_lshl_add_u32 v1, v13, 8, v1
    s_lshl_b32 s6, s5, 12
    s_add_u32 s6, s6, {L_ST}
    v_add_u32 v{STA}, s6, v1
    v_xor_b32 v{STA+1}, 16, v{STA}
    v_xor_b32 v{STA+2}, 32, v{STA}
    v_xor_b32 v{STA+3}, 48, v{STA}
    s_lshl_b32 s6, s33, 2
    s_add_u32 s6, s6, s5
    s_lshl_b32 s6, s6, 16           ; (64 a_nt + 16 w)*4096
    s_lshl_b32 s7, s32, 8
    s_sub_u32 s7, 3840, s7
    s_add_u32 s6, s6, s7
    v_lshlrev_b32 v1, 12, v13
    v_lshl_add_u32 v1, v12, 4, v1
    v_add_u32 v{KVG}, s6, v1
    s_lshl_b32 s6, s33, 2
    s_add_u32 s7, s6, s5
    s_lshl_b32 s7, s7, 4
    s_add_u32 s7, s7, s32
    s_lshl_b32 s20, s7, 3
    s_lshr_b32 s7, s32, 2
    s_add_u32 s7, s7, s6
    s_lshl_b32 s21, s7, 7
    s_lshl_b32 s7, s33, 4
    s_add_u32 s7, s7, s32
    s_lshl_b32 s7, s7, 2
    s_add_u32 s7, s7, s5
    s_lshl_b32 s22, s7, 12
    s_lshl_b32 s23, s5, 14
    s_add_u32 s23, s23, {L_U}
    ; look-back / publish / H offsets
    s_lshl_b32 s6, s3, 14
    v_lshlrev_b32 v1, 4, v14
    v_add_u32 v{PUB}, s6, v1
    v_lshrrev_b32 v1, 2, v12
    v_lshlrev_b32 v1, 14, v1
    v_sub_u32 v1, v{PUB}, v1
    v_subrev_u32 v{LBK}, 0x4000, v1
    v_subrev_u32 v{LBK+1}, 0x14000, v1
    v_subrev_u32 v{LBK+2}, 0x24000, v1
    v_subrev_u32 v{LBK+3}, 0x34000, v1
    v_cmp_gt_i32 s[40:41], 0, v{LBK}
    v_cmp_gt_i32 s[42:43], 0, v{LBK+1}
    v_cmp_gt_i32 s[44:45], 0, v{LBK+2}
    v_cmp_gt_i32 s[46:47], 0, v{LBK+3}
    s_lshl_b32 s6, s3, 4
    s_add_u32 s6, s6, s4
    s_lshl_b32 s6, s6, 15
    s_lshl_b32 s7, s5, 10
    s_add_u32 s6, s6, s7
    v_lshlrev_b32 v1, 4, v2
    v_add_u32 v{HST}, s6, v1
    s_lshl_b32 s7, s5, 2
    v_add_u32 v{FA}, s7, v{NA}
    s_mov_b32 s48, 0xaaaaaaaa
    s_mov_b32 s49, 0xaaaaaaaa
    s_mov_b32 s50, 0xcccccccc
    s_mov_b32 s51, 0xcccccccc
    s_mov_b32 s52, 0x000f000f
    s_mov_b32 s53, 0x000f000f""")
    for i in range(64):
        a(f"v_mov_b32 v{ACC+i}, 0")
    a("s_waitcnt vmcnt(22)")
    stamp0(a, 7, 2)
    a(f"""v_lshlrev_b32 v45, 16, v45
    v_lshlrev_b32 v46, 16, v46
    v_lshlrev_b32 v47, 16, v47
    v_mul_f32 v45, 0x3fb8aa3b, v45
    v_exp_f32 v45, v45
    s_nop 0
    v_cvt_pk_bf16_f32 v45, v45, v45
    v_lshlrev_b32 v45, 16, v45
    v_mul_f32 v52, v45, v46
    v_mul_f32 v53, v45, v47
    v_mul_f32 v52, 0x3fb8aa3b, v52
    v_exp_f32 v48, v52
    v_mul_f32 v53, 0.15915494, v53
    v_fract_f32 v53, v53
    v_cos_f32 v50, v53
    v_sin_f32 v51, v53
    s_nop 0
    v_mul_f32 v44, v48, v50
    v_mul_f32 v45, v48, v51
    v_add_f32 v48, -1.0, v44
    v_mul_f32 v49, v46, v46
    v_fmac_f32 v49, v47, v47
    v_rcp_f32 v49, v49
    v_mul_f32 v50, v48, v46
    v_fmac_f32 v50, v45, v47
    v_mul_f32 v51, v45, v46
    v_fma_f32 v51, -v48, v47, v51
    v_add_f32 v49, v49, v49
    v_mul_f32 v46, v50, v49
    v_mul_f32 v47, v51, v49
    v_lshlrev_b32 v54, 3, v12
    v_cvt_f32_u32 v54, v54              ; 8j
    v_lshrrev_b32 v55, 2, v12
    v_lshlrev_b32 v55, 7, v55
    v_cvt_f32_u32 v55, v55              ; 128 (j>>2)""")
    DM = "row_mask:0xf bank_mask:0xf"
    def qb(i): return f"quad_perm:[{i},{i},{i},{i}] {DM}"
    for i in range(4):
        a(f"""v_mov_b32_dpp v{L+i}, v44 {qb(i)}
        v_mov_b32_dpp v{L+4+i}, v45 {qb(i)}
        v_mov_b32_dpp v{C2+i}, v46 {qb(i)}
        v_mov_b32_dpp v{C2+4+i}, v47 {qb(i)}""")
    def powd(dr, di, m0_, m1_):
        a(f"""{m0_}
        {m1_}
        v_exp_f32 v48, v48
        v_fract_f32 v49, v49
        v_cos_f32 v50, v49
        v_sin_f32 v51, v49
        s_nop 0
        v_mul_f32 v{dr}, v48, v50
        v_mul_f32 v{di}, v48, v51""")
    for i in range(4):
        powd(P8 + i, P8 + 4 + i, f"v_mul_f32_dpp v48, v52, v54 {qb(i)}", f"v_mul_f32_dpp v49, v53, v54 {qb(i)}")
    powd(G128, G128 + 1, "v_mul_f32 v48, v52, v55", "v_mul_f32 v49, v53, v55")
    powd(L512, L512 + 1, "v_mul_f32 v48, 0x44000000, v52", "v_mul_f32 v49, 0x44000000, v53")
    def reads(s, h):
        sl = SLOT[s]
        grp, so = divmod(sl, 65536)
        f = FR + 40 * h
        R = [f"ds_read_b128 {V(f+32+4*p,4)}, v{BA+2*h+grp} offset:{so+2048*p}" for p in range(2)]
        R += [f"ds_read_b128 {V(f+4*i,4)}, v{AA+2*h+grp} offset:{so+2048*i}" for i in range(8)]
        return R
    def mfmas(h):
        f = FR + 40 * h
        M = []
        for r in range(8):
            for p in ((0, 1) if not (r & 1) else (1, 0)):
                c = ACC + 8 * r + 4 * p
                M.append(f"v_mfma_f32_16x16x32_bf16 {V(c,4)}, {V(f+32+4*p,4)}, {V(f+4*r,4)}, {V(c,4)}")
        return M
    stamp0(a, 4)
    a("s_waitcnt vmcnt(9)")
    stamp0(a, 5)
    for c in range(4): a1_k(c)
    a("s_waitcnt vmcnt(1)")
    stamp0(a, 6)
    for c in range(4): a1_v(c)
    stamp0(a, 7)
    a("s_waitcnt lgkmcnt(0)\ns_barrier")
    stamp(a, 1)
    for x in reads(0, 0): a(x)
    if OPT["prioc"]: a(f"s_setprio {OPT['prioc']}")
    for i in range(4):
        a(f"ds_read_b128 {V(STG+4*i,4)}, v{STA+i} offset:{1024*i}")
    KP, KA = 244, 246
    def ool_spin(lbl, load, test):
        o_ = Asm()
        o_.label(lbl)
        o_("s_mov_b32 s39, 0")
        o_.label(lbl + "_s")
        o_(f"""{load}
        s_add_u32 s39, s39, 1
        s_waitcnt vmcnt(0)
        s_cmp_gt_u32 s39, {SPIN}
        s_cbranch_scc1 {lbl}_r
        {test}
        s_cbranch_scc0 {lbl}_s
        s_branch {lbl}_r""")
        OOL.extend(o_.l)
        a(f"{test}\ns_cbranch_scc0 {lbl}")
        a.label(lbl + "_r")
    NLD = f"buffer_load_dwordx2 {V(GR+2,2)}, off, {S(DB)}, 0 sc1"
    KPL = f"buffer_load_dwordx2 {V(KP,2)}, v{KA}, {S(FL)}, s21 offen sc1"
    def hook(hs):
        if hs == 0:
            for i in range(4):
                a(f"buffer_store_dwordx4 {V(STG+4*i,4)}, v{KVG}, {S(KV)}, {['0','s36','s37','s38'][i]} offen sc1")
            a(NLD)
            a(f"v_lshlrev_b32 v{KA}, 3, v12\nv_lshlrev_b32 v{KA+1}, 4, v2")
        if hs == OPT["fs"]:
            a("s_waitcnt vmcnt(0)")
            ool_spin("C_non", NLD, f"v_readfirstlane_b32 s7, v{GR+2}\ns_cmp_lg_u32 s7, 0")
            a(f"""s_mov_b64 exec, 1
            buffer_store_dwordx2 {V(GR+2,2)}, off, {S(FL)}, s20 sc1
            ds_write_b64 v{NA}, {V(GR+2,2)}
            s_mov_b64 exec, -1""")
        if hs == OPT["ps"]: a(KPL)
        if hs == OPT["pc"]:
            assert hs >= 2 * RFREE
            a("s_waitcnt vmcnt(0)")
            ool_spin("C_kvp", KPL, f"""v_cmp_eq_u32 vcc, v{KP}, v{GR+2}
            v_cmp_eq_u32 s[54:55], v{KP+1}, v{GR+3}
            s_mov_b32 m0, s23
            s_and_b64 s[54:55], s[54:55], vcc
            s_cmp_eq_u64 s[54:55], -1""")
            for j in range(4):
                a(f"buffer_load_dwordx4 v{KA+1}, {S(KV)}, s22 offen offset:{1024*j} sc1 lds")
        if hs == OPT["kl"]: a("s_waitcnt vmcnt(0)")
    assert 0 < OPT["fs"] < OPT["ps"] < OPT["pc"] < OPT["kl"] and OPT["kl"] & 1
    for s in range(16):
        a(f"s_cmp_eq_u32 s34, {s}\ns_waitcnt lgkmcnt(0)\ns_cbranch_scc1 C_x{s}")
        a.label(f"C_x{s}_r")
        o_ = Asm()
        o_.label(f"C_x{s}")
        o_(f"v_add_u32 v{XA}, {SLOT[s]}, v{XA}\nv_add_u32 v{XA+1}, {SLOT[s]}, v{XA+1}")
        for t in range(2):
            for h in range(2):
                o_(f"ds_read_b128 {V(XF+8*t+4*h,4)}, v{XA+h} offset:{2048*t}")
        o_(f"s_branch C_x{s}_r")
        OOL.extend(o_.l)
        hook(2 * s)
        interleave(a, mfmas(0), reads(s, 1), 1)
        hook(2 * s + 1)
        a("s_waitcnt lgkmcnt(0)")
        if s < 15: a("s_barrier")
        M = mfmas(1)
        if s == 15:
            a("v_mov_b32 v3, 1\nv_mov_b32 v15, 2")
            cl = f"ds_write_b32 v{FA}, v3 offset:{L_F + 48 - L_N}"
            if OPT["gate"] and SA == 16: a(cl)
            elif OPT["gate"]: M[8] += "\n" + cl
            a(f"ds_write_b32 v{FA}, v{GR+2} offset:{L_F - L_N}")
        interleave(a, M, reads(s + 1, 0) if s < 15 else [], 1)
    stamp(a, 2)
    a("s_nop 3")
    SC = [False]
    def pk(op, d, x, y, c=None, neg=False):
        if SC[0]:
            for i in range(2):
                n = "-" if neg else ""
                if c is None: a(f"v_mul_f32 v{d+i}, {n}v{x+i}, v{y+i}")
                elif c == d and not neg: a(f"v_fmac_f32 v{d+i}, v{x+i}, v{y+i}")
                else: a(f"v_fma_f32 v{d+i}, {n}v{x+i}, v{y+i}, v{c+i}")
            return
        n = ""
        if neg: n = " neg_lo:[1,0,0] neg_hi:[1,0,0]" if c is not None else " neg_lo:[1,0] neg_hi:[1,0]"
        if c is None: a(f"v_pk_mul_f32 {V(d,2)}, {V(x,2)}, {V(y,2)}{n}")
        else: a(f"v_pk_fma_f32 {V(d,2)}, {V(x,2)}, {V(y,2)}, {V(c,2)}{n}")
    def cm4(dr, di, k, xr, xi, cr=None, ci=None, s=(0, 0, 1, 0)):
        for h in (0, 2):
            pk("f", dr + h, k + h, xr + h, None if cr is None else cr + h, s[0])
            pk("f", di + h, k + h, xi + h, None if ci is None else ci + h, s[1])
        for h in (0, 2):
            pk("f", dr + h, k + 4 + h, xi + h, dr + h, s[2])
            pk("f", di + h, k + 4 + h, xr + h, di + h, s[3])
    def Ur(r): return ACC + 8 * r
    def Ui(r): return ACC + 8 * r + 4
    EB = [128, 136]
    W, PL, SH_, MU, AC_, MM, U0, PK = 144, 152, 168, 176, 184, 192, 200, 128
    CPE = OPT["cpe"]
    if CPE:
        assert OPT["shsc"] and OPT["lbp"] == 2 and OPT["nh"] == 8 and OPT["ncb"] == 2 and CPE <= min(4, OPT["ncc"])
        PL, SH_, AC_, MM, U0 = 24, 144, 152, 136, 48
    e = Ur(0)
    for r in range(1, 8):
        d = EB[r & 1]
        cm4(d, d + 4, L, e, e + 4, Ur(r), Ui(r))
        e = d
    for i in range(4):
        a(f"""v_mul_f32_dpp v{W+i}, v{P8+i}, v{e+i} row_mirror {DM}
        v_mul_f32_dpp v{W+4+i}, v{P8+i}, v{e+4+i} row_mirror {DM}""")
    for i in range(4):
        a(f"""v_fmac_f32_dpp v{W+i}, -v{P8+4+i}, v{e+4+i} row_mirror {DM}
        v_fmac_f32_dpp v{W+4+i}, v{P8+4+i}, v{e+i} row_mirror {DM}""")
    for i in (0, 4, 1, 5, 2, 6, 3, 7):
        a(f"v_add_f32_dpp v{W+i}, v{W+i}, v{W+i} quad_perm:[1,0,3,2] {DM}")
    for i in range(4):
        a(f"v_cndmask_b32 v{44+i}, v{W+2*i}, v{W+2*i+1}, s[48:49]")
    for i in range(4):
        if i == 0: a("s_nop 0")
        a(f"v_add_f32_dpp v{44+i}, v{44+i}, v{44+i} quad_perm:[2,3,0,1] {DM}")
    a(f"""v_cndmask_b32 v{GR}, v44, v45, s[50:51]
    v_cndmask_b32 v{GR+1}, v46, v47, s[50:51]
    s_nop 0
    v_add_f32_dpp v{GR}, v{GR}, v{GR} row_ror:4 {DM}
    v_add_f32_dpp v{GR+1}, v{GR+1}, v{GR+1} row_ror:4 {DM}
    s_nop 0
    v_add_f32_dpp v{GR}, v{GR}, v{GR} row_ror:8 {DM}
    v_add_f32_dpp v{GR+1}, v{GR+1}, v{GR+1} row_ror:8 {DM}
    s_mov_b64 exec, s[52:53]
    buffer_store_dwordx4 {V(GR,4)}, v{PUB}, {S(ES)}, 0 offen sc1
    s_mov_b64 exec, -1""")
    CAD = 244
    def csetup():
        a(f"""s_and_b32 s7, s3, {12 * OPT['xrot']}
        s_add_u32 s7, s7, s4
        s_and_b32 s36, s7, 15
        v_lshrrev_b32 v1, 3, v2
        v_and_b32 v44, 7, v2
        v_xor_b32 v44, v44, v13
        v_lshlrev_b32 v44, 4, v44
        v_lshl_add_u32 v44, v1, 13, v44
        s_lshl_b32 s7, s4, 6
        s_add_u32 s7, s7, s5
        s_lshl_b32 s7, s7, 11
        v_add_u32 v{CAD}, s7, v44
        v_xor_b32 v{CAD+1}, 64, v{CAD}
        v_add_u32 v{CAD+1}, {65536-1024}, v{CAD+1}
        v_xor_b32 v{CAD+2}, 32, v{CAD}
        v_xor_b32 v{CAD+3}, 32, v{CAD+1}
        s_lshl_b32 s20, s36, 7
        s_and_b32 s22, s20, 1024
        s_xor_b32 s23, s22, 1024
        s_lshl_b32 s21, s5, 11""")
        if OPT["ot"]:
            a(f"""v_lshlrev_b32 v1, 12, v1
            v_and_b32 v44, 7, v2
            v_lshl_add_u32 v1, v44, 7, v1
            v_lshlrev_b32 v44, 4, v2
            v_sub_u32 v1, v1, v44
            v_add_u32 v{PUB}, v{HST}, v1""")
    def ldC(k, r=None):
        if OPT["hord"]: a(f"s_add_u32 s7, s20, {128*k}\ns_and_b32 s7, s7, 1023\ns_or_b32 s7, s7, s{22 + (k >> 3)}")
        else: a(f"s_add_u32 s7, s20, {128*k}\ns_and_b32 s7, s7, 2047")
        for j in range(4):
            tail = f"v{CAD+j}, {S(CI if j & 2 else CR)}, s7 offen offset:{1024*(j&1)}"
            if r is None:
                if not j & 1: a(f"s_add_u32 m0, s21, {16384*k + 4096*j}\ns_nop 0")
                a(f"buffer_load_dwordx4 {tail} lds")
            else: a(f"buffer_load_dwordx4 {V(r+4*j,4)}, {tail}")
    def wchk(off, t=56):
        a(f"""ds_read_b128 v[{t}:{t+3}], v{NA} offset:{L_F + off - L_N}
        s_waitcnt lgkmcnt(0)
        v_xor_b32 v{t}, v{t}, v{GR+2}
        v_xor_b32 v{t+1}, v{t+1}, v{GR+2}
        v_xor_b32 v{t+2}, v{t+2}, v{GR+2}
        v_xor_b32 v{t+3}, v{t+3}, v{GR+2}
        v_or3_b32 v{t}, v{t}, v{t+1}, v{t+2}
        v_or_b32 v{t}, v{t}, v{t+3}
        v_cmp_ne_u32 vcc, 0, v{t}""")
    def g1done():
        assert SLOT[15] == 65536
        a("s_mov_b32 s39, 0")
        a.label("C_g1d")
        wchk(0, 44)
        a(f"""s_add_u32 s39, s39, 1
        s_cmp_gt_u32 s39, {SPIN * 4}
        s_cbranch_scc1 C_g1d_ok
        s_cbranch_vccnz C_g1d""")
        a.label("C_g1d_ok")
    LBI = OPT["lbi"]
    FSH_ = OPT["pks"]
    assert not FSH_ or (CPE and LBI < 0 and OPT["gate"] == 1 and not OPT["ccd"])
    PLS = [PL + 4 * j for j in range(4)] if LBI < 0 and not FSH_ else [128, 132, 144, 148]
    def lbpoll():
        for j in range(4):
            a(f"buffer_load_dwordx4 {V(PLS[j],4)}, v{LBK+j}, {S(ES)}, 0 offen sc1")
    if OPT["lbp"] == 0: lbpoll()
    GO = f"ds_write_b32 v{FA}, v15 offset:{L_F + 48 - L_N}"
    if FSH_:
        if OPT["fpl"] == 0: lbpoll()
    elif OPT["shsc"]:
        SC[0] = True
        if OPT["gate"]: a(GO)
    if OPT["ccd"] == 2:
        csetup(); g1done()
        for t in ([] if OPT["d15"] else [14]) + [15]:
            for k in (SLOT[t] // 16384, SLOT[t] // 16384 + 1): ldC(k)
    EREG = [160, 176, 192, 224]
    if CPE and not FSH_:
        if OPT["ccd"] != 2: csetup()
        for i in range(CPE - OPT["cpw"] if LBI < 0 else 0): ldC(6 + i, EREG[i])
    if OPT["lbp"] == 1: lbpoll()
    stamp(a, 3)
    sh0 = len(a.l)
    F = EB[0]
    SHB = SH_
    if FSH_: F, SH_, MU = 160, 168, 176
    assert e == EB[1]
    for i in range(8):
        a(f"v_mov_b32_dpp v{F+i}, v{e+i} row_shr:1 {DM} bound_ctrl:0")
    for sft in (1, 2, 4, 8):
        if SC[0]:
            if sft == 1: a("s_nop 0")
            for i in range(8):
                a(f"v_mov_b32_dpp v{SH_+i}, v{F+i} row_shr:{sft} {DM} bound_ctrl:0")
            nb = f"row_newbcast:{sft} {DM}"
            for i in range(4): a(f"v_fmac_f32_dpp v{F+i}, v{P8+i}, v{SH_+i} {nb}")
            for i in range(4): a(f"v_fmac_f32_dpp v{F+4+i}, v{P8+i}, v{SH_+4+i} {nb}")
            for i in range(4): a(f"v_fmac_f32_dpp v{F+i}, -v{P8+4+i}, v{SH_+4+i} {nb}")
            for i in range(4): a(f"v_fmac_f32_dpp v{F+4+i}, v{P8+4+i}, v{SH_+i} {nb}")
            continue
        for h in range(0, 8, 2):
            a(f"v_mov_b64_dpp {V(MU+h,2)}, {V(P8+h,2)} row_newbcast:{sft} {DM}")
        for i in (0, 1, 4, 5, 2, 3, 6, 7):
            a(f"v_mov_b32_dpp v{SH_+i}, v{F+i} row_shr:{sft} {DM} bound_ctrl:0")
        cm4(F, F + 4, MU, SH_, SH_ + 4, F, F + 4)
    for i in range(CPE - OPT["cpw"], CPE if LBI < 0 and not FSH_ else 0): ldC(6 + i, EREG[i])
    cm4(AC_, AC_ + 4, C2, F, F + 4, s=(0, 1, 1, 1))
    sh1 = len(a.l) - sh0
    cm4(MM, MM + 4, C2, P8, P8 + 4)
    SH_ = SHB
    if FSH_ and OPT["fpl"] == 1: lbpoll()
    if FSH_ == 2:
        a(GO); csetup(); SC[0] = True
        sh0 = len(a.l)
    def U2(r): return U0 if r == 0 else Ur(r - 1)
    for r in range(8):
        for h in (0, 2):
            pk("m", U2(r) + h, C2 + h, Ur(r) + h)
        for h in (0, 2):
            pk("f", U2(r) + h, C2 + 4 + h, Ui(r) + h, U2(r) + h, True)
        for h in (0, 2):
            pk("m", Ui(r) + h, C2 + h, Ui(r) + h, None, True)
        for h in (0, 2):
            pk("f", Ui(r) + h, C2 + 4 + h, Ur(r) + h, Ui(r) + h, True)
    SC[0] = False
    if OPT["gate"] == 1 and not OPT["shsc"]: a(GO)
    if OPT["ccd"] != 2 and not CPE: csetup()
    if OPT["ccd"] == 1: g1done()
    if FSH_ == 3:
        csetup()
        if not OPT["fgo"]: a(GO)
        after = 0
    elif FSH_ == 1:
        if OPT["fpl"] == 2: lbpoll()
        a(GO); csetup()
        for i in range(CPE): ldC(6 + i, EREG[i])
        after = 4 * CPE
    elif LBI >= 0 or FSH_:
        assert CPE and not OPT["ccd"]
        SHD = a.l[sh0:]; del a.l[sh0:]
        ins = {}
        main_ = a.l
        for i in range(CPE):
            a.l = []; ldC(6 + i, EREG[i]); x = a.l
            n0 = len(x) - 4
            for j in range(4):
                ins.setdefault(min(len(SHD), OPT["c0"] + OPT["cd"] * (4 * i + j)), []).append((x[:n0] if j == 0 else []) + [x[n0 + j]])
        a.l = []; lbpoll(); pl_ = a.l
        a.l = main_
        after = 0 if FSH_ else -1
        for n_ in range(len(SHD) + 1):
            if n_ == min(len(SHD), sh1 + LBI) and not FSH_:
                a.l.extend(pl_); after = 0
            for x in ins.get(n_, []):
                a.l.extend(x)
                if after >= 0: after += 1
            if n_ < len(SHD): a.l.append(SHD[n_])
    elif OPT["lbp"] == 2: lbpoll()
    stamp(a, 4)
    a("s_mov_b32 s39, 0")
    if (LBI >= 0 or FSH_) and after: a(f"s_waitcnt vmcnt({after})\ns_branch C_chk1")
    if FSH_ == 3: a("s_mov_b32 s33, 0\ns_branch C_f0")
    a.label("C_chk")
    a("s_waitcnt vmcnt(0)")
    if (LBI >= 0 or FSH_) and after: a.label("C_chk1")
    def lbeval(ok):
        for j in range(4):
            b = PLS[j]
            a(f"""v_cmp_eq_u32 vcc, v{b+2}, v{GR+2}
            v_cmp_eq_u32 s[54:55], v{b+3}, v{GR+3}
            s_and_b64 s[54:55], s[54:55], vcc
            s_or_b64 s[{56+2*j}:{57+2*j}], s[54:55], s[{40+2*j}:{41+2*j}]""")
        a(f"""s_and_b64 s[56:57], s[56:57], s[58:59]
        s_and_b64 s[60:61], s[60:61], s[62:63]
        s_and_b64 s[56:57], s[56:57], s[60:61]
        s_cmp_eq_u64 s[56:57], -1
        s_cbranch_scc1 {ok}""")
    lbeval("C_ok")
    a(f"""s_add_u32 s39, s39, 1
    s_cmp_gt_u32 s39, {SPIN}
    s_cbranch_scc1 C_ok""")
    lbpoll()
    a("s_branch C_chk")
    if FSH_ == 3:
        a.label("C_f0")
        a("s_waitcnt vmcnt(0)")
        lbeval("C_ok0" if OPT["fgo"] else "C_ok")
        if OPT["fgo"]: a(GO)
        FN = OPT["fn"]
        for i in range(0, CPE, FN):
            lbpoll()
            for i_ in range(i, i + FN): ldC(6 + i_, EREG[i_])
            a(f"s_mov_b32 s33, {i + FN}\ns_waitcnt vmcnt({4 * FN})")
            lbeval("C_ok")
        lbpoll()
        a("s_branch C_chk")
    a.label("C_ok")
    if OPT["gate"] == 1: a(f"ds_write_b32 v{FA}, v3 offset:{L_F + 48 - L_N}")
    if FSH_ == 3 and OPT["fgo"]: a.label("C_ok0")
    stamp(a, 5)
    cmul(a, PLS[2], PLS[3], L512, PLS[2])
    cmul(a, PLS[1], PLS[2], L512, PLS[1])
    cmul(a, PLS[0], PLS[1], L512, PLS[0])
    cmul(a, 44, PLS[0], G128)
    a(f"""s_nop 0
    v_add_f32_dpp v44, v44, v44 row_ror:4 {DM}
    v_add_f32_dpp v45, v45, v45 row_ror:4 {DM}
    s_nop 0
    v_add_f32_dpp v44, v44, v44 row_ror:8 {DM}
    v_add_f32_dpp v45, v45, v45 row_ror:8 {DM}
    s_nop 0""")
    for i in range(4):
        a(f"v_mov_b32_dpp v{SH_+i}, v44 {qb(i)}\nv_mov_b32_dpp v{SH_+4+i}, v45 {qb(i)}")
    cm4(AC_, AC_ + 4, MM, SH_, SH_ + 4, AC_, AC_ + 4, s=(0, 1, 1, 1))
    pr, pi = AC_, AC_ + 4
    def hout(r):
        o = PK + 4 * r
        a(f"""v_permlane32_swap_b32 v{o}, v{o+2}
        v_permlane32_swap_b32 v{o+1}, v{o+3}
        s_mov_b32 s6, {4096*r}
        buffer_store_dwordx4 {V(o,4)}, v{HST}, {S(HS)}, s6 offen{FLV[0 if OPT['hw'] else OPT['hsf']]}""")
    for r in range(8):
        cm4(U2(r), Ui(r), L, pr, pi, U2(r), Ui(r), s=(0, 0, 0, 1))
        pr, pi = U2(r), Ui(r)
        if r: hout(r - 1)
        o = PK + 4 * r
        a(f"""v_cvt_pk_bf16_f32 v{o}, v{pr}, v{pr+1}
        v_cvt_pk_bf16_f32 v{o+2}, v{pi}, v{pi+1}
        v_cvt_pk_bf16_f32 v{o+1}, v{pr+2}, v{pr+3}
        v_cvt_pk_bf16_f32 v{o+3}, v{pi+2}, v{pi+3}""")
    a("s_nop 0")
    hout(7)
    if OPT["gate"]: a(GO)
    stamp(a, 6)
    CA, CB, HA, OA2, HFP, PLL = 4, 8, 48, 50, 51, 248
    NCB = OPT['ncb']
    NH = OPT['nh']
    CD = NCB // 2
    assert OPT['hd'] < NH
    ACC, HR, CF, DG = 16, 64, 64 + 8 * NH, 64
    NCC = OPT["ncc"]
    PREG = sorted([CF + 16 * NCB + 16 * i for i in range(NCC)], key=lambda r: r == XF)
    assert (not PREG or max(PREG) + 16 <= 240) and CF + 16 * NCB <= XF and (XF - CF) % 16 == 0
    vm = VM()
    vm.add("st")
    def st2():
        for r in range(8):
            a(f"s_mov_b32 s6, {4096*r}\nbuffer_store_dwordx4 {V(PK+4*r,4)}, v{HST}, {S(HS)}, s6 offen{FLV[OPT['ds2'] - 1]}"); vm.add("s2")
    if OPT["ds2"] and OPT["dsp"] == 0: st2()
    for i in range(OPT["ot"]):
        a(f"buffer_load_dword v{252+i}, v{PUB}, {S(HS)}, 0 offen offset:{64*i}{FLV[OPT['otf']]}"); vm.add("ot")
    assert PREG[:CPE] == EREG[:CPE] and CPE + OPT["cpl"] <= NCC
    NPRE = NCC - OPT["cpl"]
    if OPT["ccd"] == 1:
        for k in (SLOT[15] // 16384, SLOT[15] // 16384 + 1):
            ldC(k); vm.add("cd", 4)
    if FSH_ == 3:
        for i in range(CPE):
            a(f"s_cmp_gt_u32 s33, {i}\ns_cbranch_scc1 C_dn{i}")
            ldC(6 + i, EREG[i])
            a.label(f"C_dn{i}")
    for i in range(CPE, NPRE):
        if PREG[i] != XF:
            ldC(6 + i, PREG[i]); vm.add(f"C{i}", 4)
    CW = 52
    a(f"""v_lshlrev_b32 v1, 4, v2
    v_add_u32 v{CW}, s21, v1
    v_add_u32 v{CW+1}, 0xc000, v{CW}""")
    a(f"""v_lshrrev_b32 v1, 1, v13
    v_lshl_add_u32 v{CB}, v1, 13, v4
    v_xor_b32 v{CB+1}, 32, v{CB}
    v_xor_b32 v{CB+2}, 64, v{CB}
    v_xor_b32 v{CB+3}, 96, v{CB}
    s_lshl_b32 s6, s3, 6
    s_add_u32 s6, s6, s5
    s_lshl_b32 s6, s6, 13
    v_lshlrev_b32 v1, 4, v2
    v_add_u32 v{HA}, s6, v1
    v_add_u32 v{HA+1}, 4096, v{HA}
    s_lshl_b32 s6, s6, 1                ; (128 mt + 2 w) * 8192
    s_lshl_b32 s7, s4, 8
    s_add_u32 s6, s6, s7
    s_add_u32 s6, s6, 4096
    v_lshlrev_b32 v{OA2}, 18, v13
    v_lshl_add_u32 v{OA2}, v12, 4, v{OA2}
    v_add_u32 v{OA2}, s6, v{OA2}          ; out offset
    v_lshlrev_b32 v1, 1, v13
    v_sub_u32 v1, v12, v1           ; n - 2g = 8h + e
    v_cmp_eq_u32 s[40:41], 0, v1
    v_cmp_eq_u32 s[42:43], 1, v1
    v_cmp_eq_u32 s[44:45], 8, v1
    v_cmp_eq_u32 s[46:47], 9, v1
    v_and_b32 v56, 0xffff, v{DSK}
    v_and_b32 v57, 0xffff0000, v{DSK}
    v_and_b32 v58, 0xffff, v{DSK+1}
    v_and_b32 v59, 0xffff0000, v{DSK+1}
    s_lshl_b32 s7, s3, 13
    s_add_u32 s7, s7, {FL_H}
    v_lshrrev_b32 v1, 2, v2
    v_xor_b32 v3, s36, v1
    v_add_u32 v1, s36, v1
    v_and_b32 v1, {7 if OPT["hord"] else 15}, v1
    v_and_b32 v3, {8 if OPT["hord"] else 0}, v3
    v_or_b32 v1, v1, v3
    v_lshlrev_b32 v1, {OPT['hsh']}, v1
    v_add_u32 v{HFP}, s7, v1
    s_lshl_b32 s6, s4, {OPT['hsh']}
    s_add_u32 s6, s6, s7
    v_lshl_add_u32 v3, v12, 3, s6
    s_lshl_b32 s38, s36, 15
    s_and_b32 s30, s38, 0x40000
    s_xor_b32 s31, s30, 0x40000
    s_xor_b32 s35, s38, 0x40000
    s_lshl_b32 s6, s3, 19
    s_lshl_b32 s7, s5, 13
    s_add_u32 s6, s6, s7
    v_lshlrev_b32 v1, 7, v2
    v_add_u32 v60, s6, v1               ; touch offset
    s_mov_b32 s34, 1
    s_mov_b32 s37, 0""")
    for b in range(4):
        for h in range(2):
            for r in range(4):
                d = DG + 8 * b + 4 * h + r
                if (r & 1) == (b >> 1):
                    m = 40 + 4 * h + 2 * (r >> 1)
                    a(f"v_cndmask_b32 v{d}, 0, v{56+b}, s[{m}:{m+1}]")
                else:
                    a(f"v_mov_b32 v{d}, 0")
    for i in range(4): a(f"v_add_u32 v{CA+i}, 0xc000, v{CB+i}")
    for h in range(2):
        for t in range(2):
            for b in range(4):
                c = ACC + 16 * t + 4 * b
                a(f"v_mfma_f32_16x16x32_bf16 {V(c,4)}, {V(XF+8*t+4*h,4)}, {V(DG+8*b+4*h,4)}, {V(c,4) if h else 0}")
    PROG = OPT["prog"]
    assert not (PROG and OPT["xrot"])
    PR = 240
    if XF in PREG[:NPRE]:
        ldC(6 + NCC - 1, XF); vm.add(f"C{NCC-1}", 4)
    def poll(r): return f"buffer_load_dwordx2 {V(r,2)}, v{HFP}, {S(FL)}, 0 offen sc1"
    def peval(r):
        return f"""v_cmp_eq_u32 vcc, v{r}, v{GR+2}
        v_cmp_eq_u32 s[54:55], v{r+1}, v{GR+3}
        s_nop 0
        s_and_b64 s[54:55], s[54:55], vcc
        s_or_b32 s54, s54, 15
        {"s_or_b32 s48, s48, s54" if OPT["dyn"] else ""}
        s_ff0_i32_b64 s7, s[54:55]
        s_lshr_b32 s7, s7, 2
        s_max_u32 s37, s37, s7""".split("\n")
    nt_ = [0]
    def htouch():
        if not OPT["ht"]: return ""
        lbl = f"C2_t{nt_[0]}"; nt_[0] += 1
        o_ = Asm()
        o_.label(lbl)
        o_(f"""s_mov_b32 s34, 0
        buffer_load_dword v61, v60, {S(HS)}, s35 offen sc1
        {f"buffer_load_dword v61, v60, {S(HS)}, s35 offen offset:64 sc1" if OPT["ht"] == 1 else ""}
        s_branch {lbl}_r""")
        OOL.extend(o_.l)
        return f"\ns_and_b32 s7, s55, s34\ns_cbranch_scc1 {lbl}\n{lbl}_r:"
    DYN, DY = OPT["dyn"], 61
    assert DYN in (0, 2, 3) and (not DYN or (OPT["hord"] and PROG and not OPT["ht"] and FSH_ != 3 and NCC == 5))
    if DYN: a(f"s_mov_b32 s48, 0\ns_mov_b32 s49, {((1 << 4 * DYN) - 1) << 4}\ns_mov_b32 s33, s38")
    def dpick(j):
        lbl = f"C2_d{j}"
        o_ = Asm()
        o_.label(lbl)
        o_("s_mov_b32 s39, 0")
        o_.label(lbl + "_s")
        o_(f"""{poll(PLL)}
        s_add_u32 s39, s39, 1
        s_mov_b32 s7, s49
        s_waitcnt vmcnt(0)
        s_cmp_gt_u32 s39, {SPIN}
        s_cbranch_scc1 {lbl}_r""")
        o_("\n".join(peval(PLL)))
        o_(f"""s_and_b32 s7, s48, s49
        s_cbranch_scc0 {lbl}_s
        s_branch {lbl}_r""")
        OOL.extend(o_.l)
        return f"""s_and_b32 s7, s48, s49
        s_cbranch_scc0 {lbl}
        {lbl}_r:
        s_ff1_i32_b32 s7, s7
        s_lshl_b32 s6, 15, s7
        s_lshl_b32 s{50+j}, s7, 12
        s_lshl_b32 s7, s7, 13
        s_andn2_b32 s49, s49, s6
        s_add_u32 s38, s33, s7
        s_and_b32 s38, s38, 0x3ffff
        s_or_b32 s38, s38, s30"""
    def hchk(b):
        if b <= DYN: return dpick(b)
        lbl = f"C2_h{b}"
        o_ = Asm()
        o_.label(lbl)
        o_("s_mov_b32 s39, 0")
        o_.label(lbl + "_s")
        o_(f"""{poll(PLL)}
        s_add_u32 s39, s39, 1
        s_waitcnt vmcnt(0)
        s_cmp_gt_u32 s39, {SPIN}
        s_cbranch_scc1 {lbl}_r""")
        o_("\n".join(peval(PLL)))
        o_(f"""s_cmp_gt_u32 s37, {b}
        s_cbranch_scc0 {lbl}_s
        s_branch {lbl}_r""")
        OOL.extend(o_.l)
        return f"s_cmp_gt_u32 s37, {b}\ns_cbranch_scc0 {lbl}\n{lbl}_r:"
    if OPT["spr"] != 3: a(f"s_setprio {OPT['spr']}")
    PQ = OPT["pq"]
    if OPT["ds2"] and OPT["dsp"] == 1: st2()
    if PROG and not PQ:
        a(poll(PR)); vm.add("p0")
    if FSH_ == 3:
        for i in range(CPE): a(f"s_waitcnt vmcnt({vm.cnt('st') + 4 * (CPE - i)})\ns_cmp_eq_u32 s33, {i}\ns_cbranch_scc1 C_stw")
        a(f"s_waitcnt vmcnt({vm.cnt('st')})")
        a.label("C_stw")
        a(f"ds_write_b32 v{FA}, v{GR+2} offset:{L_F + 16 - L_N}")
    else: a(f"s_waitcnt vmcnt({vm.cnt('st')})\nds_write_b32 v{FA}, v{GR+2} offset:{L_F + 16 - L_N}")
    if OPT["ds2"] and OPT["dsp"] == 2: st2()
    wchk(16)
    a(f"""s_mov_b32 s39, 0
    s_cbranch_vccnz C_nofl
    {"buffer_wbl2 sc1" if OPT["hw"] else ""}
    {"s_waitcnt vmcnt(0)" if OPT["hw"] else ""}
    s_mov_b64 exec, {(1 << min(16, 1 << (OPT['hsh'] - 3))) - 1}
    buffer_store_dwordx2 {V(GR+2,2)}, v3, {S(FL)}, 0 offen sc1
    s_mov_b64 exec, -1""")
    if PROG:
        a("s_branch C_own")
        a.label("C_nofl")
        wchk(16)
        a(f"""s_add_u32 s39, s39, 1
        s_cmp_gt_u32 s39, {SPIN * 4}
        s_cbranch_scc1 C_own
        s_cbranch_vccnz C_nofl""")
        a.label("C_own")
    else:
        a.label("C_nofl")
    stamp(a, 7)
    stamp_dump(a, 0)
    if not PROG:
        for i in range(NPRE, NCC):
            ldC(6 + i, PREG[i]); vm.add(f"C{i}", 4)
        spin_flags(a, "C_hspin", PLL, GR + 2, HFP, FL)
    HD = OPT["hd"]
    SKB = OPT["skb"]
    KS, HALF, CF2 = 64 - 4 * SKB, 2 * SKB, 160
    assert not SKB or (CD == 1 and OPT["hord"] and OPT["za"] <= KS // 4 and SKB <= 4)
    def frag(n):
        if n < KS: return [(0, n), (1, n)]
        t, p_ = divmod(n - KS, HALF)
        return [(t, KS + 2 * p_), (t, KS + 2 * p_ + 1)]
    def ogrp(t, i, o):
        x = "\n".join(f"v_mov_b32 v{o+b}, v{ACC+16*t+4*b+i}" for b in range(4))
        y = f"s_mov_b32 s6, {(8*i+t)*8192}"
        if 4 * t + i >= OPT["nob"]: y += f"\nbuffer_store_dwordx4 {V(o,4)}, v{OA2}, {S(OS)}, s6 offen{FLV[OPT['osb']]}"
        return x, y
    def hld(k):
        if k >= KS:
            return [f"buffer_load_dwordx4 {V(HR + 8*(k%NH) + 4*i, 4)}, v{HA+t}, {S(HS)}, s{40 + ((kk - KS) >> 2)} offen offset:{1024*(kk&3)} sc1" for i, (t, kk) in enumerate(frag(k))]
        if k == KS - 1:
            L_ = [f"buffer_load_dwordx4 {V(HR + 8*(k%NH) + 4*t, 4)}, v{HA+t}, {S(HS)}, s38 offen offset:3072 sc1" for t in range(2)]
            for i in range(SKB): L_[1] += f"\ns_add_u32 s{40+i}, s38, {32768*(i+1)}\ns_and_b32 s{40+i}, s{40+i}, 0x3ffff\ns_or_b32 s{40+i}, s{40+i}, s31"
            return L_
        L_ = [f"buffer_load_dwordx4 {V(HR + 8*(k%NH) + 4*t, 4)}, v{HA+t}, {S(HS)}, s38 offen offset:{1024*(k&3)} sc1" for t in range(2)]
        if k & 3 == 3 and k < 4 * DYN: pass
        elif k & 3 == 3 and DYN and k >> 2 == DYN: L_[1] += f"\ns_add_u32 s38, s33, {32768 * (DYN + 1)}\ns_and_b32 s38, s38, 0x3ffff\ns_or_b32 s38, s38, s30"
        elif k & 3 == 3 and OPT["hord"]: L_[1] += f"\ns_add_u32 s38, s38, 32768\ns_and_b32 s38, s38, 0x3ffff\ns_or_b32 s38, s38, s{30 + ((k + 1) >> 5 & 1)}"
        elif k & 3 == 3: L_[1] += "\ns_add_u32 s38, s38, 32768\ns_and_b32 s38, s38, 0x7ffff"
        return L_
    def crd(k):
        if k >= KS:
            L_ = []
            for i, (t, kk) in enumerate(frag(k)):
                sl = (kk >> 2) % 6
                L_ += [f"ds_read_b128 {V(CF2 + 32*(k&1) + 16*i + 4*b, 4)}, v{(CB if sl < 3 else CA)+(kk&3)} offset:{16384*(sl%3) + 2048*b}" for b in range(4)]
            return L_
        if 1 <= k >> 2 <= DYN:
            L_ = [f"ds_read_b128 {V(CF + 16*(k%NCB) + 4*b, 4)}, v{DY} offset:{2048*b}" for b in range(4)]
            L_[0] = f"v_add_u32 v{DY}, s{50 + (k >> 2)}, v{CB+(k&3)}\n" + L_[0]
            return L_
        sl = (k >> 2) % 6
        return [f"ds_read_b128 {V(CF + 16*(k%NCB) + 4*b, 4)}, v{(CB if sl < 3 else CA)+(k&3)} offset:{16384*(sl%3) + 2048*b}" for b in range(4)]
    OP, OQ = L_F + 80 - L_N, L_F + 32 - L_N
    def cnt_chk(lbl, r, off, need):
        test = f"""v_min3_u32 v{r}, v{r}, v{r+1}, v{r+2}
        v_min_u32 v{r}, v{r}, v{r+3}
        v_cmp_gt_u32 vcc, {need}, v{r}"""
        o_ = Asm()
        o_.label(lbl)
        o_("s_mov_b32 s39, 0")
        o_.label(lbl + "_s")
        o_(f"""ds_read_b128 {V(r,4)}, v{NA} offset:{off}
        s_add_u32 s39, s39, 1
        s_waitcnt lgkmcnt(0)
        {test}
        s_cmp_gt_u32 s39, {SPIN * 16}
        s_cbranch_scc1 {lbl}_r
        s_cbranch_vccnz {lbl}_s
        s_branch {lbl}_r""")
        OOL.extend(o_.l)
        return test.split("\n") + [f"s_cbranch_vccnz {lbl}\n{lbl}_r:"]
    a(f"ds_read_b128 v[12:15], v{NA} offset:{OQ}")
    def avail(b): return "s_and_b32 s7, s48, s49" if b <= DYN else f"s_cmp_gt_u32 s37, {b}"
    def pcond(b, tag, r):
        return f"{avail(b)}\ns_cbranch_scc1 C_pq{b}\ns_waitcnt vmcnt({vm.cnt(tag)})\n" + "\n".join(peval(r)) + f"\nC_pq{b}:"
    for k in range(HD if PQ else 0):
        assert HD == 7 and PROG
        if k == 0:
            a(poll(PR)); vm.add("pA")
        if k == 4:
            a(poll(PR + 2)); vm.add("pB")
        if k == OPT["xfp"]:
            for i in range(NPRE, NCC):
                ldC(6 + i, PREG[i]); vm.add(f"C{i}", 4)
        if k == 4:
            if OPT["xs"] == 2: stamp(a, 8)
            a(f"s_waitcnt vmcnt({vm.cnt('pA')})")
            for x in peval(PR): a(x)
            if OPT["xs"] == 3: stamp(a, 8)
            a(pcond(1, "pB", PR + 2))
            a(hchk(1))
            if OPT["xs"] == 4: stamp(a, 8)
        if k == 5:
            a(poll(PLL)); vm.add("pC")
        for x in hld(k):
            a(x); vm.add(f"h{k}")
    if PQ and OPT["xfp"] == 7:
        for i in range(NPRE, NCC):
            ldC(6 + i, PREG[i]); vm.add(f"C{i}", 4)
    for k in range(0 if PQ else HD):
        if k == 4 and OPT["xs"] == 1:
            a("s_waitcnt vmcnt(0)"); stamp(a, 8)
        if k == 4 and OPT["xs"] == 2: stamp(a, 8)
        if k == 4 and PROG:
            for i in range(NPRE, NCC):
                if i - NPRE == OPT["pp"]:
                    a(poll(PR + 2)); vm.add("p1")
                ldC(6 + i, PREG[i]); vm.add(f"C{i}", 4)
        if PROG and k == 4:
            a(f"s_waitcnt vmcnt({vm.cnt('p0')})")
            for x in peval(PR): a(x)
            if "p1" in vm.ops:
                a(f"s_cmp_gt_u32 s37, {OPT['ppn']}\ns_cbranch_scc1 C_p1\ns_waitcnt vmcnt({vm.cnt('p1')})")
                for x in peval(PR + 2): a(x)
                a.label("C_p1")
        if k == 4 and OPT["xs"] == 3: stamp(a, 8)
        if PROG and k and k % 4 == 0: a(hchk(k // 4))
        if k == 4 and OPT["xs"] == 4: stamp(a, 8)
        for x in hld(k):
            a(x); vm.add(f"h{k}")
    if PROG and OPT["hts"] == 0: a(htouch())
    stamp(a, 9 if OPT["xs"] else 8)
    NPL = OPT["npl"] if PROG else 0
    a("s_waitcnt lgkmcnt(0)")
    for x in cnt_chk("C_crdy", 12, OQ, 6): a(x)
    a(f"s_setprio {OPT['prio2']}")
    for k in range(CD):
        for x in crd(k): a(x)
    K0 = 6 + NCC
    lk = VM()
    for k in range(CD): lk.add(f"c{k}", 4)
    pend = {}
    for k in range(64):
        j, ph = divmod(k, 4)
        chkQ = K0 <= j + 1 < 16 and k <= KS
        chkP = (NCC and 2 <= j <= NCC + 3) or (OPT["ccd"] and j == 2)
        tags = [f"c{k}"] + (["w"] if (ph == 0 and (chkP or chkQ)) or (DYN == 3 and k == 27) else [])
        a(f"s_waitcnt vmcnt({vm.cnt(f'h{k}')}) lgkmcnt({min(15, lk.cnt(*tags))})")
        if TRACE and k % 2 == 1: a(f"s_waitcnt lgkmcnt(0)\nv_writelane_b32 v251, s60, {k >> 1}")
        if TRACE and k % 2 == 0: a("s_memrealtime s[60:61]")
        M = []
        for i, (t, kk) in enumerate(frag(k) if k >= KS else []):
            for b in range(4):
                c = ACC + 16 * t + 4 * b
                M.append(f"v_mfma_f32_16x16x32_bf16 {V(c,4)}, {V(HR + 8*(k%NH) + 4*i, 4)}, {V(CF2 + 32*(k&1) + 16*i + 4*b, 4)}, {V(c,4)}")
        for t in range(2 if k < KS else 0):
            for b in (range(4) if t == 0 else reversed(range(4))):
                c = ACC + 16 * t + 4 * b
                M.append(f"v_mfma_f32_16x16x32_bf16 {V(c,4)}, {V(HR + 8*(k%NH) + 4*t, 4)}, {V(CF + 16*(k%NCB) + 4*b, 4)}, {V(c,4)}")
        F_ = []
        if DYN == 3 and k == 27: a("\n".join(cnt_chk("C2_pv", 56, OP, 6)))
        if k + CD < 64: F_ += [(x, f"c{k+CD}") for x in crd(k + CD)]
        if DYN == 3 and k == 26: F_.append((f"ds_read_b128 v[56:59], v{NA} offset:{OP}", "w"))
        if ph == 3 and j < 15 and k < KS:
            F_.append((f"v_mov_b32 v1, {j+1}\nds_write_b32 v{FA}, v1 offset:{OP}", "p"))
            if (NCC and 2 <= j + 1 <= NCC + 3) or (OPT["ccd"] and j == 1): F_.append((f"ds_read_b128 v[56:59], v{NA} offset:{OP}", "w"))
            if K0 <= j + 2 < 16: F_.append((f"ds_read_b128 v[12:15], v{NA} offset:{OQ}", "w"))
        if ph == 0 and j < NPL:
            r = PR + 2 * ((j + 2) % 3)
            F_.append((poll(r), "@p"))
            pend[k + HD + 1] = r
        if k in pend: F_.append(("\n".join(peval(pend[k])) + (htouch() if k >= OPT["hts"] else ""), None))
        if k + HD < 64:
            H_ = hld(k + HD)
            t0_, k0_ = frag(k + HD)[0]
            if PROG and t0_ == 0 and k0_ % 4 == 0: H_[0] = hchk(k0_ // 4) + "\n" + H_[0]
            if PQ and k == 1: H_[0] = pcond(2, "pB", PR + 2) + "\n" + H_[0]
            if PQ and k == 5: H_[0] = "\n".join(peval(PLL)) + "\n" + H_[0]
            F_ += [(x, f"@h{k+HD}") for x in H_]
        if ph == 0 and chkP: F_ += [(x, None) for x in cnt_chk(f"C2_p{j}", 56, OP, j - 1)]
        if ph == 0 and chkQ: F_ += [(x, None) for x in cnt_chk(f"C2_q{j}", 12, OQ, 16 if k == KS else j + 2)]
        if SKB:
            for i in range(4):
                if k == min(63, KS + HALF + 1 + i // OPT["sks"]):
                    x, y = ogrp(0, i, 224 + 4 * i)
                    F_ += [(x, None), (y, "@st")]
        for b in range(6, K0):
            if j != (max(b - 4, DYN + 2) if 7 <= b <= 6 + DYN else b - 4): continue
            sl = b % 6
            F_.append((f"ds_write_b128 v{CW + (sl >= 3)}, {V(PREG[b-6]+4*ph,4)} offset:{16384 * (sl % 3) + 8192 * (ph >> 1) + 1024 * (ph & 1)}", "x"))
            if ph == 3:
                i0 = [i for i, f in enumerate(F_) if f[1] == "p"][0]
                F_.insert(i0, F_.pop())
        for i, m in enumerate(M):
            a(m)
            per = 2 if i < (4 if k + 1 >= KS else 2) else max(1, -(-len(F_) // (8 - i)))
            for _ in range(per):
                if F_:
                    x, t = F_.pop(0)
                    a(x)
                    if t and t[0] == "@": vm.add(t[1:])
                    elif t: lk.add(t)
        assert not F_
        if k == 0 and not OPT["xs"]: stamp(a, 9)
    a("s_nop 7\ns_nop 2" if SKB else "s_nop 5")
    stamp(a, 10)
    for t in range(1 if SKB else 0, 2):
        for i in range(4): a("\n".join(ogrp(t, i, 64 + 16 * t + 4 * i)))
    stamp(a, 11)

def main():
    a = Asm()
    name = NAME + "_kernel" if OPT["single"] else "f_kernel"
    kernel_head(a, name)
    entry(a, "K_done", "K_other")
    b, c = Asm(), Asm()
    loader(b); compute(c)
    if OPT["lay"]: b, c = c, b
    a.l += b.l
    if STAMP: a("s_branch K_fin")
    else: a("s_endpgm")
    a.label("K_other")
    a.l += c.l
    a.label("K_fin")
    stamp_out(a)
    a.label("K_done")
    a("s_endpgm")
    a.l += OOL
    a.label("K_end")
    vg = 252
    hdr = open("/code/" + NAME + ".s.ref").read().split("\n")
    out = []
    for ln in hdr:
        if ln.startswith("; @launch") or ln.startswith(".amdgcn"):
            break
        if ln.startswith("; Override") or ln.startswith("; grid="):
            continue
        out.append(ln)
    out.append(f"; @launch {'' if OPT['single'] else 'kernel=' + name + ' '}grid=(256,1,1) block=(512,1,1) lds=163840")
    out.append('.amdgcn_target "amdgcn-amd-amdhsa--gfx950"')
    out.append(".text")
    out += a.l
    out.append('.section .rodata,"a"')
    out.append(kernel_desc(name, vg))
    open(OPT["out"], "w").write("\n".join(out) + "\n")
main()
```

```python
import sys
NAME = "concat_heads__ssm_conv_h3__ssm_conv_s5__prompt"
OPT = dict(out="/code/" + NAME + ".s", stamp=0, trace=0, single=0,
           win=12, kfirst=2, npre=3,
           ntk=1, nte=1, ntq=1, prioc=3, prio2=3, lt=1, ltk=5, lts=8,
           osa=2, osb=2, noa3=0, fsh=7, ffull=1, st0=0, rotm=1, rots=1, rotx=1, tpar=1,
           gate=1, hd=7, ncb=2, nh=8, xrot=0, t64=1, gchk=3,
           ra=12,
           ek=3, ow=15,
           fs=9, ps=21, pc=26, kl=31, sa=16,
           qk=15, c15=0, d14=1, d15=1, dr=1, pw=24, pre=8, per=4, zp=6, zc=8, za=10, npl=3, prog=1, lprio=0, dpos=0, shsc=1, roll=1, mord=1, op=8, late=2, hord=1, ht=0, ncc=5, cpl=1, ccd=0, zx=1, su=-2, nob=0, tw=0, lbp=2, hsh=9, spr=3, lp2=0, tc=0, tcn=1, hts=0, pp=3, ppn=3, cpe=4, cpw=0, skb=3, sks=1, lbi=-1, c0=0, cd=16, pks=0, fpl=0, fgo=1, fn=1, crr=-1, pl7=0, p7s=3, dyn=0, xs=0, pq=0, xfp=7, ot=0, otf=1, hw=0, hsf=1, ds2=0, dsp=0, cw=2, cwn=64, cw64=1, lay=1, sre=1, cw2=-1, cw2n=64, tord=0, txe=0, sct=0, scs=1, scw=128, tcon=0, tq=0, tws=0)
for arg in sys.argv[1:]:
    k, v = arg.split("=")
    assert k in OPT, k
    OPT[k] = v if k == "out" else int(v)
STAMP = OPT["stamp"]
TRACE = OPT["trace"]
FLV = ['', ' sc1', ' nt', ' sc0 sc1', ' sc0 sc1 nt', ' sc1 nt', ' sc0 nt']
def NT(k): return " nt" if OPT["nt" + k] else ""
P = dict(q=32, k=34, v=36, shift=38, ssmk=40, ssmD=42, x=44, Lre=46, Lim=48, Bre=50, Bim=52, Cre=54, Cim=56,
         logdt=58, Dskip=60, out=62, dbg=64, ws=66, q2=58)
WS_KVT = 0
WS_ZT = 4 << 20
WS_H = 8 << 20
WS_E = 16 << 20
WS_FLG = 17 << 20
FL_H = 1 << 17
FL_Z = 2 << 17
FL_SZ = 3 << 17
FSH = OPT['fsh']
FEX = '0xffff' if OPT['ffull'] else '1'
WS_STAMP = 64 << 20
SPIN = 4096

class Asm:
    def __init__(self):
        self.l = []
    def __call__(self, s):
        for ln in s.strip("\n").split("\n"):
            ln = ln.strip()
            if ln:
                self.l.append("    " + ln)
    def label(self, s):
        self.l.append(s + ":")

class VM:
    def __init__(self):
        self.ops = []
    def add(self, tag, n=1):
        self.ops += [tag] * n
    def cnt(self, *tags):
        last = max(i for i, t in enumerate(self.ops) if t in tags)
        return min(63, len(self.ops) - 1 - last)

def kernel_head(a, name):
    a.l += [".p2align 8", f".globl {name}", f".type {name},@function"]
    a.label(name)

def kernel_desc(name, vgpr, sgpr=102):
    acc = (vgpr + 3) // 4 * 4
    return f""".p2align 6
.amdhsa_kernel {name}
  .amdhsa_next_free_vgpr {vgpr}
  .amdhsa_next_free_sgpr {sgpr}
  .amdhsa_accum_offset {acc}
  .amdhsa_group_segment_fixed_size 0
  .amdhsa_kernarg_size 144
  .amdhsa_user_sgpr_count 2
  .amdhsa_user_sgpr_kernarg_segment_ptr 1
  .amdhsa_system_sgpr_workgroup_id_x 1
.end_amdhsa_kernel"""

def srd(a, d, name, nbytes, off=0):
    b = P[name]
    if off:
        a(f"s_add_u32 s{d}, s{b}, {off}\ns_addc_u32 s{d+1}, s{b+1}, 0")
    else:
        a(f"s_mov_b32 s{d}, s{b}\ns_mov_b32 s{d+1}, s{b+1}")
    a(f"s_mov_b32 s{d+2}, {nbytes}\ns_mov_b32 s{d+3}, 0x00020000")

def S(d):
    return f"s[{d}:{d+3}]"
def V(d, n):
    return f"v[{d}:{d+n-1}]"

def stamp0(a, i, lev=1):
    if STAMP and (OPT["st0"] == lev or (OPT["st0"] and i < 4 and lev == 1)): a(f"s_memrealtime s[{84+2*i}:{85+2*i}]")
def stamp(a, i):
    if STAMP and not (OPT["st0"] and 2 <= i <= 7):
        i &= 7
        a(f"s_memrealtime s[{84+2*i}:{85+2*i}]")
def stamp_dump(a, base):
    if STAMP:
        a("s_waitcnt lgkmcnt(0)")
        for i in range(8):
            a(f"v_writelane_b32 v250, s{84+2*i}, {base+i}")
def stamp_out(a):
    if not STAMP: return
    a("s_waitcnt vmcnt(0) lgkmcnt(0)")
    stamp(a, 15)
    stamp_dump(a, 8)
    srd(a, 8, "ws", 2 << 20, WS_STAMP)
    a("""s_lshl_b32 s6, s2, 3
    s_add_u32 s6, s6, s5
    s_lshl_b32 s7, s6, 8
    s_lshl_b32 s6, s6, 6
    s_add_u32 s7, s7, 0x100000
    v_lshlrev_b32 v1, 2, v2""")
    if TRACE: a("buffer_store_dword v251, v1, s[8:11], s7 offen")
    a("""s_mov_b64 exec, 0xffff
    buffer_store_dword v250, v1, s[8:11], s6 offen
    s_waitcnt vmcnt(0)""")

def tp(i):
    return f"\ns_memrealtime s[60:61]\ns_waitcnt lgkmcnt(0)\nv_writelane_b32 v251, s60, {i}" if TRACE == 2 else ""
def tr_begin(a):
    if TRACE == 1: a("s_memrealtime s[60:61]")
def tr_end(a, i):
    if TRACE == 1: a(f"s_waitcnt lgkmcnt(0)\nv_writelane_b32 v251, s60, {i}")

def cmul(a, d, x, y, c=None):
    if c is None:
        a(f"v_mul_f32 v{d}, v{x}, v{y}\nv_mul_f32 v{d+1}, v{x}, v{y+1}")
    else:
        a(f"v_fma_f32 v{d}, v{x}, v{y}, v{c}\nv_fma_f32 v{d+1}, v{x}, v{y+1}, v{c+1}")
    a(f"v_fma_f32 v{d}, -v{x+1}, v{y+1}, v{d}\nv_fmac_f32 v{d+1}, v{x+1}, v{y}")

def cwarm(a):
    if OPT["cw"] == 1: a("s_xor_b32 s6, s7, s5\ns_and_b32 s6, s6, 3\ns_cbranch_scc1 K_cw")
    if OPT["cwn"] < 256: a(f"s_cmp_ge_u32 s2, {OPT['cwn']}\ns_cbranch_scc1 K_cw")
    a(f"""s_getpc_b64 s[8:9]
    K_pc:
    v_lshlrev_b32 v4, 7, v0
    v_min_u32 v4, K_end - K_pc - 68, v4
    v_mov_b32 v5, s9
    v_add_co_u32 v4, vcc, s8, v4
    v_addc_co_u32 v5, vcc, 0, v5, vcc
    global_load_dword v251, v[4:5], off
    {"global_load_dword v251, v[4:5], off offset:64" if OPT["cw64"] else ""}
    K_cw:""")

def entry(a, done, other):
    stamp(a, 0)
    a(f"""s_cmp_ge_u32 s2, 256
    s_cbranch_scc1 {done}
    s_load_dwordx16 s[32:47], s[0:1], 0
    s_load_dwordx16 s[48:63], s[0:1], 64
    s_load_dwordx4 s[64:67], s[0:1], 128""")
    if OPT["cw"] == 2: cwarm(a)
    a(f"""v_lshrrev_b32 v1, 6, v0
    v_and_b32 v2, 63, v0
    s_and_b32 s6, s2, 3
    v_readfirstlane_b32 s5, v1
    s_lshl_b32 s6, s6, 2
    s_lshr_b32 s7, s2, 3
    s_and_b32 s3, s7, 3
    s_add_u32 s3, s3, s6            ; mt
    s_and_b32 s6, s2, 4
    s_lshl_b32 s6, s6, 1
    s_lshr_b32 s4, s7, 2
    s_add_u32 s4, s4, s6            ; nt""")
    if OPT["cw"] == 1: cwarm(a)
    a(f"""s_cmp_{"ge" if OPT["lay"] else "lt"}_u32 s5, 4
    s_cbranch_scc1 {other}""")

def interleave(a, main, fill, per, vm=None):
    fill = list(fill)
    for m in main:
        if isinstance(m, tuple):
            vm.add(m[1]); m = m[0]
        a(m)
        for _ in range(per):
            if fill: a(fill.pop(0))
    for f in fill: a(f)

SLOT, EARLY = [], []
for t_ in range(16):
    if t_ <= OPT["ra"]: SLOT.append([98304, 0, 32768, 65536][t_ % 4])
    else: SLOT.append([0, 32768, 65536][(t_ - OPT["ra"] - 1) % 3])
    prev = [u for u in range(t_) if SLOT[u] == SLOT[t_]]
    EARLY.append(prev[-1] + 1 if prev else -1)
assert OPT["ra"] % 4 == 0
RFREE = OPT["ra"] + 1
SA = OPT["sa"]
assert OPT["kl"] // 2 + 1 <= SA <= 16
L_R = 98304
L_O = L_R
L_E = L_O + 4160
L_U = L_E + 4160
L_N = 147328
L_ST = 147456
L_Z = L_R + 8192
L_F = L_N + 16
L_ZI = L_R
OOL = []

def rot1(a, d, t):
    a(f"""s_and_b32 s{d}, s2, 3
    s_lshl_b32 s{d}, s{d}, 2
    s_and_b32 s{t}, s2, 4
    s_lshl_b32 s{t}, s{t}, 1
    s_add_u32 s{d}, s{d}, s{t}
    s_add_u32 s{t}, s3, s4
    s_and_b32 s{t}, s{t}, {OPT['rotm']}
    s_lshl_b32 s{t}, s{t}, {OPT['rots']}
    {"" if OPT['rotx'] else f"s_mov_b32 s{d}, 0"}
    s_add_u32 s{d}, s{d}, s{t}
    s_and_b32 s{d}, s{d}, 15""")

def spin_flags(a, lbl, PLL, NON, AD, FL, mask=None):
    a("s_mov_b32 s51, 0")
    a.label(lbl)
    a(f"""buffer_load_dwordx2 {V(PLL,2)}, v{AD}, {S(FL)}, 0 offen sc1
    s_add_u32 s51, s51, 1
    s_waitcnt vmcnt(0)
    v_cmp_eq_u32 vcc, v{PLL}, v{NON}
    v_cmp_eq_u32 s[48:49], v{PLL+1}, v{NON+1}
    s_cmp_gt_u32 s51, {SPIN}
    s_cbranch_scc1 {lbl}_go
    s_and_b64 s[48:49], s[48:49], vcc
    {f"s_or_b64 s[48:49], s[48:49], {mask}" if mask else ""}
    s_cmp_eq_u64 s[48:49], -1
    s_cbranch_scc0 {lbl}""")
    a.label(lbl + "_go")

def loader(a):
    vm = VM()
    X, BR, BI, SK, KV, FL = 8, 12, 16, 68, 72, 76
    CR, CI = 24, 28
    a("""s_sub_u32 s6, s5, 4             ; lw
    v_lshrrev_b32 v12, 3, v2        ; r
    v_and_b32 v13, 7, v2
    v_lshrrev_b32 v14, 4, v2        ; r>>1
    v_xor_b32 v13, v13, v14
    v_lshlrev_b32 v13, 4, v13
    v_lshrrev_b32 v14, 5, v2        ; r>>2
    v_and_b32 v15, 3, v12
    v_lshl_add_u32 v15, v14, 3, v15
    v_lshl_add_u32 v14, v12, 14, v13   ; x rows 8r
    v_lshl_add_u32 v15, v15, 11, v13   ; B rows 8(r>>2)+(r&3)
    s_lshl_b32 s7, s3, 6
    s_add_u32 s7, s7, s6
    s_lshl_b32 s7, s7, 12           ; (128mt+2lw)*2048
    v_add_u32 v4, s7, v14
    v_xor_b32 v5, 64, v4
    v_add_u32 v5, 0x1fc00, v5
    s_lshl_b32 s7, s4, 2
    s_add_u32 s7, s7, s6
    s_lshl_b32 s7, s7, 15           ; (64nt+16lw)*2048
    v_add_u32 v8, s7, v15
    v_xor_b32 v9, 64, v8
    v_add_u32 v9, 0x1c00, v9""")
    rot1(a, 30, 31)
    a("""s_lshl_b32 s100, s30, 7         ; koff
    s_lshl_b32 s101, s6, 12         ; lw*4096""")
    stamp0(a, 2)
    a("s_waitcnt lgkmcnt(0)")
    stamp0(a, 3)
    srd(a, X, "x", 4 << 20)
    srd(a, BR, "Bre", 2 << 20)
    srd(a, BI, "Bim", 2 << 20)
    def dma(s):
        sl = SLOT[s]
        L = []
        L.append(f"s_add_u32 m0, s101, {sl}\ns_nop 0\nbuffer_load_dwordx4 v4, {S(X)}, s100 offen lds")
        for j in range(1, 4):
            L.append(f"buffer_load_dwordx4 v{4+(j&1)}, {S(X)}, s100 offen offset:{1024*j} lds")
        L.append(f"s_add_u32 m0, s101, {sl+16384}\ns_nop 0\nbuffer_load_dwordx4 v8, {S(BR)}, s100 offen lds")
        L.append(f"buffer_load_dwordx4 v9, {S(BR)}, s100 offen offset:1024 lds")
        L.append(f"s_add_u32 m0, s101, {sl+16384+2048}\ns_nop 0\nbuffer_load_dwordx4 v8, {S(BI)}, s100 offen lds")
        L.append(f"buffer_load_dwordx4 v9, {S(BI)}, s100 offen offset:1024 lds\ns_add_u32 s100, s100, 128\ns_and_b32 s100, s100, 2047")
        return [(x, f"d{s}") for x in L]
    D = [dma(s) for s in range(16)]
    def first():
        if OPT["kfirst"] == 2: a("s_barrier")
        stamp0(a, 4, 2)
        interleave(a, D[0][:4], [], 0, vm)
        stamp0(a, 5, 2)
        interleave(a, D[0][4:], [], 0, vm)
        stamp0(a, 6, 2)
        stamp0(a, 4)
        if OPT["kfirst"] == 1: a("s_barrier")
        for k in range(1, OPT["npre"]): interleave(a, D[k], [], 0, vm)
        stamp0(a, 7, 2)
    if OPT["su"] != -2: first()
    a(f"""s_mov_b32 s{P['q2']}, s{P['q']}
    s_mov_b32 s{P['q2']+1}, s{P['q']+1}
    s_lshr_b32 s7, s2, 3
    s_and_b32 s32, s7, 15           ; a_mt
    s_lshr_b32 s7, s7, 4
    s_and_b32 s33, s2, 7
    s_lshl_b32 s33, s33, 1
    s_add_u32 s33, s33, s7          ; a_nt
    s_lshl_b32 s34, s33, 4
    s_add_u32 s34, s34, s32
    s_lshl_b32 s34, s34, 2
    s_add_u32 s34, s34, s6          ; A2 channel
    s_lshl_b32 s35, s34, 12         ; ch*4096
    s_lshr_b32 s7, s34, 1
    s_lshl_b32 s7, s7, 2
    s_load_dword s37, s[{P['ssmD']}:{P['ssmD']+1}], s7
    v_and_b32 v12, 15, v2           ; cq / n / m
    v_lshrrev_b32 v13, 4, v2        ; tg / g""")
    if OPT["tw"]:
        TW = [("q2", 4 << 20, 0, "s32", 18), ("out", 16 << 20, 0, "s3", 20), ("out", 16 << 20, 0, "s32", 20), ("ws", 8 << 20, WS_H, "s3", 19),
              ("ws", 4 << 20, WS_ZT, "s33", 18), ("ssmk", 4 << 20, 0, "s33", 18), ("Cre", 2 << 20, 0, "s4", 17), ("Cim", 2 << 20, 0, "s4", 17),
              ("ws", 4 << 20, WS_KVT, "s33", 18), ("ws", 1 << 18, WS_E, "s3", 14)]
        a("s_mov_b64 exec, 1")
        for i, (nm, sz, off, ix, sh) in enumerate(TW):
            if not OPT["tw"] >> i & 1: continue
            a(f"s_cmp_eq_u32 s6, {i & 3}\ns_cbranch_scc0 L_tw{i}")
            srd(a, 72, nm, sz, off)
            a(f"s_lshl_b32 s7, {ix}, {sh}\nbuffer_load_dword v240, off, s[72:75], s7 sc1")
            a.label(f"L_tw{i}")
        a("s_mov_b64 exec, -1")
    SETUP = max(-1, OPT['su'])
    AAD, BAD, DFR, ZAD, PLL, NON = 16, 20, 24, 21, 22, 28
    CAD, QAD, QL, FA, NA = 246, 31, 192, 6, 7
    K0 = 6 + OPT["ncc"]
    CREG = {K0: 208, K0 + 1: 224}
    for k in range(K0 + 2, 16): CREG[k] = 64 + 16 * (k - K0 - 2)
    QS = 40
    ZM, ZN = ("s32", "s33") if OPT["zx"] else ("s3", "s4")
    def a2_setup():
        TP = ""
        if OPT["tpar"]:
            TP = f"""{["s_lshr_b32 s46, s2, 4", "s_lshr_b32 s46, s3, 1", "s_lshr_b32 s46, s3, 2", "s_lshr_b32 s46, s2, 5"][OPT["tord"]]}
            {f"s_mul_i32 s7, s6, {OPT['tws']}" if OPT["tws"] else ""}
            {"s_add_u32 s46, s46, s7" if OPT["tws"] else ""}
            s_and_b32 s46, s46, {max(0, OPT['lts'] - 1)}
            s_add_u32 s7, s3, s4
            s_and_b32 s7, s7, 1
            {f"s_cmp_{['', 'lt', 'ge'][OPT['txe']]}_u32 s4, 8" if OPT["txe"] else f"s_cmp_eq_u32 s7, {OPT['tpar'] - 1}"}
            s_cselect_b32 s46, s46, 99"""
        L = f"""s_waitcnt lgkmcnt(0)
        s_lshl_b32 s45, s6, 14
        v_lshlrev_b32 v{AAD}, 4, v13
        v_lshl_add_u32 v{AAD}, v12, 1, v{AAD}
        v_and_b32 v1, 1, v12
        v_mov_b32 v3, {L_O + 4}
        v_mov_b32 v14, {L_E + 2}
        v_cmp_eq_u32 vcc, 1, v1
        s_and_b32 s7, s34, 1
        s_lshl_b32 s7, s7, 4
        v_cndmask_b32 v3, v3, v14, vcc
        v_add3_u32 v{AAD}, v{AAD}, v3, s45
        v_add_u32 v{AAD+1}, 1024, v{AAD}
        v_add_u32 v{AAD+2}, 2048, v{AAD}
        v_add_u32 v{AAD+3}, 3072, v{AAD}
        s_add_u32 s47, s45, {L_U + 480}
        v_lshlrev_b32 v1, 4, v13
        v_lshlrev_b32 v3, 5, v12
        v_sub_u32 v1, v1, v3
        v_add_u32 v{BAD}, s47, v1
        s_lshr_b32 s37, s37, s7
        s_and_b32 s37, s37, 0xffff
        v_lshlrev_b32 v1, 3, v13
        v_add_u32 v1, v1, v12
        v_sub_u32 v1, 15, v1
        v_and_b32 v3, 1, v1
        v_lshlrev_b32 v3, 4, v3
        v_lshlrev_b32 v3, v3, s37
        v_lshrrev_b32 v1, 1, v1""".split("\n")
        for j in range(4):
            L += [f"v_cmp_eq_u32 vcc, {j}, v1", "s_nop 1", f"v_cndmask_b32 v{DFR+j}, 0, v3, vcc"]
        L += f"""s_add_u32 s7, s45, {L_Z}
        v_lshlrev_b32 v1, 3, v2
        v_add_u32 v{ZAD}, s7, v1
        v_lshlrev_b32 v10, 4, v2
        v_mov_b32 v{NA}, {L_N}
        s_lshl_b32 s7, s6, 2
        v_add_u32 v{FA}, s7, v{NA}
        v_mov_b32 v1, 0
        ds_write_b32 v{FA}, v1 offset:{L_F + 32 - L_N}
        ds_write_b32 v{FA}, v1 offset:{L_F + 80 - L_N}
        v_mov_b32 v1, 2
        ds_write_b32 v{FA}, v1 offset:{L_F + 48 - L_N}
        v_lshrrev_b32 v1, 3, v2
        v_and_b32 v3, 7, v2
        v_xor_b32 v3, v3, v13
        v_lshlrev_b32 v3, 4, v3
        v_lshl_add_u32 v3, v1, 13, v3
        s_lshl_b32 s7, s4, 6
        s_add_u32 s7, s7, s6
        s_lshl_b32 s7, s7, 11
        v_add_u32 v{CAD}, s7, v3
        v_xor_b32 v{CAD+1}, 64, v{CAD}
        v_add_u32 v{CAD+1}, {65536-1024}, v{CAD+1}
        v_xor_b32 v{CAD+2}, 32, v{CAD}
        v_xor_b32 v{CAD+3}, 32, v{CAD+1}
        s_lshl_b32 s38, s4, 7
        v_lshlrev_b32 v3, 11, v13
        v_lshl_add_u32 v3, v12, 3, v3
        s_lshl_b32 s7, {ZM}, 2
        s_add_u32 s7, s7, s6
        s_lshl_b32 s7, s7, 9
        s_add_u32 s7, s7, {ZN}
        s_lshl_b32 s7, s7, 7
        v_add_u32 v{QAD}, s7, v3
        s_lshr_b32 s46, s2, 3
        s_and_b32 s46, s46, {max(0, OPT['lts'] - 1)}
        {TP}
        s_lshl_b32 s39, s6, 11
        s_and_b32 s7, s3, {12 * OPT['xrot']}
        s_lshl_b32 s7, s7, 7
        s_add_u32 s38, s38, s7
        s_and_b32 s20, s38, 1024
        s_xor_b32 s21, s20, 1024
        s_and_b32 s7, s3, 3
        s_lshl_b32 s7, s7, 1
        s_and_b32 s47, s6, 1
        s_add_u32 s7, s7, s47
        s_lshl_b32 s7, s7, 7
        s_or_b32 s7, s7, s21
        s_lshl_b32 s47, s4, 17
        s_add_u32 s7, s7, s47
        v_lshlrev_b32 v11, 11, v2
        v_add_u32 v11, s7, v11""".split("\n")
        if OPT["lt"]:
            L += f"""s_and_b32 s7, s3, 14
            s_and_b32 s47, s6, 1
            s_add_u32 s7, s7, s47
            s_add_u32 s7, s7, s4
            s_and_b32 s7, s7, 15
            s_lshl_b32 s7, s7, {13 if OPT["tcon"] else 7}
            s_add_u32 s47, s3, s4
            s_and_b32 s47, s47, {1 if OPT["txe"] else 0}
            s_lshl_b32 s47, s47, 3
            s_xor_b32 s47, s47, s4
            s_lshl_b32 s47, s47, 17
            s_add_u32 s7, s7, s47
            v_lshlrev_b32 v30, {[11, 7, 6][OPT["tcon"]]}, v2
            v_add_u32 v30, s7, v30""".split("\n")
        if OPT["tq"]:
            assert not OPT["tc"] and not OPT["txe"]
            L += f"""s_lshl_b32 s7, s4, 3
            s_lshr_b32 s47, s3, 1
            s_add_u32 s7, s7, s47
            s_lshl_b32 s7, s7, 2
            s_add_u32 s7, s7, s6
            s_lshl_b32 s7, s7, 13
            v_lshlrev_b32 v11, 7, v2
            v_add_u32 v11, s7, v11""".split("\n")
        return L
    def ldC(k):
        L = []
        for i in range(4):
            x = ""
            if i == 0 and OPT["hord"]: x += f"s_add_u32 s44, s38, {128*k}\ns_and_b32 s44, s44, 1023\ns_or_b32 s44, s44, s{20 + (k >> 3)}\n"
            elif i == 0: x += f"s_add_u32 s44, s38, {128*k}\ns_and_b32 s44, s44, 2047\n"
            tail = f"v{CAD+i}, {S(CI if i & 2 else CR)}, s44 offen offset:{1024*(i&1)}"
            if k < 6:
                if not i & 1: x += f"s_add_u32 m0, s39, {16384*k + 4096*i}\ns_nop 0\n"
                x += f"buffer_load_dwordx4 {tail} lds"
            else:
                x += f"buffer_load_dwordx4 {V(CREG[k]+4*i,4)}, {tail}"
            if i == 3: x += tp(16 + k)
            L.append((x, f"c{k}"))
        return L
    def words(off, lbl, t=44):
        a("s_mov_b32 s51, 0")
        a.label(lbl)
        a(f"""ds_read_b128 v[{t}:{t+3}], v{NA} offset:{L_F + off - L_N}
        s_add_u32 s51, s51, 1
        s_waitcnt lgkmcnt(0)
        v_xor_b32 v{t}, v{t}, v{NON}
        v_xor_b32 v{t+1}, v{t+1}, v{NON}
        v_xor_b32 v{t+2}, v{t+2}, v{NON}
        v_xor_b32 v{t+3}, v{t+3}, v{NON}
        v_or3_b32 v{t}, v{t}, v{t+1}, v{t+2}
        v_or_b32 v{t}, v{t}, v{t+3}
        s_cmp_gt_u32 s51, {SPIN * 4}
        s_cbranch_scc1 {lbl}_ok
        v_cmp_ne_u32 vcc, 0, v{t}
        s_cbranch_vccnz {lbl}""")
        a.label(lbl + "_ok")
    TS = 52
    TCH = f"buffer_load_dword v240, v30, {S(TS)}, 0 offen"
    assert OPT["tpar"]
    if OPT["tcon"] == 2: TCH += f"\ns_movk_i32 s7, 4096\nbuffer_load_dword v241, v30, {S(TS)}, s7 offen"
    elif OPT["t64"]: TCH += f"\nbuffer_load_dword v241, v30, {S(TS)}, 0 offen offset:64"
    for i in range(OPT["tq"] & 3): TCH += f"\nbuffer_load_dword v241, v11, {S(QS)}, 0 offen offset:{64*i}{' nt' if OPT['tq'] & 4 else ''}"
    after = {k: [] for k in range(16)}
    QLD = [f"s_mov_b32 s36, {8192*j}\nbuffer_load_dwordx2 {V(QL+2*j,2)}, v{QAD}, {S(QS)}, s36 offen{NT('q')}" for j in range(8)]
    if OPT["lt"]:
        for i in range(OPT["lts"]):
            after[OPT["ltk"] + i].append((f"s_cmp_eq_u32 s46, {i}\ns_cbranch_scc0 L_t{i}\n{TCH}\nL_t{i}:", "", 0, SETUP + 1, None))
    if OPT["cw2"] >= 0:
        after[OPT["cw2"]].append((f"""s_cmp_ge_u32 s2, {OPT['cw2n']}
        s_cbranch_scc1 L_cw
        s_getpc_b64 s[48:49]
        L_pc:
        s_add_u32 s48, s48, K_end - L_pc - 68 - 511 * 128
        s_addc_u32 s49, s49, -1
        v_lshlrev_b32 v242, 7, v0
        v_mov_b32 v243, s49
        v_add_co_u32 v242, vcc, s48, v242
        v_addc_co_u32 v243, vcc, 0, v243, vcc
        global_load_dword v240, v[242:243], off
        global_load_dword v241, v[242:243], off offset:64
        L_cw:""", "", 0, SETUP + 1, None))
    ER = 112
    for j in range(4):
        after[OPT["ek"]].append((f"buffer_load_dwordx4 {V(ER+4*j,4)}, v10, {S(SK)}, s35 offen offset:{1024*j}{NT('e')}", "E", 0, SETUP + 1, None))
    if OPT["qk"] <= 15:
        for x in QLD: after[OPT["qk"]].append((x, "q", 0, SETUP + 1, None))
    CR_ = sum((ldC(k) for k in range(K0, 16)), [])
    def cslot(t): return sum((ldC(k) for k in (SLOT[t] // 16384, SLOT[t] // 16384 + 1)), [])
    CDL = []
    assert OPT["c15"] <= 8 and OPT["ra"] < 13
    if OPT["d14"]:
        for x, t in cslot(13): after[15].append((x, t, 0, 14, None))
    else: CDL += cslot(13)
    TC2 = [(f"buffer_load_dword v{240+i}, v11, {S(TS)}, 0 offen offset:{64*i}", "t2") for i in range(OPT["tcn"])]
    if 1 <= OPT["tc"] <= 2:
        for x, t in TC2: after[15].append((x, t, 0, 13 + OPT["tc"], None))
    if OPT["tc"] > 4:
        for x, t in TC2: after[OPT["tc"]].append((x, t, 0, 0, None))
    if OPT["d15"]:
        for x, t in cslot(14): after[15].append((x, t, 0, 15, None))
    elif OPT['ccd'] != 2: CDL += cslot(14)
    if not OPT['ccd']: CDL += cslot(15)
    if OPT["tc"] == 3:
        for x, t in TC2: after[15].append((x, t, 0, 15, None))
    if OPT["tc"] == 4: CDL += TC2
    if OPT["qk"] == 16:
        for x in QLD: after[15].append((x, "q", 0, 15, None))
    for x, t in CR_[:OPT["c15"]]: after[15].append((x, t, 0, 15, None))
    CR_ = CR_[OPT["c15"]:]
    ST = []
    for k in range(16):
        if k >= OPT["npre"]: ST += [(x, t, 1, EARLY[k], None) for x, t in D[k]]
        ST += after[k]
    cum = [0]
    for it in ST: cum.append(cum[-1] + it[2])
    endof = {k: 0 for k in range(OPT["npre"])}
    for i, it in enumerate(ST):
        if it[1][:1] == "d": endof[int(it[1][1:])] = i + 1
    pos = [0]
    def emit(s):
        lim = cum[endof[min(15, s + 1)]] + OPT["win"]
        L = []
        while pos[0] < len(ST):
            x, t, c, e, hook = ST[pos[0]]
            must = pos[0] < endof[min(15, s + 1)]
            assert not (must and e > s), (s, t)
            if not must and s < 15 and (e > s or cum[pos[0] + 1] > lim + 1e-6): break
            L.append((x, t)); pos[0] += 1
        return L
    srd(a, SK, "ssmk", 4 << 20)
    srd(a, FL, "ws", FL_SZ, WS_FLG)
    srd(a, CR, "Cre", 2 << 20)
    srd(a, CI, "Cim", 2 << 20)
    srd(a, QS, "q2", 4 << 20)
    a(f"""s_cmp_lt_u32 s6, 2
    s_cselect_b32 s{TS}, s{P['Cre']}, s{P['Cim']}
    s_cselect_b32 s{TS+1}, s{P['Cre']+1}, s{P['Cim']+1}
    s_mov_b32 s{TS+2}, {2 << 20}
    s_mov_b32 s{TS+3}, 0x00020000""")
    SCT = []
    if OPT["sct"]:
        assert not OPT["lt"] and not OPT["tc"]
        a(f"""s_and_b32 s7, s6, 1
        s_lshl_b32 s47, s2, 1
        s_add_u32 s7, s7, s47
        s_lshl_b32 s7, s7, 12
        s_add_u32 s{TS}, s{TS}, s7
        s_addc_u32 s{TS+1}, s{TS+1}, 0""")
        SCT = [f"s_load_dword s{TS+2}, s[{TS}:{TS+1}], {o}" for o in range(0, 4096, OPT["scw"])]
    if OPT["su"] < 0:
        for x in a2_setup(): a(x)
    if OPT["su"] == -2: first()
    stamp0(a, 5)
    a(f"s_waitcnt vmcnt({vm.cnt('d0')})")
    stamp0(a, 6)
    a("s_barrier")
    stamp(a, 1)
    ACC = 32
    FB = [64, 128]
    def reads(r):
        L = []
        f = FB[r & 1]
        for q in range(8):
            o = 128 * (q & 1) + 16 * r
            L.append(f"ds_read_b128 {V(f+32+4*q,4)}, v{BAD} offset:{512*(7-q) + 64*r}")
            L.append(f"ds_read2_b32 {V(f+4*q,2)}, v{AAD+(q>>1)} offset0:{o} offset1:{o+1}")
            L.append(f"ds_read2_b32 {V(f+4*q+2,2)}, v{AAD+(q>>1)} offset0:{o+2} offset1:{o+3}")
        return L
    def mfmas(r):
        f = FB[r & 1]
        L = []
        if r == 0:
            for u in range(8):
                L.append(f"v_mfma_f32_16x16x32_bf16 {V(ACC+4*u,4)}, {V(DFR,4)}, {V(f+32+4*u,4)}, 0")
        QU = [(q, u) for q in range(8) for u in range(8 - q)]
        if OPT["mord"]:
            rem = {c: [(q, c - q) for q in range(c + 1)] for c in range(8)}
            QU, last = [], []
            while len(QU) < 36:
                c = max((c for c in rem if rem[c] and c not in last[-3:]), key=lambda c: len(rem[c]))
                QU.append(rem[c].pop(0)); last.append(c)
            assert len(set(QU)) == 36
        for q, u in QU:
            c = ACC + 4 * (q + u)
            L.append(f"v_mfma_f32_16x16x32_bf16 {V(c,4)}, {V(f+4*q,4)}, {V(f+32+4*u,4)}, {V(c,4)}")
        return L
    def paced(items, w):
        for x, t in items:
            a(f"s_waitcnt vmcnt({w - 1})")
            a(x); vm.add(t)
    GRD = f"ds_read_b32 v1, v{FA} offset:{L_F + 48 - L_N}"
    ng = [0]
    def gate_chk(n, lev=2):
        lbl = f"L_g{ng[0]}"; ng[0] += 1
        b = Asm()
        b.label(lbl)
        b("s_mov_b32 s50, 0")
        b.label(lbl + "_s")
        b(f"""{GRD}
        s_add_u32 s50, s50, 1
        s_waitcnt lgkmcnt(0)
        v_readfirstlane_b32 s7, v1
        s_cmp_gt_u32 s50, {SPIN}
        s_cbranch_scc1 {lbl}_r
        s_cmp_lt_u32 s7, {lev}
        s_cbranch_scc1 {lbl}_s
        s_branch {lbl}_r""")
        OOL.extend(b.l)
        return f"s_waitcnt lgkmcnt({n})\nv_cmp_gt_u32 vcc, {lev}, v1", f"s_cbranch_vccnz {lbl}\n{lbl}_r:"
    def a2round(r, vmem, gated, rolled=False, last=False):
        M = mfmas(r)[-36:] if rolled else mfmas(r)
        R = reads(r + 1) if r < 7 and not last else []
        if rolled and r and not last: R += [f"v_add_u32 v{AAD+i}, 128, v{AAD+i}" for i in range(4)] + [f"v_add_u32 v{BAD}, 128, v{BAD}"]
        GP = 36 // OPT["gchk"] if gated and OPT["gate"] and OPT["gchk"] else 0
        vmem = list(vmem)
        a("s_waitcnt lgkmcnt(0)" + (tp(48 + r) if TRACE == 2 and not rolled else ""))
        since = 0
        for i, m in enumerate(M):
            a(m)
            if vmem and i % (OPT["p7s"] if last else OPT["dpos"]) == 0:
                x, t = vmem.pop(0); a(x)
                if t: vm.add(t)
            if GP and i % GP == GP - 8:
                a(GRD); since = 0
            elif GP and i % GP == GP - 2:
                g_ = gate_chk(min(15, since))
                a(g_[0])
            elif R:
                x = R.pop(0); a(x); since += x[:2] == "ds"
            if GP and i % GP == GP - 1: a(g_[1])
        assert not R and not vmem
    NS = OPT["fs"] // 2 + 1
    OW = OPT["ow"]
    assert RFREE <= OW < SA and NS < SA
    LATE = []
    for s in range(16):
        tr_begin(a)
        if s == SA:
            stamp(a, 4)
            if OPT["lprio"]: a(f"s_setprio {OPT['lprio']}")
            for x in reads(0): a(x)
        if s == OW:
            a("ds_write_b128 v1, v[32:35]")
            for j in range(4):
                a(f"ds_write_b128 v15, {V(ER+4*j,4)} offset:{1024*j + L_E - L_O}")
                a(f"ds_write_b128 v15, {V(64+4*j,4)} offset:{1024*j}")
        L = emit(s)
        if s == 15 and OPT["late"]:
            nl = {1: 8 * OPT["d15"], 2: 0}[OPT["late"]] + (OPT["tcn"] if OPT["tc"] == 2 else 0)
            LATE = L[nl:]; L = L[:nl]
        if s < SA or not OPT["dpos"]:
            for x, t in L:
                a(x)
                if t: vm.add(t)
            L = []
        if s >= OPT["scs"]:
            for x in SCT[:OPT["sct"]]: a(x)
            del SCT[:OPT["sct"]]
            assert s < 13 or not SCT
        if s == OPT["su"]:
            for x in a2_setup(): a(x)
        if s == NS:
            a(f"v_mov_b32 v1, {L_N}\nds_read_b64 v[{NON}:{NON+1}], v1")
        if s == OPT["op"]:
            assert NS < s < OW
            a(f"""v_mov_b32 v32, 0
            v_mov_b32 v33, 0
            v_mov_b32 v34, 0
            v_mov_b32 v35, 0
            s_add_u32 s47, s45, {L_U + 4096}
            v_add_u32 v1, s47, v10
            v_and_b32 v3, 16, v10
            v_and_b32 v15, 32, v10
            v_mul_u32_u24 v15, {(L_E - L_O) // 32}, v15
            v_add3_u32 v3, v3, v15, s45
            v_add_u32 v3, {L_O}, v3
            v_cmp_gt_u32 vcc, 32, v2
            s_add_u32 s47, s45, {L_O + 32}
            v_add_u32 v15, s47, v10
            v_cndmask_b32 v1, v3, v1, vcc
            v_mov_b32 v64, 0
            s_waitcnt vmcnt({vm.cnt('E')})""")
            for j in range(1, 4):
                a(f"v_mov_b32_dpp v{64+4*j}, v{ER+4*j-1} wave_ror:1 row_mask:0xf bank_mask:0xf")
            for j in range(4):
                a(f"v_mov_b32_dpp v{64+4*j}, v{ER+4*j+3} wave_shr:1 row_mask:0xf bank_mask:0xf")
            for j in range(4):
                b = 64 + 4 * j
                e = ER + 4 * j
                a(f"""v_alignbit_b32 v{b}, v{e}, v{b}, 16
                v_alignbit_b32 v{b+1}, v{e+1}, v{e}, 16
                v_alignbit_b32 v{b+2}, v{e+2}, v{e+1}, 16
                v_alignbit_b32 v{b+3}, v{e+3}, v{e+2}, 16""")
        if SA <= s < SA + 8: a2round(s - SA, L, s == 15)
        tr_end(a, s)
        w = ""
        if s in (0, SA - 1): w = " lgkmcnt(0)"
        if s < 15:
            a(f"s_waitcnt vmcnt({vm.cnt(f'd{s+1}')}){w}")
            a(tp(32 + s) + "\ns_barrier" + tp(s))
    assert pos[0] == len(ST)
    stamp(a, 3)
    OQ = L_F + 32 - L_N
    def qsig():
        a(f"v_mov_b32 v3, 6\ns_waitcnt vmcnt({vm.cnt(*[f'c{k}' for k in range(6)])})\nds_write_b32 v{FA}, v3 offset:{OQ}")
    def cdl():
        if SA < 16: words(0, "L_g1d", 242)
        stamp(a, 2)
        interleave(a, CDL, [], 0, vm)
    DR = max(OPT["dr"], 16 - SA)
    if SA == 16:
        words(0, "L_g1d", 242)
        for x in reads(0): a(x)
        interleave(a, LATE, [], 0, vm)
        if DR == 0: cdl()
        if OPT["gate"]:
            a(GRD); a('\n'.join(gate_chk(0)))
        if OPT["lprio"]: a(f"s_setprio {OPT['lprio']}")
        stamp(a, 4)
    if OPT["roll"]:
        assert SA == 16
        a("s_waitcnt lgkmcnt(0)")
        for m in mfmas(0)[:8]: a(m)
        a("s_mov_b32 s51, 0")
        code = {}
        main_ = a.l
        NR = 6 if OPT["pl7"] else 8
        def crf():
            interleave(a, CR_[:8], [], 0, vm)
            del CR_[:8]
        HK = {}
        for r_, f_ in ((DR, cdl), (DR + 3, qsig), (OPT["crr"], crf)): HK.setdefault(r_, []).append(f_)
        assert OPT["crr"] < 8 and OPT["crr"] != 0 and (OPT["crr"] < 0 or not OPT["c15"]) and (DR + 3 < NR or not OPT["pl7"])
        for r_ in sorted(HK):
            if 0 < r_ < NR:
                a.l = []
                a.label(f"L_cs{r_}")
                for f_ in HK[r_]: f_()
                a(f"s_branch L_cr{r_ & 1}")
                OOL.extend(a.l); code[r_] = 1
        a.l = main_
        a.label("L_conv")
        for r in range(2):
            for r_ in code:
                if r_ & 1 == r: a(f"s_cmp_eq_u32 s51, {r_ >> 1}\ns_cbranch_scc1 L_cs{r_}")
            a.label(f"L_cr{r}")
            a2round(r, [], True, True)
        a(f"""s_add_u32 s51, s51, 1
        s_cmp_lt_u32 s51, {NR // 2}
        s_cbranch_scc1 L_conv""")
        if OPT["pl7"]:
            if OPT["crr"] == 6: crf()
            a2round(0, [], True, True)
            if OPT["crr"] == 7: crf()
            n7 = min(OPT["pl7"], len(CR_))
            a2round(1, CR_[:n7], True, True, True)
            del CR_[:n7]
        a("s_waitcnt lgkmcnt(0)")
    for r in range(16 - SA, 8 if not OPT["roll"] else 0):
        if r == DR: cdl()
        if r == DR + 3: qsig()
        a2round(r, [], True)
    if DR >= 8: cdl()
    if OPT["lprio"] or OPT["lp2"]: a(f"s_setprio {OPT['lp2']}")
    stamp(a, 5)
    a("s_nop 6")
    for t in range(8):
        c = ACC + 4 * t
        a(f"""v_cvt_pk_bf16_f32 v{ACC+2*t}, v{c}, v{c+1}
        v_cvt_pk_bf16_f32 v{ACC+1+2*t}, v{c+2}, v{c+3}
        ds_write_b64 v{ZAD}, {V(ACC+2*t,2)} offset:{512*t}""")
    a(f"ds_write_b32 v{FA}, v{NON} offset:{L_F + 64 - L_N}")
    ZS, OS = 8, 12
    ZFP, ZLD, ZRD, OA, ZB, OB = 16, 17, 24, 21, 44, 36
    ZX, ZG, ZFS = 4, 5, 8
    def a3_setup():
        srd(a, ZS, "ws", 4 << 20, WS_ZT)
        srd(a, OS, "out", 16 << 20)
        a(f"""s_lshr_b32 s7, {ZM}, 2
        s_lshl_b32 s7, s7, 4
        s_add_u32 s7, s7, {ZN}
        s_lshl_b32 s7, s7, {4 + FSH}
        s_add_u32 s7, s7, {FL_Z}
        v_lshlrev_b32 v1, {FSH}, v12
        v_add_u32 v{ZFP}, s7, v1
        v_xor_b32 v1, v12, v13
        v_lshlrev_b32 v1, 4, v1
        v_lshl_add_u32 v3, v13, 14, v1
        s_lshl_b32 s47, {ZM}, 2
        s_add_u32 s47, s47, s6
        s_lshl_b32 s7, {ZN}, 10
        s_add_u32 s7, s7, s47
        s_lshl_b32 s7, s7, 8
        v_add_u32 v{ZLD}, s7, v3
        v_xor_b32 v{ZLD+1}, 64, v{ZLD}
        v_add_u32 v{ZLD+1}, {65536-1024}, v{ZLD+1}
        v_xor_b32 v{ZLD+2}, 128, v{ZLD}
        v_add_u32 v{ZLD+2}, {2*(65536-1024)}, v{ZLD+2}
        v_xor_b32 v{ZLD+3}, 192, v{ZLD}
        v_add_u32 v{ZLD+3}, {3*(65536-1024)}, v{ZLD+3}
        s_add_u32 s35, s45, {L_ZI}
        v_lshl_add_u32 v1, v12, 8, v1
        v_add_u32 v{ZRD}, s35, v1
        v_xor_b32 v{ZRD+1}, 64, v{ZRD}
        v_xor_b32 v{ZRD+2}, 128, v{ZRD}
        v_xor_b32 v{ZRD+3}, 192, v{ZRD}
        s_lshl_b32 s47, s47, 10
        s_add_u32 s47, s47, {ZN}
        s_lshl_b32 s47, s47, 8
        v_lshlrev_b32 v1, 13, v13
        v_lshl_add_u32 v1, v12, 4, v1
        v_add_u32 v{OA}, s47, v1
        v_bfe_u32 v1, v2, 2, 2
        v_lshlrev_b32 v1, 14, v1
        v_and_b32 v3, 3, v2
        v_lshl_add_u32 v1, v3, 7, v1
        v_lshl_add_u32 v1, v13, 4, v1
        s_lshl_b32 s7, s6, 10
        s_add_u32 s7, s7, {L_Z}
        v_add_u32 v{ZX}, s7, v1
        s_lshl_b32 s7, s34, 12
        v_add_u32 v{ZG}, s7, v10
        s_lshr_b32 s47, s34, 2
        s_lshl_b32 s7, s6, 8
        s_add_u32 s7, s7, s47
        s_lshl_b32 s7, s7, {FSH}
        s_add_u32 s7, s7, {FL_Z}
        v_lshl_add_u32 v{ZFS}, v12, 3, s7
        v_add_u32 v9, s39, v10
        v_add_u32 v11, 0xc000, v9""")
    def a3(k):
        if k == 0:
            a(f"s_waitcnt vmcnt({vm.cnt('z', 'q')}) lgkmcnt(0)")
            for i in range(4): a(f"ds_read_b128 {V(ZB+4*i,4)}, v{ZRD+i}")
        a(f"s_waitcnt lgkmcnt({0 if TRACE else 3-k})")
        for hf in range(2):
            idx = 4 * hf + k
            o = OB + 4 * hf
            for e in range(4):
                z, q = ZB + 4 * k + 2 * hf + (e >> 1), QL + 2 * idx + (e >> 1)
                if e & 1: a(f"v_and_b32 v1, 0xffff0000, v{z}\nv_and_b32 v{o+e}, 0xffff0000, v{q}")
                else: a(f"v_lshlrev_b32 v1, 16, v{z}\nv_lshlrev_b32 v{o+e}, 16, v{q}")
                a(f"v_mul_f32 v{o+e}, v{o+e}, v1")
            a(f"s_mov_b32 s7, {32768*idx}\nbuffer_store_dwordx4 {V(o,4)}, v{OA}, {S(OS)}, s7 offen{FLV[OPT['osa']]}")
            vm.add("st")
    A3 = not OPT["noa3"]
    a3_setup()
    if 5 <= DR < 8: qsig()
    if A3:
        words(64, "L_zd")
        for j in range(4):
            for ab in range(2):
                a(f"ds_read_b64_tr_b16 {V(ZB+4*j+2*ab,2)}, v{ZX} offset:{512*(j>>1) + 8*(8*(j&1)+ab)}")
        a("s_waitcnt lgkmcnt(0)")
        for j in range(4):
            a(f"buffer_store_dwordx4 {V(ZB+4*j,4)}, v{ZG}, {S(ZS)}, 0 offen offset:{1024*j} sc1")
        vm.add("zt", 4)
    if OPT["lp2"]: a("s_setprio 0")
    stamp(a, 6)
    paced(CR_[:OPT["pre"]], OPT["pw"])
    CR_ = CR_[OPT["pre"]:]
    if DR >= 8: qsig()
    if A3:
        a(f"""s_waitcnt vmcnt({vm.cnt('zt')})
        s_mov_b64 exec, {FEX}
        buffer_store_dwordx2 {V(NON,2)}, v{ZFS}, {S(FL)}, 0 offen sc1
        s_mov_b64 exec, -1""")
        vm.add("zf")
    if OPT["qk"] == 17:
        for x in QLD: a(x); vm.add("q")
    stamp(a, 7)
    stamp_dump(a, 0)
    assert OPT["zp"] <= OPT["zc"] <= OPT["za"] <= 15
    first = True
    for p_ in range(0, 16):
        b = p_ + 5
        w_ = K0 <= b < 16
        need = w_ or (CR_ and p_) or OPT["qk"] == 20 + p_ or (A3 and p_ in (OPT["zp"], OPT["zc"], OPT["za"]))
        if not need: continue
        if p_:
            a("s_mov_b32 s51, 0")
            a.label(f"L_p{p_}")
            a(f"""ds_read_b128 v[32:35], v{NA} offset:{L_F + 80 - L_N}
            s_add_u32 s51, s51, 1
            s_waitcnt lgkmcnt(0)
            v_min3_u32 v32, v32, v33, v34
            v_min_u32 v32, v32, v35
            s_cmp_gt_u32 s51, {SPIN * 16}
            s_cbranch_scc1 L_p{p_}_ok
            v_cmp_gt_u32 vcc, {p_}, v32
            s_cbranch_vccnz L_p{p_}""")
            a.label(f"L_p{p_}_ok")
        if first: stamp(a, 8)
        first = False
        if w_:
            a(f"v_mov_b32 v3, {b + 1}\ns_waitcnt vmcnt({vm.cnt(f'c{b}')})")
            sl = b % 6
            for i in range(4):
                o = 16384 * (sl % 3) + 8192 * (i >> 1) + 1024 * (i & 1)
                a(f"ds_write_b128 v{9 if sl < 3 else 11}, {V(CREG[b]+4*i,4)} offset:{o}")
            a(f"ds_write_b32 v{FA}, v3 offset:{L_F + 32 - L_N}")
            if b == 15: stamp(a, 9)
        if p_:
            paced(CR_[:OPT["per"]], OPT["pw"])
            CR_ = CR_[OPT["per"]:]
        if OPT["qk"] == 20 + p_:
            for x in QLD: a(x); vm.add("q")
        if A3 and p_ == OPT["zp"]:
            a(f"buffer_load_dwordx2 {V(PLL,2)}, v{ZFP}, {S(FL)}, 0 offen sc1")
            vm.add("zp")
        if A3 and p_ == OPT["zc"]:
            a(f"""s_waitcnt vmcnt({vm.cnt('zp')})
            v_cmp_eq_u32 vcc, v{PLL}, v{NON}
            v_cmp_eq_u32 s[48:49], v{PLL+1}, v{NON+1}
            s_mov_b32 m0, s35
            s_and_b64 s[48:49], s[48:49], vcc
            s_cmp_eq_u64 s[48:49], -1
            s_cbranch_scc1 L_zspin_go""")
            spin_flags(a, "L_zspin", PLL, NON, ZFP, FL)
            stamp(a, 10)
            for j in range(4):
                a(f"buffer_load_dwordx4 v{ZLD+j}, {S(ZS)}, 0 offen offset:{1024*j} sc1 lds")
            vm.add("z", 4)
        if A3 and p_ == OPT["za"]:
            for j in range(4): a3(j)
    assert not CR_
    stamp(a, 11)

def compute(a):
    HS, ES, DB, LD_, LR_, LI_, KV, FL, OS, DS = 8, 12, 16, 20, 24, 28, 68, 72, 76, 80
    AA, BA = 4, 8
    L, C2, P8, G128, L512 = 16, 24, 32, 40, 42
    LBK, PUB, HST, NA, FA = 56, 60, 61, 62, 63
    ACC, FR, XF, STG, XA, DSK, STA, KVG = 64, 128, 208, 224, 240, 242, 244, 248
    GR = 52
    KS, VS, SH = 8, 12, 68
    WRAW, WF, KR, VR, KT, AC, OUT = 128, 136, 140, 162, 178, 190, 224
    a(f"""v_and_b32 v12, 15, v2
    v_lshrrev_b32 v13, 4, v2
    s_lshr_b32 s7, s2, 3
    s_and_b32 s76, s7, 15           ; a_mt
    s_lshr_b32 s7, s7, 4
    s_and_b32 s77, s2, 7
    s_lshl_b32 s77, s77, 1
    s_add_u32 s77, s77, s7          ; a_nt
    s_lshl_b32 s7, s76, 2
    s_add_u32 s7, s7, s5
    s_lshl_b32 s7, s7, 16           ; t0*2048
    s_lshl_b32 s6, s77, 7
    s_add_u32 s7, s7, s6
    v_lshlrev_b32 v10, 14, v13
    v_lshl_add_u32 v10, v12, 3, v10
    v_add_u32 v10, s7, v10          ; k/v offset of row 0
    v_subrev_u32 v11, 0x1800, v10
    v_bfrev_b32 v9, 1
    v_cmp_gt_i32 vcc, 0, v11
    s_lshl_b32 s7, s77, 9
    v_lshlrev_b32 v15, 5, v12
    v_cndmask_b32 v11, v11, v9, vcc     ; halo offset
    v_add_u32 v9, s7, v15           ; shift offset
    s_mov_b32 s72, 4096
    s_mov_b32 s73, 8192
    s_mov_b32 s74, 12288
    s_lshl_b32 s6, s4, 2
    s_add_u32 s6, s6, s5
    s_lshl_b32 s6, s6, 4
    v_and_b32 v14, 3, v12
    v_and_b32 v1, 1, v13
    v_lshl_add_u32 v14, v1, 3, v14
    v_lshrrev_b32 v1, 1, v13
    v_lshl_add_u32 v14, v1, 2, v14
    v_add_u32 v14, s6, v14          ; channel
    v_lshlrev_b32 v44, 1, v14
    s_lshl_b32 s6, s4, 7
    v_lshlrev_b32 v1, 3, v12
    v_add_u32 v1, s6, v1""")
    stamp0(a, 2)
    srd_ = srd
    if OPT["sre"]:
        a(f"s_movk_i32 s{LD_+2}, 2048\ns_mov_b32 s{LD_+3}, 0x00020000\ns_mov_b64 s[{LR_+2}:{LR_+3}], s[{LD_+2}:{LD_+3}]\ns_mov_b64 s[{LI_+2}:{LI_+3}], s[{LD_+2}:{LD_+3}]")
        a(f"s_mov_b32 s{KS+2}, {4 << 20}\ns_mov_b32 s{KS+3}, s{LD_+3}\ns_mov_b64 s[{VS+2}:{VS+3}], s[{KS+2}:{KS+3}]\ns_movk_i32 s{SH+2}, 8192\ns_mov_b32 s{SH+3}, s{LD_+3}")
        def srd_(a, d, name, nbytes): a(f"s_mov_b64 s[{d}:{d+1}], s[{P[name]}:{P[name]+1}]")
    a("s_waitcnt lgkmcnt(0)")
    stamp0(a, 3)
    SOFF = ["0", "s72", "s73", "s74"]
    srd_(a, LD_, "logdt", 2048)
    srd_(a, LR_, "Lre", 2048)
    srd_(a, LI_, "Lim", 2048)
    a(f"""buffer_load_ushort v45, v44, {S(LD_)}, 0 offen
    buffer_load_ushort v46, v44, {S(LR_)}, 0 offen
    buffer_load_ushort v47, v44, {S(LI_)}, 0 offen""")
    stamp0(a, 4, 2)
    srd_(a, KS, "k", 4 << 20)
    for i in range(8):
        a(f"buffer_load_dwordx2 {V(KR+6+2*i,2)}, v10, {S(KS)}, {SOFF[i>>1]} offen offset:{2048*(i&1)}{NT('k')}")
    for i in range(3):
        a(f"buffer_load_dwordx2 {V(KR+2*i,2)}, v11, {S(KS)}, {SOFF[i>>1]} offen offset:{2048*(i&1)}{NT('k')}")
    stamp0(a, 5, 2)
    srd_(a, SH, "shift", 8192)
    a(f"buffer_load_dwordx4 {V(WRAW,4)}, v9, {S(SH)}, 0 offen")
    a(f"buffer_load_dwordx4 {V(WRAW+4,4)}, v9, {S(SH)}, 0 offen offset:16")
    srd_(a, VS, "v", 4 << 20)
    for i in range(8):
        a(f"buffer_load_dwordx2 {V(VR+2*i,2)}, v10, {S(VS)}, {SOFF[i>>1]} offen offset:{2048*(i&1)}{NT('k')}")
    stamp0(a, 6, 2)
    if OPT["kfirst"]: a("s_barrier")
    srd(a, DS, "Dskip", 2048)
    a(f"""buffer_load_dwordx2 {V(DSK,2)}, v1, {S(DS)}, 0 offen
    s_lshl_b32 s7, s5, 2
    v_add_u32 v15, s7, v13
    v_sub_u32 v15, 15, v15
    v_xor_b32 v15, v15, v12
    v_lshlrev_b32 v15, 4, v15
    v_lshl_add_u32 v15, v12, 10, v15
    v_add_u32 v15, {L_ST}, v15
    v_lshrrev_b32 v3, 1, v12
    v_xor_b32 v3, v3, v13
    v_lshlrev_b32 v3, 4, v3
    v_lshl_add_u32 v4, v12, 7, v3
    v_xor_b32 v6, 64, v4
    v_add_u32 v5, 0x10000, v4
    v_add_u32 v7, 0x10000, v6
    s_lshl_b32 s6, s5, 12
    s_add_u32 s6, s6, 16384
    v_add_u32 v8, s6, v4
    v_add_u32 v9, s6, v5
    v_add_u32 v10, s6, v6
    v_add_u32 v11, s6, v7""")
    def unp(d, s, hi):
        return f"v_and_b32 v{d}, 0xffff0000, v{s}" if hi else f"v_lshlrev_b32 v{d}, 16, v{s}"
    def a1_k(c):
        for j in range(4):
            a(unp(WF + j, WRAW + 2 * c + (j >> 1), j & 1))
        for i in range(11):
            a(unp(KT + i, KR + 2 * i + (c >> 1), c & 1))
        for t in range(8):
            a(f"v_mul_f32 v{AC+8*c+t}, v{WF}, v{KT+t+3}")
        for j in range(1, 4):
            for t in range(8):
                a(f"v_fmac_f32 v{AC+8*c+t}, v{WF+j}, v{KT+t+3-j}")
    def a1_v(c):
        for t in range(8):
            a(unp(KT + t, VR + 2 * t + (c >> 1), c & 1))
        for t in range(8):
            a(f"v_mul_f32 v{AC+8*c+t}, v{AC+8*c+t}, v{KT+t}")
        o = OUT + 4 * c
        for i in range(4):
            a(f"v_cvt_pk_bf16_f32 v{o+i}, v{AC+8*c+7-2*i}, v{AC+8*c+6-2*i}")
        a(f"ds_write_b128 v15, {V(o,4)} offset:{256*c}")
    srd(a, DB, "dbg", 256)
    a(f"""s_or_b32 s6, s2, s5
    s_cmp_eq_u32 s6, 0
    s_cbranch_scc0 C_nonce_w
    s_memrealtime s[6:7]
    v_mov_b32 v1, 0
    s_waitcnt lgkmcnt(0)
    s_or_b32 s6, s6, 1
    v_mov_b32 v48, s6
    v_mov_b32 v49, s7
    s_mov_b64 exec, 1
    buffer_store_dwordx2 v[48:49], v1, {S(DB)}, 0 offen sc1
    s_mov_b64 exec, -1""")
    a.label("C_nonce_w")
    srd(a, HS, "ws", 8 << 20, WS_H)
    srd(a, ES, "ws", 1 << 18, WS_E)
    srd(a, KV, "ws", 4 << 20, WS_KVT)
    srd(a, FL, "ws", FL_SZ, WS_FLG)
    srd(a, OS, "out", 16 << 20)
    CR, CI = 24, 80
    srd(a, CR, "Cre", 2 << 20)
    srd(a, CI, "Cim", 2 << 20)
    rot1(a, 34, 35)
    a(f"""s_sub_u32 s34, s4, s34
    s_and_b32 s34, s34, 15          ; step of G1 that holds this tile's x columns
    s_lshl_b32 s6, s5, 12
    v_add_u32 v{XA}, s6, v4
    v_xor_b32 v{XA+1}, 64, v{XA}
    v_mov_b32 v{NA}, {L_N}
    s_lshr_b32 s7, s2, 3
    s_and_b32 s32, s7, 15           ; a_mt
    s_lshr_b32 s7, s7, 4
    s_and_b32 s33, s2, 7
    s_lshl_b32 s33, s33, 1
    s_add_u32 s33, s33, s7          ; a_nt
    s_mov_b32 s36, 16384
    s_mov_b32 s37, 32768
    s_mov_b32 s38, 49152
    ; staging read addresses / KVT offsets
    s_lshl_b32 s6, s5, 2
    v_xor_b32 v1, s6, v12
    v_lshlrev_b32 v1, 4, v1
    v_lshl_add_u32 v1, v13, 8, v1
    s_lshl_b32 s6, s5, 12
    s_add_u32 s6, s6, {L_ST}
    v_add_u32 v{STA}, s6, v1
    v_xor_b32 v{STA+1}, 16, v{STA}
    v_xor_b32 v{STA+2}, 32, v{STA}
    v_xor_b32 v{STA+3}, 48, v{STA}
    s_lshl_b32 s6, s33, 2
    s_add_u32 s6, s6, s5
    s_lshl_b32 s6, s6, 16           ; (64 a_nt + 16 w)*4096
    s_lshl_b32 s7, s32, 8
    s_sub_u32 s7, 3840, s7
    s_add_u32 s6, s6, s7
    v_lshlrev_b32 v1, 12, v13
    v_lshl_add_u32 v1, v12, 4, v1
    v_add_u32 v{KVG}, s6, v1
    s_lshl_b32 s6, s33, 2
    s_add_u32 s7, s6, s5
    s_lshl_b32 s7, s7, 4
    s_add_u32 s7, s7, s32
    s_lshl_b32 s20, s7, 3
    s_lshr_b32 s7, s32, 2
    s_add_u32 s7, s7, s6
    s_lshl_b32 s21, s7, 7
    s_lshl_b32 s7, s33, 4
    s_add_u32 s7, s7, s32
    s_lshl_b32 s7, s7, 2
    s_add_u32 s7, s7, s5
    s_lshl_b32 s22, s7, 12
    s_lshl_b32 s23, s5, 14
    s_add_u32 s23, s23, {L_U}
    ; look-back / publish / H offsets
    s_lshl_b32 s6, s3, 14
    v_lshlrev_b32 v1, 4, v14
    v_add_u32 v{PUB}, s6, v1
    v_lshrrev_b32 v1, 2, v12
    v_lshlrev_b32 v1, 14, v1
    v_sub_u32 v1, v{PUB}, v1
    v_subrev_u32 v{LBK}, 0x4000, v1
    v_subrev_u32 v{LBK+1}, 0x14000, v1
    v_subrev_u32 v{LBK+2}, 0x24000, v1
    v_subrev_u32 v{LBK+3}, 0x34000, v1
    v_cmp_gt_i32 s[40:41], 0, v{LBK}
    v_cmp_gt_i32 s[42:43], 0, v{LBK+1}
    v_cmp_gt_i32 s[44:45], 0, v{LBK+2}
    v_cmp_gt_i32 s[46:47], 0, v{LBK+3}
    s_lshl_b32 s6, s3, 4
    s_add_u32 s6, s6, s4
    s_lshl_b32 s6, s6, 15
    s_lshl_b32 s7, s5, 10
    s_add_u32 s6, s6, s7
    v_lshlrev_b32 v1, 4, v2
    v_add_u32 v{HST}, s6, v1
    s_lshl_b32 s7, s5, 2
    v_add_u32 v{FA}, s7, v{NA}
    s_mov_b32 s48, 0xaaaaaaaa
    s_mov_b32 s49, 0xaaaaaaaa
    s_mov_b32 s50, 0xcccccccc
    s_mov_b32 s51, 0xcccccccc
    s_mov_b32 s52, 0x000f000f
    s_mov_b32 s53, 0x000f000f""")
    for i in range(64):
        a(f"v_mov_b32 v{ACC+i}, 0")
    a("s_waitcnt vmcnt(22)")
    stamp0(a, 7, 2)
    a(f"""v_lshlrev_b32 v45, 16, v45
    v_lshlrev_b32 v46, 16, v46
    v_lshlrev_b32 v47, 16, v47
    v_mul_f32 v45, 0x3fb8aa3b, v45
    v_exp_f32 v45, v45
    s_nop 0
    v_cvt_pk_bf16_f32 v45, v45, v45
    v_lshlrev_b32 v45, 16, v45
    v_mul_f32 v52, v45, v46
    v_mul_f32 v53, v45, v47
    v_mul_f32 v52, 0x3fb8aa3b, v52
    v_exp_f32 v48, v52
    v_mul_f32 v53, 0.15915494, v53
    v_fract_f32 v53, v53
    v_cos_f32 v50, v53
    v_sin_f32 v51, v53
    s_nop 0
    v_mul_f32 v44, v48, v50
    v_mul_f32 v45, v48, v51
    v_add_f32 v48, -1.0, v44
    v_mul_f32 v49, v46, v46
    v_fmac_f32 v49, v47, v47
    v_rcp_f32 v49, v49
    v_mul_f32 v50, v48, v46
    v_fmac_f32 v50, v45, v47
    v_mul_f32 v51, v45, v46
    v_fma_f32 v51, -v48, v47, v51
    v_add_f32 v49, v49, v49
    v_mul_f32 v46, v50, v49
    v_mul_f32 v47, v51, v49
    v_lshlrev_b32 v54, 3, v12
    v_cvt_f32_u32 v54, v54              ; 8j
    v_lshrrev_b32 v55, 2, v12
    v_lshlrev_b32 v55, 7, v55
    v_cvt_f32_u32 v55, v55              ; 128 (j>>2)""")
    DM = "row_mask:0xf bank_mask:0xf"
    def qb(i): return f"quad_perm:[{i},{i},{i},{i}] {DM}"
    for i in range(4):
        a(f"""v_mov_b32_dpp v{L+i}, v44 {qb(i)}
        v_mov_b32_dpp v{L+4+i}, v45 {qb(i)}
        v_mov_b32_dpp v{C2+i}, v46 {qb(i)}
        v_mov_b32_dpp v{C2+4+i}, v47 {qb(i)}""")
    def powd(dr, di, m0_, m1_):
        a(f"""{m0_}
        {m1_}
        v_exp_f32 v48, v48
        v_fract_f32 v49, v49
        v_cos_f32 v50, v49
        v_sin_f32 v51, v49
        s_nop 0
        v_mul_f32 v{dr}, v48, v50
        v_mul_f32 v{di}, v48, v51""")
    for i in range(4):
        powd(P8 + i, P8 + 4 + i, f"v_mul_f32_dpp v48, v52, v54 {qb(i)}", f"v_mul_f32_dpp v49, v53, v54 {qb(i)}")
    powd(G128, G128 + 1, "v_mul_f32 v48, v52, v55", "v_mul_f32 v49, v53, v55")
    powd(L512, L512 + 1, "v_mul_f32 v48, 0x44000000, v52", "v_mul_f32 v49, 0x44000000, v53")
    def reads(s, h):
        sl = SLOT[s]
        grp, so = divmod(sl, 65536)
        f = FR + 40 * h
        R = [f"ds_read_b128 {V(f+32+4*p,4)}, v{BA+2*h+grp} offset:{so+2048*p}" for p in range(2)]
        R += [f"ds_read_b128 {V(f+4*i,4)}, v{AA+2*h+grp} offset:{so+2048*i}" for i in range(8)]
        return R
    def mfmas(h):
        f = FR + 40 * h
        M = []
        for r in range(8):
            for p in ((0, 1) if not (r & 1) else (1, 0)):
                c = ACC + 8 * r + 4 * p
                M.append(f"v_mfma_f32_16x16x32_bf16 {V(c,4)}, {V(f+32+4*p,4)}, {V(f+4*r,4)}, {V(c,4)}")
        return M
    stamp0(a, 4)
    a("s_waitcnt vmcnt(9)")
    stamp0(a, 5)
    for c in range(4): a1_k(c)
    a("s_waitcnt vmcnt(1)")
    stamp0(a, 6)
    for c in range(4): a1_v(c)
    stamp0(a, 7)
    a("s_waitcnt lgkmcnt(0)\ns_barrier")
    stamp(a, 1)
    for x in reads(0, 0): a(x)
    if OPT["prioc"]: a(f"s_setprio {OPT['prioc']}")
    for i in range(4):
        a(f"ds_read_b128 {V(STG+4*i,4)}, v{STA+i} offset:{1024*i}")
    KP, KA = 244, 246
    def ool_spin(lbl, load, test):
        o_ = Asm()
        o_.label(lbl)
        o_("s_mov_b32 s39, 0")
        o_.label(lbl + "_s")
        o_(f"""{load}
        s_add_u32 s39, s39, 1
        s_waitcnt vmcnt(0)
        s_cmp_gt_u32 s39, {SPIN}
        s_cbranch_scc1 {lbl}_r
        {test}
        s_cbranch_scc0 {lbl}_s
        s_branch {lbl}_r""")
        OOL.extend(o_.l)
        a(f"{test}\ns_cbranch_scc0 {lbl}")
        a.label(lbl + "_r")
    NLD = f"buffer_load_dwordx2 {V(GR+2,2)}, off, {S(DB)}, 0 sc1"
    KPL = f"buffer_load_dwordx2 {V(KP,2)}, v{KA}, {S(FL)}, s21 offen sc1"
    def hook(hs):
        if hs == 0:
            for i in range(4):
                a(f"buffer_store_dwordx4 {V(STG+4*i,4)}, v{KVG}, {S(KV)}, {['0','s36','s37','s38'][i]} offen sc1")
            a(NLD)
            a(f"v_lshlrev_b32 v{KA}, 3, v12\nv_lshlrev_b32 v{KA+1}, 4, v2")
        if hs == OPT["fs"]:
            a("s_waitcnt vmcnt(0)")
            ool_spin("C_non", NLD, f"v_readfirstlane_b32 s7, v{GR+2}\ns_cmp_lg_u32 s7, 0")
            a(f"""s_mov_b64 exec, 1
            buffer_store_dwordx2 {V(GR+2,2)}, off, {S(FL)}, s20 sc1
            ds_write_b64 v{NA}, {V(GR+2,2)}
            s_mov_b64 exec, -1""")
        if hs == OPT["ps"]: a(KPL)
        if hs == OPT["pc"]:
            assert hs >= 2 * RFREE
            a("s_waitcnt vmcnt(0)")
            ool_spin("C_kvp", KPL, f"""v_cmp_eq_u32 vcc, v{KP}, v{GR+2}
            v_cmp_eq_u32 s[54:55], v{KP+1}, v{GR+3}
            s_mov_b32 m0, s23
            s_and_b64 s[54:55], s[54:55], vcc
            s_cmp_eq_u64 s[54:55], -1""")
            for j in range(4):
                a(f"buffer_load_dwordx4 v{KA+1}, {S(KV)}, s22 offen offset:{1024*j} sc1 lds")
        if hs == OPT["kl"]: a("s_waitcnt vmcnt(0)")
    assert 0 < OPT["fs"] < OPT["ps"] < OPT["pc"] < OPT["kl"] and OPT["kl"] & 1
    for s in range(16):
        a(f"s_cmp_eq_u32 s34, {s}\ns_waitcnt lgkmcnt(0)\ns_cbranch_scc1 C_x{s}")
        a.label(f"C_x{s}_r")
        o_ = Asm()
        o_.label(f"C_x{s}")
        o_(f"v_add_u32 v{XA}, {SLOT[s]}, v{XA}\nv_add_u32 v{XA+1}, {SLOT[s]}, v{XA+1}")
        for t in range(2):
            for h in range(2):
                o_(f"ds_read_b128 {V(XF+8*t+4*h,4)}, v{XA+h} offset:{2048*t}")
        o_(f"s_branch C_x{s}_r")
        OOL.extend(o_.l)
        hook(2 * s)
        interleave(a, mfmas(0), reads(s, 1), 1)
        hook(2 * s + 1)
        a("s_waitcnt lgkmcnt(0)")
        if s < 15: a("s_barrier")
        M = mfmas(1)
        if s == 15:
            a("v_mov_b32 v3, 1\nv_mov_b32 v15, 2")
            cl = f"ds_write_b32 v{FA}, v3 offset:{L_F + 48 - L_N}"
            if OPT["gate"] and SA == 16: a(cl)
            elif OPT["gate"]: M[8] += "\n" + cl
            a(f"ds_write_b32 v{FA}, v{GR+2} offset:{L_F - L_N}")
        interleave(a, M, reads(s + 1, 0) if s < 15 else [], 1)
    stamp(a, 2)
    a("s_nop 3")
    SC = [False]
    def pk(op, d, x, y, c=None, neg=False):
        if SC[0]:
            for i in range(2):
                n = "-" if neg else ""
                if c is None: a(f"v_mul_f32 v{d+i}, {n}v{x+i}, v{y+i}")
                elif c == d and not neg: a(f"v_fmac_f32 v{d+i}, v{x+i}, v{y+i}")
                else: a(f"v_fma_f32 v{d+i}, {n}v{x+i}, v{y+i}, v{c+i}")
            return
        n = ""
        if neg: n = " neg_lo:[1,0,0] neg_hi:[1,0,0]" if c is not None else " neg_lo:[1,0] neg_hi:[1,0]"
        if c is None: a(f"v_pk_mul_f32 {V(d,2)}, {V(x,2)}, {V(y,2)}{n}")
        else: a(f"v_pk_fma_f32 {V(d,2)}, {V(x,2)}, {V(y,2)}, {V(c,2)}{n}")
    def cm4(dr, di, k, xr, xi, cr=None, ci=None, s=(0, 0, 1, 0)):
        for h in (0, 2):
            pk("f", dr + h, k + h, xr + h, None if cr is None else cr + h, s[0])
            pk("f", di + h, k + h, xi + h, None if ci is None else ci + h, s[1])
        for h in (0, 2):
            pk("f", dr + h, k + 4 + h, xi + h, dr + h, s[2])
            pk("f", di + h, k + 4 + h, xr + h, di + h, s[3])
    def Ur(r): return ACC + 8 * r
    def Ui(r): return ACC + 8 * r + 4
    EB = [128, 136]
    W, PL, SH_, MU, AC_, MM, U0, PK = 144, 152, 168, 176, 184, 192, 200, 128
    CPE = OPT["cpe"]
    if CPE:
        assert OPT["shsc"] and OPT["lbp"] == 2 and OPT["nh"] == 8 and OPT["ncb"] == 2 and CPE <= min(4, OPT["ncc"])
        PL, SH_, AC_, MM, U0 = 24, 144, 152, 136, 48
    e = Ur(0)
    for r in range(1, 8):
        d = EB[r & 1]
        cm4(d, d + 4, L, e, e + 4, Ur(r), Ui(r))
        e = d
    for i in range(4):
        a(f"""v_mul_f32_dpp v{W+i}, v{P8+i}, v{e+i} row_mirror {DM}
        v_mul_f32_dpp v{W+4+i}, v{P8+i}, v{e+4+i} row_mirror {DM}""")
    for i in range(4):
        a(f"""v_fmac_f32_dpp v{W+i}, -v{P8+4+i}, v{e+4+i} row_mirror {DM}
        v_fmac_f32_dpp v{W+4+i}, v{P8+4+i}, v{e+i} row_mirror {DM}""")
    for i in (0, 4, 1, 5, 2, 6, 3, 7):
        a(f"v_add_f32_dpp v{W+i}, v{W+i}, v{W+i} quad_perm:[1,0,3,2] {DM}")
    for i in range(4):
        a(f"v_cndmask_b32 v{44+i}, v{W+2*i}, v{W+2*i+1}, s[48:49]")
    for i in range(4):
        if i == 0: a("s_nop 0")
        a(f"v_add_f32_dpp v{44+i}, v{44+i}, v{44+i} quad_perm:[2,3,0,1] {DM}")
    a(f"""v_cndmask_b32 v{GR}, v44, v45, s[50:51]
    v_cndmask_b32 v{GR+1}, v46, v47, s[50:51]
    s_nop 0
    v_add_f32_dpp v{GR}, v{GR}, v{GR} row_ror:4 {DM}
    v_add_f32_dpp v{GR+1}, v{GR+1}, v{GR+1} row_ror:4 {DM}
    s_nop 0
    v_add_f32_dpp v{GR}, v{GR}, v{GR} row_ror:8 {DM}
    v_add_f32_dpp v{GR+1}, v{GR+1}, v{GR+1} row_ror:8 {DM}
    s_mov_b64 exec, s[52:53]
    buffer_store_dwordx4 {V(GR,4)}, v{PUB}, {S(ES)}, 0 offen sc1
    s_mov_b64 exec, -1""")
    CAD = 244
    def csetup():
        a(f"""s_and_b32 s7, s3, {12 * OPT['xrot']}
        s_add_u32 s7, s7, s4
        s_and_b32 s36, s7, 15
        v_lshrrev_b32 v1, 3, v2
        v_and_b32 v44, 7, v2
        v_xor_b32 v44, v44, v13
        v_lshlrev_b32 v44, 4, v44
        v_lshl_add_u32 v44, v1, 13, v44
        s_lshl_b32 s7, s4, 6
        s_add_u32 s7, s7, s5
        s_lshl_b32 s7, s7, 11
        v_add_u32 v{CAD}, s7, v44
        v_xor_b32 v{CAD+1}, 64, v{CAD}
        v_add_u32 v{CAD+1}, {65536-1024}, v{CAD+1}
        v_xor_b32 v{CAD+2}, 32, v{CAD}
        v_xor_b32 v{CAD+3}, 32, v{CAD+1}
        s_lshl_b32 s20, s36, 7
        s_and_b32 s22, s20, 1024
        s_xor_b32 s23, s22, 1024
        s_lshl_b32 s21, s5, 11""")
        if OPT["ot"]:
            a(f"""v_lshlrev_b32 v1, 12, v1
            v_and_b32 v44, 7, v2
            v_lshl_add_u32 v1, v44, 7, v1
            v_lshlrev_b32 v44, 4, v2
            v_sub_u32 v1, v1, v44
            v_add_u32 v{PUB}, v{HST}, v1""")
    def ldC(k, r=None):
        if OPT["hord"]: a(f"s_add_u32 s7, s20, {128*k}\ns_and_b32 s7, s7, 1023\ns_or_b32 s7, s7, s{22 + (k >> 3)}")
        else: a(f"s_add_u32 s7, s20, {128*k}\ns_and_b32 s7, s7, 2047")
        for j in range(4):
            tail = f"v{CAD+j}, {S(CI if j & 2 else CR)}, s7 offen offset:{1024*(j&1)}"
            if r is None:
                if not j & 1: a(f"s_add_u32 m0, s21, {16384*k + 4096*j}\ns_nop 0")
                a(f"buffer_load_dwordx4 {tail} lds")
            else: a(f"buffer_load_dwordx4 {V(r+4*j,4)}, {tail}")
    def wchk(off, t=56):
        a(f"""ds_read_b128 v[{t}:{t+3}], v{NA} offset:{L_F + off - L_N}
        s_waitcnt lgkmcnt(0)
        v_xor_b32 v{t}, v{t}, v{GR+2}
        v_xor_b32 v{t+1}, v{t+1}, v{GR+2}
        v_xor_b32 v{t+2}, v{t+2}, v{GR+2}
        v_xor_b32 v{t+3}, v{t+3}, v{GR+2}
        v_or3_b32 v{t}, v{t}, v{t+1}, v{t+2}
        v_or_b32 v{t}, v{t}, v{t+3}
        v_cmp_ne_u32 vcc, 0, v{t}""")
    def g1done():
        assert SLOT[15] == 65536
        a("s_mov_b32 s39, 0")
        a.label("C_g1d")
        wchk(0, 44)
        a(f"""s_add_u32 s39, s39, 1
        s_cmp_gt_u32 s39, {SPIN * 4}
        s_cbranch_scc1 C_g1d_ok
        s_cbranch_vccnz C_g1d""")
        a.label("C_g1d_ok")
    LBI = OPT["lbi"]
    FSH_ = OPT["pks"]
    assert not FSH_ or (CPE and LBI < 0 and OPT["gate"] == 1 and not OPT["ccd"])
    PLS = [PL + 4 * j for j in range(4)] if LBI < 0 and not FSH_ else [128, 132, 144, 148]
    def lbpoll():
        for j in range(4):
            a(f"buffer_load_dwordx4 {V(PLS[j],4)}, v{LBK+j}, {S(ES)}, 0 offen sc1")
    if OPT["lbp"] == 0: lbpoll()
    GO = f"ds_write_b32 v{FA}, v15 offset:{L_F + 48 - L_N}"
    if FSH_:
        if OPT["fpl"] == 0: lbpoll()
    elif OPT["shsc"]:
        SC[0] = True
        if OPT["gate"]: a(GO)
    if OPT["ccd"] == 2:
        csetup(); g1done()
        for t in ([] if OPT["d15"] else [14]) + [15]:
            for k in (SLOT[t] // 16384, SLOT[t] // 16384 + 1): ldC(k)
    EREG = [160, 176, 192, 224]
    if CPE and not FSH_:
        if OPT["ccd"] != 2: csetup()
        for i in range(CPE - OPT["cpw"] if LBI < 0 else 0): ldC(6 + i, EREG[i])
    if OPT["lbp"] == 1: lbpoll()
    stamp(a, 3)
    sh0 = len(a.l)
    F = EB[0]
    SHB = SH_
    if FSH_: F, SH_, MU = 160, 168, 176
    assert e == EB[1]
    for i in range(8):
        a(f"v_mov_b32_dpp v{F+i}, v{e+i} row_shr:1 {DM} bound_ctrl:0")
    for sft in (1, 2, 4, 8):
        if SC[0]:
            if sft == 1: a("s_nop 0")
            for i in range(8):
                a(f"v_mov_b32_dpp v{SH_+i}, v{F+i} row_shr:{sft} {DM} bound_ctrl:0")
            nb = f"row_newbcast:{sft} {DM}"
            for i in range(4): a(f"v_fmac_f32_dpp v{F+i}, v{P8+i}, v{SH_+i} {nb}")
            for i in range(4): a(f"v_fmac_f32_dpp v{F+4+i}, v{P8+i}, v{SH_+4+i} {nb}")
            for i in range(4): a(f"v_fmac_f32_dpp v{F+i}, -v{P8+4+i}, v{SH_+4+i} {nb}")
            for i in range(4): a(f"v_fmac_f32_dpp v{F+4+i}, v{P8+4+i}, v{SH_+i} {nb}")
            continue
        for h in range(0, 8, 2):
            a(f"v_mov_b64_dpp {V(MU+h,2)}, {V(P8+h,2)} row_newbcast:{sft} {DM}")
        for i in (0, 1, 4, 5, 2, 3, 6, 7):
            a(f"v_mov_b32_dpp v{SH_+i}, v{F+i} row_shr:{sft} {DM} bound_ctrl:0")
        cm4(F, F + 4, MU, SH_, SH_ + 4, F, F + 4)
    for i in range(CPE - OPT["cpw"], CPE if LBI < 0 and not FSH_ else 0): ldC(6 + i, EREG[i])
    cm4(AC_, AC_ + 4, C2, F, F + 4, s=(0, 1, 1, 1))
    sh1 = len(a.l) - sh0
    cm4(MM, MM + 4, C2, P8, P8 + 4)
    SH_ = SHB
    if FSH_ and OPT["fpl"] == 1: lbpoll()
    if FSH_ == 2:
        a(GO); csetup(); SC[0] = True
        sh0 = len(a.l)
    def U2(r): return U0 if r == 0 else Ur(r - 1)
    for r in range(8):
        for h in (0, 2):
            pk("m", U2(r) + h, C2 + h, Ur(r) + h)
        for h in (0, 2):
            pk("f", U2(r) + h, C2 + 4 + h, Ui(r) + h, U2(r) + h, True)
        for h in (0, 2):
            pk("m", Ui(r) + h, C2 + h, Ui(r) + h, None, True)
        for h in (0, 2):
            pk("f", Ui(r) + h, C2 + 4 + h, Ur(r) + h, Ui(r) + h, True)
    SC[0] = False
    if OPT["gate"] == 1 and not OPT["shsc"]: a(GO)
    if OPT["ccd"] != 2 and not CPE: csetup()
    if OPT["ccd"] == 1: g1done()
    if FSH_ == 3:
        csetup()
        if not OPT["fgo"]: a(GO)
        after = 0
    elif FSH_ == 1:
        if OPT["fpl"] == 2: lbpoll()
        a(GO); csetup()
        for i in range(CPE): ldC(6 + i, EREG[i])
        after = 4 * CPE
    elif LBI >= 0 or FSH_:
        assert CPE and not OPT["ccd"]
        SHD = a.l[sh0:]; del a.l[sh0:]
        ins = {}
        main_ = a.l
        for i in range(CPE):
            a.l = []; ldC(6 + i, EREG[i]); x = a.l
            n0 = len(x) - 4
            for j in range(4):
                ins.setdefault(min(len(SHD), OPT["c0"] + OPT["cd"] * (4 * i + j)), []).append((x[:n0] if j == 0 else []) + [x[n0 + j]])
        a.l = []; lbpoll(); pl_ = a.l
        a.l = main_
        after = 0 if FSH_ else -1
        for n_ in range(len(SHD) + 1):
            if n_ == min(len(SHD), sh1 + LBI) and not FSH_:
                a.l.extend(pl_); after = 0
            for x in ins.get(n_, []):
                a.l.extend(x)
                if after >= 0: after += 1
            if n_ < len(SHD): a.l.append(SHD[n_])
    elif OPT["lbp"] == 2: lbpoll()
    stamp(a, 4)
    a("s_mov_b32 s39, 0")
    if (LBI >= 0 or FSH_) and after: a(f"s_waitcnt vmcnt({after})\ns_branch C_chk1")
    if FSH_ == 3: a("s_mov_b32 s33, 0\ns_branch C_f0")
    a.label("C_chk")
    a("s_waitcnt vmcnt(0)")
    if (LBI >= 0 or FSH_) and after: a.label("C_chk1")
    def lbeval(ok):
        for j in range(4):
            b = PLS[j]
            a(f"""v_cmp_eq_u32 vcc, v{b+2}, v{GR+2}
            v_cmp_eq_u32 s[54:55], v{b+3}, v{GR+3}
            s_and_b64 s[54:55], s[54:55], vcc
            s_or_b64 s[{56+2*j}:{57+2*j}], s[54:55], s[{40+2*j}:{41+2*j}]""")
        a(f"""s_and_b64 s[56:57], s[56:57], s[58:59]
        s_and_b64 s[60:61], s[60:61], s[62:63]
        s_and_b64 s[56:57], s[56:57], s[60:61]
        s_cmp_eq_u64 s[56:57], -1
        s_cbranch_scc1 {ok}""")
    lbeval("C_ok")
    a(f"""s_add_u32 s39, s39, 1
    s_cmp_gt_u32 s39, {SPIN}
    s_cbranch_scc1 C_ok""")
    lbpoll()
    a("s_branch C_chk")
    if FSH_ == 3:
        a.label("C_f0")
        a("s_waitcnt vmcnt(0)")
        lbeval("C_ok0" if OPT["fgo"] else "C_ok")
        if OPT["fgo"]: a(GO)
        FN = OPT["fn"]
        for i in range(0, CPE, FN):
            lbpoll()
            for i_ in range(i, i + FN): ldC(6 + i_, EREG[i_])
            a(f"s_mov_b32 s33, {i + FN}\ns_waitcnt vmcnt({4 * FN})")
            lbeval("C_ok")
        lbpoll()
        a("s_branch C_chk")
    a.label("C_ok")
    if OPT["gate"] == 1: a(f"ds_write_b32 v{FA}, v3 offset:{L_F + 48 - L_N}")
    if FSH_ == 3 and OPT["fgo"]: a.label("C_ok0")
    stamp(a, 5)
    cmul(a, PLS[2], PLS[3], L512, PLS[2])
    cmul(a, PLS[1], PLS[2], L512, PLS[1])
    cmul(a, PLS[0], PLS[1], L512, PLS[0])
    cmul(a, 44, PLS[0], G128)
    a(f"""s_nop 0
    v_add_f32_dpp v44, v44, v44 row_ror:4 {DM}
    v_add_f32_dpp v45, v45, v45 row_ror:4 {DM}
    s_nop 0
    v_add_f32_dpp v44, v44, v44 row_ror:8 {DM}
    v_add_f32_dpp v45, v45, v45 row_ror:8 {DM}
    s_nop 0""")
    for i in range(4):
        a(f"v_mov_b32_dpp v{SH_+i}, v44 {qb(i)}\nv_mov_b32_dpp v{SH_+4+i}, v45 {qb(i)}")
    cm4(AC_, AC_ + 4, MM, SH_, SH_ + 4, AC_, AC_ + 4, s=(0, 1, 1, 1))
    pr, pi = AC_, AC_ + 4
    def hout(r):
        o = PK + 4 * r
        a(f"""v_permlane32_swap_b32 v{o}, v{o+2}
        v_permlane32_swap_b32 v{o+1}, v{o+3}
        s_mov_b32 s6, {4096*r}
        buffer_store_dwordx4 {V(o,4)}, v{HST}, {S(HS)}, s6 offen{FLV[0 if OPT['hw'] else OPT['hsf']]}""")
    for r in range(8):
        cm4(U2(r), Ui(r), L, pr, pi, U2(r), Ui(r), s=(0, 0, 0, 1))
        pr, pi = U2(r), Ui(r)
        if r: hout(r - 1)
        o = PK + 4 * r
        a(f"""v_cvt_pk_bf16_f32 v{o}, v{pr}, v{pr+1}
        v_cvt_pk_bf16_f32 v{o+2}, v{pi}, v{pi+1}
        v_cvt_pk_bf16_f32 v{o+1}, v{pr+2}, v{pr+3}
        v_cvt_pk_bf16_f32 v{o+3}, v{pi+2}, v{pi+3}""")
    a("s_nop 0")
    hout(7)
    if OPT["gate"]: a(GO)
    stamp(a, 6)
    CA, CB, HA, OA2, HFP, PLL = 4, 8, 48, 50, 51, 248
    NCB = OPT['ncb']
    NH = OPT['nh']
    CD = NCB // 2
    assert OPT['hd'] < NH
    ACC, HR, CF, DG = 16, 64, 64 + 8 * NH, 64
    NCC = OPT["ncc"]
    PREG = sorted([CF + 16 * NCB + 16 * i for i in range(NCC)], key=lambda r: r == XF)
    assert (not PREG or max(PREG) + 16 <= 240) and CF + 16 * NCB <= XF and (XF - CF) % 16 == 0
    vm = VM()
    vm.add("st")
    def st2():
        for r in range(8):
            a(f"s_mov_b32 s6, {4096*r}\nbuffer_store_dwordx4 {V(PK+4*r,4)}, v{HST}, {S(HS)}, s6 offen{FLV[OPT['ds2'] - 1]}"); vm.add("s2")
    if OPT["ds2"] and OPT["dsp"] == 0: st2()
    for i in range(OPT["ot"]):
        a(f"buffer_load_dword v{252+i}, v{PUB}, {S(HS)}, 0 offen offset:{64*i}{FLV[OPT['otf']]}"); vm.add("ot")
    assert PREG[:CPE] == EREG[:CPE] and CPE + OPT["cpl"] <= NCC
    NPRE = NCC - OPT["cpl"]
    if OPT["ccd"] == 1:
        for k in (SLOT[15] // 16384, SLOT[15] // 16384 + 1):
            ldC(k); vm.add("cd", 4)
    if FSH_ == 3:
        for i in range(CPE):
            a(f"s_cmp_gt_u32 s33, {i}\ns_cbranch_scc1 C_dn{i}")
            ldC(6 + i, EREG[i])
            a.label(f"C_dn{i}")
    for i in range(CPE, NPRE):
        if PREG[i] != XF:
            ldC(6 + i, PREG[i]); vm.add(f"C{i}", 4)
    CW = 52
    a(f"""v_lshlrev_b32 v1, 4, v2
    v_add_u32 v{CW}, s21, v1
    v_add_u32 v{CW+1}, 0xc000, v{CW}""")
    a(f"""v_lshrrev_b32 v1, 1, v13
    v_lshl_add_u32 v{CB}, v1, 13, v4
    v_xor_b32 v{CB+1}, 32, v{CB}
    v_xor_b32 v{CB+2}, 64, v{CB}
    v_xor_b32 v{CB+3}, 96, v{CB}
    s_lshl_b32 s6, s3, 6
    s_add_u32 s6, s6, s5
    s_lshl_b32 s6, s6, 13
    v_lshlrev_b32 v1, 4, v2
    v_add_u32 v{HA}, s6, v1
    v_add_u32 v{HA+1}, 4096, v{HA}
    s_lshl_b32 s6, s6, 1                ; (128 mt + 2 w) * 8192
    s_lshl_b32 s7, s4, 8
    s_add_u32 s6, s6, s7
    s_add_u32 s6, s6, 4096
    v_lshlrev_b32 v{OA2}, 18, v13
    v_lshl_add_u32 v{OA2}, v12, 4, v{OA2}
    v_add_u32 v{OA2}, s6, v{OA2}          ; out offset
    v_lshlrev_b32 v1, 1, v13
    v_sub_u32 v1, v12, v1           ; n - 2g = 8h + e
    v_cmp_eq_u32 s[40:41], 0, v1
    v_cmp_eq_u32 s[42:43], 1, v1
    v_cmp_eq_u32 s[44:45], 8, v1
    v_cmp_eq_u32 s[46:47], 9, v1
    v_and_b32 v56, 0xffff, v{DSK}
    v_and_b32 v57, 0xffff0000, v{DSK}
    v_and_b32 v58, 0xffff, v{DSK+1}
    v_and_b32 v59, 0xffff0000, v{DSK+1}
    s_lshl_b32 s7, s3, 13
    s_add_u32 s7, s7, {FL_H}
    v_lshrrev_b32 v1, 2, v2
    v_xor_b32 v3, s36, v1
    v_add_u32 v1, s36, v1
    v_and_b32 v1, {7 if OPT["hord"] else 15}, v1
    v_and_b32 v3, {8 if OPT["hord"] else 0}, v3
    v_or_b32 v1, v1, v3
    v_lshlrev_b32 v1, {OPT['hsh']}, v1
    v_add_u32 v{HFP}, s7, v1
    s_lshl_b32 s6, s4, {OPT['hsh']}
    s_add_u32 s6, s6, s7
    v_lshl_add_u32 v3, v12, 3, s6
    s_lshl_b32 s38, s36, 15
    s_and_b32 s30, s38, 0x40000
    s_xor_b32 s31, s30, 0x40000
    s_xor_b32 s35, s38, 0x40000
    s_lshl_b32 s6, s3, 19
    s_lshl_b32 s7, s5, 13
    s_add_u32 s6, s6, s7
    v_lshlrev_b32 v1, 7, v2
    v_add_u32 v60, s6, v1               ; touch offset
    s_mov_b32 s34, 1
    s_mov_b32 s37, 0""")
    for b in range(4):
        for h in range(2):
            for r in range(4):
                d = DG + 8 * b + 4 * h + r
                if (r & 1) == (b >> 1):
                    m = 40 + 4 * h + 2 * (r >> 1)
                    a(f"v_cndmask_b32 v{d}, 0, v{56+b}, s[{m}:{m+1}]")
                else:
                    a(f"v_mov_b32 v{d}, 0")
    for i in range(4): a(f"v_add_u32 v{CA+i}, 0xc000, v{CB+i}")
    for h in range(2):
        for t in range(2):
            for b in range(4):
                c = ACC + 16 * t + 4 * b
                a(f"v_mfma_f32_16x16x32_bf16 {V(c,4)}, {V(XF+8*t+4*h,4)}, {V(DG+8*b+4*h,4)}, {V(c,4) if h else 0}")
    PROG = OPT["prog"]
    assert not (PROG and OPT["xrot"])
    PR = 240
    if XF in PREG[:NPRE]:
        ldC(6 + NCC - 1, XF); vm.add(f"C{NCC-1}", 4)
    def poll(r): return f"buffer_load_dwordx2 {V(r,2)}, v{HFP}, {S(FL)}, 0 offen sc1"
    def peval(r):
        return f"""v_cmp_eq_u32 vcc, v{r}, v{GR+2}
        v_cmp_eq_u32 s[54:55], v{r+1}, v{GR+3}
        s_nop 0
        s_and_b64 s[54:55], s[54:55], vcc
        s_or_b32 s54, s54, 15
        {"s_or_b32 s48, s48, s54" if OPT["dyn"] else ""}
        s_ff0_i32_b64 s7, s[54:55]
        s_lshr_b32 s7, s7, 2
        s_max_u32 s37, s37, s7""".split("\n")
    nt_ = [0]
    def htouch():
        if not OPT["ht"]: return ""
        lbl = f"C2_t{nt_[0]}"; nt_[0] += 1
        o_ = Asm()
        o_.label(lbl)
        o_(f"""s_mov_b32 s34, 0
        buffer_load_dword v61, v60, {S(HS)}, s35 offen sc1
        {f"buffer_load_dword v61, v60, {S(HS)}, s35 offen offset:64 sc1" if OPT["ht"] == 1 else ""}
        s_branch {lbl}_r""")
        OOL.extend(o_.l)
        return f"\ns_and_b32 s7, s55, s34\ns_cbranch_scc1 {lbl}\n{lbl}_r:"
    DYN, DY = OPT["dyn"], 61
    assert DYN in (0, 2, 3) and (not DYN or (OPT["hord"] and PROG and not OPT["ht"] and FSH_ != 3 and NCC == 5))
    if DYN: a(f"s_mov_b32 s48, 0\ns_mov_b32 s49, {((1 << 4 * DYN) - 1) << 4}\ns_mov_b32 s33, s38")
    def dpick(j):
        lbl = f"C2_d{j}"
        o_ = Asm()
        o_.label(lbl)
        o_("s_mov_b32 s39, 0")
        o_.label(lbl + "_s")
        o_(f"""{poll(PLL)}
        s_add_u32 s39, s39, 1
        s_mov_b32 s7, s49
        s_waitcnt vmcnt(0)
        s_cmp_gt_u32 s39, {SPIN}
        s_cbranch_scc1 {lbl}_r""")
        o_("\n".join(peval(PLL)))
        o_(f"""s_and_b32 s7, s48, s49
        s_cbranch_scc0 {lbl}_s
        s_branch {lbl}_r""")
        OOL.extend(o_.l)
        return f"""s_and_b32 s7, s48, s49
        s_cbranch_scc0 {lbl}
        {lbl}_r:
        s_ff1_i32_b32 s7, s7
        s_lshl_b32 s6, 15, s7
        s_lshl_b32 s{50+j}, s7, 12
        s_lshl_b32 s7, s7, 13
        s_andn2_b32 s49, s49, s6
        s_add_u32 s38, s33, s7
        s_and_b32 s38, s38, 0x3ffff
        s_or_b32 s38, s38, s30"""
    def hchk(b):
        if b <= DYN: return dpick(b)
        lbl = f"C2_h{b}"
        o_ = Asm()
        o_.label(lbl)
        o_("s_mov_b32 s39, 0")
        o_.label(lbl + "_s")
        o_(f"""{poll(PLL)}
        s_add_u32 s39, s39, 1
        s_waitcnt vmcnt(0)
        s_cmp_gt_u32 s39, {SPIN}
        s_cbranch_scc1 {lbl}_r""")
        o_("\n".join(peval(PLL)))
        o_(f"""s_cmp_gt_u32 s37, {b}
        s_cbranch_scc0 {lbl}_s
        s_branch {lbl}_r""")
        OOL.extend(o_.l)
        return f"s_cmp_gt_u32 s37, {b}\ns_cbranch_scc0 {lbl}\n{lbl}_r:"
    if OPT["spr"] != 3: a(f"s_setprio {OPT['spr']}")
    PQ = OPT["pq"]
    if OPT["ds2"] and OPT["dsp"] == 1: st2()
    if PROG and not PQ:
        a(poll(PR)); vm.add("p0")
    if FSH_ == 3:
        for i in range(CPE): a(f"s_waitcnt vmcnt({vm.cnt('st') + 4 * (CPE - i)})\ns_cmp_eq_u32 s33, {i}\ns_cbranch_scc1 C_stw")
        a(f"s_waitcnt vmcnt({vm.cnt('st')})")
        a.label("C_stw")
        a(f"ds_write_b32 v{FA}, v{GR+2} offset:{L_F + 16 - L_N}")
    else: a(f"s_waitcnt vmcnt({vm.cnt('st')})\nds_write_b32 v{FA}, v{GR+2} offset:{L_F + 16 - L_N}")
    if OPT["ds2"] and OPT["dsp"] == 2: st2()
    wchk(16)
    a(f"""s_mov_b32 s39, 0
    s_cbranch_vccnz C_nofl
    {"buffer_wbl2 sc1" if OPT["hw"] else ""}
    {"s_waitcnt vmcnt(0)" if OPT["hw"] else ""}
    s_mov_b64 exec, {(1 << min(16, 1 << (OPT['hsh'] - 3))) - 1}
    buffer_store_dwordx2 {V(GR+2,2)}, v3, {S(FL)}, 0 offen sc1
    s_mov_b64 exec, -1""")
    if PROG:
        a("s_branch C_own")
        a.label("C_nofl")
        wchk(16)
        a(f"""s_add_u32 s39, s39, 1
        s_cmp_gt_u32 s39, {SPIN * 4}
        s_cbranch_scc1 C_own
        s_cbranch_vccnz C_nofl""")
        a.label("C_own")
    else:
        a.label("C_nofl")
    stamp(a, 7)
    stamp_dump(a, 0)
    if not PROG:
        for i in range(NPRE, NCC):
            ldC(6 + i, PREG[i]); vm.add(f"C{i}", 4)
        spin_flags(a, "C_hspin", PLL, GR + 2, HFP, FL)
    HD = OPT["hd"]
    SKB = OPT["skb"]
    KS, HALF, CF2 = 64 - 4 * SKB, 2 * SKB, 160
    assert not SKB or (CD == 1 and OPT["hord"] and OPT["za"] <= KS // 4 and SKB <= 4)
    def frag(n):
        if n < KS: return [(0, n), (1, n)]
        t, p_ = divmod(n - KS, HALF)
        return [(t, KS + 2 * p_), (t, KS + 2 * p_ + 1)]
    def ogrp(t, i, o):
        x = "\n".join(f"v_mov_b32 v{o+b}, v{ACC+16*t+4*b+i}" for b in range(4))
        y = f"s_mov_b32 s6, {(8*i+t)*8192}"
        if 4 * t + i >= OPT["nob"]: y += f"\nbuffer_store_dwordx4 {V(o,4)}, v{OA2}, {S(OS)}, s6 offen{FLV[OPT['osb']]}"
        return x, y
    def hld(k):
        if k >= KS:
            return [f"buffer_load_dwordx4 {V(HR + 8*(k%NH) + 4*i, 4)}, v{HA+t}, {S(HS)}, s{40 + ((kk - KS) >> 2)} offen offset:{1024*(kk&3)} sc1" for i, (t, kk) in enumerate(frag(k))]
        if k == KS - 1:
            L_ = [f"buffer_load_dwordx4 {V(HR + 8*(k%NH) + 4*t, 4)}, v{HA+t}, {S(HS)}, s38 offen offset:3072 sc1" for t in range(2)]
            for i in range(SKB): L_[1] += f"\ns_add_u32 s{40+i}, s38, {32768*(i+1)}\ns_and_b32 s{40+i}, s{40+i}, 0x3ffff\ns_or_b32 s{40+i}, s{40+i}, s31"
            return L_
        L_ = [f"buffer_load_dwordx4 {V(HR + 8*(k%NH) + 4*t, 4)}, v{HA+t}, {S(HS)}, s38 offen offset:{1024*(k&3)} sc1" for t in range(2)]
        if k & 3 == 3 and k < 4 * DYN: pass
        elif k & 3 == 3 and DYN and k >> 2 == DYN: L_[1] += f"\ns_add_u32 s38, s33, {32768 * (DYN + 1)}\ns_and_b32 s38, s38, 0x3ffff\ns_or_b32 s38, s38, s30"
        elif k & 3 == 3 and OPT["hord"]: L_[1] += f"\ns_add_u32 s38, s38, 32768\ns_and_b32 s38, s38, 0x3ffff\ns_or_b32 s38, s38, s{30 + ((k + 1) >> 5 & 1)}"
        elif k & 3 == 3: L_[1] += "\ns_add_u32 s38, s38, 32768\ns_and_b32 s38, s38, 0x7ffff"
        return L_
    def crd(k):
        if k >= KS:
            L_ = []
            for i, (t, kk) in enumerate(frag(k)):
                sl = (kk >> 2) % 6
                L_ += [f"ds_read_b128 {V(CF2 + 32*(k&1) + 16*i + 4*b, 4)}, v{(CB if sl < 3 else CA)+(kk&3)} offset:{16384*(sl%3) + 2048*b}" for b in range(4)]
            return L_
        if 1 <= k >> 2 <= DYN:
            L_ = [f"ds_read_b128 {V(CF + 16*(k%NCB) + 4*b, 4)}, v{DY} offset:{2048*b}" for b in range(4)]
            L_[0] = f"v_add_u32 v{DY}, s{50 + (k >> 2)}, v{CB+(k&3)}\n" + L_[0]
            return L_
        sl = (k >> 2) % 6
        return [f"ds_read_b128 {V(CF + 16*(k%NCB) + 4*b, 4)}, v{(CB if sl < 3 else CA)+(k&3)} offset:{16384*(sl%3) + 2048*b}" for b in range(4)]
    OP, OQ = L_F + 80 - L_N, L_F + 32 - L_N
    def cnt_chk(lbl, r, off, need):
        test = f"""v_min3_u32 v{r}, v{r}, v{r+1}, v{r+2}
        v_min_u32 v{r}, v{r}, v{r+3}
        v_cmp_gt_u32 vcc, {need}, v{r}"""
        o_ = Asm()
        o_.label(lbl)
        o_("s_mov_b32 s39, 0")
        o_.label(lbl + "_s")
        o_(f"""ds_read_b128 {V(r,4)}, v{NA} offset:{off}
        s_add_u32 s39, s39, 1
        s_waitcnt lgkmcnt(0)
        {test}
        s_cmp_gt_u32 s39, {SPIN * 16}
        s_cbranch_scc1 {lbl}_r
        s_cbranch_vccnz {lbl}_s
        s_branch {lbl}_r""")
        OOL.extend(o_.l)
        return test.split("\n") + [f"s_cbranch_vccnz {lbl}\n{lbl}_r:"]
    a(f"ds_read_b128 v[12:15], v{NA} offset:{OQ}")
    def avail(b): return "s_and_b32 s7, s48, s49" if b <= DYN else f"s_cmp_gt_u32 s37, {b}"
    def pcond(b, tag, r):
        return f"{avail(b)}\ns_cbranch_scc1 C_pq{b}\ns_waitcnt vmcnt({vm.cnt(tag)})\n" + "\n".join(peval(r)) + f"\nC_pq{b}:"
    for k in range(HD if PQ else 0):
        assert HD == 7 and PROG
        if k == 0:
            a(poll(PR)); vm.add("pA")
        if k == 4:
            a(poll(PR + 2)); vm.add("pB")
        if k == OPT["xfp"]:
            for i in range(NPRE, NCC):
                ldC(6 + i, PREG[i]); vm.add(f"C{i}", 4)
        if k == 4:
            if OPT["xs"] == 2: stamp(a, 8)
            a(f"s_waitcnt vmcnt({vm.cnt('pA')})")
            for x in peval(PR): a(x)
            if OPT["xs"] == 3: stamp(a, 8)
            a(pcond(1, "pB", PR + 2))
            a(hchk(1))
            if OPT["xs"] == 4: stamp(a, 8)
        if k == 5:
            a(poll(PLL)); vm.add("pC")
        for x in hld(k):
            a(x); vm.add(f"h{k}")
    if PQ and OPT["xfp"] == 7:
        for i in range(NPRE, NCC):
            ldC(6 + i, PREG[i]); vm.add(f"C{i}", 4)
    for k in range(0 if PQ else HD):
        if k == 4 and OPT["xs"] == 1:
            a("s_waitcnt vmcnt(0)"); stamp(a, 8)
        if k == 4 and OPT["xs"] == 2: stamp(a, 8)
        if k == 4 and PROG:
            for i in range(NPRE, NCC):
                if i - NPRE == OPT["pp"]:
                    a(poll(PR + 2)); vm.add("p1")
                ldC(6 + i, PREG[i]); vm.add(f"C{i}", 4)
        if PROG and k == 4:
            a(f"s_waitcnt vmcnt({vm.cnt('p0')})")
            for x in peval(PR): a(x)
            if "p1" in vm.ops:
                a(f"s_cmp_gt_u32 s37, {OPT['ppn']}\ns_cbranch_scc1 C_p1\ns_waitcnt vmcnt({vm.cnt('p1')})")
                for x in peval(PR + 2): a(x)
                a.label("C_p1")
        if k == 4 and OPT["xs"] == 3: stamp(a, 8)
        if PROG and k and k % 4 == 0: a(hchk(k // 4))
        if k == 4 and OPT["xs"] == 4: stamp(a, 8)
        for x in hld(k):
            a(x); vm.add(f"h{k}")
    if PROG and OPT["hts"] == 0: a(htouch())
    stamp(a, 9 if OPT["xs"] else 8)
    NPL = OPT["npl"] if PROG else 0
    a("s_waitcnt lgkmcnt(0)")
    for x in cnt_chk("C_crdy", 12, OQ, 6): a(x)
    a(f"s_setprio {OPT['prio2']}")
    for k in range(CD):
        for x in crd(k): a(x)
    K0 = 6 + NCC
    lk = VM()
    for k in range(CD): lk.add(f"c{k}", 4)
    pend = {}
    for k in range(64):
        j, ph = divmod(k, 4)
        chkQ = K0 <= j + 1 < 16 and k <= KS
        chkP = (NCC and 2 <= j <= NCC + 3) or (OPT["ccd"] and j == 2)
        tags = [f"c{k}"] + (["w"] if (ph == 0 and (chkP or chkQ)) or (DYN == 3 and k == 27) else [])
        a(f"s_waitcnt vmcnt({vm.cnt(f'h{k}')}) lgkmcnt({min(15, lk.cnt(*tags))})")
        if TRACE and k % 2 == 1: a(f"s_waitcnt lgkmcnt(0)\nv_writelane_b32 v251, s60, {k >> 1}")
        if TRACE and k % 2 == 0: a("s_memrealtime s[60:61]")
        M = []
        for i, (t, kk) in enumerate(frag(k) if k >= KS else []):
            for b in range(4):
                c = ACC + 16 * t + 4 * b
                M.append(f"v_mfma_f32_16x16x32_bf16 {V(c,4)}, {V(HR + 8*(k%NH) + 4*i, 4)}, {V(CF2 + 32*(k&1) + 16*i + 4*b, 4)}, {V(c,4)}")
        for t in range(2 if k < KS else 0):
            for b in (range(4) if t == 0 else reversed(range(4))):
                c = ACC + 16 * t + 4 * b
                M.append(f"v_mfma_f32_16x16x32_bf16 {V(c,4)}, {V(HR + 8*(k%NH) + 4*t, 4)}, {V(CF + 16*(k%NCB) + 4*b, 4)}, {V(c,4)}")
        F_ = []
        if DYN == 3 and k == 27: a("\n".join(cnt_chk("C2_pv", 56, OP, 6)))
        if k + CD < 64: F_ += [(x, f"c{k+CD}") for x in crd(k + CD)]
        if DYN == 3 and k == 26: F_.append((f"ds_read_b128 v[56:59], v{NA} offset:{OP}", "w"))
        if ph == 3 and j < 15 and k < KS:
            F_.append((f"v_mov_b32 v1, {j+1}\nds_write_b32 v{FA}, v1 offset:{OP}", "p"))
            if (NCC and 2 <= j + 1 <= NCC + 3) or (OPT["ccd"] and j == 1): F_.append((f"ds_read_b128 v[56:59], v{NA} offset:{OP}", "w"))
            if K0 <= j + 2 < 16: F_.append((f"ds_read_b128 v[12:15], v{NA} offset:{OQ}", "w"))
        if ph == 0 and j < NPL:
            r = PR + 2 * ((j + 2) % 3)
            F_.append((poll(r), "@p"))
            pend[k + HD + 1] = r
        if k in pend: F_.append(("\n".join(peval(pend[k])) + (htouch() if k >= OPT["hts"] else ""), None))
        if k + HD < 64:
            H_ = hld(k + HD)
            t0_, k0_ = frag(k + HD)[0]
            if PROG and t0_ == 0 and k0_ % 4 == 0: H_[0] = hchk(k0_ // 4) + "\n" + H_[0]
            if PQ and k == 1: H_[0] = pcond(2, "pB", PR + 2) + "\n" + H_[0]
            if PQ and k == 5: H_[0] = "\n".join(peval(PLL)) + "\n" + H_[0]
            F_ += [(x, f"@h{k+HD}") for x in H_]
        if ph == 0 and chkP: F_ += [(x, None) for x in cnt_chk(f"C2_p{j}", 56, OP, j - 1)]
        if ph == 0 and chkQ: F_ += [(x, None) for x in cnt_chk(f"C2_q{j}", 12, OQ, 16 if k == KS else j + 2)]
        if SKB:
            for i in range(4):
                if k == min(63, KS + HALF + 1 + i // OPT["sks"]):
                    x, y = ogrp(0, i, 224 + 4 * i)
                    F_ += [(x, None), (y, "@st")]
        for b in range(6, K0):
            if j != (max(b - 4, DYN + 2) if 7 <= b <= 6 + DYN else b - 4): continue
            sl = b % 6
            F_.append((f"ds_write_b128 v{CW + (sl >= 3)}, {V(PREG[b-6]+4*ph,4)} offset:{16384 * (sl % 3) + 8192 * (ph >> 1) + 1024 * (ph & 1)}", "x"))
            if ph == 3:
                i0 = [i for i, f in enumerate(F_) if f[1] == "p"][0]
                F_.insert(i0, F_.pop())
        for i, m in enumerate(M):
            a(m)
            per = 2 if i < (4 if k + 1 >= KS else 2) else max(1, -(-len(F_) // (8 - i)))
            for _ in range(per):
                if F_:
                    x, t = F_.pop(0)
                    a(x)
                    if t and t[0] == "@": vm.add(t[1:])
                    elif t: lk.add(t)
        assert not F_
        if k == 0 and not OPT["xs"]: stamp(a, 9)
    a("s_nop 7\ns_nop 2" if SKB else "s_nop 5")
    stamp(a, 10)
    for t in range(1 if SKB else 0, 2):
        for i in range(4): a("\n".join(ogrp(t, i, 64 + 16 * t + 4 * i)))
    stamp(a, 11)

def main():
    a = Asm()
    name = NAME + "_kernel" if OPT["single"] else "f_kernel"
    kernel_head(a, name)
    entry(a, "K_done", "K_other")
    b, c = Asm(), Asm()
    loader(b); compute(c)
    if OPT["lay"]: b, c = c, b
    a.l += b.l
    if STAMP: a("s_branch K_fin")
    else: a("s_endpgm")
    a.label("K_other")
    a.l += c.l
    a.label("K_fin")
    stamp_out(a)
    a.label("K_done")
    a("s_endpgm")
    a.l += OOL
    a.label("K_end")
    vg = 252
    hdr = open("/code/" + NAME + ".s.ref").read().split("\n")
    out = []
    for ln in hdr:
        if ln.startswith("; @launch") or ln.startswith(".amdgcn"):
            break
        if ln.startswith("; Override") or ln.startswith("; grid="):
            continue
        out.append(ln)
    out.append(f"; @launch {'' if OPT['single'] else 'kernel=' + name + ' '}grid=(256,1,1) block=(512,1,1) lds=163840")
    out.append('.amdgcn_target "amdgcn-amd-amdhsa--gfx950"')
    out.append(".text")
    out += a.l
    out.append('.section .rodata,"a"')
    out.append(kernel_desc(name, vg))
    open(OPT["out"], "w").write("\n".join(out) + "\n")
main()
```
